```python
import torch

def _softmax(x, axis=-1):
    return torch.softmax(x, dim=axis)
def _gelu(x):
    return torch.nn.functional.gelu(x, approximate="tanh")
def _silu(x):
    return torch.nn.functional.silu(x)
def _sigmoid(x):
    return torch.sigmoid(x)
def _layernorm(x, axis=-1, eps=1e-5):
    m = x.mean(dim=axis, keepdim=True)
    v = x.var(dim=axis, keepdim=True, unbiased=False)
    return (x - m) / torch.sqrt(v + eps)
def _scatter_add(tgt, idx, src, axis=0):
    return tgt.clone().index_add_(axis, idx, src)
def _segment_sum(src, seg, n):
    out = torch.zeros((n,) + src.shape[1:], dtype=src.dtype)
    return out.index_add_(0, seg, src)
def _pad(x, pw):
    flat = tuple(v for pair in reversed(pw) for v in pair)
    return torch.nn.functional.pad(x, flat)

kernel_name = 'sequential_preLN__softmax_full_mha__dense_activation_gelu__prompt'

def setup_inputs():

    _w = (lambda a: (lambda t: t.to(torch.bfloat16) if t.is_floating_point() else t)(torch.as_tensor(a)))
    def _A_setup():
        B, S, D = 1, 2048, 512
        return {
            "x": _w((lambda *s: torch.randn(*s, dtype=torch.bfloat16) * 0.05)(B, S, D)),
            "wqkv": _w((lambda *s: torch.randn(*s, dtype=torch.bfloat16) * 0.05)(D, 3 * D)),
            "wo": _w((lambda *s: torch.randn(*s, dtype=torch.bfloat16) * 0.05)(D, D)),
        }
    _A_in = _A_setup()

    def _B_setup():
        B, S, D, F = 1, 2048, 512, 1376
        return {
            "x": _w((lambda *s: torch.randn(*s, dtype=torch.bfloat16) * 0.05)(B, S, D)),
            "w1": _w((lambda *s: torch.randn(*s, dtype=torch.bfloat16) * 0.8)(D, F) * (D ** -0.5)),
            "b1": _w((lambda *s: torch.randn(*s, dtype=torch.bfloat16) * 0.2)(F) * 0.01),
            "w2": _w((lambda *s: torch.randn(*s, dtype=torch.bfloat16) * 0.2)(F, D) * (F ** -0.5)),
            "b2": _w((lambda *s: torch.randn(*s, dtype=torch.bfloat16) * 0.2)(D) * 0.01),
        }
    _B_in = _B_setup()

    return {
        "A_x": _A_in["x"],
        "A_wqkv": _A_in["wqkv"],
        "A_wo": _A_in["wo"],
        "B_x": _B_in["x"],
        "B_w1": _B_in["w1"],
        "B_b1": _B_in["b1"],
        "B_w2": _B_in["w2"],
        "B_b2": _B_in["b2"],
    }

def reference(A_x, A_wqkv, A_wo, B_x, B_w1, B_b1, B_w2, B_b2):
    def _A_ref(x, wqkv, wo):
        B, S, D = x.shape
        H = 32; Dh = D // H
        qkv = (lambda x, *d: x.permute(*d))((x @ wqkv).reshape(B, S, 3, H, Dh), 2, 0, 3, 1, 4)
        q, k, v = qkv[0], qkv[1], qkv[2]
        scale = Dh ** -0.5
        scores = torch.einsum("bhqd,bhkd->bhqk", q, k) * scale
        p = _softmax(scores, axis=-1)
        o = torch.einsum("bhqk,bhkd->bhqd", p, v)
        return (lambda x, *d: x.permute(*d))(o, 0, 2, 1, 3).reshape(B, S, D) @ wo

    def _B_ref(x, w1, b1, w2, b2):
        h = torch.einsum("bsd,df->bsf", x, w1) + b1
        h = _gelu(h)
        return torch.einsum("bsf,fd->bsd", h, w2) + b2

    x = A_x
    h = x + _A_ref(_layernorm(x, axis=-1), A_wqkv, A_wo)
    h2 = h + _B_ref(_layernorm(h, axis=-1), B_w1, B_b1, B_w2, B_b2)
    return h2
```

```python
import sys, math, struct

NAME = "sequential_preLN__softmax_full_mha__dense_activation_gelu__prompt"
STAMPS = "--stamps" in sys.argv
FORCE_FB = "--force-fallback" in sys.argv

def f32(x):
    return "0x%08x" % struct.unpack("<I", struct.pack("<f", x))[0]

class Asm:
    def __init__(self):
        self.L = []
        self.n = 0
    def __call__(self, s):
        for line in s.split("\n"):
            line = line.strip()
            if line:
                self.L.append("    " + line)
    def label(self, l):
        self.L.append(l + ":")
    def c(self, s):
        self.L.append("    ; " + s)
    def raw(self, s):
        self.L.append(s)
    def uniq(self, p):
        self.n += 1
        return f"{p}_{self.n}"
    def text(self):
        return "\n".join(self.L) + "\n"

def vr(b, n):
    return f"v{b}" if n == 1 else f"v[{b}:{b+n-1}]"
def sr(b, n):
    return f"s{b}" if n == 1 else f"s[{b}:{b+n-1}]"

S_WG, S_W = 2, 3
R_X, R_WQKV, R_WO, R_W1, R_W2, R_WS, R_OUT, R_B1, R_B2 = 8, 12, 16, 20, 24, 28, 32, 36, 40
KA = 44
S_HG, S_TB, S_TB2, S_J, S_N = 66, 67, 68, 69, 70
S_F0 = 71
T0, T1, T2, T3, T4, T5, T6, T7 = 72, 73, 74, 75, 76, 77, 78, 79
S_LOOP, S_SLOT, S_XOFF = 80, 81, 82
S_MASKV = 84
S_C0, S_C1, S_C2 = 86, 87, 88
S_TS = 90
S_NT = 92
S_SPIN = 93
S_SAVE = 94

WS_NONCE = 0
WS_FKV = 0x1000
WS_FO = 0x2000
WS_FH = 0x4000
WS_FG = 0x6000
WS_STAMP = 0x10000
WS_KV = 0x100000
WS_OF = 0x500000
WS_H = 0x700000
WS_GF = 0x900000
WS_SIZE = 0x1000000

L_XN = 0
L_RING = 65536
LDS_BYTES = 163840

V_LANE = 1
V_HRES = 252

a = Asm()
stamp_idx = [0]
def stamp(name):
    i = stamp_idx[0]
    stamp_idx[0] += 1
    if not STAMPS:
        return
    a.c(f"stamp {i} {name}")
    a(f"s_memtime {sr(S_TS,2)}")
    a(f"s_waitcnt lgkmcnt(0)")
    a(f"v_writelane_b32 v250, s{S_TS}, {i}")

def stamp_flush():
    if not STAMPS:
        return
    l = a.uniq("L_st")
    a(f"s_and_b32 s{T7}, s{S_W}, 3")
    a(f"s_cmp_lg_u32 s{T7}, 0")
    a(f"s_cbranch_scc1 {l}")
    a(f"s_lshl_b32 s{T7}, s{S_WG}, 8")
    a(f"s_lshl_b32 s{T6}, s{S_W}, 5")
    a(f"s_add_u32 s{T7}, s{T7}, s{T6}")
    a(f"s_add_u32 s{T7}, s{T7}, {WS_STAMP}")
    a(f"v_lshlrev_b32 v251, 2, v{V_LANE}")
    a(f"s_mov_b64 exec, 0xffffffff")
    a(f"buffer_store_dword v250, v251, {sr(R_WS,4)}, s{T7} offen")
    a(f"s_mov_b64 exec, -1")
    a.label(l)

def srd(r, ptr, size):
    a(f"s_mov_b32 s{r}, s{ptr}")
    a(f"s_mov_b32 s{r+1}, s{ptr+1}")
    a(f"s_mov_b32 s{r+2}, {size}")
    a(f"s_mov_b32 s{r+3}, 0x00020000")

def publish_and_wait(own_off_s, poll_off_s, nflags):
    l_skip, l_poll, l_done = a.uniq("L_skip"), a.uniq("L_poll"), a.uniq("L_done")
    a("s_waitcnt vmcnt(0) lgkmcnt(0)")
    a("s_barrier")
    a(f"s_cmp_lg_u32 s{S_W}, 0")
    a(f"s_cbranch_scc1 {l_skip}")
    a(f"v_mov_b32 v248, s{S_N}")
    a(f"v_lshlrev_b32 v249, 2, v{V_LANE}")
    a(f"s_mov_b64 exec, 1")
    a(f"buffer_store_dword v248, v249, {sr(R_WS,4)}, s{own_off_s} offen sc1")
    m = (1 << nflags) - 1
    a(f"s_mov_b32 exec_lo, {m:#x}")
    a(f"s_mov_b32 s{S_SPIN}, 0")
    a.label(l_poll)
    a(f"buffer_load_dword v247, v249, {sr(R_WS,4)}, s{poll_off_s} offen sc1")
    a(f"s_add_u32 s{S_SPIN}, s{S_SPIN}, 1")
    a("s_waitcnt vmcnt(0)")
    a(f"v_cmp_eq_u32 vcc, v247, v248")
    a(f"s_cmp_gt_u32 s{S_SPIN}, 200000")
    a(f"s_cbranch_scc1 {l_done}")
    a(f"s_cmp_eq_u64 vcc, exec")
    a(f"s_cbranch_scc0 {l_poll}")
    a.label(l_done)
    a("s_mov_b64 exec, -1")
    a.label(l_skip)
    a("s_barrier")

LN_X, LN_D, LN_T = 16, 48, 112
V_ROWOFF = 2
V_XNW = 3

def ln_addr():
    a(f"v_lshrrev_b32 v4, 3, v0")
    a(f"v_and_b32 v5, 7, v0")
    a(f"v_lshlrev_b32 v{V_ROWOFF}, 10, v4")
    a(f"v_lshl_add_u32 v{V_ROWOFF}, v5, 4, v{V_ROWOFF}")
    a(f"v_and_b32 v6, 31, v4")
    a(f"v_xor_b32 v6, v6, v5")
    a(f"v_lshlrev_b32 v6, 4, v6")
    a(f"v_lshl_add_u32 v6, v5, 9, v6")
    a(f"v_lshrrev_b32 v4, 5, v4")
    a(f"v_lshl_add_u32 v{V_XNW}, v4, 15, v6")

def ln_loads(rsrc, soff, flags=""):
    for i in range(8):
        a(f"buffer_load_dwordx4 {vr(LN_X+4*i,4)}, v{V_ROWOFF}, {sr(rsrc,4)}, s{soff} offen offset:{128*i} {flags}")

def dpp_sum8(v):
    a("s_nop 1")
    a(f"v_add_f32_dpp v{v}, v{v}, v{v} quad_perm:[1,0,3,2] row_mask:0xf bank_mask:0xf")
    a("s_nop 1")
    a(f"v_add_f32_dpp v{v}, v{v}, v{v} quad_perm:[2,3,0,1] row_mask:0xf bank_mask:0xf")
    a("s_nop 1")
    a(f"v_add_f32_dpp v{v}, v{v}, v{v} row_half_mirror row_mask:0xf bank_mask:0xf")

def ln_compute(vm_after):
    t = LN_T
    a(f"v_mov_b32 v{t+4}, 0x3f803f80")
    a(f"v_mov_b32 v{t+5}, 0x00003f80")
    a(f"v_mov_b32 v{t+6}, 0x3f800000")
    a(f"v_mov_b32 v{t}, 0")
    a(f"v_mov_b32 v{t+1}, 0")
    for i in range(8):
        a(f"s_waitcnt vmcnt({vm_after + 7 - i})")
        for j in range(4):
            a(f"v_dot2_f32_bf16 v{t+(j&1)}, v{LN_X+4*i+j}, v{t+4}, v{t+(j&1)}")
    a("s_nop 2")
    a(f"v_add_f32 v{t}, v{t}, v{t+1}")
    dpp_sum8(t)
    a(f"v_mul_f32 v{t}, {f32(-1.0/512)}, v{t}")
    a(f"v_mov_b32 v{t+2}, 0")
    a(f"v_mov_b32 v{t+3}, 0")
    for r in range(32):
        a(f"v_dot2_f32_bf16 v{LN_D+2*r}, v{LN_X+r}, v{t+5}, v{t}")
        a(f"v_dot2_f32_bf16 v{LN_D+2*r+1}, v{LN_X+r}, v{t+6}, v{t}")
        if r >= 2:
            q = r - 2
            a(f"v_pk_fma_f32 {vr(t+2,2)}, {vr(LN_D+2*q,2)}, {vr(LN_D+2*q,2)}, {vr(t+2,2)}")
    a("s_nop 2")
    for q in (30, 31):
        a(f"v_pk_fma_f32 {vr(t+2,2)}, {vr(LN_D+2*q,2)}, {vr(LN_D+2*q,2)}, {vr(t+2,2)}")
    a(f"v_add_f32 v{t+2}, v{t+2}, v{t+3}")
    dpp_sum8(t+2)
    a(f"v_mov_b32 v{t+3}, {f32(1e-5)}")
    a(f"v_fmac_f32 v{t+3}, {f32(1.0/512)}, v{t+2}")
    a(f"v_rsq_f32 v{t+2}, v{t+3}")
    a("s_nop 0")
    a(f"v_mov_b32 v{t+3}, v{t+2}")
    for i in range(8):
        for j in range(4):
            r = 4*i + j
            a(f"v_pk_mul_f32 {vr(LN_D+2*r,2)}, {vr(LN_D+2*r,2)}, {vr(t+2,2)}")
        for j in range(4):
            r = 4*i + j
            a(f"v_cvt_pk_bf16_f32 v{LN_X+r}, v{LN_D+2*r}, v{LN_D+2*r+1}")
        a(f"ds_write_b128 v{V_XNW}, {vr(LN_X+4*i,4)} offset:{L_XN + 4096*i}")

G_ACC = 128
G_XF = 176
G_WF = 184
G_XA = 208
G_WA = 216
V_DMA = 218

def ring_addr(row_bytes, col_s, seg_bytes):
    a(f"v_lshrrev_b32 v4, 3, v{V_LANE}")
    a(f"v_and_b32 v5, 7, v{V_LANE}")
    a(f"v_lshlrev_b32 v6, 1, v4")
    a(f"v_and_b32 v6, 4, v6")
    a(f"v_xor_b32 v5, v5, v6")
    a(f"v_mul_u32_u24 v4, {row_bytes}, v4")
    a(f"v_lshl_add_u32 v4, v5, 4, v4")
    a(f"v_add_u32 v{V_DMA}, s{col_s}, v4")
    a(f"v_add_u32 v{V_DMA+1}, {seg_bytes}, v{V_DMA}")
    a(f"v_add_u32 v{V_DMA+2}, {2*seg_bytes}, v{V_DMA}")

def ring_issue(rsrc, row_bytes, chunk):
    a(f"s_add_u32 s{T2}, s{T0}, {chunk*32*row_bytes}")
    for seg in range(3):
        a(f"s_add_u32 m0, s{T1}, {(chunk % 8)*12288 + seg*1024}")
        a("s_nop 0")
        a(f"buffer_load_dwordx4 v{V_DMA+seg}, {sr(rsrc,4)}, s{T2} offen lds")

def ring_setup(row_bytes):
    a(f"s_sub_u32 s{T1}, s{S_W}, 4")
    a(f"s_mul_i32 s{T0}, s{T1}, {8*row_bytes}")
    a(f"s_mul_i32 s{T1}, s{T1}, 3072")
    a(f"s_add_u32 s{T1}, s{T1}, {L_RING}")

def ring_loader(rsrc, row_bytes):
    for n in range(16):
        issued = 8 if n <= 2 else min(16, n + 6)
        a(f"s_waitcnt vmcnt({3*(issued - n - 1)})" + (" lgkmcnt(0)" if n == 0 else ""))
        a("s_barrier")
        if n >= 2 and n + 6 <= 15:
            ring_issue(rsrc, row_bytes, n + 6)

def tr_lane_addr(dst, hp_s, piece_bytes, perm):
    a(f"v_bfe_u32 v4, v{V_LANE}, 2, 2")
    a(f"v_lshrrev_b32 v5, 1, v4")
    a(f"v_xor_b32 v5, s{hp_s}, v5")
    a(f"v_lshlrev_b32 v5, 6, v5")
    a(f"v_lshl_add_u32 v5, v4, 7, v5")
    a(f"v_bfe_u32 v4, v{V_LANE}, 4, 1")
    a(f"v_lshl_add_u32 v5, v4, 5, v5")
    if perm:
        a(f"v_and_b32 v4, 1, v{V_LANE}")
        a(f"v_lshl_add_u32 v5, v4, 4, v5")
        a(f"v_bfe_u32 v4, v{V_LANE}, 1, 1")
        a(f"v_lshl_add_u32 v5, v4, 3, v5")
    else:
        a(f"v_and_b32 v4, 3, v{V_LANE}")
        a(f"v_lshl_add_u32 v5, v4, 3, v5")
    a(f"v_lshrrev_b32 v4, 5, v{V_LANE}")
    a(f"v_mul_u32_u24 v4, {piece_bytes}, v4")
    a(f"v_add_u32 v{dst}, v4, v5")

def gemm192_addr():
    a(f"s_lshr_b32 s{T0}, s{S_W}, 1")
    tr_lane_addr(G_WA, T0, 3072, True)
    a(f"v_add_u32 v{G_WA}, {L_RING}, v{G_WA}")
    a(f"s_and_b32 s{T0}, s{S_W}, 1")
    a(f"s_lshl_b32 s{T0}, s{T0}, 15")
    a(f"v_and_b32 v4, 31, v{V_LANE}")
    a(f"v_lshrrev_b32 v5, 5, v{V_LANE}")
    for b in range(4):
        a(f"v_add_u32 v6, {2*b}, v5")
        a(f"v_xor_b32 v7, v4, v6")
        a(f"v_lshlrev_b32 v7, 4, v7")
        a(f"v_lshl_add_u32 v7, v6, 9, v7")
        a(f"v_add_u32 v{G_XA+b}, s{T0}, v7")

def gemm192_compute(swap_last):
    def wa(t):
        ch = t >> 1
        off = (ch % 8)*12288 + (t & 1)*6144
        return (G_WA + 1, off - 49152) if off >= 49152 else (G_WA, off)
    def rd_w(t, seg):
        if t >= 32: return
        r, off = wa(t)
        d = G_WF + 12*(t & 1) + 4*seg
        a(f"ds_read_b64_tr_b16 {vr(d,2)}, v{r} offset:{off + seg*1024}")
        a(f"ds_read_b64_tr_b16 {vr(d+2,2)}, v{r} offset:{off + seg*1024 + 512}")
    def rd_x(t):
        if t >= 32: return
        a(f"ds_read_b128 {vr(G_XF+4*(t&1),4)}, v{G_XA+(t&3)} offset:{L_XN + (t>>2)*4096}")
    a(f"v_add_u32 v{G_WA+1}, 49152, v{G_WA}")
    a("s_waitcnt lgkmcnt(0)")
    a("s_barrier")
    for t in (0, 1):
        rd_w(t, 0); rd_w(t, 1); rd_x(t); rd_w(t, 2)
    for t in range(32):
        if t % 2 == 0 and t + 2 < 32:
            a("s_barrier")
        a(f"s_waitcnt lgkmcnt({7 if t < 31 else 0})")
        x = vr(G_XF+4*(t&1), 4)
        for seg in range(3):
            w = vr(G_WF + 12*(t&1) + 4*seg, 4)
            acc = vr(G_ACC + 16*seg, 16)
            if seg == 2 and swap_last:
                a(f"v_mfma_f32_32x32x16_bf16 {acc}, {x}, {w}, {acc}")
            else:
                a(f"v_mfma_f32_32x32x16_bf16 {acc}, {w}, {x}, {acc}")
            if seg == 2:
                rd_x(t + 2)
            rd_w(t + 2, seg)

def tile_reduce(acc, dst, lds_base):
    a(f"s_and_b32 s{T0}, s{S_W}, 1")
    a(f"s_lshl_b32 s{T0}, s{T0}, 13")
    a(f"s_lshr_b32 s{T1}, s{S_W}, 2")
    a(f"s_lshl_b32 s{T1}, s{T1}, 14")
    a(f"s_add_u32 s{T0}, s{T0}, s{T1}")
    a(f"s_add_u32 s{T0}, s{T0}, {lds_base}")
    a(f"s_and_b32 s{T1}, s{S_W}, 2")
    a(f"s_lshl_b32 s{T1}, s{T1}, 1")
    a(f"v_and_b32 v4, 31, v{V_LANE}")
    a(f"v_lshlrev_b32 v4, 8, v4")
    a(f"v_lshrrev_b32 v5, 5, v{V_LANE}")
    a(f"v_xor_b32 v5, v5, v{V_LANE}")
    a(f"v_and_b32 v5, 1, v5")
    a(f"v_lshl_add_u32 v4, v5, 7, v4")
    a(f"v_add_u32 v4, s{T0}, v4")
    a(f"v_and_b32 v5, 7, v{V_LANE}")
    a(f"v_xor_b32 v5, s{T1}, v5")
    for i in range(4):
        a(f"v_xor_b32 v6, {i}, v5")
        a(f"v_lshl_add_u32 v{8+i}, v6, 4, v4")
    a(f"v_lshrrev_b32 v4, 3, v0")
    a(f"v_xor_b32 v5, v4, v0")
    a(f"v_and_b32 v5, 7, v5")
    a(f"v_lshlrev_b32 v5, 4, v5")
    a(f"v_lshl_add_u32 v5, v4, 8, v5")
    a(f"v_and_b32 v4, 1, v4")
    a(f"v_lshl_add_u32 v12, v4, 7, v5")
    a(f"v_add_u32 v12, {lds_base}, v12")
    a(f"v_xor_b32 v13, 128, v12")
    a("s_nop 7")
    a("s_nop 3")
    for i in range(4):
        a(f"ds_write_b128 v{8+i}, {vr(acc+4*i,4)}")
    a("s_waitcnt lgkmcnt(0)")
    a("s_barrier")
    a(f"ds_read_b128 {vr(dst,4)}, v12")
    a(f"ds_read_b128 {vr(dst+4,4)}, v13")
    a(f"ds_read_b128 {vr(dst+8,4)}, v12 offset:16384")
    a(f"ds_read_b128 {vr(dst+12,4)}, v13 offset:16384")
    a("s_waitcnt lgkmcnt(0)")
    for i in range(4):
        a(f"v_pk_add_f32 {vr(dst+2*i,2)}, {vr(dst+2*i,2)}, {vr(dst+8+2*i,2)}")

def add_bf16x8(dst, src, tmp):
    for i in range(4):
        a(f"v_lshlrev_b32 v{tmp}, 16, v{src+i}")
        a(f"v_and_b32 v{tmp+1}, 0xffff0000, v{src+i}")
        a(f"v_pk_add_f32 {vr(dst+2*i,2)}, {vr(dst+2*i,2)}, {vr(tmp,2)}")

hdr = open("cdna_kernels/" + NAME + ".s.ref").read().split("\n")
for line in hdr:
    if line.startswith("; Override"):
        break
    a.raw(line)
a.raw(f"; @launch grid=(256,1,1) block=(512,1,1) lds={LDS_BYTES}")
a.raw('.amdgcn_target "amdgcn-amd-amdhsa--gfx950"')
a.raw(".text")
a.raw(f".globl {NAME}_kernel")
a.raw(".p2align 8")
a.raw(f".type {NAME}_kernel,@function")
a.label(f"{NAME}_kernel")

a(f"s_cmp_ge_u32 s{S_WG}, 256")
a("s_cbranch_scc1 L_end")
if STAMPS:
    a("v_mov_b32 v250, 0")
stamp("start")
a(f"s_load_dwordx16 {sr(KA,16)}, s[0:1], 0")
a(f"s_load_dwordx4 {sr(KA+16,4)}, s[0:1], 64")
a(f"s_load_dwordx2 {sr(KA+20,2)}, s[0:1], 80")
a("v_lshrrev_b32 v4, 6, v0")
a(f"v_and_b32 v{V_LANE}, 63, v0")
a(f"v_readfirstlane_b32 s{S_W}, v4")
a.c("roles")
a(f"s_and_b32 s{T0}, s{S_WG}, 7")
a(f"s_lshr_b32 s{T1}, s{S_WG}, 3")
a(f"s_and_b32 s{T2}, s{T0}, 3")
a(f"s_lshl_b32 s{T2}, s{T2}, 1")
a(f"s_and_b32 s{T3}, s{T1}, 1")
a(f"s_add_u32 s{S_HG}, s{T2}, s{T3}")
a(f"s_lshr_b32 s{T2}, s{T0}, 2")
a(f"s_lshl_b32 s{T2}, s{T2}, 4")
a(f"s_lshr_b32 s{T3}, s{T1}, 1")
a(f"s_add_u32 s{S_TB}, s{T2}, s{T3}")
a(f"s_lshl_b32 s{T2}, s{T0}, 2")
a(f"s_and_b32 s{T3}, s{T1}, 3")
a(f"s_add_u32 s{S_TB2}, s{T2}, s{T3}")
a(f"s_lshr_b32 s{S_J}, s{T1}, 2")
a(f"s_min_u32 s{T2}, s{S_J}, 3")
a(f"s_mul_i32 s{S_F0}, s{S_J}, 5")
a(f"s_add_u32 s{S_F0}, s{S_F0}, s{T2}")
a(f"s_cmp_lt_u32 s{S_J}, 3")
a(f"s_cselect_b32 s{S_NT}, 6, 5")
ln_addr()
a(f"s_lshl_b32 s{T4}, s{S_HG}, 7")
ring_addr(3072, T4, 1024)
a("s_waitcnt lgkmcnt(0)")
srd(R_X, KA+0, 2048*512*2)
a(f"s_lshl_b32 s{T4}, s{S_TB}, 16")
ln_loads(R_X, T4)
a(f"s_load_dword s{S_N}, {sr(KA+20,2)}, {WS_NONCE}")
srd(R_WQKV, KA+2, 512*1536*2)
srd(R_WO, KA+4, 512*512*2)
srd(R_W1, KA+8, 512*1376*2)
srd(R_B1, KA+10, 1376*2)
srd(R_W2, KA+12, 1376*512*2)
srd(R_B2, KA+14, 512*2)
srd(R_OUT, KA+16, 2048*512*2)
srd(R_WS, KA+20, WS_SIZE)
a("s_waitcnt lgkmcnt(0)")
a.c("hand-off tag of this launch: next value of a full-period sequence after the one found in the workspace")
a(f"s_mul_i32 s{S_N}, s{S_N}, 0x0019660d")
a(f"s_add_u32 s{S_N}, s{S_N}, 0x3c6ef35f")

a.c("======== phase 1: LN1 + QKV projection")
a(f"s_cmp_lt_u32 s{S_W}, 4")
a("s_cbranch_scc1 L_p1_compute")
ring_setup(3072)
for ch in range(8):
    ring_issue(R_WQKV, 3072, ch)
ln_compute(24)
ring_loader(R_WQKV, 3072)
a("s_branch L_p1_done")
a.label("L_p1_compute")
gemm192_addr()
for i in range(48):
    a(f"v_mov_b32 v{G_ACC+i}, 0")
ln_compute(0)
stamp("ln1 done")
gemm192_compute(True)
a.c("epilogue: Q -> LDS, K/V -> workspace")
L_Q = L_RING
a(f"s_and_b32 s{T0}, s{S_W}, 1")
a(f"s_lshr_b32 s{T1}, s{S_W}, 1")
a(f"s_lshl_b32 s{T2}, s{T0}, 12")
a(f"s_lshl_b32 s{T3}, s{T1}, 11")
a(f"s_add_u32 s{T2}, s{T2}, s{T3}")
a(f"s_add_u32 s{T2}, s{T2}, {L_Q}")
a(f"v_lshlrev_b32 v8, 4, v{V_LANE}")
a(f"v_add_u32 v8, s{T2}, v8")
a(f"v_and_b32 v4, 0x33, v{V_LANE}")
a(f"v_bfe_u32 v5, v{V_LANE}, 2, 1")
a(f"v_lshl_add_u32 v4, v5, 3, v4")
a(f"v_bfe_u32 v5, v{V_LANE}, 3, 1")
a(f"v_lshl_add_u32 v4, v5, 2, v4")
a(f"v_lshlrev_b32 v9, 4, v4")
a(f"v_and_b32 v4, 15, v{V_LANE}")
a(f"v_lshlrev_b32 v4, 4, v4")
a(f"v_lshrrev_b32 v5, 5, v{V_LANE}")
a(f"v_lshl_add_u32 v4, v5, 8, v4")
a(f"v_bfe_u32 v5, v{V_LANE}, 4, 1")
a(f"v_lshl_add_u32 v10, v5, 17, v4")
a(f"s_lshl_b32 s{T2}, s{S_HG}, 1")
a(f"s_add_u32 s{T2}, s{T2}, s{T1}")
a(f"s_lshl_b32 s{T2}, s{T2}, 18")
a(f"s_lshl_b32 s{T3}, s{S_TB}, 1")
a(f"s_add_u32 s{T3}, s{T3}, s{T0}")
a(f"s_lshl_b32 s{T3}, s{T3}, 11")
a(f"s_add_u32 s{T2}, s{T2}, s{T3}")
a(f"s_add_u32 s{T2}, s{T2}, {WS_KV}")
a(f"s_add_u32 s{T3}, s{T2}, 0x20000")
a(f"v_mov_b32 v12, {f32(0.25*math.log2(math.e))}")
a(f"v_mov_b32 v13, v12")
a("s_nop 4")
for i in range(8):
    a(f"v_cvt_pk_bf16_f32 v{24+i}, v{G_ACC+16+2*i}, v{G_ACC+16+2*i+1}")
a(f"buffer_store_dwordx4 v[24:27], v9, {sr(R_WS,4)}, s{T2} offen sc1")
a(f"buffer_store_dwordx4 v[28:31], v9, {sr(R_WS,4)}, s{T3} offen sc1")
for i in range(8):
    a(f"v_cvt_pk_bf16_f32 v{32+i}, v{G_ACC+32+2*i}, v{G_ACC+32+2*i+1}")
a(f"buffer_store_dwordx4 v[32:35], v10, {sr(R_WS,4)}, s{T2} offen offset:1024 sc1")
a(f"buffer_store_dwordx4 v[36:39], v10, {sr(R_WS,4)}, s{T2} offen offset:1536 sc1")
for i in range(8):
    a(f"v_pk_mul_f32 {vr(G_ACC+2*i,2)}, {vr(G_ACC+2*i,2)}, v[12:13]")
for i in range(8):
    a(f"v_cvt_pk_bf16_f32 v{16+i}, v{G_ACC+2*i}, v{G_ACC+2*i+1}")
a(f"ds_write_b128 v8, v[16:19]")
a(f"ds_write_b128 v8, v[20:23] offset:1024")
a.label("L_p1_done")
stamp("p1 done")
a(f"s_lshl_b32 s{T1}, s{S_HG}, 8")
a(f"s_add_u32 s{T1}, s{T1}, {WS_FKV}")
a(f"s_lshl_b32 s{T0}, s{S_TB}, 2")
a(f"s_add_u32 s{T0}, s{T0}, s{T1}")
publish_and_wait(T0, T1, 32)
stamp("kv ready")

a.c("======== phase 2: attention; wave = (head = w&3, key half = w>>2), 64 queries")
A_Q = 16
A_S = 24
A_O = 56
A_KV = 88
A_IDX, A_AK, A_AV = 8, 9, 10
QA, QB, SA, SB, OA, OB = A_Q, A_Q+4, A_S, A_S+16, A_O, A_O+16
def Kf(t): return A_KV + 12*(t % 4)
def Vf(t, s): return A_KV + 12*(t % 4) + 4 + 4*s
a(f"s_and_b32 s{T0}, s{S_W}, 3")
a(f"s_lshr_b32 s{T1}, s{S_W}, 2")
a(f"v_lshlrev_b32 v{A_AK}, 4, v{V_LANE}")
a(f"s_lshl_b32 s{T2}, s{S_W}, 10")
a(f"s_add_u32 s{T3}, s{T2}, {L_Q}")
a(f"v_add_u32 v4, s{T3}, v{A_AK}")
a(f"v_xor_b32 v5, 4096, v4")
a(f"ds_read_b128 {vr(QA,4)}, v4")
a(f"ds_read_b128 {vr(QB,4)}, v5")
a(f"v_and_b32 v4, 15, v{V_LANE}")
a(f"v_lshlrev_b32 v4, 4, v4")
a(f"v_lshrrev_b32 v5, 5, v{V_LANE}")
a(f"v_lshl_add_u32 v{A_AV}, v5, 8, v4")
a(f"s_lshl_b32 s{T2}, s{S_HG}, 2")
a(f"s_add_u32 s{T2}, s{T2}, s{T0}")
a(f"s_lshl_b32 s{T2}, s{T2}, 17")
a(f"s_add_u32 s{S_C0}, s{T2}, {WS_KV}")
a(f"s_lshl_b32 s{T3}, s{T1}, 16")
a(f"s_add_u32 s{S_XOFF}, s{S_C0}, s{T3}")
a(f"s_mov_b32 s{S_MASKV}, 0xffff")
a(f"s_mov_b32 s{S_MASKV+1}, 0xffff")
a(f"v_mov_b32 v{A_IDX}, 0xdddddddd")
for t in range(4):
    for i in range(8):
        a(f"v_mov_b32 v{Vf(t,0)+i}, 0x3f803f80")
for i in range(32):
    a(f"v_mov_b32 v{A_O+i}, 0")
for i in range(8):
    a(f"v_mov_b32 v{SB+8+i}, 0")
def kv_load(t, soff, imm):
    a(f"buffer_load_dwordx4 {vr(Kf(t),4)}, v{A_AK}, {sr(R_WS,4)}, s{soff} offen offset:{imm} sc1")
    a(f"s_mov_b64 exec, {sr(S_MASKV,2)}")
    a(f"buffer_load_dwordx4 {vr(Vf(t,0),4)}, v{A_AV}, {sr(R_WS,4)}, s{soff} offen offset:{imm+1024} sc1")
    a(f"buffer_load_dwordx4 {vr(Vf(t,1),4)}, v{A_AV}, {sr(R_WS,4)}, s{soff} offen offset:{imm+1536} sc1")
    a("s_mov_b64 exec, -1")
kv_load(0, S_XOFF, 0)
kv_load(1, S_XOFF, 2048)
a(f"s_add_u32 s{S_XOFF}, s{S_XOFF}, 4096")
kv_load(2, S_XOFF, 0)
a("s_waitcnt vmcnt(6) lgkmcnt(0)")
a(f"v_mfma_f32_32x32x16_bf16 {vr(SA,16)}, {vr(Kf(0),4)}, {vr(QA,4)}, 0")
a(f"s_mov_b32 s{S_LOOP}, 8")
a("s_nop 7")
a("s_nop 3")
def smf(o, v, s):
    a(f"v_smfmac_f32_32x32x32_bf16 {vr(o,16)}, {vr(v,4)}, {vr(s,8)}, v{A_IDX}")
a.raw(".p2align 6")
a.label("L_attn")
for t in range(4):
    for i in range(16):
        if i == 2:
            smf(OB, Vf(t-1, 1), SB+8)
        if i == 3:
            kv_load(t+3, S_XOFF, 2048 if (t+3) % 2 else 0)
            if (t+3) % 2:
                a(f"s_add_u32 s{S_XOFF}, s{S_XOFF}, 4096")
        if i == 5:
            a(f"v_mfma_f32_32x32x16_bf16 {vr(SB,16)}, {vr(Kf(t),4)}, {vr(QB,4)}, 0")
        if i == 10:
            smf(OA, Vf(t, 0), SA)
        a(f"v_exp_f32 v{SA+i}, v{SA+i}")
    for i in range(16):
        if i == 2:
            smf(OA, Vf(t, 1), SA+8)
        if i == 5:
            a("s_waitcnt vmcnt(6)")
            a(f"v_mfma_f32_32x32x16_bf16 {vr(SA,16)}, {vr(Kf(t+1),4)}, {vr(QA,4)}, 0")
        if i == 10:
            smf(OB, Vf(t, 0), SB)
        if t == 3 and i == 12:
            a(f"s_sub_u32 s{S_LOOP}, s{S_LOOP}, 1")
            a(f"s_cmp_lg_u32 s{S_LOOP}, 0")
        a(f"v_exp_f32 v{SB+i}, v{SB+i}")
a("s_cbranch_scc1 L_attn")
a("s_nop 1")
smf(OB, Vf(3, 1), SB+8)
stamp("attn loop done")
a.c("combine the two key halves: keep A, send B")
L_OX = L_XN
a(f"s_mul_i32 s{T2}, s{S_W}, 3072")
a(f"v_add_u32 v4, s{T2}, v{A_AK}")
a(f"s_xor_b32 s{T3}, s{S_W}, 4")
a(f"s_mul_i32 s{T3}, s{T3}, 3072")
a(f"v_add_u32 v5, s{T3}, v{A_AK}")
a("s_waitcnt vmcnt(0)")
a("s_nop 7")
a(f"ds_write_b128 v4, {vr(OB,4)} offset:{L_OX}")
a(f"ds_write_b128 v4, {vr(OB+4,4)} offset:{L_OX+1024}")
a(f"ds_write_b32 v4, v{OB+8} offset:{L_OX+2048}")
a("s_waitcnt lgkmcnt(0)")
a("s_barrier")
a(f"ds_read_b128 {vr(SA,4)}, v5 offset:{L_OX}")
a(f"ds_read_b128 {vr(SA+4,4)}, v5 offset:{L_OX+1024}")
a(f"ds_read_b32 v{SA+8}, v5 offset:{L_OX+2048}")
a("s_waitcnt lgkmcnt(0)")
for i in range(9):
    a(f"v_add_f32 v{OA+i}, v{OA+i}, v{SA+i}")
a.c("the loop subtracted no row maximum: a row sum outside [2^-64, 2^64] (or NaN) sends the wave to the true-max path")
a(f"v_mov_b32 v4, {f32(2.0**-64)}")
a(f"v_mov_b32 v5, {f32(2.0**64)}")
a(f"v_cmp_ge_f32 vcc, v{OA+8}, v4")
a(f"v_cmp_le_f32 {sr(S_SAVE,2)}, v{OA+8}, v5")
a("s_nop 1")
a(f"s_and_b64 vcc, vcc, {sr(S_SAVE,2)}")
a(f"s_cmp_eq_u64 vcc, -1")
if FORCE_FB:
    a("s_branch L_attn_fb")
else:
    a("s_cbranch_scc0 L_attn_fb")
a.label("L_attn_fin")
a(f"v_rcp_f32 v4, v{OA+8}")
a("s_nop 0")
for i in range(8):
    a(f"v_mul_f32 v{OA+i}, v{OA+i}, v4")
for i in range(4):
    a(f"v_cvt_pk_bf16_f32 v{SA+i}, v{OA+2*i}, v{OA+2*i+1}")
a(f"s_lshr_b32 s{T1}, s{S_W}, 2")
a(f"s_lshl_b32 s{T2}, s{S_TB}, 1")
a(f"s_add_u32 s{T2}, s{T2}, s{T1}")
a(f"s_lshl_b32 s{T2}, s{T2}, 5")
a(f"s_lshl_b32 s{T3}, s{S_HG}, 2")
a(f"s_add_u32 s{T2}, s{T2}, s{T3}")
a(f"s_and_b32 s{T0}, s{S_W}, 3")
a(f"s_add_u32 s{T2}, s{T2}, s{T0}")
a(f"s_lshl_b32 s{T2}, s{T2}, 10")
a(f"s_add_u32 s{T2}, s{T2}, {WS_OF}")
a(f"buffer_store_dwordx4 {vr(SA,4)}, v{A_AK}, {sr(R_WS,4)}, s{T2} offen sc1")

a.c("======== phase 3: h = x + O Wo ; tile 64 tokens x 64 columns; wave = (tb32, ct, kh)")
L_WO = L_RING
P_W = 16
P_ACC = 80
P_AF = 96
P_XR = 112
P_RES = 120
a(f"s_lshl_b32 s{T4}, s{S_J}, 7")
ring_addr(1024, T4, 0)
a(f"s_lshl_b32 s{T0}, s{S_W}, 16")
a(f"s_lshl_b32 s{T1}, s{S_W}, 13")
for p in range(8):
    a(f"s_add_u32 m0, s{T1}, {L_WO + p*1024}")
    a(f"s_add_u32 s{T2}, s{T0}, {p*8192}")
    a(f"buffer_load_dwordx4 v{V_DMA}, {sr(R_WO,4)}, s{T2} offen lds")
a(f"s_lshl_b32 s{T5}, s{S_TB2}, 16")
a(f"s_add_u32 s{S_C1}, s{T5}, s{T4}")
a(f"buffer_load_dwordx4 {vr(P_XR,4)}, v{V_ROWOFF}, {sr(R_X,4)}, s{S_C1} offen")
stamp("O stored")
a(f"s_lshl_b32 s{T0}, s{S_TB}, 8")
a(f"s_lshl_b32 s{T1}, s{S_HG}, 2")
a(f"s_add_u32 s{T0}, s{T0}, s{T1}")
a(f"s_add_u32 s{T0}, s{T0}, {WS_FO}")
a(f"s_lshl_b32 s{T1}, s{S_TB2}, 8")
a(f"s_add_u32 s{T1}, s{T1}, {WS_FO}")
publish_and_wait(T0, T1, 8)
stamp("O ready")
a(f"v_lshlrev_b32 v8, 4, v{V_LANE}")
a(f"s_and_b32 s{T0}, s{S_W}, 3")
a(f"s_lshr_b32 s{T1}, s{S_W}, 2")
a(f"s_lshl_b32 s{T1}, s{T1}, 4")
a(f"s_add_u32 s{T0}, s{T0}, s{T1}")
a(f"s_lshl_b32 s{T0}, s{T0}, 10")
a(f"s_add_u32 s{T1}, s{T5}, {WS_OF}")
a(f"s_add_u32 s{T1}, s{T1}, s{T0}")
for q in range(4):
    for tb32 in range(2):
        a(f"s_add_u32 m0, s{T0}, {L_XN + tb32*32768 + q*4096}")
        a(f"s_add_u32 s{T2}, s{T1}, {tb32*32768 + q*4096}")
        a(f"buffer_load_dwordx4 v8, {sr(R_WS,4)}, s{T2} offen sc1 lds")
a(f"s_bfe_u32 s{T2}, s{S_W}, 0x10001")
tr_lane_addr(9, T2, 1024, False)
a(f"s_lshr_b32 s{T3}, s{S_W}, 2")
a(f"s_lshl_b32 s{T3}, s{T3}, 15")
a(f"s_add_u32 s{T3}, s{T3}, {L_WO}")
a(f"v_add_u32 v9, s{T3}, v9")
for t in range(16):
    a(f"ds_read_b64_tr_b16 {vr(P_W+4*t,2)}, v9 offset:{t*2048}")
    a(f"ds_read_b64_tr_b16 {vr(P_W+4*t+2,2)}, v9 offset:{t*2048+512}")
a(f"s_and_b32 s{T2}, s{S_W}, 1")
a(f"s_lshl_b32 s{T2}, s{T2}, 15")
a(f"s_lshr_b32 s{T3}, s{S_W}, 2")
a(f"s_lshl_b32 s{T3}, s{T3}, 14")
a(f"s_add_u32 s{T2}, s{T2}, s{T3}")
a(f"v_add_u32 v10, s{T2}, v8")
for i in range(16):
    a(f"v_mov_b32 v{P_ACC+i}, 0")
for q in range(4):
    a(f"s_waitcnt vmcnt({6-2*q})")
    a("s_barrier")
    for b in range(4):
        a(f"ds_read_b128 {vr(P_AF+4*b,4)}, v10 offset:{L_XN + q*4096 + b*1024}")
    for b in range(4):
        a(f"s_waitcnt lgkmcnt({3-b})")
        a(f"v_mfma_f32_32x32x16_bf16 {vr(P_ACC,16)}, {vr(P_W+16*q+4*b,4)}, {vr(P_AF+4*b,4)}, {vr(P_ACC,16)}")
tile_reduce(P_ACC, P_RES, L_RING + 65536)
add_bf16x8(P_RES, P_XR, 14)
for i in range(4):
    a(f"v_cvt_pk_bf16_f32 v{V_HRES+i}, v{P_RES+2*i}, v{P_RES+2*i+1}")
a(f"s_add_u32 s{T2}, s{S_C1}, {WS_H}")
a(f"buffer_store_dwordx4 {vr(V_HRES,4)}, v{V_ROWOFF}, {sr(R_WS,4)}, s{T2} offen sc1")
stamp("h stored")
a(f"s_lshl_b32 s{T1}, s{S_TB2}, 8")
a(f"s_add_u32 s{T1}, s{T1}, {WS_FH}")
a(f"s_lshl_b32 s{T0}, s{S_J}, 2")
a(f"s_add_u32 s{T0}, s{T0}, s{T1}")
publish_and_wait(T0, T1, 8)
stamp("h ready")

a.c("======== phase 4: g = gelu(LN(h) W1 + b1)")
a(f"s_lshl_b32 s{T4}, s{S_TB2}, 16")
a(f"s_add_u32 s{T4}, s{T4}, {WS_H}")
ln_loads(R_WS, T4, "sc1")
a(f"s_cmp_lt_u32 s{S_W}, 4")
a("s_cbranch_scc1 L_p4_compute")
a(f"s_lshl_b32 s{T4}, s{S_F0}, 6")
ring_addr(2752, T4, 128)
ring_setup(2752)
for ch in range(8):
    ring_issue(R_W1, 2752, ch)
ln_compute(24)
ring_loader(R_W1, 2752)
a("s_branch L_p4_done")
a.label("L_p4_compute")
a(f"s_lshr_b32 s{T0}, s{S_W}, 1")
a(f"s_add_u32 s{T0}, s{T0}, s{S_F0}")
a(f"s_lshl_b32 s{T4}, s{T0}, 6")
a(f"v_lshrrev_b32 v4, 5, v{V_LANE}")
a(f"v_lshlrev_b32 v8, 4, v4")
B_T = G_WF
for seg in range(3):
    for s in range(2):
        a(f"buffer_load_dwordx4 {vr(B_T+8*seg+4*s,4)}, v8, {sr(R_B1,4)}, s{T4} offen offset:{seg*128+s*32}")
gemm192_addr()
ln_compute(6)
a("s_waitcnt vmcnt(0)")
for r in range(24):
    a(f"v_lshlrev_b32 v{G_ACC+2*r}, 16, v{B_T+r}")
    a(f"v_and_b32 v{G_ACC+2*r+1}, 0xffff0000, v{B_T+r}")
stamp("ln2 done")
gemm192_compute(False)
stamp("ffn1 done")
c1 = -2.0*math.sqrt(2.0/math.pi)*math.log2(math.e)
c3 = c1*0.044715
a(f"v_mov_b32 v8, {f32(c1)}")
a(f"v_mov_b32 v9, v8")
a(f"v_mov_b32 v10, {f32(c3)}")
a(f"v_mov_b32 v11, v10")
a(f"v_mov_b32 v12, 1.0")
a(f"v_mov_b32 v13, 1.0")
a(f"v_lshlrev_b32 v14, 4, v{V_LANE}")
a(f"s_and_b32 s{T0}, s{S_W}, 1")
a(f"s_lshl_b32 s{T1}, s{S_TB2}, 1")
a(f"s_add_u32 s{T0}, s{T0}, s{T1}")
a(f"s_mul_i32 s{T0}, s{T0}, 86")
a(f"s_lshr_b32 s{T1}, s{S_W}, 1")
a(f"s_add_u32 s{T3}, s{T1}, 4")
a(f"s_add_u32 s{T1}, s{T1}, s{S_F0}")
a(f"s_lshl_b32 s{T1}, s{T1}, 1")
a(f"s_add_u32 s{T0}, s{T0}, s{T1}")
a(f"s_lshl_b32 s{T0}, s{T0}, 10")
a(f"s_add_u32 s{T0}, s{T0}, {WS_GF}")
a("s_nop 2")
GT = 16
for seg in range(3):
    if seg == 2:
        a(f"s_cmp_ge_u32 s{T3}, s{S_NT}")
        a("s_cbranch_scc1 L_p4_done")
    u = G_ACC + 16*seg
    for i in range(8):
        a(f"v_pk_mul_f32 {vr(GT+2*i,2)}, {vr(u+2*i,2)}, {vr(u+2*i,2)}")
    for i in range(8):
        a(f"v_pk_fma_f32 {vr(GT+2*i,2)}, {vr(GT+2*i,2)}, v[10:11], v[8:9]")
    for i in range(8):
        a(f"v_pk_mul_f32 {vr(GT+2*i,2)}, {vr(GT+2*i,2)}, {vr(u+2*i,2)}")
    for i in range(16):
        a(f"v_exp_f32 v{GT+i}, v{GT+i}")
    for i in range(8):
        a(f"v_pk_add_f32 {vr(GT+2*i,2)}, {vr(GT+2*i,2)}, v[12:13]")
    for i in range(16):
        a(f"v_rcp_f32 v{GT+i}, v{GT+i}")
    for i in range(8):
        a(f"v_pk_mul_f32 {vr(GT+2*i,2)}, {vr(GT+2*i,2)}, {vr(u+2*i,2)}")
    o = 32 + 8*seg
    for i in range(8):
        a(f"v_cvt_pk_bf16_f32 v{o+i}, v{GT+2*i}, v{GT+2*i+1}")
    a(f"s_add_u32 s{T2}, s{T0}, {seg*4096}")
    a(f"buffer_store_dwordx4 {vr(o,4)}, v14, {sr(R_WS,4)}, s{T2} offen sc1")
    a(f"buffer_store_dwordx4 {vr(o+4,4)}, v14, {sr(R_WS,4)}, s{T2} offen offset:1024 sc1")
a.label("L_p4_done")
stamp("g stored")

a.c("======== phase 5: out = h + g W2 + b2 ; wave = (tb32, ct, kh), 43 k-steps each")
F_W = 16
F_ACC = 188
F_AF = 204
F_B2 = 224
F_RES = 228
a("s_barrier")
a(f"s_lshl_b32 s{T4}, s{S_J}, 7")
ring_addr(1024, T4, 0)
a(f"v_and_b32 v4, 7, v0")
a(f"v_lshlrev_b32 v8, 4, v4")
a(f"buffer_load_dwordx4 {vr(F_B2,4)}, v8, {sr(R_B2,4)}, s{T4} offen")
a(f"s_bfe_u32 s{T2}, s{S_W}, 0x10001")
tr_lane_addr(9, T2, 1024, False)
a(f"s_lshr_b32 s{T3}, s{S_W}, 2")
a(f"s_mul_i32 s{T3}, s{T3}, {44*1024}")
a(f"v_add_u32 v9, s{T3}, v9")
a(f"s_lshr_b32 s{T0}, s{S_W}, 2")
a(f"s_mul_i32 s{T0}, s{T0}, 86")
a(f"s_and_b32 s{T1}, s{S_W}, 3")
a(f"s_mul_i32 s{T1}, s{T1}, 11")
a(f"s_add_u32 s{T0}, s{T0}, s{T1}")
a(f"s_lshl_b32 s{T0}, s{T0}, 13")
a(f"s_mul_i32 s{T1}, s{S_W}, {11*1024}")
for r in range(2):
    for p in range(11):
        a(f"s_add_u32 m0, s{T1}, {p*1024}")
        a(f"s_add_u32 s{T2}, s{T0}, {(44*r + p)*8192}")
        a(f"buffer_load_dwordx4 v{V_DMA}, {sr(R_W2,4)}, s{T2} offen lds")
    a("s_waitcnt vmcnt(0)")
    a("s_barrier")
    for t in range(22*r, min(43, 22*r+22)):
        a(f"ds_read_b64_tr_b16 {vr(F_W+4*t,2)}, v9 offset:{(t-22*r)*2048}")
        a(f"ds_read_b64_tr_b16 {vr(F_W+4*t+2,2)}, v9 offset:{(t-22*r)*2048+512}")
    if r == 0:
        a("s_waitcnt lgkmcnt(0)")
        a("s_barrier")
stamp("w2 staged")
a(f"s_lshl_b32 s{T1}, s{S_TB2}, 8")
a(f"s_add_u32 s{T1}, s{T1}, {WS_FG}")
a(f"s_lshl_b32 s{T0}, s{S_J}, 2")
a(f"s_add_u32 s{T0}, s{T0}, s{T1}")
publish_and_wait(T0, T1, 8)
stamp("g ready")
a(f"v_lshlrev_b32 v8, 4, v{V_LANE}")
a(f"s_lshr_b32 s{T1}, s{S_W}, 2")
a(f"s_and_b32 s{T0}, s{S_W}, 3")
a(f"s_lshl_b32 s{T2}, s{T1}, 3")
a(f"s_add_u32 s{T2}, s{T2}, s{T0}")
a(f"s_lshl_b32 s{T3}, s{T2}, 10")
a(f"s_mul_i32 s{T1}, s{T1}, 43")
a(f"s_add_u32 s{T0}, s{T0}, s{T1}")
a(f"s_mul_i32 s{T1}, s{S_TB2}, 172")
a(f"s_add_u32 s{T0}, s{T0}, s{T1}")
a(f"s_lshl_b32 s{T0}, s{T0}, 10")
a(f"s_add_u32 s{T4}, s{T0}, {WS_GF}")
def g_issue(q):
    for tb32 in range(2):
        a(f"s_add_u32 m0, s{T3}, {(q % 10)*16384 + tb32*4096}")
        a(f"s_add_u32 s{T2}, s{T4}, {(tb32*86 + 4*q)*1024}")
        a(f"buffer_load_dwordx4 v8, {sr(R_WS,4)}, s{T2} offen sc1 lds")
for q in range(10):
    g_issue(q)
a(f"s_and_b32 s{T0}, s{S_W}, 1")
a(f"s_lshl_b32 s{T0}, s{T0}, 12")
a(f"s_lshr_b32 s{T1}, s{S_W}, 2")
a(f"s_lshl_b32 s{T1}, s{T1}, 13")
a(f"s_add_u32 s{T0}, s{T0}, s{T1}")
a(f"v_add_u32 v10, s{T0}, v8")
a(f"v_add_u32 v11, 65536, v10")
a(f"v_add_u32 v12, 131072, v10")
for i in range(16):
    a(f"v_mov_b32 v{F_ACC+i}, 0")
for q in range(11):
    issued = 10 if q <= 1 else 11
    a(f"s_waitcnt vmcnt({2*(issued - q - 1)})")
    a("s_barrier")
    if q == 1:
        g_issue(10)
    nb = 4 if q < 10 else 3
    off = (q % 10)*16384
    for b in range(nb):
        a(f"ds_read_b128 {vr(F_AF+4*b,4)}, v{10 + off//65536} offset:{off % 65536 + b*1024}")
    for b in range(nb):
        a(f"s_waitcnt lgkmcnt({nb-1-b})")
        a(f"v_mfma_f32_32x32x16_bf16 {vr(F_ACC,16)}, {vr(F_W+16*q+4*b,4)}, {vr(F_AF+4*b,4)}, {vr(F_ACC,16)}")
tile_reduce(F_ACC, F_RES, 32768)
add_bf16x8(F_RES, F_B2, 14)
add_bf16x8(F_RES, V_HRES, 14)
for i in range(4):
    a(f"v_cvt_pk_bf16_f32 v{16+i}, v{F_RES+2*i}, v{F_RES+2*i+1}")
a(f"buffer_store_dwordx4 v[16:19], v{V_ROWOFF}, {sr(R_OUT,4)}, s{S_C1} offen")
a("s_waitcnt vmcnt(0)") if STAMPS else None
stamp("end")
stamp_flush()
a.c("every workgroup has read the old tag by now: leave this launch's tag for the next launch to step past")
a(f"s_or_b32 s{T0}, s{S_WG}, s{S_W}")
a(f"s_cmp_lg_u32 s{T0}, 0")
a("s_cbranch_scc1 L_end")
a(f"v_mov_b32 v4, s{S_N}")
a(f"v_mov_b32 v5, {WS_NONCE}")
a("s_mov_b64 exec, 1")
a(f"buffer_store_dword v4, v5, {sr(R_WS,4)}, 0 offen sc1")
a.label("L_end")
a("s_endpgm")

a.c("======== attention with the row's true maximum: q-block A over all 2048 keys")
a.label("L_attn_fb")
FM = SB
a(f"v_mov_b32 v{FM}, 0xff800000")
a(f"s_mov_b32 s{S_XOFF}, s{S_C0}")
a(f"s_mov_b32 s{S_LOOP}, 64")
a.label("L_fb1")
a(f"buffer_load_dwordx4 {vr(Kf(0),4)}, v{A_AK}, {sr(R_WS,4)}, s{S_XOFF} offen sc1")
a("s_waitcnt vmcnt(0)")
a(f"v_mfma_f32_32x32x16_bf16 {vr(SA,16)}, {vr(Kf(0),4)}, {vr(QA,4)}, 0")
a(f"s_add_u32 s{S_XOFF}, s{S_XOFF}, 2048")
a("s_nop 7")
a("s_nop 3")
for i in range(8):
    a(f"v_max3_f32 v{FM}, v{FM}, v{SA+2*i}, v{SA+2*i+1}")
a(f"s_sub_u32 s{S_LOOP}, s{S_LOOP}, 1")
a(f"s_cmp_lg_u32 s{S_LOOP}, 0")
a("s_cbranch_scc1 L_fb1")
a(f"v_mov_b32 v{FM+1}, v{FM}")
a("s_nop 1")
a(f"v_permlane32_swap_b32 v{FM}, v{FM+1}")
a("s_nop 1")
a(f"v_max_f32 v{FM}, v{FM}, v{FM+1}")
for i in range(16):
    a(f"v_mov_b32 v{OA+i}, 0")
a(f"s_mov_b32 s{S_XOFF}, s{S_C0}")
a(f"s_mov_b32 s{S_LOOP}, 64")
a.label("L_fb2")
kv_load(0, S_XOFF, 0)
a("s_waitcnt vmcnt(0)")
a(f"v_mfma_f32_32x32x16_bf16 {vr(SA,16)}, {vr(Kf(0),4)}, {vr(QA,4)}, 0")
a(f"s_add_u32 s{S_XOFF}, s{S_XOFF}, 2048")
a("s_nop 7")
a("s_nop 3")
for i in range(16):
    a(f"v_sub_f32 v{SA+i}, v{SA+i}, v{FM}")
for i in range(16):
    a(f"v_exp_f32 v{SA+i}, v{SA+i}")
a("s_nop 1")
smf(OA, Vf(0, 0), SA)
smf(OA, Vf(0, 1), SA+8)
a(f"s_sub_u32 s{S_LOOP}, s{S_LOOP}, 1")
a(f"s_cmp_lg_u32 s{S_LOOP}, 0")
a("s_nop 7")
a("s_cbranch_scc1 L_fb2")
a("s_nop 7")
a("s_nop 3")
a("s_branch L_attn_fin")

a.raw('.section .rodata,"a"')
a.raw(".p2align 6")
a.raw(f".amdhsa_kernel {NAME}_kernel")
a.raw("  .amdhsa_next_free_vgpr 256")
a.raw("  .amdhsa_next_free_sgpr 102")
a.raw("  .amdhsa_accum_offset 256")
a.raw("  .amdhsa_group_segment_fixed_size 0")
a.raw("  .amdhsa_kernarg_size 88")
a.raw("  .amdhsa_user_sgpr_count 2")
a.raw("  .amdhsa_user_sgpr_kernarg_segment_ptr 1")
a.raw("  .amdhsa_system_sgpr_workgroup_id_x 1")
a.raw(".end_amdhsa_kernel")

out = [x for x in sys.argv[1:] if not x.startswith("--")]
open(out[0] if out else "cdna_kernels/" + NAME + ".s", "w").write(a.text())
```

```python
import struct

def f32(x):
    return "0x%08x" % struct.unpack("<I", struct.pack("<f", x))[0]

class Asm:
    def __init__(self):
        self.L = []
        self.n = 0
    def __call__(self, s):
        for line in s.split("\n"):
            line = line.strip()
            if line:
                self.L.append("    " + line)
    def label(self, l):
        self.L.append(l + ":")
    def c(self, s):
        self.L.append("    ; " + s)
    def raw(self, s):
        self.L.append(s)
    def uniq(self, p):
        self.n += 1
        return f"{p}_{self.n}"
    def text(self):
        return "\n".join(self.L) + "\n"

def vr(b, n):
    return f"v{b}" if n == 1 else f"v[{b}:{b+n-1}]"
def sr(b, n):
    return f"s{b}" if n == 1 else f"s[{b}:{b+n-1}]"

class Cnt:
    def __init__(self, a, name, cap):
        self.a, self.name, self.cap, self.q = a, name, cap, []
    def copy(self):
        c = Cnt(self.a, self.name, self.cap); c.q = list(self.q); return c
    def issue(self, tag, n=1):
        self.q += [tag]*n
    def need(self, *tags):
        idx = [i for i, t in enumerate(self.q) if t in tags]
        if not idx:
            return None
        n = len(self.q) - 1 - idx[-1]
        n = min(n, self.cap)
        self.q = self.q[len(self.q) - n:] if n else []
        return n
    def wait(self, *tags, extra=""):
        n = self.need(*tags)
        if n is not None:
            self.a(f"s_waitcnt {self.name}({n}) {extra}")
        elif extra:
            self.a(f"s_waitcnt {extra}")
    def clear(self):
        self.q = []
```

```python
import sys, math
from lib import *

NAME = "sequential_preLN__softmax_full_mha__dense_activation_gelu__prompt"
args = sys.argv[1:]
def opt(n, d):
    for x in args:
        if x.startswith("--" + n + "="):
            return type(d)(x.split("=")[1])
    return d
STAMPS = "--stamps" in args
FORCE_FB = "--force-fallback" in args
LH = opt("lh", 1)
NA = opt("na", 12)
PK_IL = opt("pkil", 0)
SWITCH = opt("switch", 0)

S_WG, S_W = 2, 3
S_PC = 4
R_X, R_WQKV, R_WO, R_W1, R_W2, R_WS, R_OUT, R_B1, R_B2 = 8, 12, 16, 20, 24, 28, 32, 36, 40
KA = 44
S_HG, S_TB, S_TB2, S_J, S_N = 66, 67, 68, 69, 70
S_F0 = 71
T0, T1, T2, T3, T4, T5, T6, T7 = 72, 73, 74, 75, 76, 77, 78, 79
S_LOOP, S_XOFF, S_HEAD = 80, 81, 82
S_TILE = 83
S_MASKV = 84
S_D0, S_D1, S_D2, S_D3 = 86, 87, 88, 89
S_TS = 90
S_NT = 92
S_SPIN = 93
S_SAVE = 94
S_D4, S_D5 = 96, 97
S_FOWN, S_FPOLL = 98, 99

WS_NONCE = 0
WS_FKV = 0x1000
WS_FO = 0x2000
WS_FH = 0x4000
WS_FG = 0x6000
WS_STAMP = 0x10000
WS_KV = 0x100000
WS_OF = 0x500000
WS_H = 0x700000
WS_GF = 0x900000
WS_SIZE = 0x1000000

L_XN = 0
L_RING = 65536
L_Q = 32768
L_OX = 0
L_WO = L_RING + 32768
LDS_BYTES = 163840

V_LANE, V_ROWOFF, V_XNW = 1, 2, 3
V_DA, V_DB = 12, 13
V_B1 = 232
V_B2 = 236
V_REDW, V_REDR, V_L16 = 240, 244, 246
V_HRES = 252

a = Asm()
stamp_idx = [0]
def stamp(name):
    i = stamp_idx[0]
    stamp_idx[0] += 1
    if not STAMPS:
        return
    a.c(f"stamp {i} {name}")
    a(f"s_memtime {sr(S_TS,2)}")
    a(f"s_waitcnt lgkmcnt(0)")
    a(f"v_writelane_b32 v250, s{S_TS}, {i}")
    a(f"s_memrealtime {sr(S_TS,2)}")
    a(f"s_waitcnt lgkmcnt(0)")
    a(f"v_writelane_b32 v250, s{S_TS}, {i+32}")

def stamp_flush():
    if not STAMPS:
        return
    l = a.uniq("L_st")
    a(f"s_and_b32 s{T7}, s{S_W}, 3")
    a(f"s_cmp_lg_u32 s{T7}, 0")
    a(f"s_cbranch_scc1 {l}")
    a(f"s_lshl_b32 s{T7}, s{S_WG}, 9")
    a(f"s_lshl_b32 s{T6}, s{S_W}, 6")
    a(f"s_add_u32 s{T7}, s{T7}, s{T6}")
    a(f"s_add_u32 s{T7}, s{T7}, {WS_STAMP}")
    a(f"v_lshlrev_b32 v251, 2, v{V_LANE}")
    a(f"buffer_store_dword v250, v251, {sr(R_WS,4)}, s{T7} offen")
    a.label(l)

def srd(r, ptr, size):
    a(f"s_mov_b32 s{r}, s{ptr}")
    a(f"s_mov_b32 s{r+1}, s{ptr+1}")
    a(f"s_mov_b32 s{r+2}, {size}")
    a(f"s_mov_b32 s{r+3}, 0x00020000")

def flag_addr(base, line_own, word_own, line_poll):
    a(f"s_lshl_b32 s{S_FOWN}, s{line_own}, 8")
    a(f"s_lshl_b32 s{T7}, s{word_own}, 2")
    a(f"s_add_u32 s{S_FOWN}, s{S_FOWN}, s{T7}")
    a(f"s_add_u32 s{S_FOWN}, s{S_FOWN}, {base}")
    a(f"s_lshl_b32 s{S_FPOLL}, s{line_poll}, 8")
    a(f"s_add_u32 s{S_FPOLL}, s{S_FPOLL}, {base}")

def flag_store(poller):
    l = a.uniq("L_nf")
    a(f"s_cmp_lg_u32 s{S_W}, {poller}")
    a(f"s_cbranch_scc1 {l}")
    a(f"s_mov_b64 exec, 1")
    a(f"buffer_store_dword v248, v249, {sr(R_WS,4)}, s{S_FOWN} offen sc1")
    a(f"s_mov_b64 exec, -1")
    a.label(l)

def flag_poll(poller, nflags):
    l_skip, l_poll, l_done = a.uniq("L_skip"), a.uniq("L_poll"), a.uniq("L_done")
    a(f"s_cmp_lg_u32 s{S_W}, {poller}")
    a(f"s_cbranch_scc1 {l_skip}")
    a(f"s_mov_b32 exec_hi, 0")
    a(f"s_mov_b32 exec_lo, {(1 << nflags) - 1:#x}")
    a(f"s_mov_b32 s{S_SPIN}, 0")
    a.label(l_poll)
    a(f"buffer_load_dword v247, v249, {sr(R_WS,4)}, s{S_FPOLL} offen sc1")
    a(f"s_add_u32 s{S_SPIN}, s{S_SPIN}, 1")
    a("s_waitcnt vmcnt(0)")
    a(f"v_cmp_eq_u32 vcc, v247, v248")
    a(f"s_cmp_gt_u32 s{S_SPIN}, 200000")
    a(f"s_cbranch_scc1 {l_done}")
    a(f"s_cmp_eq_u64 vcc, exec")
    a(f"s_cbranch_scc0 {l_poll}")
    a.label(l_done)
    a("s_mov_b64 exec, -1")
    a.label(l_skip)

LN_X, LN_D, LN_T = 16, 48, 112

def ln_loads(vm, rsrc, soff, flags=""):
    for i in range(8):
        a(f"buffer_load_dwordx4 {vr(LN_X+4*i,4)}, v{V_ROWOFF}, {sr(rsrc,4)}, s{soff} offen offset:{128*i} {flags}")
        vm.issue(("x", i))

def dpp_sum8(v):
    a("s_nop 1")
    a(f"v_add_f32_dpp v{v}, v{v}, v{v} quad_perm:[1,0,3,2] row_mask:0xf bank_mask:0xf")
    a("s_nop 1")
    a(f"v_add_f32_dpp v{v}, v{v}, v{v} quad_perm:[2,3,0,1] row_mask:0xf bank_mask:0xf")
    a("s_nop 1")
    a(f"v_add_f32_dpp v{v}, v{v}, v{v} row_half_mirror row_mask:0xf bank_mask:0xf")

def ln_consts():
    t = LN_T
    a(f"v_mov_b32 v{t+4}, 0x3f803f80")
    a(f"v_mov_b32 v{t+5}, 0x00003f80")
    a(f"v_mov_b32 v{t+6}, 0x3f800000")
    for i in range(4):
        a(f"v_mov_b32 v{t+i}, 0")

def ln_compute(vm, scale):
    t = LN_T
    for i in range(8):
        vm.wait(("x", i))
        for j in range(4):
            a(f"v_dot2_f32_bf16 v{t+(j&1)}, v{LN_X+4*i+j}, v{t+4}, v{t+(j&1)}")
    a("s_nop 2")
    a(f"v_add_f32 v{t}, v{t}, v{t+1}")
    dpp_sum8(t)
    a(f"v_mul_f32 v{t}, {f32(-1.0/512)}, v{t}")
    a.raw(".p2align 3")
    for r in range(32):
        a(f"v_dot2_f32_bf16 v{LN_D+2*r}, v{LN_X+r}, v{t+5}, v{t}")
        a(f"v_dot2_f32_bf16 v{LN_D+2*r+1}, v{LN_X+r}, v{t+6}, v{t}")
        if r >= 2:
            q = r - 2
            a(f"v_pk_fma_f32 {vr(t+2,2)}, {vr(LN_D+2*q,2)}, {vr(LN_D+2*q,2)}, {vr(t+2,2)}")
    a("s_nop 2")
    for q in (30, 31):
        a(f"v_pk_fma_f32 {vr(t+2,2)}, {vr(LN_D+2*q,2)}, {vr(LN_D+2*q,2)}, {vr(t+2,2)}")
    a(f"v_add_f32 v{t+2}, v{t+2}, v{t+3}")
    dpp_sum8(t+2)
    a(f"v_mov_b32 v{t+3}, {f32(1e-5)}")
    a(f"v_fmac_f32 v{t+3}, {f32(1.0/512)}, v{t+2}")
    a(f"v_rsq_f32 v{t+2}, v{t+3}")
    a("s_nop 0")
    if scale != 1.0:
        a(f"v_mul_f32 v{t+2}, {f32(scale)}, v{t+2}")
    a(f"v_mov_b32 v{t+3}, v{t+2}")
    a.raw(".p2align 3")
    for i in range(8):
        for j in range(4):
            r = 4*i + j
            a(f"v_pk_mul_f32 {vr(LN_D+2*r,2)}, {vr(LN_D+2*r,2)}, {vr(t+2,2)}")
        for j in range(4):
            r = 4*i + j
            a(f"v_cvt_pk_bf16_f32 v{LN_X+r}, v{LN_D+2*r}, v{LN_D+2*r+1}")
        a(f"ds_write_b128 v{V_XNW}, {vr(LN_X+4*i,4)} offset:{L_XN + 4096*i}")

def dma_addr(dst, row_bytes, col_s):
    a(f"v_lshrrev_b32 v10, 3, v{V_LANE}")
    a(f"v_and_b32 v11, 7, v{V_LANE}")
    a(f"v_lshlrev_b32 v{dst}, 1, v10")
    a(f"v_and_b32 v{dst}, 4, v{dst}")
    a(f"v_xor_b32 v11, v11, v{dst}")
    a(f"v_mul_u32_u24 v10, {row_bytes}, v10")
    a(f"v_lshl_add_u32 v10, v11, 4, v10")
    a(f"v_add_u32 v{dst}, s{col_s}, v10")

def dma(vm, tag, rsrc, vaddr, sg, goff, sl, loff, flags=""):
    a(f"s_add_u32 m0, s{sl}, {loff}")
    a(f"s_add_u32 s{T7}, s{sg}, {goff}")
    a(f"buffer_load_dwordx4 v{vaddr}, {sr(rsrc,4)}, s{T7} offen {flags} lds")
    vm.issue(tag)

def tr_lane_addr(dst, hp_s, perm):
    a(f"v_bfe_u32 v10, v{V_LANE}, 2, 2")
    a(f"v_lshrrev_b32 v11, 1, v10")
    a(f"v_xor_b32 v11, s{hp_s}, v11")
    a(f"v_lshlrev_b32 v11, 6, v11")
    a(f"v_lshl_add_u32 v11, v10, 7, v11")
    a(f"v_bfe_u32 v10, v{V_LANE}, 4, 1")
    a(f"v_lshl_add_u32 v11, v10, 5, v11")
    if perm:
        a(f"v_and_b32 v10, 1, v{V_LANE}")
        a(f"v_lshl_add_u32 v11, v10, 4, v11")
        a(f"v_bfe_u32 v10, v{V_LANE}, 1, 1")
        a(f"v_lshl_add_u32 v11, v10, 3, v11")
    else:
        a(f"v_and_b32 v10, 3, v{V_LANE}")
        a(f"v_lshl_add_u32 v11, v10, 3, v11")
    a(f"v_lshrrev_b32 v10, 5, v{V_LANE}")
    a(f"v_lshl_add_u32 v{dst}, v10, 10, v11")

def tr_read(dst, vaddr, off):
    a(f"ds_read_b64_tr_b16 {vr(dst,2)}, v{vaddr} offset:{off}")
    a(f"ds_read_b64_tr_b16 {vr(dst+2,2)}, v{vaddr} offset:{off+512}")

G_X, G_ACC, G_WF = 16, 144, 192
G_XA, G_WA = 4, 8

def gemm_addr():
    a(f"s_lshr_b32 s{T0}, s{S_W}, 1")
    a(f"s_and_b32 s{T0}, s{T0}, 1")
    tr_lane_addr(G_WA, T0, True)
    a(f"v_add_u32 v{G_WA}, {L_RING}, v{G_WA}")
    a(f"v_add_u32 v{G_WA+1}, 49152, v{G_WA}")
    a(f"s_and_b32 s{T0}, s{S_W}, 1")
    a(f"s_lshl_b32 s{T0}, s{T0}, 15")
    for b in range(4):
        a(f"v_lshrrev_b32 v10, 5, v{V_LANE}")
        a(f"v_add_u32 v10, {2*b}, v10")
        a(f"v_and_b32 v11, 31, v{V_LANE}")
        a(f"v_xor_b32 v11, v11, v10")
        a(f"v_lshlrev_b32 v11, 4, v11")
        a(f"v_lshl_add_u32 v11, v10, 9, v11")
        a(f"v_add_u32 v{G_XA+b}, s{T0}, v11")

def gemm_compute(vm, swapped, zero_c, inject, end_barrier):
    lg = Cnt(a, "lgkmcnt", 15)
    def rd(u):
        if u >= 96: return
        if u < 32:
            a(f"ds_read_b128 {vr(G_X+4*u,4)}, v{G_XA+(u&3)} offset:{L_XN + (u>>2)*4096}")
            lg.issue(u)
        off = ((u >> 3) % 6)*16384 + (u & 7)*2048
        r = G_WA
        if off >= 49152:
            r, off = G_WA + 1, off - 49152
        tr_read(G_WF + 4*(u & 3), r, off)
        lg.issue(u, 2)
    vm.wait(("w", 0), extra="lgkmcnt(0)")
    a("s_barrier")
    for u in range(4):
        rd(u)
    for u in range(96):
        seg, t = u >> 5, u & 31
        if u % 8 == 4 and u + 4 < 96:
            vm.wait(("w", (u + 4) >> 3))
            a("s_barrier")
        lg.wait(u)
        if u == 95 and end_barrier:
            a("s_barrier")
        x, w, acc = vr(G_X+4*t, 4), vr(G_WF+4*(u&3), 4), vr(G_ACC+16*seg, 16)
        c = "0" if (zero_c and t == 0) else acc
        if seg in swapped:
            a(f"v_mfma_f32_32x32x16_bf16 {acc}, {x}, {w}, {c}")
        else:
            a(f"v_mfma_f32_32x32x16_bf16 {acc}, {w}, {x}, {c}")
        rd(u + 4)
        for ins in inject.get(u, []):
            if isinstance(ins, tuple):
                a(ins[0]); vm.issue(ins[1])
            else:
                a(ins)

def spread(inject, items, u0, u1):
    tot = sum(c for _, c in items)
    acc = 0
    for ins, c in items:
        u = u0 + min(u1 - u0 - 1, int(acc * (u1 - u0) / tot))
        inject.setdefault(u, []).append(ins)
        acc += c

def ring_setup(first, per, row_bytes):
    a(f"s_sub_u32 s{T1}, s{S_W}, {first}")
    a(f"s_mul_i32 s{T0}, s{T1}, {per*8*row_bytes}")
    a(f"s_lshl_b32 s{T1}, s{T1}, {10 + int(math.log2(per))}")

def ring_issue(vm, rsrc, row_bytes, seg_off, n, per):
    for p in range(per):
        dma(vm, ("w", n), rsrc, V_DB, T0, seg_off[n >> 2] + ((n & 3)*128 + p*8)*row_bytes, T1, L_RING + (n % 6)*16384 + p*1024)

def gemm_loader(vm, rsrc, row_bytes, seg_off, after=None):
    ring_setup(4, 4, row_bytes)
    for n in range(12):
        vm.wait(("w", n), extra="lgkmcnt(0)" if n == 0 else "")
        a("s_barrier")
        if 2 <= n <= 7:
            ring_issue(vm, rsrc, row_bytes, seg_off, n + 4, 4)
        if after:
            after(n)

def act_setup(nsteps_half, base, tb_stride_steps):
    a(f"s_lshr_b32 s{T1}, s{S_W}, 2")
    a(f"s_and_b32 s{T0}, s{S_W}, 3")
    a(f"s_lshl_b32 s{T2}, s{T1}, 3")
    a(f"s_add_u32 s{T2}, s{T2}, s{T0}")
    a(f"s_lshl_b32 s{T3}, s{T2}, 10")
    a(f"s_mul_i32 s{T1}, s{T1}, {nsteps_half}")
    a(f"s_add_u32 s{T0}, s{T0}, s{T1}")
    a(f"s_mul_i32 s{T1}, s{S_TB2}, {2*tb_stride_steps}")
    a(f"s_add_u32 s{T0}, s{T0}, s{T1}")
    a(f"s_lshl_b32 s{T0}, s{T0}, 10")
    a(f"s_add_u32 s{T4}, s{T0}, {base}")
    a(f"s_and_b32 s{T0}, s{S_W}, 1")
    a(f"s_lshl_b32 s{T0}, s{T0}, 12")
    a(f"s_lshr_b32 s{T1}, s{S_W}, 2")
    a(f"s_lshl_b32 s{T1}, s{T1}, 13")
    a(f"s_add_u32 s{T0}, s{T0}, s{T1}")
    a(f"v_add_u32 v4, s{T0}, v{V_L16}")
    a(f"v_add_u32 v5, 65536, v4")
    a(f"v_add_u32 v6, 131072, v4")

def act_issue(vm, q, slot, tb_stride_steps):
    for tb32 in range(2):
        dma(vm, ("a", q), R_WS, V_L16, T4, (tb32*tb_stride_steps + 4*q)*1024, T3, slot*16384 + tb32*4096, "sc1")

def tile_gemm(vm, nsteps, slots, wreg, acc, af, after):
    nq = (nsteps + 3)//4
    def mf(t):
        c = "0" if t == 0 else vr(acc, 16)
        a(f"v_mfma_f32_32x32x16_bf16 {vr(acc,16)}, {vr(wreg+4*t,4)}, {vr(af+16*((t>>2)&1)+4*(t&3),4)}, {c}")
    for q in range(nq):
        vm.wait(("a", q), extra="lgkmcnt(0)")
        a("s_barrier")
        off = slots[q]*16384
        for b in range(4):
            if 4*q + b < nsteps:
                a(f"ds_read_b128 {vr(af+16*(q&1)+4*b,4)}, v{4 + off//65536} offset:{off % 65536 + b*1024}")
            if q > 0:
                mf(4*(q-1) + b)
        after(q)
    last = list(range(4*(nq-1), nsteps))
    for i, t in enumerate(last):
        a(f"s_waitcnt lgkmcnt({len(last)-1-i})")
        mf(t)

def reduce_addr():
    a(f"s_and_b32 s{T0}, s{S_W}, 1")
    a(f"s_lshl_b32 s{T0}, s{T0}, 13")
    a(f"s_lshr_b32 s{T1}, s{S_W}, 2")
    a(f"s_lshl_b32 s{T1}, s{T1}, 14")
    a(f"s_add_u32 s{T0}, s{T0}, s{T1}")
    a(f"s_and_b32 s{T1}, s{S_W}, 2")
    a(f"s_lshl_b32 s{T1}, s{T1}, 1")
    a(f"v_and_b32 v10, 31, v{V_LANE}")
    a(f"v_lshlrev_b32 v10, 8, v10")
    a(f"v_lshrrev_b32 v11, 5, v{V_LANE}")
    a(f"v_xor_b32 v11, v11, v{V_LANE}")
    a(f"v_and_b32 v11, 1, v11")
    a(f"v_lshl_add_u32 v10, v11, 7, v10")
    a(f"v_add_u32 v10, s{T0}, v10")
    a(f"v_and_b32 v11, 7, v{V_LANE}")
    a(f"v_xor_b32 v11, s{T1}, v11")
    for i in range(4):
        a(f"v_xor_b32 v{V_REDW+i}, {i}, v11")
        a(f"v_lshl_add_u32 v{V_REDW+i}, v{V_REDW+i}, 4, v10")
    a(f"v_lshrrev_b32 v10, 3, v0")
    a(f"v_xor_b32 v11, v10, v0")
    a(f"v_and_b32 v11, 7, v11")
    a(f"v_lshlrev_b32 v11, 4, v11")
    a(f"v_lshl_add_u32 v11, v10, 8, v11")
    a(f"v_and_b32 v10, 1, v10")
    a(f"v_lshl_add_u32 v{V_REDR}, v10, 7, v11")
    a(f"v_xor_b32 v{V_REDR+1}, 128, v{V_REDR}")

def tile_reduce(acc, dst, fill):
    assert len(fill) >= 12
    for x in fill:
        a(x)
    for i in range(4):
        a(f"ds_write_b128 v{V_REDW+i}, {vr(acc+4*i,4)}")
    a("s_waitcnt lgkmcnt(0)")
    a("s_barrier")
    a(f"ds_read_b128 {vr(dst,4)}, v{V_REDR}")
    a(f"ds_read_b128 {vr(dst+8,4)}, v{V_REDR} offset:16384")
    a(f"ds_read_b128 {vr(dst+4,4)}, v{V_REDR+1}")
    a(f"ds_read_b128 {vr(dst+12,4)}, v{V_REDR+1} offset:16384")

def unpack8(dst, src):
    L = []
    for i in range(4):
        L.append(f"v_lshlrev_b32 v{dst+2*i}, 16, v{src+i}")
        L.append(f"v_and_b32 v{dst+2*i+1}, 0xffff0000, v{src+i}")
    return L

hdr = open("cdna_kernels/" + NAME + ".s.ref").read().split("\n")
for line in hdr:
    if line.startswith("; Override"):
        break
    a.raw(line)
a.raw(f"; @launch grid=(256,1,1) block=(512,1,1) lds={LDS_BYTES}")
a.raw('.amdgcn_target "amdgcn-amd-amdhsa--gfx950"')
a.raw(".text")
a.raw(f".globl {NAME}_kernel")
a.raw(".p2align 8")
a.raw(f".type {NAME}_kernel,@function")
a.label(f"{NAME}_kernel")

vm = Cnt(a, "vmcnt", 63)
a(f"s_cmp_ge_u32 s{S_WG}, 256")
a("s_cbranch_scc1 L_end")
if STAMPS:
    a("v_mov_b32 v250, 0")
stamp("start")
a(f"s_load_dwordx16 {sr(KA,16)}, s[0:1], 0")
a(f"s_load_dwordx4 {sr(KA+16,4)}, s[0:1], 64")
a(f"s_load_dwordx2 {sr(KA+20,2)}, s[0:1], 80")
a(f"s_getpc_b64 {sr(S_PC,2)}")
a.label("L_pc")
a.c("pull this kernel's code into L2")
a("v_lshrrev_b32 v4, 6, v0")
a(f"v_and_b32 v{V_LANE}, 63, v0")
a(f"v_readfirstlane_b32 s{S_W}, v4")
a(f"v_lshl_add_u32 v5, v4, 5, v{V_LANE}")
a(f"v_lshlrev_b32 v5, 7, v5")
a(f"v_min_u32 v5, L_code_end-L_pc-4, v5")
a("s_mov_b32 exec_hi, 0")
a(f"global_load_dword v14, v5, {sr(S_PC,2)}")
vm.issue("pf")
a("s_mov_b32 exec_hi, -1")
a.c("roles")
a(f"s_and_b32 s{T0}, s{S_WG}, 7")
a(f"s_lshr_b32 s{T1}, s{S_WG}, 3")
a(f"s_and_b32 s{T2}, s{T0}, {(8 >> LH) - 1}")
a(f"s_lshl_b32 s{T2}, s{T2}, {LH}")
a(f"s_and_b32 s{T3}, s{T1}, {(1 << LH) - 1}")
a(f"s_add_u32 s{S_HG}, s{T2}, s{T3}")
a(f"s_lshr_b32 s{T2}, s{T0}, {3 - LH}")
a(f"s_lshl_b32 s{T2}, s{T2}, {5 - LH}")
a(f"s_lshr_b32 s{T5}, s{T1}, {LH}")
a(f"s_add_u32 s{S_TB}, s{T2}, s{T5}")
a(f"s_lshl_b32 s{T2}, s{T0}, 2")
a(f"s_and_b32 s{T3}, s{T1}, 3")
a(f"s_add_u32 s{S_TB2}, s{T2}, s{T3}")
a(f"s_lshr_b32 s{S_J}, s{T1}, 2")
a(f"v_lshrrev_b32 v4, 3, v0")
a(f"v_and_b32 v5, 7, v0")
a(f"v_lshlrev_b32 v{V_ROWOFF}, 10, v4")
a(f"v_lshl_add_u32 v{V_ROWOFF}, v5, 4, v{V_ROWOFF}")
RW = 2 << LH
a(f"s_lshl_b32 s{T5}, s{T5}, 3")
a(f"s_add_u32 s{T5}, s{T5}, s{S_W}")
a(f"s_mul_i32 s{T5}, s{T5}, {RW*3072}")
a(f"s_lshl_b32 s{T4}, s{S_HG}, 7")
a(f"s_add_u32 s{T5}, s{T5}, s{T4}")
a(f"v_and_b32 v6, {RW-1}, v{V_LANE}")
a(f"v_mul_u32_u24 v6, 3072, v6")
a(f"v_lshrrev_b32 v7, {LH+1}, v{V_LANE}")
a(f"v_lshl_add_u32 v6, v7, 10, v6")
a(f"s_lshl_b32 s{T6}, s{S_TB}, 16")
a("s_waitcnt lgkmcnt(0)")
srd(R_WQKV, KA+2, 512*1536*2)
srd(R_X, KA+0, 2048*512*2)
m = (1 << (3*RW)) - 1
a(f"s_mov_b32 exec_lo, {m & 0xffffffff:#x}")
a(f"s_mov_b32 exec_hi, {m >> 32:#x}")
a(f"buffer_load_dword v14, v6, {sr(R_WQKV,4)}, s{T5} offen")
vm.issue("pf")
a("s_mov_b64 exec, -1")
ln_loads(vm, R_X, T6)
a(f"s_load_dword s{S_N}, {sr(KA+20,2)}, {WS_NONCE}")
dma_addr(V_DB, 3072, T4)
QKV_SEG = [1024, 2048, 0]
ring_setup(0, 2, 3072)
for n in range(6):
    ring_issue(vm, R_WQKV, 3072, QKV_SEG, n, 2)
srd(R_WO, KA+4, 512*512*2)
srd(R_W1, KA+8, 512*1376*2)
srd(R_B1, KA+10, 1376*2)
srd(R_W2, KA+12, 1376*512*2)
srd(R_B2, KA+14, 512*2)
srd(R_OUT, KA+16, 2048*512*2)
srd(R_WS, KA+20, WS_SIZE)
a(f"s_min_u32 s{T2}, s{S_J}, 3")
a(f"s_mul_i32 s{S_F0}, s{S_J}, 5")
a(f"s_add_u32 s{S_F0}, s{S_F0}, s{T2}")
a(f"s_cmp_lt_u32 s{S_J}, 3")
a(f"s_cselect_b32 s{S_NT}, 6, 5")
a(f"s_lshl_b32 s{T4}, s{S_J}, 7")
a(f"s_lshl_b32 s{T5}, s{S_TB2}, 16")
a(f"s_add_u32 s{S_TILE}, s{T5}, s{T4}")
a.c("small operands needed much later: residual x tile, b2, b1")
a(f"buffer_load_dwordx4 {vr(V_HRES,4)}, v{V_ROWOFF}, {sr(R_X,4)}, s{S_TILE} offen")
a(f"v_lshlrev_b32 v6, 4, v5")
a(f"buffer_load_dwordx4 {vr(V_B2,4)}, v6, {sr(R_B2,4)}, s{T4} offen")
a(f"v_and_b32 v6, 0x13, v{V_LANE}")
a(f"v_bfe_u32 v7, v{V_LANE}, 2, 1")
a(f"v_lshl_add_u32 v6, v7, 3, v6")
a(f"v_bfe_u32 v7, v{V_LANE}, 3, 1")
a(f"v_lshl_add_u32 v6, v7, 2, v6")
a(f"v_lshlrev_b32 v6, 1, v6")
a(f"s_bfe_u32 s{T0}, s{S_W}, 0x10001")
a(f"s_add_u32 s{T0}, s{T0}, s{S_F0}")
a(f"s_lshl_b32 s{T0}, s{T0}, 6")
for seg in range(3):
    a(f"buffer_load_ushort v{V_B1+seg}, v6, {sr(R_B1,4)}, s{T0} offen offset:{seg*128}")
vm.issue("misc", 5)
a(f"v_mov_b32 v{V_B1+3}, 0")
dma_addr(V_DA, 1024, T4)
a(f"v_and_b32 v6, 31, v4")
a(f"v_xor_b32 v6, v6, v5")
a(f"v_lshlrev_b32 v6, 4, v6")
a(f"v_lshl_add_u32 v6, v5, 9, v6")
a(f"v_lshrrev_b32 v4, 5, v4")
a(f"v_lshl_add_u32 v{V_XNW}, v4, 15, v6")
a(f"v_lshlrev_b32 v{V_L16}, 4, v{V_LANE}")
a(f"v_lshlrev_b32 v249, 2, v{V_LANE}")
reduce_addr()
gemm_addr()
ln_consts()
flag_addr(WS_FKV, S_HG, S_TB, S_HG)
a("s_waitcnt lgkmcnt(0)")
a.c("hand-off tag of this launch: next value of a full-period sequence after the one found in the workspace")
a(f"s_mul_i32 s{S_N}, s{S_N}, 0x0019660d")
a(f"s_add_u32 s{S_N}, s{S_N}, 0x3c6ef35f")
a(f"v_mov_b32 v248, s{S_N}")

a.c("======== phase 1: LN1 + QKV projection")
stamp("setup")
ln_compute(vm, 1.0)
stamp("ln1 done")
a(f"s_cmp_lt_u32 s{S_W}, 4")
a("s_cbranch_scc1 L_p1_compute")
gemm_loader(vm.copy(), R_WQKV, 3072, QKV_SEG)
a("s_branch L_p1_done")
a.label("L_p1_compute")
a(f"s_and_b32 s{T0}, s{S_W}, 1")
a(f"s_lshr_b32 s{T1}, s{S_W}, 1")
a(f"s_lshl_b32 s{T2}, s{T0}, 12")
a(f"s_lshl_b32 s{T3}, s{T1}, 11")
a(f"s_add_u32 s{T4}, s{T2}, s{T3}")
a(f"s_lshl_b32 s{T2}, s{S_HG}, 1")
a(f"s_add_u32 s{T2}, s{T2}, s{T1}")
a(f"s_lshl_b32 s{T2}, s{T2}, 18")
a(f"s_lshl_b32 s{T3}, s{S_TB}, 1")
a(f"s_add_u32 s{T3}, s{T3}, s{T0}")
a(f"s_lshl_b32 s{T3}, s{T3}, 11")
a(f"s_add_u32 s{T2}, s{T2}, s{T3}")
a(f"s_add_u32 s{T2}, s{T2}, {WS_KV}")
a(f"s_add_u32 s{T3}, s{T2}, 0x20000")
E_K, E_V, E_Q, E_C = 208, 209, 210, 212
inj = {}
pre = [f"v_and_b32 v10, 0x33, v{V_LANE}", f"v_bfe_u32 v11, v{V_LANE}, 2, 1", "v_lshl_add_u32 v10, v11, 3, v10",
       f"v_bfe_u32 v11, v{V_LANE}, 3, 1", "v_lshl_add_u32 v10, v11, 2, v10", f"v_lshlrev_b32 v{E_K}, 4, v10",
       f"v_and_b32 v10, 15, v{V_LANE}", "v_lshlrev_b32 v10, 4, v10", f"v_lshrrev_b32 v11, 5, v{V_LANE}",
       "v_lshl_add_u32 v10, v11, 8, v10", f"v_bfe_u32 v11, v{V_LANE}, 4, 1", f"v_lshl_add_u32 v{E_V}, v11, 17, v10",
       f"v_add_u32 v{E_Q}, s{T4}, v{V_L16}", f"v_mov_b32 v{E_C}, {f32(0.25*math.log2(math.e))}", f"v_mov_b32 v{E_C+1}, v{E_C}"]
spread(inj, [(x, 1) for x in pre], 4, 19)
def cvt_inplace(b):
    return [f"v_cvt_pk_bf16_f32 v{b+i}, v{b+2*i}, v{b+2*i+1}" for i in range(8)]
aK, aV, aQ = G_ACC, G_ACC+16, G_ACC+32
items = [(x, 1) for x in cvt_inplace(aK)]
items += [((f"buffer_store_dwordx4 {vr(aK,4)}, v{E_K}, {sr(R_WS,4)}, s{T2} offen sc1", "st"), 2),
          ((f"buffer_store_dwordx4 {vr(aK+4,4)}, v{E_K}, {sr(R_WS,4)}, s{T3} offen sc1", "st"), 2)]
spread(inj, items, 36, 42)
items = [(x, 1) for x in cvt_inplace(aV)]
items += [((f"buffer_store_dwordx4 {vr(aV,4)}, v{E_V}, {sr(R_WS,4)}, s{T2} offen offset:1024 sc1", "st"), 2),
          ((f"buffer_store_dwordx4 {vr(aV+4,4)}, v{E_V}, {sr(R_WS,4)}, s{T2} offen offset:1536 sc1", "st"), 2)]
spread(inj, items, 67, 71)
gemm_compute(vm.copy(), {1}, True, inj, False)
a("s_nop 7")
a("s_nop 3")
for i in range(8):
    a(f"v_pk_mul_f32 {vr(aQ+2*i,2)}, {vr(aQ+2*i,2)}, {vr(E_C,2)}")
for x in cvt_inplace(aQ):
    a(x)
a(f"ds_write_b128 v{E_Q}, {vr(aQ,4)} offset:{L_Q}")
a(f"ds_write_b128 v{E_Q}, {vr(aQ+4,4)} offset:{L_Q+1024}")
a.label("L_p1_done")
stamp("p1 done")
a("s_waitcnt vmcnt(0) lgkmcnt(0)")
vm.clear()
a("s_barrier")
flag_store(4)
stamp("kv drained")

a.c("======== phase 2: attention; wave = (head = w&3, key range by w>>2), 64 queries")
A_Q = 16
A_S = 24
A_O = 56
A_KV = 88
A_IDX, A_AV = 8, 9
A_W1, A_W2, A_DUM = 14, 15, 11
QA, QB, SA, SB, OA, OB = A_Q, A_Q+4, A_S, A_S+16, A_O, A_O+16
def Kf(t): return A_KV + 12*(t % 4)
def Vf(t, s): return A_KV + 12*(t % 4) + 4 + 4*s
a(f"s_and_b32 s{T0}, s{S_W}, 3")
a(f"s_lshr_b32 s{T1}, s{S_W}, 2")
a(f"s_lshl_b32 s{T2}, s{S_W}, 10")
a(f"v_add_u32 v4, s{T2}, v{V_L16}")
a(f"v_xor_b32 v5, 4096, v4")
a(f"ds_read_b128 {vr(QA,4)}, v4 offset:{L_Q}")
a(f"ds_read_b128 {vr(QB,4)}, v5 offset:{L_Q}")
a(f"v_and_b32 v4, 15, v{V_LANE}")
a(f"v_lshrrev_b32 v5, 5, v{V_LANE}")
a(f"v_lshl_add_u32 v6, v5, 4, v4")
a(f"v_lshlrev_b32 v{A_AV}, 4, v6")
a(f"s_lshl_b32 s{T2}, s{S_HG}, 2")
a(f"s_add_u32 s{T2}, s{T2}, s{T0}")
a(f"s_lshl_b32 s{T2}, s{T2}, 17")
a(f"s_add_u32 s{S_HEAD}, s{T2}, {WS_KV}")
a(f"s_mul_i32 s{T3}, s{T1}, {NA*8192}")
a(f"s_add_u32 s{S_XOFF}, s{S_HEAD}, s{T3}")
a(f"s_mov_b32 s{S_MASKV}, 0xffff")
a(f"s_mov_b32 s{S_MASKV+1}, 0xffff")
a(f"v_mov_b32 v{A_IDX}, 0xdddddddd")
a.c("rows 16 and 20 of the V operand are ones (row sums for both lane halves), the other spare rows zero")
a(f"v_and_b32 v4, 0x1b, v{V_LANE}")
a(f"v_cmp_eq_u32 vcc, 16, v4")
a(f"v_mov_b32 v4, 0x3f803f80")
a(f"v_mov_b32 v5, 0")
a(f"v_cndmask_b32 v4, v5, v4, vcc")
for t in range(4):
    for i in range(8):
        a(f"v_mov_b32 v{Vf(t,0)+i}, v4")
for i in range(32):
    a(f"v_mov_b32 v{A_O+i}, 0")
for i in range(8):
    a(f"v_mov_b32 v{SB+8+i}, 0")
a.c("addresses of the weight prefetch done by waves 4-7")
a(f"s_lshl_b32 s{T4}, s{S_F0}, 6")
dma_addr(V_DB, 2752, T4)
a(f"v_lshrrev_b32 v4, 2, v6")
a(f"v_mul_u32_u24 v4, 2752, v4")
a(f"v_and_b32 v5, 3, v6")
a(f"v_lshlrev_b32 v5, 7, v5")
a(f"v_min_u32 v5, 380, v5")
a(f"v_add3_u32 v{A_W1}, v4, v5, s{T4}")
a(f"v_min_u32 v4, 21, v6")
a(f"v_lshlrev_b32 v4, 10, v4")
a(f"s_lshl_b32 s{T4}, s{S_J}, 7")
a(f"v_add_u32 v{A_W2}, s{T4}, v4")
a(f"s_lshl_b32 s{S_D0}, s{T0}, 17")
a(f"s_lshl_b32 s{S_D1}, s{T0}, 14")
a(f"s_mul_i32 s{S_D2}, s{T0}, {64*2752}")
a(f"s_lshl_b32 s{S_D3}, s{T0}, 13")
a(f"s_and_b32 s{T4}, s{S_TB2}, 3")
a(f"s_lshl_b32 s{T4}, s{T4}, 2")
a(f"s_add_u32 s{T4}, s{T4}, s{T0}")
a(f"s_mul_i32 s{S_D4}, s{T4}, {32*2752}")
a(f"s_mul_i32 s{S_D5}, s{T4}, {86*1024}")
flag_poll(4, 32)
a("s_waitcnt lgkmcnt(0)")
a("s_barrier")
stamp("kv ready")
def kv_load(t, soff, imm, masked_extra=None):
    a(f"buffer_load_dwordx4 {vr(Kf(t),4)}, v{V_L16}, {sr(R_WS,4)}, s{soff} offen offset:{imm} sc1")
    a(f"s_mov_b64 exec, {sr(S_MASKV,2)}")
    a(f"buffer_load_dwordx4 {vr(Vf(t,0),4)}, v{A_AV}, {sr(R_WS,4)}, s{soff} offen offset:{imm+1024} sc1")
    a(f"buffer_load_dwordx4 {vr(Vf(t,1),4)}, v{A_AV}, {sr(R_WS,4)}, s{soff} offen offset:{imm+1536} sc1")
    if masked_extra:
        a(masked_extra)
    a("s_mov_b64 exec, -1")
kv_load(0, S_XOFF, 0)
kv_load(1, S_XOFF, 2048)
a(f"s_add_u32 s{S_XOFF}, s{S_XOFF}, 4096")
kv_load(2, S_XOFF, 0)
flag_addr(WS_FO, S_TB, S_HG, S_TB2)
def smf(o, v, s):
    a(f"v_smfmac_f32_32x32x32_bf16 {vr(o,16)}, {vr(v,4)}, {vr(s,8)}, v{A_IDX}")
def attn_body(duty):
    dummy = Cnt(a, "vmcnt", 63)
    for t in range(4):
        for i in range(16):
            if i == 2:
                smf(OB, Vf(t-1, 1), SB+8)
            if i == 5:
                a(f"v_mfma_f32_32x32x16_bf16 {vr(SB,16)}, {vr(Kf(t),4)}, {vr(QB,4)}, 0")
            if i == 10:
                smf(OA, Vf(t, 0), SA)
            if i == 12:
                ex = None
                if duty and t % 2 == 0:
                    ex = f"buffer_load_dword v{A_DUM}, v{A_W1}, {sr(R_W1,4)}, s{S_D4} offen"
                elif duty:
                    ex = f"buffer_load_dword v{A_DUM}, v{A_W2}, {sr(R_W2,4)}, s{S_D5} offen"
                kv_load(t+3, S_XOFF, 2048 if (t+3) % 2 else 0, ex)
                if (t+3) % 2:
                    a(f"s_add_u32 s{S_XOFF}, s{S_XOFF}, 4096")
                if duty:
                    if t % 2 == 0:
                        a(f"s_add_u32 s{S_D4}, s{S_D4}, {8*2752}")
                    else:
                        a(f"s_add_u32 s{S_D5}, s{S_D5}, {22*1024}")
                    for p in range(2):
                        dma(dummy, 0, R_WO, V_DA, S_D0, (2*t+p)*8192, S_D1, L_WO + (2*t+p)*1024)
                    dma(dummy, 0, R_W1, V_DB, S_D2, t*8*2752, S_D3, L_RING + t*1024)
            a(f"v_exp_f32 v{SA+i}, v{SA+i}")
        for i in range(16):
            if i == 2:
                smf(OA, Vf(t, 1), SA+8)
            if i == 5:
                a(f"s_waitcnt vmcnt({18 if duty else 6})")
                a(f"v_mfma_f32_32x32x16_bf16 {vr(SA,16)}, {vr(Kf(t+1),4)}, {vr(QA,4)}, 0")
            if i == 10:
                smf(OB, Vf(t, 0), SB)
            if t == 3 and i == 12:
                if duty:
                    a(f"s_add_u32 s{S_D0}, s{S_D0}, {8*8192}")
                    a(f"s_add_u32 s{S_D1}, s{S_D1}, {8*1024}")
                    a(f"s_add_u32 s{S_D2}, s{S_D2}, {32*2752}")
                    a(f"s_add_u32 s{S_D3}, s{S_D3}, {4*1024}")
                a(f"s_sub_u32 s{S_LOOP}, s{S_LOOP}, 1")
                a(f"s_cmp_lg_u32 s{S_LOOP}, 0")
            a(f"v_exp_f32 v{SB+i}, v{SB+i}")
a(f"s_cmp_lt_u32 s{S_W}, 4")
a("s_cbranch_scc1 L_attn_a")
a("s_waitcnt vmcnt(0)")
a(f"v_mfma_f32_32x32x16_bf16 {vr(SA,16)}, {vr(Kf(0),4)}, {vr(QA,4)}, 0")
a(f"s_mov_b32 s{S_LOOP}, 2")
a("s_nop 7")
a("s_nop 3")
a.raw(".p2align 4")
a.label("L_attn_duty")
attn_body(True)
a("s_cbranch_scc1 L_attn_duty")
a(f"s_mov_b32 s{S_LOOP}, {16 - NA - 2}")
if SWITCH:
    a("s_setprio 2")
a("s_branch L_attn" if NA < 14 else "s_branch L_attn_end")
a.label("L_attn_a")
a("s_setprio 1")
a("s_waitcnt vmcnt(6)")
a(f"v_mfma_f32_32x32x16_bf16 {vr(SA,16)}, {vr(Kf(0),4)}, {vr(QA,4)}, 0")
a(f"s_mov_b32 s{S_LOOP}, {NA}")
a("s_nop 7")
a("s_nop 3")
a.raw(".p2align 4")
a.label("L_attn")
attn_body(False)
a("s_cbranch_scc1 L_attn")
a.label("L_attn_end")
a("s_setprio 0")
a("s_nop 0")
smf(OB, Vf(3, 1), SB+8)
stamp("attn loop done")
a.c("combine the two key ranges: keep A, send B")
a(f"s_mul_i32 s{T2}, s{S_W}, 3072")
a(f"v_add_u32 v4, s{T2}, v{V_L16}")
a(f"s_xor_b32 s{T3}, s{S_W}, 4")
a(f"s_mul_i32 s{T3}, s{T3}, 3072")
a(f"v_add_u32 v5, s{T3}, v{V_L16}")
a(f"s_lshr_b32 s{T1}, s{S_W}, 2")
a(f"s_lshl_b32 s{T2}, s{S_TB}, 1")
a(f"s_add_u32 s{T2}, s{T2}, s{T1}")
a(f"s_lshl_b32 s{T2}, s{T2}, 5")
a(f"s_lshl_b32 s{T3}, s{S_HG}, 2")
a(f"s_add_u32 s{T2}, s{T2}, s{T3}")
a(f"s_and_b32 s{T0}, s{S_W}, 3")
a(f"s_add_u32 s{T2}, s{T2}, s{T0}")
a(f"ds_write_b128 v4, {vr(OB,4)} offset:{L_OX}")
a(f"ds_write_b128 v4, {vr(OB+4,4)} offset:{L_OX+1024}")
a(f"ds_write_b32 v4, v{OB+8} offset:{L_OX+2048}")
a(f"s_lshl_b32 s{T2}, s{T2}, 10")
a(f"s_add_u32 s{T2}, s{T2}, {WS_OF}")
a(f"v_mov_b32 v6, {f32(2.0**-64)}")
a(f"v_mov_b32 v7, {f32(2.0**64)}")
a("s_waitcnt lgkmcnt(0)")
a("s_barrier")
a(f"ds_read_b32 v{SA+8}, v5 offset:{L_OX+2048}")
a(f"ds_read_b128 {vr(SA,4)}, v5 offset:{L_OX}")
a(f"ds_read_b128 {vr(SA+4,4)}, v5 offset:{L_OX+1024}")
a("s_waitcnt lgkmcnt(2)")
a(f"v_add_f32 v{OA+8}, v{OA+8}, v{SA+8}")
a.c("the loop subtracted no row maximum: a row sum outside [2^-64, 2^64] (or NaN) sends the wave to the true-max path")
a(f"v_cmp_ge_f32 vcc, v{OA+8}, v6")
a(f"v_cmp_le_f32 {sr(S_SAVE,2)}, v{OA+8}, v7")
a("s_waitcnt lgkmcnt(0)")
for i in range(4):
    a(f"v_pk_add_f32 {vr(OA+2*i,2)}, {vr(OA+2*i,2)}, {vr(SA+2*i,2)}")
a(f"s_and_b64 vcc, vcc, {sr(S_SAVE,2)}")
a(f"s_cmp_eq_u64 vcc, -1")
if FORCE_FB:
    a("s_branch L_attn_fb")
else:
    a("s_cbranch_scc0 L_attn_fb")
a.label("L_attn_fin")
a(f"v_rcp_f32 v4, v{OA+8}")
a("s_nop 0")
for i in range(8):
    a(f"v_mul_f32 v{OA+i}, v{OA+i}, v4")
for i in range(4):
    a(f"v_cvt_pk_bf16_f32 v{SA+i}, v{OA+2*i}, v{OA+2*i+1}")
a(f"buffer_store_dwordx4 {vr(SA,4)}, v{V_L16}, {sr(R_WS,4)}, s{T2} offen sc1")
stamp("O stored")

a.c("======== phase 3: h = x + O Wo ; tile 64 tokens x 64 columns; wave = (tb32, ct, kh)")
P_W = 16
P_ACC = 80
P_AF = 96
P_XR = 128
a(f"s_bfe_u32 s{T2}, s{S_W}, 0x10001")
tr_lane_addr(7, T2, False)
a(f"s_lshr_b32 s{T3}, s{S_W}, 2")
a(f"s_lshl_b32 s{T3}, s{T3}, 15")
a(f"s_add_u32 s{T3}, s{T3}, {L_WO}")
a(f"v_add_u32 v7, s{T3}, v7")
act_setup(16, WS_OF, 32)
ring_setup(0, 2, 2752)
a("s_waitcnt vmcnt(0)")
a("s_barrier")
flag_store(0)
stamp("O drained")
for t in range(16):
    tr_read(P_W + 4*t, 7, t*2048)
flag_poll(0, 8)
a("s_waitcnt lgkmcnt(0)")
a("s_barrier")
stamp("O ready")
for q in range(4):
    act_issue(vm, q, q, 32)
W1_SEG = [0, 128, 256]
def p3_after(q):
    ring_issue(vm, R_W1, 2752, W1_SEG, q + 2, 2)
flag_addr(WS_FH, S_TB2, S_J, S_TB2)
tile_gemm(vm, 16, [0, 1, 2, 3], P_W, P_ACC, P_AF, p3_after)
tile_reduce(P_ACC, P_AF, unpack8(P_XR, V_HRES) + [f"s_add_u32 s{T2}, s{S_TILE}, {WS_H}", "s_nop 0", "s_nop 0", "s_nop 0"])
for h in range(2):
    a(f"s_waitcnt lgkmcnt({2-2*h})")
    for i in range(2*h, 2*h+2):
        a(f"v_pk_add_f32 {vr(P_XR+2*i,2)}, {vr(P_XR+2*i,2)}, {vr(P_AF+2*i,2)}")
        a(f"v_pk_add_f32 {vr(P_XR+2*i,2)}, {vr(P_XR+2*i,2)}, {vr(P_AF+8+2*i,2)}")
    for i in range(2*h, 2*h+2):
        a(f"v_cvt_pk_bf16_f32 v{V_HRES+i}, v{P_XR+2*i}, v{P_XR+2*i+1}")
a(f"buffer_store_dwordx4 {vr(V_HRES,4)}, v{V_ROWOFF}, {sr(R_WS,4)}, s{T2} offen sc1")
stamp("h stored")

a.c("======== phase 4: g = gelu(LN(h) W1 + b1), everything scaled by GS so that the tanh argument is u*(u*u+k)")
c1 = -2.0*math.sqrt(2.0/math.pi)*math.log2(math.e)
c3 = c1*0.044715
GS = -((-c3) ** (1.0/3))
GK = c1/GS
a.c("bias -> accumulators through one-hot products")
a(f"v_cmp_gt_u32 vcc, 32, v{V_LANE}")
a(f"v_mov_b32 v16, 0x3f80")
a(f"v_mov_b32 v17, 0")
a(f"v_cndmask_b32 v16, v17, v16, vcc")
for i in range(12):
    if i:
        a(f"v_mov_b32 v{16+i}, {'v16' if i % 5 == 0 else '0'}")
gemm_addr()
for seg in range(3):
    a(f"v_mfma_f32_32x32x16_bf16 {vr(G_ACC+16*seg,16)}, {vr(V_B1,4)}, {vr(16+4*seg,4)}, 0")
ln_consts()
a("s_waitcnt vmcnt(0)")
vm.clear()
a.c("pull the stored tile back into this XCD's L2 while the flags travel")
a(f"buffer_load_dwordx4 {vr(P_XR,4)}, v{V_ROWOFF}, {sr(R_WS,4)}, s{T2} offen sc1")
vm.issue("rr")
a("s_barrier")
flag_store(0)
stamp("h drained")
a(f"v_mov_b32 v10, {f32(GS)}")
a(f"v_mov_b32 v11, v10")
a(f"s_lshl_b32 s{T4}, s{S_TB2}, 16")
a(f"s_add_u32 s{T4}, s{T4}, {WS_H}")
a("s_nop 3")
for i in range(24):
    a(f"v_pk_mul_f32 {vr(G_ACC+2*i,2)}, {vr(G_ACC+2*i,2)}, v[10:11]")
a(f"v_mov_b32 v10, {f32(GK)}")
a(f"v_mov_b32 v11, v10")
a(f"v_mov_b32 v14, 1.0")
a(f"v_mov_b32 v15, 1.0")
flag_poll(0, 8)
a("s_barrier")
stamp("h ready")
ln_loads(vm, R_WS, T4, "sc1")
flag_addr(WS_FG, S_TB2, S_J, S_TB2)
ln_compute(vm, GS)
stamp("ln2 done")
F_W = 16
F_ACC = 188
F_AF = 204
def w2_lds(kh, p):
    return p*1024 if kh else (90112 + p*1024 if p < 72 else (p - 72)*1024)
def w2_reads(kh, t0, t1):
    for t in range(t0, t1):
        off = w2_lds(kh, 2*t)
        tr_read(F_W + 4*t, 7 + off//65536, off % 65536)
def w2_addr():
    a(f"s_bfe_u32 s{T2}, s{S_W}, 0x10001")
    tr_lane_addr(7, T2, False)
    a(f"v_add_u32 v8, 65536, v7")
    a(f"v_add_u32 v9, 131072, v7")
a(f"s_cmp_lt_u32 s{S_W}, 4")
a("s_cbranch_scc1 L_p4_compute")
a.c("---- loader waves: W1 ring, then W2 (second k-half for themselves, first k-half for waves 0-3)")
vl = vm.copy()
w2_addr()
a(f"s_and_b32 s{T5}, s{S_W}, 3")
a(f"s_lshl_b32 s{T6}, s{T5}, 10")
a(f"s_lshl_b32 s{T5}, s{T5}, 13")
def w2_issue(kh, p0, p1, throttle=None):
    for p in range(p0, p1, 4):
        if throttle is not None and len(vl.q) > throttle:
            a(f"s_waitcnt vmcnt({throttle})")
            vl.q = vl.q[len(vl.q) - throttle:]
        dma(vl, ("w2", kh, p//16), R_W2, V_DA, T5, (kh*86 + p)*8192, T6, w2_lds(kh, p))
def p4_after(n):
    if n >= 8:
        w2_issue(1, 16*(n-8), 16*(n-8) + 16)
gemm_loader(vl, R_W1, 2752, W1_SEG, p4_after)
vl.wait(("w2", 1, 1))
a("s_barrier")
w2_issue(1, 64, 88)
w2_reads(1, 0, 16)
w2_issue(0, 0, 32, 7)
act_setup(43, WS_GF, 86)
vl.wait(("w2", 1, 5), extra="lgkmcnt(0)")
a("s_barrier")
stamp("g drained L")
w2_issue(0, 32, 48, 5)
w2_reads(1, 16, 30)
w2_issue(0, 48, 64, 5)
w2_reads(1, 30, 43)
w2_issue(0, 64, 88, 5)
a("s_waitcnt vmcnt(0) lgkmcnt(0)")
stamp("w2 staged L")
a("s_barrier")
vm.clear()
G_SLOTS = [2, 3, 4, 0, 1, 5, 6, 7, 8, 9, 2]
vtmp = vm.copy()
for q in range(3):
    act_issue(vtmp, q, G_SLOTS[q], 86)
a("s_branch L_p5")

a.label("L_p4_compute")
a(f"s_and_b32 s{T0}, s{S_W}, 1")
a(f"s_lshl_b32 s{T1}, s{S_TB2}, 1")
a(f"s_add_u32 s{T0}, s{T0}, s{T1}")
a(f"s_mul_i32 s{T0}, s{T0}, 86")
a(f"s_lshr_b32 s{T1}, s{S_W}, 1")
a(f"s_add_u32 s{T3}, s{T1}, 4")
a(f"s_add_u32 s{T1}, s{T1}, s{S_F0}")
a(f"s_lshl_b32 s{T1}, s{T1}, 1")
a(f"s_add_u32 s{T0}, s{T0}, s{T1}")
a(f"s_lshl_b32 s{T0}, s{T0}, 10")
a(f"s_add_u32 s{T0}, s{T0}, {WS_GF}")
a(f"s_add_u32 s{T1}, s{T0}, 4096")
a(f"s_add_u32 s{T2}, s{T0}, 8192")
GT, GO = 208, 224
def gelu(seg, pk):
    u = G_ACC + 16*seg
    L = []
    def two(op, f):
        if pk:
            for i in range(8):
                L.append((f"v_pk_{op}_f32 {vr(GT+2*i,2)}, " + f(lambda b: vr(b+2*i, 2), lambda b: vr(b, 2)), 1))
        else:
            for i in range(16):
                L.append((f"v_{op}_f32 v{GT+i}, " + f(lambda b: f"v{b+i}", lambda b: f"v{b}"), 1))
    two("fma", lambda e, k: f"{e(u)}, {e(u)}, {k(10)}")
    two("mul", lambda e, k: f"{e(GT)}, {e(u)}")
    for i in range(16):
        L.append((f"v_exp_f32 v{GT+i}, v{GT+i}", 2))
    two("add", lambda e, k: f"{e(GT)}, {k(14)}")
    for i in range(16):
        L.append((f"v_rcp_f32 v{GT+i}, v{GT+i}", 2))
    two("mul", lambda e, k: f"{e(GT)}, {e(u)}")
    for i in range(8):
        L.append((f"v_cvt_pk_bf16_f32 v{GO+i}, v{GT+2*i}, v{GT+2*i+1}", 1))
        if i % 4 == 3:
            L.append(((f"buffer_store_dwordx4 {vr(GO+i-3,4)}, v{V_L16}, {sr(R_WS,4)}, s{T0+seg} offen offset:{(i//4)*1024} sc1", "st"), 2))
    return L
inj = {}
spread(inj, gelu(0, PK_IL), 35, 64)
spread(inj, gelu(1, PK_IL), 67, 95)
vc = vm.copy()
gemm_compute(vc, set(), False, inj, True)
stamp("ffn1 done")
a(f"v_lshrrev_b32 v4, 4, v{V_LANE}")
a(f"s_cmp_ge_u32 s{T3}, s{S_NT}")
a(f"s_cselect_b32 s{T5}, 1, 2")
a(f"v_min_u32 v4, s{T5}, v4")
a(f"v_and_b32 v5, 15, v{V_LANE}")
a(f"v_lshlrev_b32 v5, 7, v5")
a(f"v_lshl_add_u32 v16, v4, 12, v5")
a(f"s_mov_b32 s{T6}, s{T0}")
a("s_cbranch_scc1 L_p4_skip")
a("s_nop 3")
a.raw(".p2align 3")
for x, _ in gelu(2, 1):
    a(x[0] if isinstance(x, tuple) else x)
a.label("L_p4_skip")
stamp("g stored")
w2_addr()
act_setup(43, WS_GF, 86)
a("s_waitcnt vmcnt(0)")
a(f"buffer_load_dword v17, v16, {sr(R_WS,4)}, s{T6} offen sc1")
a("s_barrier")
flag_store(0)
stamp("g drained")
flag_poll(0, 8)
a("s_waitcnt vmcnt(0)")
a("s_barrier")
stamp("g ready")
for q in range(3):
    act_issue(vm, q, G_SLOTS[q], 86)
w2_reads(0, 0, 43)

a.label("L_p5")
a.c("======== phase 5: out = h + g W2 + b2 ; wave = (tb32, ct, kh), 43 k-steps each")
def p5_after(q):
    if q == 0:
        for n in range(3, 6):
            act_issue(vm, n, G_SLOTS[n], 86)
    elif q <= 5:
        act_issue(vm, q + 5, G_SLOTS[q + 5], 86)
tile_gemm(vm, 43, G_SLOTS, F_W, F_ACC, F_AF, p5_after)
stamp("ffn2 done")
fill = unpack8(16, V_HRES) + unpack8(24, V_B2) + [f"v_pk_add_f32 {vr(16+2*i,2)}, {vr(16+2*i,2)}, {vr(24+2*i,2)}" for i in range(4)]
fill += [f"v_mov_b32 v10, {f32(1.0/GS)}", "v_mov_b32 v11, v10"]
tile_reduce(F_ACC, 32, fill)
for h in range(2):
    a(f"s_waitcnt lgkmcnt({2-2*h})")
    for i in range(2*h, 2*h+2):
        a(f"v_pk_add_f32 {vr(32+2*i,2)}, {vr(32+2*i,2)}, {vr(40+2*i,2)}")
        a(f"v_pk_fma_f32 {vr(16+2*i,2)}, {vr(32+2*i,2)}, v[10:11], {vr(16+2*i,2)}")
    for i in range(2*h, 2*h+2):
        a(f"v_cvt_pk_bf16_f32 v{24+i}, v{16+2*i}, v{16+2*i+1}")
a(f"buffer_store_dwordx4 v[24:27], v{V_ROWOFF}, {sr(R_OUT,4)}, s{S_TILE} offen")
if STAMPS:
    a("s_waitcnt vmcnt(0)")
stamp("end")
stamp_flush()
a.c("every workgroup has read the old tag by now: leave this launch's tag for the next launch to step past")
a(f"s_or_b32 s{T0}, s{S_WG}, s{S_W}")
a(f"s_cmp_lg_u32 s{T0}, 0")
a("s_cbranch_scc1 L_end")
a("s_mov_b64 exec, 1")
a(f"buffer_store_dword v248, v249, {sr(R_WS,4)}, 0 offen offset:{WS_NONCE} sc1")
a.label("L_end")
a("s_endpgm")
a.label("L_code_end")

a.c("======== attention with the row's true maximum: q-block A over all 2048 keys")
a.label("L_attn_fb")
FM = SB
a("s_waitcnt vmcnt(0)")
a(f"v_mov_b32 v{FM}, 0xff800000")
a(f"s_mov_b32 s{S_XOFF}, s{S_HEAD}")
a(f"s_mov_b32 s{S_LOOP}, 64")
a.label("L_fb1")
a(f"buffer_load_dwordx4 {vr(Kf(0),4)}, v{V_L16}, {sr(R_WS,4)}, s{S_XOFF} offen sc1")
a("s_waitcnt vmcnt(0)")
a(f"v_mfma_f32_32x32x16_bf16 {vr(SA,16)}, {vr(Kf(0),4)}, {vr(QA,4)}, 0")
a(f"s_add_u32 s{S_XOFF}, s{S_XOFF}, 2048")
a("s_nop 7")
a("s_nop 3")
for i in range(8):
    a(f"v_max3_f32 v{FM}, v{FM}, v{SA+2*i}, v{SA+2*i+1}")
a(f"s_sub_u32 s{S_LOOP}, s{S_LOOP}, 1")
a(f"s_cmp_lg_u32 s{S_LOOP}, 0")
a("s_cbranch_scc1 L_fb1")
a(f"v_mov_b32 v{FM+1}, v{FM}")
a("s_nop 1")
a(f"v_permlane32_swap_b32 v{FM}, v{FM+1}")
a("s_nop 1")
a(f"v_max_f32 v{FM}, v{FM}, v{FM+1}")
for i in range(16):
    a(f"v_mov_b32 v{OA+i}, 0")
a(f"s_mov_b32 s{S_XOFF}, s{S_HEAD}")
a(f"s_mov_b32 s{S_LOOP}, 64")
a.label("L_fb2")
kv_load(0, S_XOFF, 0)
a("s_waitcnt vmcnt(0)")
a(f"v_mfma_f32_32x32x16_bf16 {vr(SA,16)}, {vr(Kf(0),4)}, {vr(QA,4)}, 0")
a(f"s_add_u32 s{S_XOFF}, s{S_XOFF}, 2048")
a("s_nop 7")
a("s_nop 3")
for i in range(16):
    a(f"v_sub_f32 v{SA+i}, v{SA+i}, v{FM}")
for i in range(16):
    a(f"v_exp_f32 v{SA+i}, v{SA+i}")
a("s_nop 1")
smf(OA, Vf(0, 0), SA)
smf(OA, Vf(0, 1), SA+8)
a(f"s_sub_u32 s{S_LOOP}, s{S_LOOP}, 1")
a(f"s_cmp_lg_u32 s{S_LOOP}, 0")
a("s_nop 7")
a("s_cbranch_scc1 L_fb2")
a("s_nop 7")
a("s_nop 3")
a("s_branch L_attn_fin")

a.raw('.section .rodata,"a"')
a.raw(".p2align 6")
a.raw(f".amdhsa_kernel {NAME}_kernel")
a.raw("  .amdhsa_next_free_vgpr 256")
a.raw("  .amdhsa_next_free_sgpr 102")
a.raw("  .amdhsa_accum_offset 256")
a.raw("  .amdhsa_group_segment_fixed_size 0")
a.raw("  .amdhsa_kernarg_size 88")
a.raw("  .amdhsa_user_sgpr_count 2")
a.raw("  .amdhsa_user_sgpr_kernarg_segment_ptr 1")
a.raw("  .amdhsa_system_sgpr_workgroup_id_x 1")
a.raw(".end_amdhsa_kernel")

out = [x for x in args if not x.startswith("--")]
open(out[0] if out else "cdna_kernels/" + NAME + ".s", "w").write(a.text())
```

```python
import sys, math
from lib import *

NAME = "sequential_preLN__softmax_full_mha__dense_activation_gelu__prompt"
args = sys.argv[1:]
def opt(n, d):
    for x in args:
        if x.startswith("--" + n + "="):
            return type(d)(x.split("=")[1])
    return d
STAMPS = "--stamps" in args
FORCE_FB = "--force-fallback" in args
LH = opt("lh", 1)
NA = opt("na", 52)
IT1 = opt("it1", 4)
TB1 = opt("tb1", 6)
MALLW = opt("mallw", 1)
ROT = opt("rot", 0)
NBLK = opt("nblk", 2)
TB2 = opt("tb2", 1)
IT2 = opt("it2", 1)
TEND = opt("tend", 1)
T0B = opt("t0b", 0)
KG = opt("kg", 0)
NODUTY = opt("noduty", 0)
NPA = opt("npa", 3)
WPF = opt("wpf", 1)
GST = opt("gst", 0)
PROBE = opt("probe", "").replace("_", " ")

S_WG, S_W = 2, 3
S_PC = 4
R_X, R_WQKV, R_WO, R_W1, R_W2, R_WS, R_OUT, R_B1, R_B2 = 8, 12, 16, 20, 24, 28, 32, 36, 40
KA = 44
S_HG, S_TB, S_TB2, S_J, S_N = 66, 67, 68, 69, 70
S_F0 = 71
T0, T1, T2, T3, T4, T5, T6, T7 = 72, 73, 74, 75, 76, 77, 78, 79
S_LOOP, S_XOFF, S_HEAD = 80, 81, 82
S_TILE = 83
S_MASKV = 84
S_D0, S_D1, S_D2, S_D3 = 86, 87, 88, 89
S_TS = 90
S_NT = 92
S_SPIN = 93
S_SAVE = 94
S_D4, S_D5 = 96, 97
S_STAGE = 101
S_SHR = 65 + 0 if False else 100
S_R0, S_R1 = 4, 5
S_FOWN, S_FPOLL = 98, 99

WS_NONCE = 0
WS_FKV = 0x1000
WS_FO = 0x2000
WS_FH = 0x4000
WS_FG = 0x6000
WS_STAMP = 0x10000
WS_KV = 0x100000
WS_OF = 0x500000
WS_H = 0x700000
WS_GF = 0x900000
WS_SIZE = 0x1000000

L_XN = 0
L_RING = 65536
L_Q = 32768
L_OX = 0
LDS_BYTES = 163840

V_LANE, V_ROWOFF, V_XNW = 1, 2, 3
V_DA, V_DB = 12, 13
V_B1 = 232
V_B2 = 236
V_REDW, V_REDR, V_L16 = 240, 244, 246
V_HRES = 252

a = Asm()
stamp_idx = [0]
def stamp(name):
    i = stamp_idx[0]
    stamp_idx[0] += 1
    if PROBE and name == "start":
        a("s_memrealtime s[6:7]")
    if PROBE and name == "setup":
        a("s_mov_b32 s1, 0")
    if PROBE == name:
        a(f"s_memrealtime {sr(S_TS,2)}")
        a("s_waitcnt lgkmcnt(0)")
        a(f"s_sub_u32 s1, s{S_TS}, s6")
    if PROBE and name == "end":
        a("s_mul_i32 s1, s1, 10")
        a("s_add_u32 s1, s1, 10000")
        a(f"s_cmp_lg_u32 s{S_WG}, 100")
        a("s_cbranch_scc1 L_nopin")
        a.label("L_pin")
        a(f"s_memrealtime {sr(S_TS,2)}")
        a("s_waitcnt lgkmcnt(0)")
        a(f"s_sub_u32 s{S_TS}, s{S_TS}, s6")
        a(f"s_cmp_lt_u32 s{S_TS}, s1")
        a("s_cbranch_scc1 L_pin")
        a.label("L_nopin")
    if not STAMPS:
        return
    a.c(f"stamp {i} {name}")
    a(f"s_memtime {sr(S_TS,2)}")
    a(f"s_waitcnt lgkmcnt(0)")
    a(f"v_writelane_b32 v250, s{S_TS}, {i}")
    a(f"s_memrealtime {sr(S_TS,2)}")
    a(f"s_waitcnt lgkmcnt(0)")
    a(f"v_writelane_b32 v250, s{S_TS}, {i+32}")

def stamp_flush():
    if not STAMPS:
        return
    l = a.uniq("L_st")
    a(f"s_and_b32 s{T7}, s{S_W}, 3")
    a(f"s_cmp_lg_u32 s{T7}, 0")
    a(f"s_cbranch_scc1 {l}")
    a(f"s_lshl_b32 s{T7}, s{S_WG}, 9")
    a(f"s_lshl_b32 s{T6}, s{S_W}, 6")
    a(f"s_add_u32 s{T7}, s{T7}, s{T6}")
    a(f"s_add_u32 s{T7}, s{T7}, {WS_STAMP}")
    a(f"v_lshlrev_b32 v251, 2, v{V_LANE}")
    a(f"buffer_store_dword v250, v251, {sr(R_WS,4)}, s{T7} offen")
    a.label(l)

def srd(r, ptr, size):
    a(f"s_mov_b32 s{r}, s{ptr}")
    a(f"s_mov_b32 s{r+1}, s{ptr+1}")
    a(f"s_mov_b32 s{r+2}, {size}")
    a(f"s_mov_b32 s{r+3}, 0x00020000")

def flag_addr(base, line_own, word_own, line_poll):
    a(f"s_lshl_b32 s{S_FOWN}, s{line_own}, 8")
    a(f"s_lshl_b32 s{T7}, s{word_own}, 2")
    a(f"s_add_u32 s{S_FOWN}, s{S_FOWN}, s{T7}")
    a(f"s_add_u32 s{S_FOWN}, s{S_FOWN}, {base}")
    a(f"s_lshl_b32 s{S_FPOLL}, s{line_poll}, 8")
    a(f"s_add_u32 s{S_FPOLL}, s{S_FPOLL}, {base}")

def flag_store(poller):
    l = a.uniq("L_nf")
    a(f"s_cmp_lg_u32 s{S_W}, {poller}")
    a(f"s_cbranch_scc1 {l}")
    a(f"s_mov_b64 exec, 1")
    a(f"buffer_store_dword v248, v249, {sr(R_WS,4)}, s{S_FOWN} offen sc1")
    a(f"s_mov_b64 exec, -1")
    a.label(l)

def flag_poll(poller, nflags):
    l_skip, l_poll, l_done = a.uniq("L_skip"), a.uniq("L_poll"), a.uniq("L_done")
    a(f"s_cmp_lg_u32 s{S_W}, {poller}")
    a(f"s_cbranch_scc1 {l_skip}")
    a(f"s_mov_b32 exec_hi, 0")
    a(f"s_mov_b32 exec_lo, {(1 << nflags) - 1:#x}")
    a(f"s_mov_b32 s{S_SPIN}, 0")
    a.label(l_poll)
    a(f"buffer_load_dword v247, v249, {sr(R_WS,4)}, s{S_FPOLL} offen sc1")
    a(f"s_add_u32 s{S_SPIN}, s{S_SPIN}, 1")
    a("s_waitcnt vmcnt(0)")
    a(f"v_cmp_eq_u32 vcc, v247, v248")
    a(f"s_cmp_gt_u32 s{S_SPIN}, 200000")
    a(f"s_cbranch_scc1 {l_done}")
    a(f"s_cmp_eq_u64 vcc, exec")
    a(f"s_cbranch_scc0 {l_poll}")
    a.label(l_done)
    a("s_mov_b64 exec, -1")
    a.label(l_skip)

LN_X, LN_D, LN_T = 16, 48, 56

def ln_loads(vm, rsrc, soff, flags=""):
    for i in range(8):
        a(f"buffer_load_dwordx4 {vr(LN_X+4*i,4)}, v{V_ROWOFF}, {sr(rsrc,4)}, s{soff} offen offset:{128*i} {flags}")
        vm.issue(("x", i))

def ln_consts():
    t = LN_T
    a(f"v_mov_b32 v{t+4}, 0x3f803f80")
    a(f"v_mov_b32 v{t+5}, 0x00003f80")
    a(f"v_mov_b32 v{t+6}, 0x3f800000")
    a(f"v_mov_b32 v{t}, 0")
    a(f"v_mov_b32 v{t+1}, 0")

def ln_stats(vm, scale):
    t = LN_T
    for i in range(8):
        vm.wait(("x", i))
        if i in (7,) and scale >= 1.0:
            stamp(f"x{i} in {scale}")
        a.raw(".p2align 3")
        for j in range(4):
            a(f"v_dot2_f32_bf16 v{t}, v{LN_X+4*i+j}, v{t+4}, v{t}")
            a(f"v_dot2_f32_bf16 v{t+1}, v{LN_X+4*i+j}, v{LN_X+4*i+j}, v{t+1}")

def ln_norm(scale):
    t = LN_T
    a("s_nop 1")
    for ctl in ("quad_perm:[1,0,3,2]", "quad_perm:[2,3,0,1]", "row_half_mirror"):
        a("s_nop 0")
        a(f"v_add_f32_dpp v{t}, v{t}, v{t} {ctl} row_mask:0xf bank_mask:0xf")
        a(f"v_add_f32_dpp v{t+1}, v{t+1}, v{t+1} {ctl} row_mask:0xf bank_mask:0xf")
    a(f"v_mul_f32 v{t}, {f32(-1.0/512)}, v{t}")
    a(f"v_mul_f32 v{t+2}, v{t}, v{t}")
    a(f"v_mul_f32 v{t+1}, {f32(1.0/512)}, v{t+1}")
    a(f"v_sub_f32 v{t+1}, v{t+1}, v{t+2}")
    a(f"v_max_f32 v{t+1}, 0, v{t+1}")
    a(f"v_add_f32 v{t+1}, {f32(1e-5)}, v{t+1}")
    a(f"v_rsq_f32 v{t+2}, v{t+1}")
    a("s_nop 0")
    if scale != 1.0:
        a(f"v_mul_f32 v{t+2}, {f32(scale)}, v{t+2}")
    a(f"v_mov_b32 v{t+3}, v{t+2}")
    for i in range(8):
        a.raw(".p2align 3")
        for j in range(4):
            a(f"v_dot2_f32_bf16 v{LN_D+2*j}, v{LN_X+4*i+j}, v{t+5}, v{t}")
            a(f"v_dot2_f32_bf16 v{LN_D+2*j+1}, v{LN_X+4*i+j}, v{t+6}, v{t}")
        for j in range(4):
            a(f"v_pk_mul_f32 {vr(LN_D+2*j,2)}, {vr(LN_D+2*j,2)}, {vr(t+2,2)}")
        for j in range(4):
            a(f"v_cvt_pk_bf16_f32 v{LN_X+4*i+j}, v{LN_D+2*j}, v{LN_D+2*j+1}")
        a(f"ds_write_b128 v{V_XNW}, {vr(LN_X+4*i,4)} offset:{L_XN + 4096*i}")

def dma_addr(dst, row_bytes, col_s):
    a(f"v_lshrrev_b32 v10, 3, v{V_LANE}")
    a(f"v_and_b32 v11, 7, v{V_LANE}")
    a(f"v_lshlrev_b32 v{dst}, 1, v10")
    a(f"v_and_b32 v{dst}, 4, v{dst}")
    a(f"v_xor_b32 v11, v11, v{dst}")
    a(f"v_mul_u32_u24 v10, {row_bytes}, v10")
    a(f"v_lshl_add_u32 v10, v11, 4, v10")
    a(f"v_add_u32 v{dst}, s{col_s}, v10")

def dma(vm, tag, rsrc, vaddr, sg, goff, sl, loff, flags=""):
    a(f"s_add_u32 m0, s{sl}, {loff}")
    a(f"s_add_u32 s{T7}, s{sg}, {goff}")
    a(f"buffer_load_dwordx4 v{vaddr}, {sr(rsrc,4)}, s{T7} offen {flags} lds")
    vm.issue(tag)

def tr_lane_addr(dst, hp_s, perm):
    a(f"v_bfe_u32 v10, v{V_LANE}, 2, 2")
    a(f"v_lshrrev_b32 v11, 1, v10")
    a(f"v_xor_b32 v11, s{hp_s}, v11")
    a(f"v_lshlrev_b32 v11, 6, v11")
    a(f"v_lshl_add_u32 v11, v10, 7, v11")
    a(f"v_bfe_u32 v10, v{V_LANE}, 4, 1")
    a(f"v_lshl_add_u32 v11, v10, 5, v11")
    if perm:
        a(f"v_and_b32 v10, 1, v{V_LANE}")
        a(f"v_lshl_add_u32 v11, v10, 4, v11")
        a(f"v_bfe_u32 v10, v{V_LANE}, 1, 1")
        a(f"v_lshl_add_u32 v11, v10, 3, v11")
    else:
        a(f"v_and_b32 v10, 3, v{V_LANE}")
        a(f"v_lshl_add_u32 v11, v10, 3, v11")
    a(f"v_lshrrev_b32 v10, 5, v{V_LANE}")
    a(f"v_lshl_add_u32 v{dst}, v10, 10, v11")

def tr_read(dst, vaddr, off):
    a(f"ds_read_b64_tr_b16 {vr(dst,2)}, v{vaddr} offset:{off}")
    a(f"ds_read_b64_tr_b16 {vr(dst+2,2)}, v{vaddr} offset:{off+512}")

G_X, G_ACC = 16, 144
G_WF = [192, 196, 200, 204, 224, 228]
G_XA, G_WA = 4, 8

def gemm_addr():
    a(f"s_lshr_b32 s{T0}, s{S_W}, 1")
    a(f"s_and_b32 s{T0}, s{T0}, 1")
    tr_lane_addr(G_WA, T0, True)
    a(f"v_add_u32 v{G_WA}, {L_RING}, v{G_WA}")
    a(f"v_add_u32 v{G_WA+1}, 49152, v{G_WA}")
    a(f"s_and_b32 s{T0}, s{S_W}, 1")
    a(f"s_lshl_b32 s{T0}, s{T0}, 15")
    for b in range(4):
        a(f"v_lshrrev_b32 v10, 5, v{V_LANE}")
        a(f"v_add_u32 v10, {2*b}, v10")
        a(f"v_and_b32 v11, 31, v{V_LANE}")
        a(f"v_xor_b32 v11, v11, v10")
        a(f"v_lshlrev_b32 v11, 4, v11")
        a(f"v_lshl_add_u32 v11, v10, 9, v11")
        a(f"v_add_u32 v{G_XA+b}, s{T0}, v11")

def gemm_compute(vm, swapped, zero_c, inject, end_barrier, nm):
    lg = Cnt(a, "lgkmcnt", 15)
    nxt = [0]
    def rd(u):
        if u % 8 == 0 and u:
            vm.wait(("w", u >> 3))
            a("s_barrier")
        if u < 32:
            a(f"ds_read_b128 {vr(G_X+4*u,4)}, v{G_XA+(u&3)} offset:{L_XN + (u>>2)*4096}")
            lg.issue(u)
        off = ((u >> 3) % 6)*16384 + (u & 7)*2048
        r = G_WA
        if off >= 49152:
            r, off = G_WA + 1, off - 49152
        tr_read(G_WF[u % 6], r, off)
        lg.issue(u, 2)
    def fill(upto):
        while nxt[0] <= min(upto, 95):
            rd(nxt[0]); nxt[0] += 1
    vm.wait(("w", 0), extra="lgkmcnt(0)")
    a("s_barrier")
    fill(3)
    for u in range(96):
        seg, t = u >> 5, u & 31
        if t == 0 and GST:
            stamp(f"{nm} pass{seg}")
        if u < 32:
            lg.wait(u)
        elif u % 2 == 0:
            lg.wait(u + 1)
        if u == 94 and end_barrier:
            a("s_barrier")
        x, w, acc = vr(G_X+4*t, 4), vr(G_WF[u % 6], 4), vr(G_ACC+16*seg, 16)
        c = "0" if (zero_c and t == 0) else acc
        if seg in swapped:
            a(f"v_mfma_f32_32x32x16_bf16 {acc}, {x}, {w}, {c}")
        else:
            a(f"v_mfma_f32_32x32x16_bf16 {acc}, {w}, {x}, {c}")
        fill(u + (4 if u < 28 else 5 if u < 29 else 6))
        for ins in inject.get(u, []):
            if isinstance(ins, tuple):
                a(ins[0]); vm.issue(ins[1])
            else:
                a(ins)

def spread(inject, items, u0, u1):
    tot = sum(c for _, c in items)
    acc = 0
    for ins, c in items:
        u = u0 + min(u1 - u0 - 1, int(acc * (u1 - u0) / tot))
        inject.setdefault(u, []).append(ins)
        acc += c

def ring_setup(first, per, row_bytes):
    a(f"s_sub_u32 s{T1}, s{S_W}, {first}")
    a(f"s_mul_i32 s{T0}, s{T1}, {per*8*row_bytes}")
    a(f"s_lshl_b32 s{T1}, s{T1}, {10 + int(math.log2(per))}")

def ring_issue(vm, rsrc, row_bytes, seg_off, n, per):
    for p in range(per):
        dma(vm, ("w", n), rsrc, V_DB, T0, seg_off[n >> 2] + ((n & 3)*128 + p*8)*row_bytes, T1, L_RING + (n % 6)*16384 + p*1024)

def gemm_loader(vm, rsrc, row_bytes, seg_off, after=None, early_last=False):
    ring_setup(4, 4, row_bytes)
    for n in range(12):
        if early_last and n > 8:
            k = vm.need(("w", n))
            if n < 11:
                a(f"s_waitcnt vmcnt({k})")
            else:
                l = a.uniq("L_lw")
                a(f"s_waitcnt vmcnt({k})")
        else:
            vm.wait(("w", n), extra="lgkmcnt(0)" if n == 0 else "")
        a("s_barrier")
        if 2 <= n <= 7:
            ring_issue(vm, rsrc, row_bytes, seg_off, n + 4, 4)
        if after:
            after(n)

def act_setup(nsteps_half, base, both):
    a(f"s_and_b32 s{T0}, s{S_W}, 3")
    a(f"s_lshl_b32 s{T3}, s{T0}, 10")
    if both:
        a(f"s_lshr_b32 s{T1}, s{S_W}, 2")
        a(f"s_lshl_b32 s{T2}, s{T1}, 13")
        a(f"s_add_u32 s{T3}, s{T3}, s{T2}")
        a(f"s_mul_i32 s{T1}, s{T1}, {nsteps_half}")
        a(f"s_add_u32 s{T0}, s{T0}, s{T1}")
    a(f"s_mul_i32 s{T1}, s{S_TB2}, {4*nsteps_half}")
    a(f"s_add_u32 s{T0}, s{T0}, s{T1}")
    a(f"s_lshl_b32 s{T0}, s{T0}, 10")
    a(f"s_add_u32 s{T4}, s{T0}, {base}")
    a(f"s_and_b32 s{T0}, s{S_W}, 2")
    a(f"s_lshl_b32 s{T0}, s{T0}, 12")
    a(f"v_add_u32 v4, s{T0}, v{V_L16}")
    a(f"v_add_u32 v5, 65536, v4")
    a(f"v_add_u32 v6, 131072, v4")

def act_issue(vm, q, slot, nsteps_half, both):
    for kh in range(1 if both else 2):
        for tb32 in range(2):
            dma(vm, ("a", q), R_WS, V_L16, T4, ((2*tb32 + kh)*nsteps_half + 4*q)*1024, T3, slot*16384 + kh*8192 + tb32*4096, "sc1")

def tile_compute(vm, nsteps, slots, wreg, acc, af):
    lg = Cnt(a, "lgkmcnt", 15)
    n = 2*nsteps
    def rd(u):
        if u >= n: return
        t, tb32 = u >> 1, u & 1
        if u % 8 == 0:
            vm.wait(("a", t >> 2))
            a("s_barrier")
        off = slots[t >> 2]*16384 + tb32*4096 + (t & 3)*1024
        a(f"ds_read_b128 {vr(af+4*(u&3),4)}, v{4 + off//65536} offset:{off % 65536}")
        lg.issue(u)
    for u in range(4):
        rd(u)
    for u in range(n):
        t, tb32 = u >> 1, u & 1
        lg.wait(u)
        d = vr(acc + 16*tb32, 16)
        a(f"v_mfma_f32_32x32x16_bf16 {d}, {vr(wreg(t),4)}, {vr(af+4*(u&3),4)}, {'0' if t == 0 else d}")
        rd(u + 4)
    a("s_nop 7")
    for tb32 in range(2):
        if tb32 == 0:
            a("s_nop 2")
        for i in range(4):
            a(f"ds_write_b128 v{V_REDW+i}, {vr(acc+16*tb32+4*i,4)} offset:{tb32*8192}")
    a("s_waitcnt lgkmcnt(0)")

def tile_loader(vm, nsteps, after):
    for q in range((nsteps + 3)//4):
        vm.wait(("a", q))
        a("s_barrier")
        after(q)

def reduce_addr():
    a(f"s_and_b32 s{T0}, s{S_W}, 2")
    a(f"s_lshl_b32 s{T0}, s{T0}, 13")
    a(f"s_and_b32 s{T1}, s{S_W}, 1")
    a(f"s_lshl_b32 s{T1}, s{T1}, 2")
    a(f"v_and_b32 v10, 31, v{V_LANE}")
    a(f"v_lshlrev_b32 v10, 8, v10")
    a(f"v_lshrrev_b32 v11, 5, v{V_LANE}")
    a(f"v_xor_b32 v11, v11, v{V_LANE}")
    a(f"v_and_b32 v11, 1, v11")
    a(f"v_lshl_add_u32 v10, v11, 7, v10")
    a(f"v_add_u32 v10, s{T0}, v10")
    a(f"v_and_b32 v11, 7, v{V_LANE}")
    a(f"v_xor_b32 v11, s{T1}, v11")
    for i in range(4):
        a(f"v_xor_b32 v{V_REDW+i}, {i}, v11")
        a(f"v_lshl_add_u32 v{V_REDW+i}, v{V_REDW+i}, 4, v10")
    a(f"v_lshrrev_b32 v10, 3, v0")
    a(f"v_xor_b32 v11, v10, v0")
    a(f"v_and_b32 v11, 7, v11")
    a(f"v_lshlrev_b32 v11, 4, v11")
    a(f"v_lshl_add_u32 v11, v10, 8, v11")
    a(f"v_and_b32 v10, 1, v10")
    a(f"v_lshl_add_u32 v{V_REDR}, v10, 7, v11")
    a(f"v_xor_b32 v{V_REDR+1}, 128, v{V_REDR}")

def tile_gather(dst):
    a("s_barrier")
    a(f"ds_read_b128 {vr(dst,4)}, v{V_REDR}")
    a(f"ds_read_b128 {vr(dst+8,4)}, v{V_REDR} offset:16384")
    a(f"ds_read_b128 {vr(dst+4,4)}, v{V_REDR+1}")
    a(f"ds_read_b128 {vr(dst+12,4)}, v{V_REDR+1} offset:16384")

def unpack8(dst, src):
    L = []
    for i in range(4):
        L.append(f"v_lshlrev_b32 v{dst+2*i}, 16, v{src+i}")
        L.append(f"v_and_b32 v{dst+2*i+1}, 0xffff0000, v{src+i}")
    return L

hdr = open("cdna_kernels/" + NAME + ".s.ref").read().split("\n")
for line in hdr:
    if line.startswith("; Override"):
        break
    a.raw(line)
a.raw(f"; @launch grid=(256,1,1) block=(512,1,1) lds={LDS_BYTES}")
a.raw('.amdgcn_target "amdgcn-amd-amdhsa--gfx950"')
a.raw(".text")
a.raw(f".globl {NAME}_kernel")
a.raw(".p2align 8")
a.raw(f".type {NAME}_kernel,@function")
a.label(f"{NAME}_kernel")

vm = Cnt(a, "vmcnt", 63)
a(f"s_cmp_ge_u32 s{S_WG}, 256")
a("s_cbranch_scc1 L_end")
if STAMPS:
    a("v_mov_b32 v250, 0")
stamp("start")
a(f"s_load_dwordx16 {sr(KA,16)}, s[0:1], 0")
a(f"s_load_dwordx4 {sr(KA+16,4)}, s[0:1], 64")
a(f"s_load_dwordx2 {sr(KA+20,2)}, s[0:1], 80")
a(f"s_getpc_b64 {sr(S_PC,2)}")
a.label("L_pc")
a.c("pull this kernel's code into L2")
a("v_lshrrev_b32 v4, 6, v0")
a(f"v_and_b32 v{V_LANE}, 63, v0")
a(f"v_readfirstlane_b32 s{S_W}, v4")
a(f"v_lshl_add_u32 v5, v4, 5, v{V_LANE}")
a(f"v_lshlrev_b32 v5, 7, v5")
a(f"v_min_u32 v5, L_code_end-L_pc-4, v5")
a("s_mov_b32 exec_hi, 0")
a(f"global_load_dword v251, v5, {sr(S_PC,2)}")
vm.issue("pf")
a("s_mov_b32 exec_hi, -1")
a.c("roles")
a(f"s_and_b32 s{T0}, s{S_WG}, 7")
a(f"s_lshr_b32 s{T1}, s{S_WG}, 3")
a(f"s_lshr_b32 s{T2}, s{T0}, {3 - LH}")
a(f"s_lshl_b32 s{T2}, s{T2}, {5 - LH}")
a(f"s_lshr_b32 s{S_SHR}, s{T1}, {LH}")
a(f"s_add_u32 s{S_TB}, s{T2}, s{S_SHR}")
a(f"v_lshrrev_b32 v4, 3, v0")
a(f"v_and_b32 v5, 7, v0")
a(f"v_lshlrev_b32 v{V_ROWOFF}, 10, v4")
a(f"v_lshl_add_u32 v{V_ROWOFF}, v5, 4, v{V_ROWOFF}")
a(f"s_lshl_b32 s{T6}, s{S_TB}, 16")
a(f"s_and_b32 s{T2}, s{T0}, {(8 >> LH) - 1}")
a(f"s_and_b32 s{T3}, s{T1}, {(1 << LH) - 1}")
a(f"s_lshl_b32 s{T3}, s{T3}, {3 - LH}")
a(f"s_add_u32 s{S_HG}, s{T2}, s{T3}")
a(f"s_lshl_b32 s{T4}, s{S_HG}, 7")
def w_prefetch(v):
    RW = 4 << LH
    a(f"s_lshl_b32 s{T5}, s{S_SHR}, 2")
    a(f"s_and_b32 s{T7}, s{S_W}, 3")
    a(f"s_add_u32 s{T5}, s{T5}, s{T7}")
    a(f"s_mul_i32 s{T5}, s{T5}, {RW*3072}")
    a(f"s_lshl_b32 s{T7}, s{S_HG}, 7")
    a(f"s_add_u32 s{T5}, s{T5}, s{T7}")
    a(f"v_mul_u32_u24 v10, 3072, v{V_LANE}")
    a(f"s_mov_b32 exec_lo, {(1 << RW) - 1:#x}")
    a(f"s_mov_b32 exec_hi, 0")
    for o in (1024, 2048, 0):
        a(f"buffer_load_dword v251, v10, {sr(R_WQKV,4)}, s{T5} offen offset:{o}")
        v.issue("pf")
    a("s_mov_b64 exec, -1")
a(f"s_mov_b32 s{R_X+2}, {2048*512*2}")
a(f"s_mov_b32 s{R_X+3}, 0x00020000")
a(f"s_mov_b32 s{R_WQKV+2}, {512*1536*2}")
a(f"s_mov_b32 s{R_WQKV+3}, 0x00020000")
a("s_waitcnt lgkmcnt(0)")
a(f"s_mov_b64 {sr(R_WQKV,2)}, {sr(KA+2,2)}")
a(f"s_mov_b64 {sr(R_X,2)}, {sr(KA,2)}")
ln_loads(vm, R_X, T6)
stamp("x issued")
a(f"s_lshl_b32 s{T2}, s{T0}, 2")
a(f"s_and_b32 s{T3}, s{T1}, 3")
a(f"s_add_u32 s{S_TB2}, s{T2}, s{T3}")
a(f"s_lshr_b32 s{S_J}, s{T1}, 2")
dma_addr(V_DB, 3072, T4)
QKV_SEG = [1024, 2048, 0]
a(f"s_min_u32 s{T2}, s{S_J}, 3")
a(f"s_mul_i32 s{S_F0}, s{S_J}, 5")
a(f"s_add_u32 s{S_F0}, s{S_F0}, s{T2}")
a(f"s_cmp_lt_u32 s{S_J}, 3")
a(f"s_cselect_b32 s{S_NT}, 6, 5")
a(f"s_lshl_b32 s{T4}, s{S_J}, 7")
a(f"s_lshl_b32 s{T5}, s{S_TB2}, 16")
a(f"s_add_u32 s{S_TILE}, s{T5}, s{T4}")
a(f"v_and_b32 v6, 31, v4")
a(f"v_xor_b32 v6, v6, v5")
a(f"v_lshlrev_b32 v6, 4, v6")
a(f"v_lshl_add_u32 v6, v5, 9, v6")
a(f"v_lshrrev_b32 v4, 5, v4")
a(f"v_lshl_add_u32 v{V_XNW}, v4, 15, v6")
a(f"v_lshlrev_b32 v{V_L16}, 4, v{V_LANE}")
a(f"v_lshlrev_b32 v249, 2, v{V_LANE}")
ln_consts()
srd(R_WS, KA+20, WS_SIZE)

a.c("======== phase 1: LN1 + QKV projection")
def late_setup():
    srd(R_WO, KA+4, 512*512*2)
    srd(R_W1, KA+8, 512*1376*2)
    srd(R_B1, KA+10, 1376*2)
    srd(R_W2, KA+12, 1376*512*2)
    srd(R_B2, KA+14, 512*2)
    srd(R_OUT, KA+16, 2048*512*2)
    a.c("hand-off tag of this launch: next value of a full-period sequence after the one found in the workspace")
    a(f"s_mul_i32 s{S_N}, s{S_N}, 0x0019660d")
    a(f"s_add_u32 s{S_N}, s{S_N}, 0x3c6ef35f")
    a(f"v_mov_b32 v248, s{S_N}")
    flag_addr(WS_FKV, S_HG, S_TB, S_HG)
def misc_loads(vm):
    a.c("small operands needed much later: residual x tile, b2, b1")
    a(f"buffer_load_dwordx4 {vr(V_HRES,4)}, v{V_ROWOFF}, {sr(R_X,4)}, s{S_TILE} offen")
    a(f"v_and_b32 v10, 7, v0")
    a(f"v_lshlrev_b32 v10, 4, v10")
    a(f"s_lshl_b32 s{T4}, s{S_J}, 7")
    a(f"buffer_load_dwordx4 {vr(V_B2,4)}, v10, {sr(R_B2,4)}, s{T4} offen")
    a(f"v_and_b32 v10, 0x13, v{V_LANE}")
    a(f"v_bfe_u32 v11, v{V_LANE}, 2, 1")
    a(f"v_lshl_add_u32 v10, v11, 3, v10")
    a(f"v_bfe_u32 v11, v{V_LANE}, 3, 1")
    a(f"v_lshl_add_u32 v10, v11, 2, v10")
    a(f"v_lshlrev_b32 v10, 1, v10")
    a(f"s_bfe_u32 s{T5}, s{S_W}, 0x10001")
    a(f"s_add_u32 s{T5}, s{T5}, s{S_F0}")
    a(f"s_lshl_b32 s{T5}, s{T5}, 6")
    for seg in range(3):
        a(f"buffer_load_ushort v{V_B1+seg}, v10, {sr(R_B1,4)}, s{T5} offen offset:{seg*128}")
    vm.issue("misc", 5)
    a(f"v_mov_b32 v{V_B1+3}, 0")
stamp("setup")
va, vl = vm.copy(), vm.copy()
a(f"s_cmp_lt_u32 s{S_W}, 4")
a("s_cbranch_scc1 L_p1_a")
if WPF == 1:
    w_prefetch(vl)
a(f"s_load_dword s{S_N}, {sr(KA+20,2)}, {WS_NONCE}")
ln_stats(vl, 2.0)
a("s_branch L_p1_norm")
a.label("L_p1_a")
if WPF == 2:
    w_prefetch(va)
gemm_addr()
ring_setup(0, 4, 3072)
ln_stats(va, 1.0)
a(f"s_load_dword s{S_N}, {sr(KA+20,2)}, {WS_NONCE}")
a.label("L_p1_norm")
ln_norm(1.0)
stamp("ln1 done")
a(f"s_cmp_lt_u32 s{S_W}, 4")
a("s_cbranch_scc1 L_p1_compute")
def p1_after(n):
    if n == 0:
        for k in range(NPA, min(6, NPA + 2)):
            ring_issue(vl, R_WQKV, 3072, QKV_SEG, k, 4)
        late_setup()
    if n == 1:
        for k in range(NPA + 2, 6):
            ring_issue(vl, R_WQKV, 3072, QKV_SEG, k, 4)
    if n == 7:
        misc_loads(vl)
    if n == 8 and MALLW:
        a.c("first touch of the later weights, a different 1/256 by every workgroup (waves 5, 6, 7: Wo, W1, W2)")
        a(f"s_mul_i32 s{T2}, s{S_WG}, 5504")
        a(f"s_lshl_b32 s{T3}, s{S_WG}, 11")
        a(f"v_lshlrev_b32 v10, 7, v{V_LANE}")
        for w, r, so, n_l in ((5, R_WO, T3, 16), (6, R_W1, T2, 43), (7, R_W2, T2, 43)):
            l = a.uniq("L_w")
            a(f"s_cmp_lg_u32 s{S_W}, {w}")
            a(f"s_cbranch_scc1 {l}")
            m = (1 << n_l) - 1
            a(f"s_mov_b32 exec_lo, {m & 0xffffffff:#x}")
            a(f"s_mov_b32 exec_hi, {m >> 32:#x}")
            a(f"buffer_load_dword v251, v10, {sr(r,4)}, s{so} offen")
            a("s_mov_b64 exec, -1")
            a.label(l)
gemm_loader(vl, R_WQKV, 3072, QKV_SEG, p1_after, early_last=MALLW)
a("s_branch L_p1_done")
a.label("L_p1_compute")
for n in range(NPA):
    ring_issue(va, R_WQKV, 3072, QKV_SEG, n, 4)
a("s_waitcnt lgkmcnt(0)")
late_setup()
stamp("A pre done")
a(f"s_and_b32 s{T0}, s{S_W}, 1")
a(f"s_lshr_b32 s{T1}, s{S_W}, 1")
a(f"s_lshl_b32 s{T2}, s{T0}, 12")
a(f"s_lshl_b32 s{T3}, s{T1}, 11")
a(f"s_add_u32 s{T4}, s{T2}, s{T3}")
a(f"s_lshl_b32 s{T2}, s{S_HG}, 1")
a(f"s_add_u32 s{T2}, s{T2}, s{T1}")
a(f"s_lshl_b32 s{T2}, s{T2}, 18")
a(f"s_lshl_b32 s{T3}, s{S_TB}, 1")
a(f"s_add_u32 s{T3}, s{T3}, s{T0}")
a(f"s_lshl_b32 s{T3}, s{T3}, 11")
a(f"s_add_u32 s{T2}, s{T2}, s{T3}")
a(f"s_add_u32 s{T2}, s{T2}, {WS_KV}")
a(f"s_add_u32 s{T3}, s{T2}, 0x20000")
E_K, E_V, E_Q, E_C = 208, 209, 210, 212
inj = {}
pre = [f"v_and_b32 v10, 0x33, v{V_LANE}", f"v_bfe_u32 v11, v{V_LANE}, 2, 1", "v_lshl_add_u32 v10, v11, 3, v10",
       f"v_bfe_u32 v11, v{V_LANE}, 3, 1", "v_lshl_add_u32 v10, v11, 2, v10", f"v_lshlrev_b32 v{E_K}, 4, v10",
       f"v_and_b32 v10, 15, v{V_LANE}", "v_lshlrev_b32 v10, 4, v10", f"v_lshrrev_b32 v11, 5, v{V_LANE}",
       "v_lshl_add_u32 v10, v11, 8, v10", f"v_bfe_u32 v11, v{V_LANE}, 4, 1", f"v_lshl_add_u32 v{E_V}, v11, 17, v10",
       f"v_add_u32 v{E_Q}, s{T4}, v{V_L16}", f"v_mov_b32 v{E_C}, {f32(0.25*math.log2(math.e))}", f"v_mov_b32 v{E_C+1}, v{E_C}"]
spread(inj, [(x, 1) for x in pre], 4, 19)
def cvt_inplace(b):
    return [f"v_cvt_pk_bf16_f32 v{b+i}, v{b+2*i}, v{b+2*i+1}" for i in range(8)]
aK, aV, aQ = G_ACC, G_ACC+16, G_ACC+32
items = [(x, 1) for x in cvt_inplace(aK)]
items += [((f"buffer_store_dwordx4 {vr(aK,4)}, v{E_K}, {sr(R_WS,4)}, s{T2} offen sc1", "st"), 2),
          ((f"buffer_store_dwordx4 {vr(aK+4,4)}, v{E_K}, {sr(R_WS,4)}, s{T3} offen sc1", "st"), 2)]
spread(inj, items, 36, 42)
items = [(x, 1) for x in cvt_inplace(aV)]
items += [((f"buffer_store_dwordx4 {vr(aV,4)}, v{E_V}, {sr(R_WS,4)}, s{T2} offen offset:1024 sc1", "st"), 2),
          ((f"buffer_store_dwordx4 {vr(aV+4,4)}, v{E_V}, {sr(R_WS,4)}, s{T2} offen offset:1536 sc1", "st"), 2)]
spread(inj, items, 68, 72)
gemm_compute(va, {1}, True, inj, False, 'p1')
a("s_nop 7")
a("s_nop 3")
for i in range(8):
    a(f"v_pk_mul_f32 {vr(aQ+2*i,2)}, {vr(aQ+2*i,2)}, {vr(E_C,2)}")
for x in cvt_inplace(aQ):
    a(x)
a(f"ds_write_b128 v{E_Q}, {vr(aQ,4)} offset:{L_Q}")
a(f"ds_write_b128 v{E_Q}, {vr(aQ+4,4)} offset:{L_Q+1024}")
stamp("p1 done")
a("s_waitcnt vmcnt(0) lgkmcnt(0)")
a.label("L_p1_done")
vm.clear()
a("s_barrier")
flag_store(4)
stamp("kv drained")
a(f"s_cmp_ge_u32 s{S_W}, 4")
a("s_cbranch_scc1 L_nomisc")
misc_loads(Cnt(a, "vmcnt", 63))
a.label("L_nomisc")

a.c("======== phase 2: attention; wave = (head = w&3, key range by w>>2), 64 queries")
A_Q = 16
A_S = 24
A_O = 56
A_KV = 88
A_IDX, A_AV, A_AK = 8, 9, 15
A_W1, A_DUM = 14, 251
P_W = 160
QA, QB, SA, SB, OA, OB = A_Q, A_Q+4, A_S, A_S+16, A_O, A_O+16
def Kf(t, ns=4): return A_KV + 12*(t % ns)
def Vf(t, s, ns=4): return A_KV + 12*(t % ns) + 4 + 4*s
def F_W(t): return 140 + 4*t if t < 24 else 64 + 4*(t - 24)
a(f"s_and_b32 s{T0}, s{S_W}, 3")
a(f"s_lshr_b32 s{T1}, s{S_W}, 2")
a(f"s_lshl_b32 s{T2}, s{S_W}, 10")
a(f"v_add_u32 v4, s{T2}, v{V_L16}")
a(f"v_xor_b32 v5, 4096, v4")
a(f"ds_read_b128 {vr(QA,4)}, v4 offset:{L_Q}")
a(f"ds_read_b128 {vr(QB,4)}, v5 offset:{L_Q}")
a(f"v_and_b32 v4, 15, v{V_LANE}")
a(f"v_lshrrev_b32 v5, 5, v{V_LANE}")
a(f"v_lshl_add_u32 v6, v5, 4, v4")
a(f"v_lshlrev_b32 v{A_AV}, 4, v6")
a(f"s_lshl_b32 s{T2}, s{S_HG}, 2")
a(f"s_add_u32 s{T2}, s{T2}, s{T0}")
a(f"s_lshl_b32 s{T2}, s{T2}, 17")
a(f"s_add_u32 s{S_HEAD}, s{T2}, {WS_KV}")
a(f"v_add_u32 v{A_AV}, s{S_HEAD}, v{A_AV}")
a(f"v_add_u32 v{A_AK}, s{S_HEAD}, v{V_L16}")
a.c("workgroups that share the head start at different key tiles")
a(f"s_mul_i32 s{T3}, s{T1}, {NA*2048}")
a(f"s_lshl_b32 s{S_XOFF}, s{S_SHR}, {17 - KG}")
a(f"s_add_u32 s{S_XOFF}, s{S_XOFF}, s{T3}")
a(f"s_and_b32 s{S_XOFF}, s{S_XOFF}, 0x1ffff")
a(f"s_mov_b32 s{S_MASKV}, 0xffff")
a(f"s_mov_b32 s{S_MASKV+1}, 0xffff")
a(f"v_mov_b32 v{A_IDX}, 0xdddddddd")
a.c("rows 16 and 20 of the V operand are ones (row sums for both lane halves), the other spare rows zero")
a(f"v_and_b32 v4, 0x1b, v{V_LANE}")
a(f"v_cmp_eq_u32 vcc, 16, v4")
a(f"v_mov_b32 v4, 0x3f803f80")
a(f"v_mov_b32 v5, 0")
a(f"v_cndmask_b32 v4, v5, v4, vcc")
for t in range(6):
    for i in range(8):
        a(f"v_mov_b32 v{Vf(t,0,6)+i}, v4")
for i in range(32):
    a(f"v_mov_b32 v{A_O+i}, 0")
for i in range(8):
    a(f"v_mov_b32 v{SB+8+i}, 0")
reduce_addr()
a(f"s_and_b32 s{T0}, s{S_W}, 3")
a(f"s_lshl_b32 s{T4}, s{S_J}, 7")
dma_addr(V_DA, 1024, T4)
a.c("weight staging addresses")
a(f"s_lshl_b32 s{T4}, s{S_F0}, 6")
dma_addr(V_DB, 2752, T4)
a(f"v_lshrrev_b32 v4, 2, v{V_LANE}")
a(f"v_mul_u32_u24 v4, 2752, v4")
a(f"v_and_b32 v5, 3, v{V_LANE}")
a(f"v_lshlrev_b32 v5, 7, v5")
a(f"v_min_u32 v5, 252, v5")
a(f"v_add3_u32 v{A_W1}, v4, v5, s{T4}")
a(f"s_lshl_b32 s{S_D0}, s{T0}, 13")
a(f"s_lshl_b32 s{S_D1}, s{T0}, 10")
a(f"s_mul_i32 s{S_D2}, s{T0}, {8*2752}")
a(f"s_and_b32 s{T2}, s{S_W}, 1")
a(f"s_bfe_u32 s{T3}, s{S_W}, 0x10001")
a(f"s_mul_i32 s{S_D3}, s{T3}, 86")
a(f"s_add_u32 s{S_D3}, s{S_D3}, s{T2}")
a(f"s_lshl_b32 s{S_D3}, s{S_D3}, 13")
a(f"s_and_b32 s{T4}, s{S_TB2}, 3")
a(f"s_lshl_b32 s{T4}, s{T4}, 2")
a(f"s_add_u32 s{T4}, s{T4}, s{T0}")
a(f"s_mul_i32 s{S_D4}, s{T4}, {32*2752}")
tr_lane_addr(7, T2, False)
W2_HOME = [(0, 65536, 49152), (24, 131072, 16384), (32, 20480, 22528)]
S_H = [T4, T5, T6]
for k, (t0, base, stride) in enumerate(W2_HOME):
    a(f"s_mul_i32 s{S_H[k]}, s{T3}, {stride}")
    a(f"s_add_u32 s{S_H[k]}, s{S_H[k]}, {base}")
    a(f"v_add_u32 v{4+k}, s{S_H[k]}, v7")
    a(f"s_lshl_b32 s{T7}, s{T2}, 10")
    a(f"s_add_u32 s{S_H[k]}, s{S_H[k]}, s{T7}")
a(f"s_lshl_b32 s{T7}, s{T3}, 15")
a(f"v_add_u32 v7, s{T7}, v7")
def w2_home(t):
    k = 0 if t < 24 else 1 if t < 32 else 2
    return k, (t - W2_HOME[k][0])*2048
flag_poll(4, 32)
a("s_waitcnt lgkmcnt(0)")
a("s_barrier")
stamp("kv ready")
def kv_load(v, t, ns):
    imm = 2048*(t & 1)
    a(f"buffer_load_dwordx4 {vr(Kf(t,ns),4)}, v{A_AK}, {sr(R_WS,4)}, s{S_XOFF} offen offset:{imm} sc1")
    a(f"s_mov_b64 exec, {sr(S_MASKV,2)}")
    a(f"buffer_load_dwordx4 {vr(Vf(t,0,ns),4)}, v{A_AV}, {sr(R_WS,4)}, s{S_XOFF} offen offset:{imm+1024} sc1")
    a(f"buffer_load_dwordx4 {vr(Vf(t,1,ns),4)}, v{A_AV}, {sr(R_WS,4)}, s{S_XOFF} offen offset:{imm+1536} sc1")
    a("s_mov_b64 exec, -1")
    if t & 1:
        a(f"s_add_u32 s{S_XOFF}, s{S_XOFF}, 4096")
        a(f"s_and_b32 s{S_XOFF}, s{S_XOFF}, 0x1ffff")
    v.issue(("kv", t), 3)
def smf(o, v, s):
    a(f"v_smfmac_f32_32x32x32_bf16 {vr(o,16)}, {vr(v,4)}, {vr(s,8)}, v{A_IDX}")
def attn_tile(v, t, ns, last=None, side=(), tail=None):
    side = list(side)
    order = {1: [(0, 13)], 2: [(0, 13), (1, 13)], 4: [(0, 4), (0, 13), (1, 4), (1, 13)]}[NBLK]
    at = {}
    for k, f in enumerate(side):
        at.setdefault(order[k*NBLK//len(side)], []).append(f)
    for ph in range(2):
        S, So, O, Oo, Qo = (SA, SB, OA, OB, QB) if ph == 0 else (SB, SA, OB, OA, QA)
        for i in range(16):
            for f in at.get((ph, i), []):
                f()
            if i == 2:
                smf(Oo, Vf(t - 1 + ph, 1, ns), So + 8)
            if i == 5 and not (ph == 1 and t == last):
                if ph == 1:
                    v.wait(("kv", t + 1))
                a(f"v_mfma_f32_32x32x16_bf16 {vr(So,16)}, {vr(Kf(t+ph,ns),4)}, {vr(Qo,4)}, 0")
            if i == 10:
                smf(O, Vf(t, 0, ns), S)
            if ph == 0 and i == 12 and (last is None or t + ns - 1 <= last):
                kv_load(v, t + ns - 1, ns)
            if ph == 1 and i == 12 and tail:
                tail()
            a(f"v_exp_f32 v{S+i}, v{S+i}")
def attn_first(v):
    v.wait(("kv", 0))
    a(f"v_mfma_f32_32x32x16_bf16 {vr(SA,16)}, {vr(Kf(0),4)}, {vr(QA,4)}, 0")
    flag_addr(WS_FO, S_TB, S_HG, S_TB2)
    a("s_nop 5")
a(f"s_cmp_lt_u32 s{S_W}, 4")
a("s_cbranch_scc1 L_attn_a")

a.c("---- waves 4-7: fewer key tiles, and the weights of the later phases go on chip")
vb = vm.copy()
NB = 64 - NA
for t in range(3):
    kv_load(vb, t, 4)
attn_first(vb)
def rot_list(tag, rsrc, vaddr, sg, g0, gstep, sl, l0, lstep, n):
    def mk(k):
        def f():
            if not ROT:
                dma(vb, tag, rsrc, vaddr, sg, g0 + k*gstep, sl, l0 + k*lstep)
                return
            if k == 0:
                a(f"s_and_b32 s{S_R0}, s{S_TB2}, 3")
                a(f"s_mul_i32 s{S_R0}, s{S_R0}, {n//4}")
            else:
                a(f"s_add_u32 s{S_R0}, s{S_R0}, 1")
                a(f"s_cmp_eq_u32 s{S_R0}, {n}")
                a(f"s_cselect_b32 s{S_R0}, 0, s{S_R0}")
            a(f"s_mul_i32 s{S_R1}, s{S_R0}, {lstep}")
            a(f"s_add_u32 s{S_R1}, s{S_R1}, s{sl}")
            a(f"s_mul_i32 s{S_D5}, s{S_R0}, {gstep}")
            a(f"s_add_u32 s{S_D5}, s{S_D5}, s{sg}")
            dma(vb, tag, rsrc, vaddr, S_D5, g0, S_R1, l0)
        return f
    return [mk(k) for k in range(n)]
L_wo = rot_list("r1", R_WO, V_DA, S_D0, 0, 32768, S_D1, 0, 4096, 16)
L_w2 = [rot_list("r2" if k else "r1", R_W2, V_DA, S_D3, t0*16384, 16384, S_H[k], 0, 2048, n) for k, (t0, n) in enumerate(((0, 24), (24, 8), (32, 11)))]
L_w1 = rot_list("r2", R_W1, V_DB, S_D2, 0, 32*2752, S_D1, L_RING, 4096, 16)
def d_warm(k):
    def f():
        a(f"s_add_u32 s{T7}, s{S_D4}, {k*16*2752 + 128}")
        a(f"buffer_load_dword v{A_DUM}, v{A_W1}, {sr(R_W1,4)}, s{T7} offen")
        vb.issue("r2")
    return f
def d_rd(t):
    k, off = w2_home(t)
    return lambda: tr_read(F_W(t), 4 + k, off)
def share(L, tiles):
    return {t: L[k*len(L)//len(tiles):(k+1)*len(L)//len(tiles)] for k, t in enumerate(tiles)}
plan = {}
plan.update(share(L_wo + L_w2[0], list(range(T0B, TB1 - 1))))
plan.update(share([d_rd(t) for t in range(24)], list(range(TB1, TB1 + TB2))))
plan.update(share(L_w2[1] + L_w2[2] + L_w1 + [d_warm(0), d_warm(1)], list(range(TB1 + TB2, NB - TEND))))
if NODUTY:
    plan = {}
for t in range(NB):
    if t == TB1:
        stamp("B at bar1") if opt("ast", 0) else None
        vb.wait("r1")
        a("s_barrier")
        stamp("B past bar1") if opt("ast", 0) else None
    if t == TB1 + TB2:
        a("s_waitcnt lgkmcnt(0)")
        stamp("B at bar2") if opt("ast", 0) else None
        a("s_barrier")
        stamp("B past bar2") if opt("ast", 0) else None
    attn_tile(vb, t, 4, NB - 1, plan.get(t, []))
a("s_nop 1")
smf(OB, Vf(NB - 1, 1, 4), SB+8)
a("s_branch L_attn_end")

a.c("---- waves 0-3")
a.label("L_attn_s1")
stamp("A at bar1") if opt("ast", 0) else None
a("s_barrier")
for t in range(16):
    tr_read(P_W + 4*t, 7, t*2048)
a(f"s_mov_b32 s{S_LOOP}, {IT2}")
a("s_branch L_attn")
a.label("L_attn_s2")
a("s_waitcnt lgkmcnt(0)")
stamp("A at bar2") if opt("ast", 0) else None
a("s_barrier")
a(f"s_mov_b32 s{S_LOOP}, {NA//6 - IT1 - IT2}")
a("s_branch L_attn")
a.label("L_attn_a")
a("s_setprio 1")
va = vm.copy()
for t in range(5):
    kv_load(va, t, 6)
a(f"s_mov_b32 s{S_LOOP}, {IT1}")
a(f"s_mov_b32 s{S_STAGE}, 0")
attn_first(va)
a.raw(".p2align 4")
a.label("L_attn")
def loop_tail():
    a(f"s_sub_u32 s{S_LOOP}, s{S_LOOP}, 1")
    a(f"s_cmp_lg_u32 s{S_LOOP}, 0")
for t in range(6):
    attn_tile(va, t, 6, None, [], loop_tail if t == 5 else None)
a("s_cbranch_scc1 L_attn")
a(f"s_add_u32 s{S_STAGE}, s{S_STAGE}, 1")
a(f"s_cmp_eq_u32 s{S_STAGE}, 1")
a("s_cbranch_scc1 L_attn_s1")
a(f"s_cmp_eq_u32 s{S_STAGE}, 2")
a("s_cbranch_scc1 L_attn_s2")
for t in range(6, 6 + NA % 6):
    attn_tile(va, t, 6, 5 + NA % 6)
if NA % 6:
    a("s_nop 1")
smf(OB, Vf(5 + NA % 6, 1, 6), SB+8)
a("s_setprio 0")
a.label("L_attn_end")
stamp("attn loop done")
a.c("combine the two key ranges: keep A, send B")
a(f"s_lshl_b32 s{T2}, s{S_W}, 11")
a(f"v_add_u32 v10, s{T2}, v{V_L16}")
a(f"s_lshl_b32 s{T2}, s{S_W}, 8")
a(f"v_add_u32 v11, s{T2}, v249")
a(f"s_lshr_b32 s{T1}, s{S_W}, 2")
a(f"s_lshl_b32 s{T2}, s{S_TB}, 1")
a(f"s_add_u32 s{T2}, s{T2}, s{T1}")
a(f"s_lshl_b32 s{T2}, s{T2}, 5")
a(f"s_lshl_b32 s{T3}, s{S_HG}, 2")
a(f"s_add_u32 s{T2}, s{T2}, s{T3}")
a(f"s_and_b32 s{T0}, s{S_W}, 3")
a(f"s_add_u32 s{T2}, s{T2}, s{T0}")
a(f"ds_write_b128 v10, {vr(OB,4)} offset:{L_OX}")
a(f"ds_write_b128 v10, {vr(OB+4,4)} offset:{L_OX+1024}")
a(f"ds_write_b32 v11, v{OB+8} offset:{L_OX+16384}")
a(f"s_lshl_b32 s{T2}, s{T2}, 10")
a(f"s_add_u32 s{T2}, s{T2}, {WS_OF}")
a(f"v_xor_b32 v14, 8192, v10")
a(f"v_xor_b32 v{SB+2}, 1024, v11")
a(f"v_mov_b32 v{SB}, {f32(2.0**-64)}")
a(f"v_mov_b32 v{SB+1}, {f32(2.0**64)}")
a("s_waitcnt lgkmcnt(0)")
a("s_barrier")
a(f"ds_read_b32 v{SA+8}, v{SB+2} offset:{L_OX+16384}")
a(f"ds_read_b128 {vr(SA,4)}, v14 offset:{L_OX}")
a(f"ds_read_b128 {vr(SA+4,4)}, v14 offset:{L_OX+1024}")
a("s_waitcnt lgkmcnt(2)")
a(f"v_add_f32 v{OA+8}, v{OA+8}, v{SA+8}")
a.c("the loop subtracted no row maximum: a row sum outside [2^-64, 2^64] (or NaN) sends the wave to the true-max path")
a(f"v_cmp_ge_f32 vcc, v{OA+8}, v{SB}")
a(f"v_cmp_le_f32 {sr(S_SAVE,2)}, v{OA+8}, v{SB+1}")
a("s_waitcnt lgkmcnt(0)")
for i in range(4):
    a(f"v_pk_add_f32 {vr(OA+2*i,2)}, {vr(OA+2*i,2)}, {vr(SA+2*i,2)}")
a(f"s_and_b64 vcc, vcc, {sr(S_SAVE,2)}")
a(f"s_cmp_eq_u64 vcc, -1")
if FORCE_FB:
    a("s_branch L_attn_fb")
else:
    a("s_cbranch_scc0 L_attn_fb")
a.label("L_attn_fin")
a(f"v_rcp_f32 v10, v{OA+8}")
a("s_nop 0")
for i in range(8):
    a(f"v_mul_f32 v{OA+i}, v{OA+i}, v10")
for i in range(4):
    a(f"v_cvt_pk_bf16_f32 v{SA+i}, v{OA+2*i}, v{OA+2*i+1}")
a(f"buffer_store_dwordx4 {vr(SA,4)}, v{V_L16}, {sr(R_WS,4)}, s{T2} offen sc1")

a.c("======== phase 3: h = x + O Wo ; tile 64 tokens x 64 columns, computed by waves 0-3")
T_ACC, T_AF = 16, 48
a("s_waitcnt vmcnt(0)")
a("s_barrier")
flag_store(0)
stamp("O drained")
a(f"s_cmp_lt_u32 s{S_W}, 4")
a("s_cbranch_scc1 L_p3_nord")
for t in range(24, 43):
    d_rd(t)()
a("s_waitcnt lgkmcnt(0)")
a.label("L_p3_nord")
act_setup(16, WS_OF, True)
flag_poll(0, 8)
a("s_barrier")
stamp("O ready")
for q in range(4):
    act_issue(vm, q, q, 16, True)
flag_addr(WS_FH, S_TB2, S_J, S_TB2)
W1_SEG = [0, 128, 256]
a(f"s_cmp_lt_u32 s{S_W}, 4")
a("s_cbranch_scc1 L_p3_compute")
vl = vm.copy()
ring_setup(4, 4, 2752)
def p3_after(q):
    if q in (1, 2):
        ring_issue(vl, R_W1, 2752, W1_SEG, q + 3, 4)
tile_loader(vl, 16, p3_after)
a("s_branch L_p3_done")
a.label("L_p3_compute")
tile_compute(vm.copy(), 16, [0, 1, 2, 3], lambda t: P_W + 4*t, T_ACC, T_AF)
a.label("L_p3_done")
tile_gather(16)
for x in unpack8(32, V_HRES):
    a(x)
a(f"s_add_u32 s{T2}, s{S_TILE}, {WS_H}")
for h in range(2):
    a(f"s_waitcnt lgkmcnt({2-2*h})")
    for i in range(2*h, 2*h+2):
        a(f"v_pk_add_f32 {vr(32+2*i,2)}, {vr(32+2*i,2)}, {vr(16+2*i,2)}")
        a(f"v_pk_add_f32 {vr(32+2*i,2)}, {vr(32+2*i,2)}, {vr(24+2*i,2)}")
    for i in range(2*h, 2*h+2):
        a(f"v_cvt_pk_bf16_f32 v{V_HRES+i}, v{32+2*i}, v{32+2*i+1}")
a(f"buffer_store_dwordx4 {vr(V_HRES,4)}, v{V_ROWOFF}, {sr(R_WS,4)}, s{T2} offen sc1")
stamp("h stored")

a.c("======== phase 4: g = gelu(LN(h) W1 + b1), everything scaled by GS so that the tanh argument is u*(u*u+k)")
c1 = -2.0*math.sqrt(2.0/math.pi)*math.log2(math.e)
c3 = c1*0.044715
GS = -((-c3) ** (1.0/3))
GK = c1/GS
a(f"s_cmp_ge_u32 s{S_W}, 4")
a("s_cbranch_scc1 L_p4_nobias")
a.c("bias -> accumulators through one-hot products")
a(f"v_cmp_gt_u32 vcc, 32, v{V_LANE}")
a(f"v_mov_b32 v16, 0x3f80")
a(f"v_mov_b32 v17, 0")
a(f"v_cndmask_b32 v16, v17, v16, vcc")
for i in range(1, 12):
    a(f"v_mov_b32 v{16+i}, {'v16' if i % 5 == 0 else '0'}")
a(f"v_mov_b32 v14, {f32(GS)}")
a(f"v_mov_b32 v15, v14")
for seg in range(3):
    a(f"v_mfma_f32_32x32x16_bf16 {vr(G_ACC+16*seg,16)}, {vr(V_B1,4)}, {vr(16+4*seg,4)}, 0")
gemm_addr()
for i in range(24):
    a(f"v_pk_mul_f32 {vr(G_ACC+2*i,2)}, {vr(G_ACC+2*i,2)}, v[14:15]")
a(f"v_mov_b32 v10, {f32(GK)}")
a(f"v_mov_b32 v11, v10")
a(f"v_mov_b32 v14, 1.0")
a(f"v_mov_b32 v15, 1.0")
a.label("L_p4_nobias")
ln_consts()
a("s_waitcnt vmcnt(0)")
vm.clear()
a.c("pull the stored tile back into this XCD's L2 while the flags travel")
a(f"buffer_load_dwordx4 {vr(LN_D,4)}, v{V_ROWOFF}, {sr(R_WS,4)}, s{T2} offen sc1")
vm.issue("rr")
a("s_barrier")
flag_store(0)
stamp("h drained")
a(f"s_lshl_b32 s{T4}, s{S_TB2}, 16")
a(f"s_add_u32 s{T4}, s{T4}, {WS_H}")
flag_poll(0, 8)
a("s_barrier")
stamp("h ready")
ln_loads(vm, R_WS, T4, "sc1")
flag_addr(WS_FG, S_TB2, S_J, S_TB2)
ln_stats(vm, GS)
ln_norm(GS)
stamp("ln2 done")
G_SLOTS = [2, 3, 4, 5, 6, 7, 8, 9, 0, 1, 2]
G_SLOTS = [0, 1, 2, 3, 4, 5, 6, 7, 8, 9, 2]
a(f"s_cmp_lt_u32 s{S_W}, 4")
a("s_cbranch_scc1 L_p4_compute")
a.c("---- waves 4-7: W1 ring, then phase 5 compute")
gemm_loader(vm.copy(), R_W1, 2752, W1_SEG)
act_setup(43, WS_GF, False)
a("s_barrier")
a("s_barrier")
a.c("======== phase 5: out = h + g W2 + b2, computed by waves 4-7")
vm.clear()
tile_compute(vm.copy(), 43, G_SLOTS, F_W, T_ACC, T_AF)
stamp("ffn2 done B")
a("s_branch L_p5_done")

a.label("L_p4_compute")
a(f"s_and_b32 s{T0}, s{S_W}, 1")
a(f"s_lshl_b32 s{T1}, s{S_TB2}, 1")
a(f"s_add_u32 s{T0}, s{T0}, s{T1}")
a(f"s_mul_i32 s{T0}, s{T0}, 86")
a(f"s_lshr_b32 s{T1}, s{S_W}, 1")
a(f"s_add_u32 s{T3}, s{T1}, 4")
a(f"s_add_u32 s{T1}, s{T1}, s{S_F0}")
a(f"s_lshl_b32 s{T1}, s{T1}, 1")
a(f"s_add_u32 s{T0}, s{T0}, s{T1}")
a(f"s_lshl_b32 s{T0}, s{T0}, 10")
a(f"s_add_u32 s{T0}, s{T0}, {WS_GF}")
a(f"s_add_u32 s{T1}, s{T0}, 4096")
a(f"s_add_u32 s{T2}, s{T0}, 8192")
GT = 208
def gelu(seg, pk):
    u = G_ACC + 16*seg
    L = []
    def two(op, f):
        if pk:
            for i in range(8):
                L.append((f"v_pk_{op}_f32 {vr(GT+2*i,2)}, " + f(lambda b: vr(b+2*i, 2), lambda b: vr(b, 2)), 1))
        else:
            for i in range(16):
                L.append((f"v_{op}_f32 v{GT+i}, " + f(lambda b: f"v{b+i}", lambda b: f"v{b}"), 1))
    two("fma", lambda e, k: f"{e(u)}, {e(u)}, {k(10)}")
    two("mul", lambda e, k: f"{e(GT)}, {e(u)}")
    for i in range(16):
        L.append((f"v_exp_f32 v{GT+i}, v{GT+i}", 2))
    two("add", lambda e, k: f"{e(GT)}, {k(14)}")
    for i in range(16):
        L.append((f"v_rcp_f32 v{GT+i}, v{GT+i}", 2))
    two("mul", lambda e, k: f"{e(GT)}, {e(u)}")
    for i in range(8):
        L.append((f"v_cvt_pk_bf16_f32 v{u+i}, v{GT+2*i}, v{GT+2*i+1}", 1))
        if i % 4 == 3:
            L.append(((f"buffer_store_dwordx4 {vr(u+i-3,4)}, v{V_L16}, {sr(R_WS,4)}, s{T0+seg} offen offset:{(i//4)*1024} sc1", "st"), 2))
    return L
inj = {}
spread(inj, gelu(0, 0), 35, 64)
spread(inj, gelu(1, 0), 68, 95)
gemm_compute(vm.copy(), set(), False, inj, False, 'p4')
stamp("ffn1 done")
a(f"v_lshrrev_b32 v4, 4, v{V_LANE}")
a(f"s_cmp_ge_u32 s{T3}, s{S_NT}")
a(f"s_cselect_b32 s{T5}, 1, 2")
a(f"v_min_u32 v4, s{T5}, v4")
a(f"v_and_b32 v5, 15, v{V_LANE}")
a(f"v_lshlrev_b32 v5, 7, v5")
a(f"v_lshl_add_u32 v16, v4, 12, v5")
a(f"s_mov_b32 s{T6}, s{T0}")
a("s_cbranch_scc1 L_p4_skip")
a("s_nop 3")
a.raw(".p2align 3")
for x, _ in gelu(2, 1):
    a(x[0] if isinstance(x, tuple) else x)
a.label("L_p4_skip")
stamp("g stored")
act_setup(43, WS_GF, False)
a("s_waitcnt vmcnt(0)")
a(f"buffer_load_dword v17, v16, {sr(R_WS,4)}, s{T6} offen sc1")
a("s_barrier")
flag_store(0)
stamp("g drained")
flag_poll(0, 8)
a("s_barrier")
stamp("g ready")
vl = vm.copy()
for q in range(4):
    act_issue(vl, q, G_SLOTS[q], 43, False)
def p5_after(q):
    if q + 4 <= 10:
        act_issue(vl, q + 4, G_SLOTS[q + 4], 43, False)
tile_loader(vl, 43, p5_after)
a.label("L_p5_done")
tile_gather(16)
for x in unpack8(32, V_HRES) + unpack8(40, V_B2):
    a(x)
for i in range(4):
    a(f"v_pk_add_f32 {vr(32+2*i,2)}, {vr(32+2*i,2)}, {vr(40+2*i,2)}")
a(f"v_mov_b32 v10, {f32(1.0/GS)}")
a("v_mov_b32 v11, v10")
for h in range(2):
    a(f"s_waitcnt lgkmcnt({2-2*h})")
    for i in range(2*h, 2*h+2):
        a(f"v_pk_add_f32 {vr(16+2*i,2)}, {vr(16+2*i,2)}, {vr(24+2*i,2)}")
        a(f"v_pk_fma_f32 {vr(32+2*i,2)}, {vr(16+2*i,2)}, v[10:11], {vr(32+2*i,2)}")
    for i in range(2*h, 2*h+2):
        a(f"v_cvt_pk_bf16_f32 v{40+i}, v{32+2*i}, v{32+2*i+1}")
a(f"buffer_store_dwordx4 v[40:43], v{V_ROWOFF}, {sr(R_OUT,4)}, s{S_TILE} offen")
if STAMPS:
    a("s_waitcnt vmcnt(0)")
stamp("end")
stamp_flush()
a.c("every workgroup has read the old tag by now: leave this launch's tag for the next launch to step past")
a(f"s_or_b32 s{T0}, s{S_WG}, s{S_W}")
a(f"s_cmp_lg_u32 s{T0}, 0")
a("s_cbranch_scc1 L_end")
a("s_mov_b64 exec, 1")
a(f"buffer_store_dword v248, v249, {sr(R_WS,4)}, 0 offen offset:{WS_NONCE} sc1")
a.label("L_end")
a("s_endpgm")
a.label("L_code_end")

a.c("======== attention with the row's true maximum: q-block A over all 2048 keys")
a.label("L_attn_fb")
FM = SB
a("s_waitcnt vmcnt(0)")
a(f"v_mov_b32 v{FM}, 0xff800000")
a(f"s_mov_b32 s{S_XOFF}, 0")
a(f"s_mov_b32 s{S_LOOP}, 64")
a.label("L_fb1")
a(f"buffer_load_dwordx4 {vr(Kf(0),4)}, v{A_AK}, {sr(R_WS,4)}, s{S_XOFF} offen sc1")
a("s_waitcnt vmcnt(0)")
a(f"v_mfma_f32_32x32x16_bf16 {vr(SA,16)}, {vr(Kf(0),4)}, {vr(QA,4)}, 0")
a(f"s_add_u32 s{S_XOFF}, s{S_XOFF}, 2048")
a("s_nop 7")
a("s_nop 3")
for i in range(8):
    a(f"v_max3_f32 v{FM}, v{FM}, v{SA+2*i}, v{SA+2*i+1}")
a(f"s_sub_u32 s{S_LOOP}, s{S_LOOP}, 1")
a(f"s_cmp_lg_u32 s{S_LOOP}, 0")
a("s_cbranch_scc1 L_fb1")
a(f"v_mov_b32 v{FM+1}, v{FM}")
a("s_nop 1")
a(f"v_permlane32_swap_b32 v{FM}, v{FM+1}")
a("s_nop 1")
a(f"v_max_f32 v{FM}, v{FM}, v{FM+1}")
for i in range(16):
    a(f"v_mov_b32 v{OA+i}, 0")
a(f"s_mov_b32 s{S_XOFF}, 0")
a(f"s_mov_b32 s{S_LOOP}, 64")
a.label("L_fb2")
kv_load(Cnt(a, "vmcnt", 63), 0, 4)
a("s_waitcnt vmcnt(0)")
a(f"v_mfma_f32_32x32x16_bf16 {vr(SA,16)}, {vr(Kf(0),4)}, {vr(QA,4)}, 0")
a(f"s_add_u32 s{S_XOFF}, s{S_XOFF}, 2048")
a("s_nop 7")
a("s_nop 3")
for i in range(16):
    a(f"v_sub_f32 v{SA+i}, v{SA+i}, v{FM}")
for i in range(16):
    a(f"v_exp_f32 v{SA+i}, v{SA+i}")
a("s_nop 1")
smf(OA, Vf(0, 0), SA)
smf(OA, Vf(0, 1), SA+8)
a(f"s_sub_u32 s{S_LOOP}, s{S_LOOP}, 1")
a(f"s_cmp_lg_u32 s{S_LOOP}, 0")
a("s_nop 7")
a("s_cbranch_scc1 L_fb2")
a("s_nop 7")
a("s_nop 3")
a("s_branch L_attn_fin")

a.raw('.section .rodata,"a"')
a.raw(".p2align 6")
a.raw(f".amdhsa_kernel {NAME}_kernel")
a.raw("  .amdhsa_next_free_vgpr 256")
a.raw("  .amdhsa_next_free_sgpr 102")
a.raw("  .amdhsa_accum_offset 256")
a.raw("  .amdhsa_group_segment_fixed_size 0")
a.raw("  .amdhsa_kernarg_size 88")
a.raw("  .amdhsa_user_sgpr_count 2")
a.raw("  .amdhsa_user_sgpr_kernarg_segment_ptr 1")
a.raw("  .amdhsa_system_sgpr_workgroup_id_x 1")
a.raw(".end_amdhsa_kernel")

out = [x for x in args if not x.startswith("--")]
open(out[0] if out else "cdna_kernels/" + NAME + ".s", "w").write(a.text())
```

```python
import sys, math
from lib import *

NAME = "sequential_preLN__softmax_full_mha__dense_activation_gelu__prompt"
args = sys.argv[1:]
def opt(n, d):
    for x in args:
        if x.startswith("--" + n + "="):
            return type(d)(x.split("=")[1])
    return d
STAMPS = "--stamps" in args
FORCE_FB = "--force-fallback" in args
LH = opt("lh", 1)
NA = opt("na", 52)
IT1 = opt("it1", 4)
TB1 = opt("tb1", 6)
MALLW = opt("mallw", 1)
ROT = opt("rot", 0)
NBLK = opt("nblk", 2)
TB2 = opt("tb2", 1)
IT2 = opt("it2", 1)
TEND = opt("tend", 1)
T0B = opt("t0b", 1)
KG = opt("kg", 0)
NODUTY = opt("noduty", 0)
NPA = opt("npa", 2)
NPB = opt("npb", 2)
WPF = opt("wpf", 3)
KROT = opt("krot", 1)
XSW = opt("xsw", 1)
GST = opt("gst", 0)
PROBE = opt("probe", "").replace("_", " ")

S_WG, S_W = 2, 3
S_PC = 4
R_X, R_WQKV, R_WO, R_W1, R_W2, R_WS, R_OUT, R_B1, R_B2 = 8, 12, 16, 20, 24, 28, 32, 36, 40
KA = 44
S_HG, S_TB, S_TB2, S_J, S_N = 66, 67, 68, 69, 70
S_F0 = 71
T0, T1, T2, T3, T4, T5, T6, T7 = 72, 73, 74, 75, 76, 77, 78, 79
S_LOOP, S_XOFF, S_HEAD = 80, 81, 82
S_TILE = 83
S_MASKV = 84
S_D0, S_D1, S_D2, S_D3 = 86, 87, 88, 89
S_TS = 90
S_NT = 92
S_SPIN = 93
S_SAVE = 94
S_D4, S_D5 = 96, 97
S_STAGE = 101
S_SHR = 65 + 0 if False else 100
S_R0, S_R1 = 4, 5
S_FOWN, S_FPOLL = 98, 99

WS_NONCE = 0
WS_FKV = 0x1000
WS_FO = 0x2000
WS_FH = 0x4000
WS_FG = 0x6000
WS_STAMP = 0x10000
WS_KV = 0x100000
WS_OF = 0x500000
WS_H = 0x700000
WS_GF = 0x900000
WS_SIZE = 0x1000000

L_XN = 0
L_RING = 65536
L_Q = 32768
L_OX = 0
LDS_BYTES = 163840

V_LANE, V_ROWOFF, V_XNW = 1, 2, 3
V_DA, V_DB = 12, 13
V_B1 = 232
V_B2 = 236
V_REDW, V_REDR, V_L16 = 240, 244, 246
V_HRES = 252

a = Asm()
stamp_idx = [0]
def stamp(name):
    i = stamp_idx[0]
    stamp_idx[0] += 1
    if PROBE and name == "start":
        a("s_memrealtime s[6:7]")
    if PROBE and name == "setup":
        a("s_mov_b32 s1, 0")
    if PROBE == name:
        a(f"s_memrealtime {sr(S_TS,2)}")
        a("s_waitcnt lgkmcnt(0)")
        a(f"s_sub_u32 s1, s{S_TS}, s6")
    if PROBE and name == "end":
        a("s_mul_i32 s1, s1, 10")
        a("s_add_u32 s1, s1, 10000")
        a(f"s_cmp_lg_u32 s{S_WG}, 100")
        a("s_cbranch_scc1 L_nopin")
        a.label("L_pin")
        a(f"s_memrealtime {sr(S_TS,2)}")
        a("s_waitcnt lgkmcnt(0)")
        a(f"s_sub_u32 s{S_TS}, s{S_TS}, s6")
        a(f"s_cmp_lt_u32 s{S_TS}, s1")
        a("s_cbranch_scc1 L_pin")
        a.label("L_nopin")
    if not STAMPS:
        return
    a.c(f"stamp {i} {name}")
    a(f"s_memtime {sr(S_TS,2)}")
    a(f"s_waitcnt lgkmcnt(0)")
    a(f"v_writelane_b32 v250, s{S_TS}, {i}")
    a(f"s_memrealtime {sr(S_TS,2)}")
    a(f"s_waitcnt lgkmcnt(0)")
    a(f"v_writelane_b32 v250, s{S_TS}, {i+32}")

def stamp_flush():
    if not STAMPS:
        return
    l = a.uniq("L_st")
    a(f"s_and_b32 s{T7}, s{S_W}, 3")
    a(f"s_cmp_lg_u32 s{T7}, 0")
    a(f"s_cbranch_scc1 {l}")
    a(f"s_lshl_b32 s{T7}, s{S_WG}, 9")
    a(f"s_lshl_b32 s{T6}, s{S_W}, 6")
    a(f"s_add_u32 s{T7}, s{T7}, s{T6}")
    a(f"s_add_u32 s{T7}, s{T7}, {WS_STAMP}")
    a(f"v_lshlrev_b32 v251, 2, v{V_LANE}")
    a(f"buffer_store_dword v250, v251, {sr(R_WS,4)}, s{T7} offen")
    a.label(l)

def srd(r, ptr, size):
    a(f"s_mov_b32 s{r}, s{ptr}")
    a(f"s_mov_b32 s{r+1}, s{ptr+1}")
    a(f"s_mov_b32 s{r+2}, {size}")
    a(f"s_mov_b32 s{r+3}, 0x00020000")

def flag_addr(base, line_own, word_own, line_poll):
    a(f"s_lshl_b32 s{S_FOWN}, s{line_own}, 8")
    a(f"s_lshl_b32 s{T7}, s{word_own}, 2")
    a(f"s_add_u32 s{S_FOWN}, s{S_FOWN}, s{T7}")
    a(f"s_add_u32 s{S_FOWN}, s{S_FOWN}, {base}")
    a(f"s_lshl_b32 s{S_FPOLL}, s{line_poll}, 8")
    a(f"s_add_u32 s{S_FPOLL}, s{S_FPOLL}, {base}")

def flag_store(poller):
    l = a.uniq("L_nf")
    a(f"s_cmp_lg_u32 s{S_W}, {poller}")
    a(f"s_cbranch_scc1 {l}")
    a(f"s_mov_b64 exec, 1")
    a(f"buffer_store_dword v248, v249, {sr(R_WS,4)}, s{S_FOWN} offen sc1")
    a(f"s_mov_b64 exec, -1")
    a.label(l)

def flag_poll(poller, nflags):
    l_skip, l_poll, l_done = a.uniq("L_skip"), a.uniq("L_poll"), a.uniq("L_done")
    a(f"s_cmp_lg_u32 s{S_W}, {poller}")
    a(f"s_cbranch_scc1 {l_skip}")
    a(f"s_mov_b32 exec_hi, 0")
    a(f"s_mov_b32 exec_lo, {(1 << nflags) - 1:#x}")
    a(f"s_mov_b32 s{S_SPIN}, 0")
    a.label(l_poll)
    a(f"buffer_load_dword v247, v249, {sr(R_WS,4)}, s{S_FPOLL} offen sc1")
    a(f"s_add_u32 s{S_SPIN}, s{S_SPIN}, 1")
    a("s_waitcnt vmcnt(0)")
    a(f"v_cmp_eq_u32 vcc, v247, v248")
    a(f"s_cmp_gt_u32 s{S_SPIN}, 200000")
    a(f"s_cbranch_scc1 {l_done}")
    a(f"s_cmp_eq_u64 vcc, exec")
    a(f"s_cbranch_scc0 {l_poll}")
    a.label(l_done)
    a("s_mov_b64 exec, -1")
    a.label(l_skip)

LN_X, LN_D, LN_T = 16, 48, 56

def ln_loads(vm, rsrc, soff, flags=""):
    for i in range(8):
        so, imm = (soff[i >> 1], 128*(i & 1)) if isinstance(soff, list) else (soff, 128*i)
        a(f"buffer_load_dwordx4 {vr(LN_X+4*i,4)}, v{V_ROWOFF}, {sr(rsrc,4)}, s{so} offen offset:{imm} {flags}")
        vm.issue(("x", i))

def ln_consts():
    t = LN_T
    a(f"v_mov_b32 v{t+4}, 0x3f803f80")
    a(f"v_mov_b32 v{t+5}, 0x00003f80")
    a(f"v_mov_b32 v{t+6}, 0x3f800000")
    a(f"v_mov_b32 v{t}, 0")
    a(f"v_mov_b32 v{t+1}, 0")

def ln_stats(vm, scale):
    t = LN_T
    for i in range(8):
        vm.wait(("x", i))
        if i in (7,) and scale >= 1.0:
            stamp(f"x{i} in {scale}")
        a.raw(".p2align 3")
        for j in range(4):
            a(f"v_dot2_f32_bf16 v{t}, v{LN_X+4*i+j}, v{t+4}, v{t}")
            a(f"v_dot2_f32_bf16 v{t+1}, v{LN_X+4*i+j}, v{LN_X+4*i+j}, v{t+1}")

def ln_norm(scale):
    t = LN_T
    a("s_nop 1")
    for ctl in ("quad_perm:[1,0,3,2]", "quad_perm:[2,3,0,1]", "row_half_mirror"):
        a("s_nop 0")
        a(f"v_add_f32_dpp v{t}, v{t}, v{t} {ctl} row_mask:0xf bank_mask:0xf")
        a(f"v_add_f32_dpp v{t+1}, v{t+1}, v{t+1} {ctl} row_mask:0xf bank_mask:0xf")
    a(f"v_mul_f32 v{t}, {f32(-1.0/512)}, v{t}")
    a(f"v_mul_f32 v{t+2}, v{t}, v{t}")
    a(f"v_mul_f32 v{t+1}, {f32(1.0/512)}, v{t+1}")
    a(f"v_sub_f32 v{t+1}, v{t+1}, v{t+2}")
    a(f"v_max_f32 v{t+1}, 0, v{t+1}")
    a(f"v_add_f32 v{t+1}, {f32(1e-5)}, v{t+1}")
    a(f"v_rsq_f32 v{t+2}, v{t+1}")
    a("s_nop 0")
    if scale != 1.0:
        a(f"v_mul_f32 v{t+2}, {f32(scale)}, v{t+2}")
    a(f"v_mov_b32 v{t+3}, v{t+2}")
    for i in range(8):
        a.raw(".p2align 3")
        for j in range(4):
            a(f"v_dot2_f32_bf16 v{LN_D+2*j}, v{LN_X+4*i+j}, v{t+5}, v{t}")
            a(f"v_dot2_f32_bf16 v{LN_D+2*j+1}, v{LN_X+4*i+j}, v{t+6}, v{t}")
        for j in range(4):
            a(f"v_pk_mul_f32 {vr(LN_D+2*j,2)}, {vr(LN_D+2*j,2)}, {vr(t+2,2)}")
        for j in range(4):
            a(f"v_cvt_pk_bf16_f32 v{LN_X+4*i+j}, v{LN_D+2*j}, v{LN_D+2*j+1}")
        a(f"ds_write_b128 v{V_XNW}, {vr(LN_X+4*i,4)} offset:{L_XN + 4096*i}")

def dma_addr(dst, row_bytes, col_s):
    a(f"v_lshrrev_b32 v10, 3, v{V_LANE}")
    a(f"v_and_b32 v11, 7, v{V_LANE}")
    a(f"v_lshlrev_b32 v{dst}, 1, v10")
    a(f"v_and_b32 v{dst}, 4, v{dst}")
    a(f"v_xor_b32 v11, v11, v{dst}")
    a(f"v_mul_u32_u24 v10, {row_bytes}, v10")
    a(f"v_lshl_add_u32 v10, v11, 4, v10")
    a(f"v_add_u32 v{dst}, s{col_s}, v10")

def dma(vm, tag, rsrc, vaddr, sg, goff, sl, loff, flags=""):
    a(f"s_add_u32 m0, s{sl}, {loff}")
    a(f"s_add_u32 s{T7}, s{sg}, {goff}")
    a(f"buffer_load_dwordx4 v{vaddr}, {sr(rsrc,4)}, s{T7} offen {flags} lds")
    vm.issue(tag)

def tr_lane_addr(dst, hp_s, perm):
    a(f"v_bfe_u32 v10, v{V_LANE}, 2, 2")
    a(f"v_lshrrev_b32 v11, 1, v10")
    a(f"v_xor_b32 v11, s{hp_s}, v11")
    a(f"v_lshlrev_b32 v11, 6, v11")
    a(f"v_lshl_add_u32 v11, v10, 7, v11")
    a(f"v_bfe_u32 v10, v{V_LANE}, 4, 1")
    a(f"v_lshl_add_u32 v11, v10, 5, v11")
    if perm:
        a(f"v_and_b32 v10, 1, v{V_LANE}")
        a(f"v_lshl_add_u32 v11, v10, 4, v11")
        a(f"v_bfe_u32 v10, v{V_LANE}, 1, 1")
        a(f"v_lshl_add_u32 v11, v10, 3, v11")
    else:
        a(f"v_and_b32 v10, 3, v{V_LANE}")
        a(f"v_lshl_add_u32 v11, v10, 3, v11")
    a(f"v_lshrrev_b32 v10, 5, v{V_LANE}")
    a(f"v_lshl_add_u32 v{dst}, v10, 10, v11")

def tr_read(dst, vaddr, off):
    a(f"ds_read_b64_tr_b16 {vr(dst,2)}, v{vaddr} offset:{off}")
    a(f"ds_read_b64_tr_b16 {vr(dst+2,2)}, v{vaddr} offset:{off+512}")

G_X, G_ACC = 16, 144
G_WF = [192, 196, 200, 204, 224, 228]
G_XA, G_WA = 4, 8

def gemm_addr():
    a(f"s_lshr_b32 s{T0}, s{S_W}, 1")
    a(f"s_and_b32 s{T0}, s{T0}, 1")
    tr_lane_addr(G_WA, T0, True)
    a(f"v_add_u32 v{G_WA}, {L_RING}, v{G_WA}")
    a(f"v_add_u32 v{G_WA+1}, 49152, v{G_WA}")
    a(f"s_and_b32 s{T0}, s{S_W}, 1")
    a(f"s_lshl_b32 s{T0}, s{T0}, 15")
    for b in range(4):
        a(f"v_lshrrev_b32 v10, 5, v{V_LANE}")
        a(f"v_add_u32 v10, {2*b}, v10")
        a(f"v_and_b32 v11, 31, v{V_LANE}")
        a(f"v_xor_b32 v11, v11, v10")
        a(f"v_lshlrev_b32 v11, 4, v11")
        a(f"v_lshl_add_u32 v11, v10, 9, v11")
        a(f"v_add_u32 v{G_XA+b}, s{T0}, v11")

def gemm_compute(vm, swapped, zero_c, inject, end_barrier, nm):
    lg = Cnt(a, "lgkmcnt", 15)
    nxt = [0]
    def rd(u):
        if u % 8 == 0 and u:
            vm.wait(("w", u >> 3))
            a("s_barrier")
        if u < 32:
            a(f"ds_read_b128 {vr(G_X+4*u,4)}, v{G_XA+(u&3)} offset:{L_XN + (u>>2)*4096}")
            lg.issue(u)
        off = ((u >> 3) % 6)*16384 + (u & 7)*2048
        r = G_WA
        if off >= 49152:
            r, off = G_WA + 1, off - 49152
        tr_read(G_WF[u % 6], r, off)
        lg.issue(u, 2)
    def fill(upto):
        while nxt[0] <= min(upto, 95):
            rd(nxt[0]); nxt[0] += 1
    vm.wait(("w", 0), extra="lgkmcnt(0)")
    a("s_barrier")
    fill(3)
    for u in range(96):
        seg, t = u >> 5, u & 31
        if t == 0 and GST:
            stamp(f"{nm} pass{seg}")
        if u < 32:
            lg.wait(u)
        elif u % 2 == 0:
            lg.wait(u + 1)
        if u == 94 and end_barrier:
            a("s_barrier")
        x, w, acc = vr(G_X+4*t, 4), vr(G_WF[u % 6], 4), vr(G_ACC+16*seg, 16)
        c = "0" if (zero_c and t == 0) else acc
        if seg in swapped:
            a(f"v_mfma_f32_32x32x16_bf16 {acc}, {x}, {w}, {c}")
        else:
            a(f"v_mfma_f32_32x32x16_bf16 {acc}, {w}, {x}, {c}")
        fill(u + (4 if u < 28 else 5 if u < 29 else 6))
        for ins in inject.get(u, []):
            if isinstance(ins, tuple):
                a(ins[0]); vm.issue(ins[1])
            else:
                a(ins)

def spread(inject, items, u0, u1):
    tot = sum(c for _, c in items)
    acc = 0
    for ins, c in items:
        u = u0 + min(u1 - u0 - 1, int(acc * (u1 - u0) / tot))
        inject.setdefault(u, []).append(ins)
        acc += c

S_RG = [S_D0, S_D1, S_D2, S_D3]
def ring_setup(row_bytes, rot):
    a(f"s_and_b32 s{T1}, s{S_W}, 3")
    a(f"s_mul_i32 s{T0}, s{T1}, {32*row_bytes}")
    a(f"s_lshl_b32 s{T1}, s{T1}, 12")
    for c in range(4):
        if rot:
            a(f"s_add_u32 s{T7}, s{rot}, {c}")
            a(f"s_and_b32 s{T7}, s{T7}, 3")
            a(f"s_mul_i32 s{T7}, s{T7}, {128*row_bytes}")
            a(f"s_add_u32 s{S_RG[c]}, s{T0}, s{T7}")
        else:
            a(f"s_add_u32 s{S_RG[c]}, s{T0}, {c*128*row_bytes}")

def ring_issue(vm, rsrc, row_bytes, seg_off, n):
    for p in range(4):
        dma(vm, ("w", n), rsrc, V_DB, S_RG[n & 3], seg_off[n >> 2] + p*8*row_bytes, T1, L_RING + (n % 6)*16384 + p*1024)

def gemm_loader(vm, rsrc, row_bytes, seg_off, after=None):
    for n in range(12):
        vm.wait(("w", n), extra="lgkmcnt(0)" if n == 0 else "")
        a("s_barrier")
        if 2 <= n <= 7:
            ring_issue(vm, rsrc, row_bytes, seg_off, n + 4)
        if after:
            after(n)

def act_setup(nsteps_half, base, both):
    a(f"s_and_b32 s{T0}, s{S_W}, 3")
    a(f"s_lshl_b32 s{T3}, s{T0}, 10")
    if both:
        a(f"s_lshr_b32 s{T1}, s{S_W}, 2")
        a(f"s_lshl_b32 s{T2}, s{T1}, 13")
        a(f"s_add_u32 s{T3}, s{T3}, s{T2}")
        a(f"s_mul_i32 s{T1}, s{T1}, {nsteps_half}")
        a(f"s_add_u32 s{T0}, s{T0}, s{T1}")
    a(f"s_mul_i32 s{T1}, s{S_TB2}, {4*nsteps_half}")
    a(f"s_add_u32 s{T0}, s{T0}, s{T1}")
    a(f"s_lshl_b32 s{T0}, s{T0}, 10")
    a(f"s_add_u32 s{T4}, s{T0}, {base}")
    a(f"s_and_b32 s{T0}, s{S_W}, 2")
    a(f"s_lshl_b32 s{T0}, s{T0}, 12")
    a(f"v_add_u32 v4, s{T0}, v{V_L16}")
    a(f"v_add_u32 v5, 65536, v4")
    a(f"v_add_u32 v6, 131072, v4")

def act_issue(vm, q, slot, nsteps_half, both):
    for kh in range(1 if both else 2):
        for tb32 in range(2):
            dma(vm, ("a", q), R_WS, V_L16, T4, ((2*tb32 + kh)*nsteps_half + 4*q)*1024, T3, slot*16384 + kh*8192 + tb32*4096, "sc1")

def tile_compute(vm, nsteps, slots, wreg, acc, af):
    lg = Cnt(a, "lgkmcnt", 15)
    n = 2*nsteps
    def rd(u):
        if u >= n: return
        t, tb32 = u >> 1, u & 1
        if u % 8 == 0:
            vm.wait(("a", t >> 2))
            a("s_barrier")
        off = slots[t >> 2]*16384 + tb32*4096 + (t & 3)*1024
        a(f"ds_read_b128 {vr(af+4*(u&3),4)}, v{4 + off//65536} offset:{off % 65536}")
        lg.issue(u)
    for u in range(4):
        rd(u)
    for u in range(n):
        t, tb32 = u >> 1, u & 1
        lg.wait(u)
        d = vr(acc + 16*tb32, 16)
        a(f"v_mfma_f32_32x32x16_bf16 {d}, {vr(wreg(t),4)}, {vr(af+4*(u&3),4)}, {'0' if t == 0 else d}")
        rd(u + 4)
    a("s_nop 7")
    for tb32 in range(2):
        if tb32 == 0:
            a("s_nop 2")
        for i in range(4):
            a(f"ds_write_b128 v{V_REDW+i}, {vr(acc+16*tb32+4*i,4)} offset:{tb32*8192}")
    a("s_waitcnt lgkmcnt(0)")

def tile_loader(vm, nsteps, after):
    for q in range((nsteps + 3)//4):
        vm.wait(("a", q))
        a("s_barrier")
        after(q)

def reduce_addr():
    a(f"s_and_b32 s{T0}, s{S_W}, 2")
    a(f"s_lshl_b32 s{T0}, s{T0}, 13")
    a(f"s_and_b32 s{T1}, s{S_W}, 1")
    a(f"s_lshl_b32 s{T1}, s{T1}, 2")
    a(f"v_and_b32 v10, 31, v{V_LANE}")
    a(f"v_lshlrev_b32 v10, 8, v10")
    a(f"v_lshrrev_b32 v11, 5, v{V_LANE}")
    a(f"v_xor_b32 v11, v11, v{V_LANE}")
    a(f"v_and_b32 v11, 1, v11")
    a(f"v_lshl_add_u32 v10, v11, 7, v10")
    a(f"v_add_u32 v10, s{T0}, v10")
    a(f"v_and_b32 v11, 7, v{V_LANE}")
    a(f"v_xor_b32 v11, s{T1}, v11")
    for i in range(4):
        a(f"v_xor_b32 v{V_REDW+i}, {i}, v11")
        a(f"v_lshl_add_u32 v{V_REDW+i}, v{V_REDW+i}, 4, v10")
    a(f"v_lshrrev_b32 v10, 3, v0")
    a(f"v_xor_b32 v11, v10, v0")
    a(f"v_and_b32 v11, 7, v11")
    a(f"v_lshlrev_b32 v11, 4, v11")
    a(f"v_lshl_add_u32 v11, v10, 8, v11")
    a(f"v_and_b32 v10, 1, v10")
    a(f"v_lshl_add_u32 v{V_REDR}, v10, 7, v11")
    a(f"v_xor_b32 v{V_REDR+1}, 128, v{V_REDR}")

def tile_gather(dst):
    a("s_barrier")
    a(f"ds_read_b128 {vr(dst,4)}, v{V_REDR}")
    a(f"ds_read_b128 {vr(dst+8,4)}, v{V_REDR} offset:16384")
    a(f"ds_read_b128 {vr(dst+4,4)}, v{V_REDR+1}")
    a(f"ds_read_b128 {vr(dst+12,4)}, v{V_REDR+1} offset:16384")

def unpack8(dst, src):
    L = []
    for i in range(4):
        L.append(f"v_lshlrev_b32 v{dst+2*i}, 16, v{src+i}")
        L.append(f"v_and_b32 v{dst+2*i+1}, 0xffff0000, v{src+i}")
    return L

hdr = open("cdna_kernels/" + NAME + ".s.ref").read().split("\n")
for line in hdr:
    if line.startswith("; Override"):
        break
    a.raw(line)
a.raw(f"; @launch grid=(256,1,1) block=(512,1,1) lds={LDS_BYTES}")
a.raw('.amdgcn_target "amdgcn-amd-amdhsa--gfx950"')
a.raw(".text")
a.raw(f".globl {NAME}_kernel")
a.raw(".p2align 8")
a.raw(f".type {NAME}_kernel,@function")
a.label(f"{NAME}_kernel")

vm = Cnt(a, "vmcnt", 63)
a(f"s_cmp_ge_u32 s{S_WG}, 256")
a("s_cbranch_scc1 L_end")
if STAMPS:
    a("v_mov_b32 v250, 0")
stamp("start")
a(f"s_load_dwordx16 {sr(KA,16)}, s[0:1], 0")
a(f"s_load_dwordx4 {sr(KA+16,4)}, s[0:1], 64")
a(f"s_load_dwordx2 {sr(KA+20,2)}, s[0:1], 80")
a(f"s_getpc_b64 {sr(S_PC,2)}")
a.label("L_pc")
a.c("pull this kernel's code into L2, one line per wave")
a("v_lshrrev_b32 v4, 6, v0")
a(f"s_and_b32 s{T0}, s{S_WG}, 0xf8")
a(f"v_readfirstlane_b32 s{S_W}, v4")
a(f"v_add_u32 v5, s{T0}, v4")
a(f"v_lshlrev_b32 v5, 7, v5")
a(f"v_min_u32 v5, L_code_end-L_pc-4, v5")
a("s_mov_b64 exec, 1")
a(f"global_load_dword v251, v5, {sr(S_PC,2)}")
vm.issue("pf")
a("s_mov_b64 exec, -1")
a.c("roles")
a(f"v_and_b32 v{V_LANE}, 63, v0")
a(f"s_and_b32 s{T0}, s{S_WG}, 7")
a(f"s_lshr_b32 s{T1}, s{S_WG}, 3")
if XSW:
    a.c("workgroups that share an x tile give its halves to opposite wave sets")
    a(f"s_and_b32 s{T2}, s{T1}, 1")
    a(f"s_lshl_b32 s{T2}, s{T2}, 8")
    a(f"v_xor_b32 v0, s{T2}, v0")
a(f"s_lshr_b32 s{T2}, s{T0}, {3 - LH}")
a(f"s_lshl_b32 s{T2}, s{T2}, {5 - LH}")
a(f"s_lshr_b32 s{S_SHR}, s{T1}, {LH}")
a(f"s_add_u32 s{S_TB}, s{T2}, s{S_SHR}")
a(f"v_lshrrev_b32 v4, 3, v0")
a(f"v_and_b32 v5, 7, v0")
a(f"v_lshlrev_b32 v{V_ROWOFF}, 10, v4")
a(f"v_lshl_add_u32 v{V_ROWOFF}, v5, 4, v{V_ROWOFF}")
a(f"s_lshl_b32 s{T6}, s{S_TB}, 16")
for c in range(4):
    if KROT:
        a(f"s_add_u32 s{T7}, s{S_SHR}, {c}")
        a(f"s_and_b32 s{T7}, s{T7}, 3")
        a(f"s_lshl_b32 s{T7}, s{T7}, 8")
        a(f"s_add_u32 s{S_RG[c]}, s{T6}, s{T7}")
    else:
        a(f"s_add_u32 s{S_RG[c]}, s{T6}, {c*256}")
a(f"s_mov_b32 s{R_X+2}, {2048*512*2}")
a(f"s_mov_b32 s{R_X+3}, 0x00020000")
a(f"s_mov_b32 s{R_WQKV+2}, {512*1536*2}")
a(f"s_mov_b32 s{R_WQKV+3}, 0x00020000")
if WPF == 3:
    a.c("first touch of Wqkv, six different lines by every wave")
    a(f"s_lshl_b32 s{T5}, s{S_WG}, 3")
    a(f"s_add_u32 s{T5}, s{T5}, s{S_W}")
    a(f"s_mul_i32 s{T5}, s{T5}, 768")
    a(f"v_lshlrev_b32 v6, 7, v{V_LANE}")
    a("s_mov_b64 exec, 63")
a("s_waitcnt lgkmcnt(0)")
a(f"s_mov_b64 {sr(R_WQKV,2)}, {sr(KA+2,2)}")
a(f"s_mov_b64 {sr(R_X,2)}, {sr(KA,2)}")
if WPF == 3:
    a(f"buffer_load_dword v251, v6, {sr(R_WQKV,4)}, s{T5} offen")
    vm.issue("pf")
    a("s_mov_b64 exec, -1")
ln_loads(vm, R_X, S_RG)
stamp("x issued")
a(f"s_and_b32 s{T2}, s{T0}, {(8 >> LH) - 1}")
a(f"s_and_b32 s{T3}, s{T1}, {(1 << LH) - 1}")
a(f"s_lshl_b32 s{T3}, s{T3}, {3 - LH}")
a(f"s_add_u32 s{S_HG}, s{T2}, s{T3}")
a(f"s_lshl_b32 s{T4}, s{S_HG}, 7")
a(f"s_lshl_b32 s{T2}, s{T0}, 2")
a(f"s_and_b32 s{T3}, s{T1}, 3")
a(f"s_add_u32 s{S_TB2}, s{T2}, s{T3}")
a(f"s_lshr_b32 s{S_J}, s{T1}, 2")
dma_addr(V_DB, 3072, T4)
QKV_SEG = [1024, 2048, 0]
a(f"s_min_u32 s{T2}, s{S_J}, 3")
a(f"s_mul_i32 s{S_F0}, s{S_J}, 5")
a(f"s_add_u32 s{S_F0}, s{S_F0}, s{T2}")
a(f"s_cmp_lt_u32 s{S_J}, 3")
a(f"s_cselect_b32 s{S_NT}, 6, 5")
a(f"s_lshl_b32 s{T4}, s{S_J}, 7")
a(f"s_lshl_b32 s{T5}, s{S_TB2}, 16")
a(f"s_add_u32 s{S_TILE}, s{T5}, s{T4}")
a(f"v_and_b32 v6, 31, v4")
a(f"v_xor_b32 v6, v6, v5")
a(f"v_lshlrev_b32 v6, 4, v6")
a(f"v_lshl_add_u32 v6, v5, 9, v6")
a(f"v_lshrrev_b32 v4, 5, v4")
a(f"v_lshl_add_u32 v{V_XNW}, v4, 15, v6")
a(f"v_lshlrev_b32 v{V_L16}, 4, v{V_LANE}")
a(f"v_lshlrev_b32 v249, 2, v{V_LANE}")
ln_consts()
srd(R_WS, KA+20, WS_SIZE)

a.c("======== phase 1: LN1 + QKV projection")
def late_setup():
    srd(R_WO, KA+4, 512*512*2)
    srd(R_W1, KA+8, 512*1376*2)
    srd(R_B1, KA+10, 1376*2)
    srd(R_W2, KA+12, 1376*512*2)
    srd(R_B2, KA+14, 512*2)
    srd(R_OUT, KA+16, 2048*512*2)
    a.c("hand-off tag of this launch: next value of a full-period sequence after the one found in the workspace")
    a(f"s_mul_i32 s{S_N}, s{S_N}, 0x0019660d")
    a(f"s_add_u32 s{S_N}, s{S_N}, 0x3c6ef35f")
    a(f"v_mov_b32 v248, s{S_N}")
    flag_addr(WS_FKV, S_HG, S_TB, S_HG)
def misc_loads(vm):
    a.c("small operands needed much later: residual x tile, b2, b1")
    a(f"buffer_load_dwordx4 {vr(V_HRES,4)}, v{V_ROWOFF}, {sr(R_X,4)}, s{S_TILE} offen")
    a(f"v_and_b32 v10, 7, v0")
    a(f"v_lshlrev_b32 v10, 4, v10")
    a(f"s_lshl_b32 s{T4}, s{S_J}, 7")
    a(f"buffer_load_dwordx4 {vr(V_B2,4)}, v10, {sr(R_B2,4)}, s{T4} offen")
    a(f"v_and_b32 v10, 0x13, v{V_LANE}")
    a(f"v_bfe_u32 v11, v{V_LANE}, 2, 1")
    a(f"v_lshl_add_u32 v10, v11, 3, v10")
    a(f"v_bfe_u32 v11, v{V_LANE}, 3, 1")
    a(f"v_lshl_add_u32 v10, v11, 2, v10")
    a(f"v_lshlrev_b32 v10, 1, v10")
    a(f"s_bfe_u32 s{T5}, s{S_W}, 0x10001")
    a(f"s_add_u32 s{T5}, s{T5}, s{S_F0}")
    a(f"s_lshl_b32 s{T5}, s{T5}, 6")
    for seg in range(3):
        a(f"buffer_load_ushort v{V_B1+seg}, v10, {sr(R_B1,4)}, s{T5} offen offset:{seg*128}")
    vm.issue("misc", 5)
    a(f"v_mov_b32 v{V_B1+3}, 0")
ring_setup(3072, S_SHR if KROT else None)
stamp("setup")
va, vl = vm.copy(), vm.copy()
a(f"s_cmp_lt_u32 s{S_W}, 4")
a("s_cbranch_scc1 L_p1_a")
for n in range(NPB):
    ring_issue(vl, R_WQKV, 3072, QKV_SEG, n)
a(f"s_load_dword s{S_N}, {sr(KA+20,2)}, {WS_NONCE}")
ln_stats(vl, 2.0)
a("s_branch L_p1_norm")
a.label("L_p1_a")
a.c("first touch (scalar path) of the flag lines and the biases")
a(f"s_lshl_b32 s{T2}, s{S_TB2}, 8")
a(f"s_lshl_b32 s{T3}, s{S_W}, 13")
a(f"s_add_u32 s{T2}, s{T2}, s{T3}")
a(f"s_lshl_b32 s{T3}, s{S_HG}, 8")
a(f"s_add_u32 s{T3}, s{T3}, {WS_FKV}")
a(f"s_cmp_eq_u32 s{S_W}, 0")
a(f"s_cselect_b32 s{T2}, s{T3}, s{T2}")
a(f"s_add_u32 s{T3}, s{T2}, 64")
a(f"s_load_dword s{S_SPIN}, {sr(KA+20,2)}, s{T2}")
a(f"s_load_dword s{S_SPIN}, {sr(KA+20,2)}, s{T3}")
a(f"s_lshl_b32 s{T2}, s{S_W}, 1")
a(f"s_add_u32 s{T2}, s{T2}, s{S_F0}")
a(f"s_min_u32 s{T2}, s{T2}, 41")
a(f"s_lshl_b32 s{T2}, s{T2}, 6")
a(f"s_add_u32 s{T3}, s{T2}, 64")
a(f"s_load_dword s{S_SPIN}, {sr(KA+10,2)}, s{T2}")
a(f"s_load_dword s{S_SPIN}, {sr(KA+10,2)}, s{T3}")
a(f"s_and_b32 s{T2}, s{S_W}, 1")
a(f"s_lshl_b32 s{T2}, s{T2}, 6")
a(f"s_add_u32 s{T2}, s{T2}, s{T4}")
a(f"s_load_dword s{S_SPIN}, {sr(KA+14,2)}, s{T2}")
a(f"s_load_dword s{S_N}, {sr(KA+20,2)}, {WS_NONCE}")
gemm_addr()
ln_stats(va, 1.0)
a.label("L_p1_norm")
ln_norm(1.0)
stamp("ln1 done")
a(f"s_cmp_lt_u32 s{S_W}, 4")
a("s_cbranch_scc1 L_p1_compute")
def p1_after(n):
    k0 = NPB + NPA
    if n == 0:
        for k in range(k0, min(6, k0 + 2)):
            ring_issue(vl, R_WQKV, 3072, QKV_SEG, k)
        late_setup()
    if n == 1:
        for k in range(k0 + 2, 6):
            ring_issue(vl, R_WQKV, 3072, QKV_SEG, k)
gemm_loader(vl, R_WQKV, 3072, QKV_SEG, p1_after)
a("s_branch L_p1_done")
a.label("L_p1_compute")
for n in range(NPB, NPB + NPA):
    ring_issue(va, R_WQKV, 3072, QKV_SEG, n)
a("s_waitcnt lgkmcnt(0)")
late_setup()
stamp("A pre done")
a(f"s_and_b32 s{T0}, s{S_W}, 1")
a(f"s_lshr_b32 s{T1}, s{S_W}, 1")
a(f"s_lshl_b32 s{T2}, s{T0}, 12")
a(f"s_lshl_b32 s{T3}, s{T1}, 11")
a(f"s_add_u32 s{T4}, s{T2}, s{T3}")
a(f"s_lshl_b32 s{T2}, s{S_HG}, 1")
a(f"s_add_u32 s{T2}, s{T2}, s{T1}")
a(f"s_lshl_b32 s{T2}, s{T2}, 18")
a(f"s_lshl_b32 s{T3}, s{S_TB}, 1")
a(f"s_add_u32 s{T3}, s{T3}, s{T0}")
a(f"s_lshl_b32 s{T3}, s{T3}, 11")
a(f"s_add_u32 s{T2}, s{T2}, s{T3}")
a(f"s_add_u32 s{T2}, s{T2}, {WS_KV}")
a(f"s_add_u32 s{T3}, s{T2}, 0x20000")
E_K, E_V, E_Q, E_C = 208, 209, 210, 212
inj = {}
pre = [f"v_and_b32 v10, 0x33, v{V_LANE}", f"v_bfe_u32 v11, v{V_LANE}, 2, 1", "v_lshl_add_u32 v10, v11, 3, v10",
       f"v_bfe_u32 v11, v{V_LANE}, 3, 1", "v_lshl_add_u32 v10, v11, 2, v10", f"v_lshlrev_b32 v{E_K}, 4, v10",
       f"v_and_b32 v10, 15, v{V_LANE}", "v_lshlrev_b32 v10, 4, v10", f"v_lshrrev_b32 v11, 5, v{V_LANE}",
       "v_lshl_add_u32 v10, v11, 8, v10", f"v_bfe_u32 v11, v{V_LANE}, 4, 1", f"v_lshl_add_u32 v{E_V}, v11, 17, v10",
       f"v_add_u32 v{E_Q}, s{T4}, v{V_L16}", f"v_mov_b32 v{E_C}, {f32(0.25*math.log2(math.e))}", f"v_mov_b32 v{E_C+1}, v{E_C}"]
spread(inj, [(x, 1) for x in pre], 4, 19)
def cvt_inplace(b):
    return [f"v_cvt_pk_bf16_f32 v{b+i}, v{b+2*i}, v{b+2*i+1}" for i in range(8)]
aK, aV, aQ = G_ACC, G_ACC+16, G_ACC+32
items = [(x, 1) for x in cvt_inplace(aK)]
items += [((f"buffer_store_dwordx4 {vr(aK,4)}, v{E_K}, {sr(R_WS,4)}, s{T2} offen sc1", "st"), 2),
          ((f"buffer_store_dwordx4 {vr(aK+4,4)}, v{E_K}, {sr(R_WS,4)}, s{T3} offen sc1", "st"), 2)]
spread(inj, items, 36, 42)
items = [(x, 1) for x in cvt_inplace(aV)]
items += [((f"buffer_store_dwordx4 {vr(aV,4)}, v{E_V}, {sr(R_WS,4)}, s{T2} offen offset:1024 sc1", "st"), 2),
          ((f"buffer_store_dwordx4 {vr(aV+4,4)}, v{E_V}, {sr(R_WS,4)}, s{T2} offen offset:1536 sc1", "st"), 2)]
spread(inj, items, 68, 72)
gemm_compute(va, {1}, True, inj, False, 'p1')
a("s_nop 7")
a("s_nop 3")
for i in range(8):
    a(f"v_pk_mul_f32 {vr(aQ+2*i,2)}, {vr(aQ+2*i,2)}, {vr(E_C,2)}")
for x in cvt_inplace(aQ):
    a(x)
a(f"ds_write_b128 v{E_Q}, {vr(aQ,4)} offset:{L_Q}")
a(f"ds_write_b128 v{E_Q}, {vr(aQ+4,4)} offset:{L_Q+1024}")
stamp("p1 done")
a("s_waitcnt vmcnt(0) lgkmcnt(0)")
a.label("L_p1_done")
vm.clear()
a("s_barrier")
flag_store(4)
stamp("kv drained")
misc_loads(Cnt(a, "vmcnt", 63))

a.c("======== phase 2: attention; wave = (head = w&3, key range by w>>2), 64 queries")
A_Q = 16
A_S = 24
A_O = 56
A_KV = 88
A_IDX, A_AV, A_AK = 8, 9, 15
A_W1, A_DUM = 14, 251
P_W = 160
QA, QB, SA, SB, OA, OB = A_Q, A_Q+4, A_S, A_S+16, A_O, A_O+16
def Kf(t, ns=4): return A_KV + 12*(t % ns)
def Vf(t, s, ns=4): return A_KV + 12*(t % ns) + 4 + 4*s
def F_W(t): return 140 + 4*t if t < 24 else 64 + 4*(t - 24)
a(f"s_and_b32 s{T0}, s{S_W}, 3")
a(f"s_lshr_b32 s{T1}, s{S_W}, 2")
a(f"s_lshl_b32 s{T2}, s{S_W}, 10")
a(f"v_add_u32 v4, s{T2}, v{V_L16}")
a(f"v_xor_b32 v5, 4096, v4")
a(f"ds_read_b128 {vr(QA,4)}, v4 offset:{L_Q}")
a(f"ds_read_b128 {vr(QB,4)}, v5 offset:{L_Q}")
a(f"v_and_b32 v4, 15, v{V_LANE}")
a(f"v_lshrrev_b32 v5, 5, v{V_LANE}")
a(f"v_lshl_add_u32 v6, v5, 4, v4")
a(f"v_lshlrev_b32 v{A_AV}, 4, v6")
a(f"s_lshl_b32 s{T2}, s{S_HG}, 2")
a(f"s_add_u32 s{T2}, s{T2}, s{T0}")
a(f"s_lshl_b32 s{T2}, s{T2}, 17")
a(f"s_add_u32 s{S_HEAD}, s{T2}, {WS_KV}")
a(f"v_add_u32 v{A_AV}, s{S_HEAD}, v{A_AV}")
a(f"v_add_u32 v{A_AK}, s{S_HEAD}, v{V_L16}")
a.c("workgroups that share the head start at different key tiles")
a(f"s_mul_i32 s{T3}, s{T1}, {NA*2048}")
a(f"s_lshl_b32 s{S_XOFF}, s{S_SHR}, {17 - KG}")
a(f"s_add_u32 s{S_XOFF}, s{S_XOFF}, s{T3}")
a(f"s_and_b32 s{S_XOFF}, s{S_XOFF}, 0x1ffff")
a(f"s_mov_b32 s{S_MASKV}, 0xffff")
a(f"s_mov_b32 s{S_MASKV+1}, 0xffff")
a(f"v_mov_b32 v{A_IDX}, 0xdddddddd")
a.c("rows 16 and 20 of the V operand are ones (row sums for both lane halves), the other spare rows zero")
a(f"v_and_b32 v4, 0x1b, v{V_LANE}")
a(f"v_cmp_eq_u32 vcc, 16, v4")
a(f"v_mov_b32 v4, 0x3f803f80")
a(f"v_mov_b32 v5, 0")
a(f"v_cndmask_b32 v4, v5, v4, vcc")
for t in range(6):
    for i in range(8):
        a(f"v_mov_b32 v{Vf(t,0,6)+i}, v4")
for i in range(32):
    a(f"v_mov_b32 v{A_O+i}, 0")
for i in range(8):
    a(f"v_mov_b32 v{SB+8+i}, 0")
reduce_addr()
a(f"s_and_b32 s{T0}, s{S_W}, 3")
a(f"s_lshl_b32 s{T4}, s{S_J}, 7")
dma_addr(V_DA, 1024, T4)
a.c("weight staging addresses")
a(f"s_lshl_b32 s{T4}, s{S_F0}, 6")
dma_addr(V_DB, 2752, T4)
a(f"v_lshrrev_b32 v4, 2, v{V_LANE}")
a(f"v_mul_u32_u24 v4, 2752, v4")
a(f"v_and_b32 v5, 3, v{V_LANE}")
a(f"v_lshlrev_b32 v5, 7, v5")
a(f"v_min_u32 v5, 252, v5")
a(f"v_add3_u32 v{A_W1}, v4, v5, s{T4}")
a(f"s_lshl_b32 s{S_D0}, s{T0}, 13")
a(f"s_lshl_b32 s{S_D1}, s{T0}, 10")
a(f"s_mul_i32 s{S_D2}, s{T0}, {8*2752}")
a(f"s_and_b32 s{T2}, s{S_W}, 1")
a(f"s_bfe_u32 s{T3}, s{S_W}, 0x10001")
a(f"s_mul_i32 s{S_D3}, s{T3}, 86")
a(f"s_add_u32 s{S_D3}, s{S_D3}, s{T2}")
a(f"s_lshl_b32 s{S_D3}, s{S_D3}, 13")
a(f"s_and_b32 s{T4}, s{S_TB2}, 3")
a(f"s_lshl_b32 s{T4}, s{T4}, 2")
a(f"s_add_u32 s{T4}, s{T4}, s{T0}")
a(f"s_mul_i32 s{S_D4}, s{T4}, {32*2752}")
tr_lane_addr(7, T2, False)
W2_HOME = [(0, 65536, 49152), (24, 131072, 16384), (32, 20480, 22528)]
S_H = [T4, T5, T6]
for k, (t0, base, stride) in enumerate(W2_HOME):
    a(f"s_mul_i32 s{S_H[k]}, s{T3}, {stride}")
    a(f"s_add_u32 s{S_H[k]}, s{S_H[k]}, {base}")
    a(f"v_add_u32 v{4+k}, s{S_H[k]}, v7")
    a(f"s_lshl_b32 s{T7}, s{T2}, 10")
    a(f"s_add_u32 s{S_H[k]}, s{S_H[k]}, s{T7}")
a(f"s_lshl_b32 s{T7}, s{T3}, 15")
a(f"v_add_u32 v7, s{T7}, v7")
def w2_home(t):
    k = 0 if t < 24 else 1 if t < 32 else 2
    return k, (t - W2_HOME[k][0])*2048
flag_poll(4, 32)
a("s_waitcnt lgkmcnt(0)")
a("s_barrier")
stamp("kv ready")
def kv_load(v, t, ns):
    imm = 2048*(t & 1)
    a(f"buffer_load_dwordx4 {vr(Kf(t,ns),4)}, v{A_AK}, {sr(R_WS,4)}, s{S_XOFF} offen offset:{imm} sc1")
    a(f"s_mov_b64 exec, {sr(S_MASKV,2)}")
    a(f"buffer_load_dwordx4 {vr(Vf(t,0,ns),4)}, v{A_AV}, {sr(R_WS,4)}, s{S_XOFF} offen offset:{imm+1024} sc1")
    a(f"buffer_load_dwordx4 {vr(Vf(t,1,ns),4)}, v{A_AV}, {sr(R_WS,4)}, s{S_XOFF} offen offset:{imm+1536} sc1")
    a("s_mov_b64 exec, -1")
    if t & 1:
        a(f"s_add_u32 s{S_XOFF}, s{S_XOFF}, 4096")
        a(f"s_and_b32 s{S_XOFF}, s{S_XOFF}, 0x1ffff")
    v.issue(("kv", t), 3)
def smf(o, v, s):
    a(f"v_smfmac_f32_32x32x32_bf16 {vr(o,16)}, {vr(v,4)}, {vr(s,8)}, v{A_IDX}")
def attn_tile(v, t, ns, last=None, side=(), tail=None):
    side = list(side)
    order = {1: [(0, 13)], 2: [(0, 13), (1, 13)], 4: [(0, 4), (0, 13), (1, 4), (1, 13)]}[NBLK]
    at = {}
    for k, f in enumerate(side):
        at.setdefault(order[k*NBLK//len(side)], []).append(f)
    for ph in range(2):
        S, So, O, Oo, Qo = (SA, SB, OA, OB, QB) if ph == 0 else (SB, SA, OB, OA, QA)
        for i in range(16):
            for f in at.get((ph, i), []):
                f()
            if i == 2:
                smf(Oo, Vf(t - 1 + ph, 1, ns), So + 8)
            if i == 5 and not (ph == 1 and t == last):
                if ph == 1:
                    v.wait(("kv", t + 1))
                a(f"v_mfma_f32_32x32x16_bf16 {vr(So,16)}, {vr(Kf(t+ph,ns),4)}, {vr(Qo,4)}, 0")
            if i == 10:
                smf(O, Vf(t, 0, ns), S)
            if ph == 0 and i == 12 and (last is None or t + ns - 1 <= last):
                kv_load(v, t + ns - 1, ns)
            if ph == 1 and i == 12 and tail:
                tail()
            a(f"v_exp_f32 v{S+i}, v{S+i}")
def attn_first(v):
    v.wait(("kv", 0))
    a(f"v_mfma_f32_32x32x16_bf16 {vr(SA,16)}, {vr(Kf(0),4)}, {vr(QA,4)}, 0")
    flag_addr(WS_FO, S_TB, S_HG, S_TB2)
    a("s_nop 5")
a(f"s_cmp_lt_u32 s{S_W}, 4")
a("s_cbranch_scc1 L_attn_a")

a.c("---- waves 4-7: fewer key tiles, and the weights of the later phases go on chip")
vb = vm.copy()
NB = 64 - NA
for t in range(3):
    kv_load(vb, t, 4)
attn_first(vb)
if MALLW:
    a.c("first touch of the later weights, different lines by every wave")
    a(f"s_lshl_b32 s{T2}, s{S_WG}, 2")
    a(f"s_add_u32 s{T2}, s{T2}, s{T0}")
    a(f"s_lshl_b32 s{T3}, s{T2}, 9")
    a(f"s_mul_i32 s{T2}, s{T2}, {11*128}")
    a(f"v_lshlrev_b32 v10, 7, v{V_LANE}")
    for r, so, m in ((R_WO, T3, 15), (R_W2, T2, 0x7ff), (R_W1, T2, 0x7ff)):
        a(f"s_mov_b64 exec, {m:#x}")
        a(f"buffer_load_dword v251, v10, {sr(r,4)}, s{so} offen")
        vb.issue("pf")
    a("s_mov_b64 exec, -1")
def rot_list(tag, rsrc, vaddr, sg, g0, gstep, sl, l0, lstep, n):
    def mk(k):
        def f():
            if not ROT:
                dma(vb, tag, rsrc, vaddr, sg, g0 + k*gstep, sl, l0 + k*lstep)
                return
            if k == 0:
                a(f"s_and_b32 s{S_R0}, s{S_TB2}, 3")
                a(f"s_mul_i32 s{S_R0}, s{S_R0}, {n//4}")
            else:
                a(f"s_add_u32 s{S_R0}, s{S_R0}, 1")
                a(f"s_cmp_eq_u32 s{S_R0}, {n}")
                a(f"s_cselect_b32 s{S_R0}, 0, s{S_R0}")
            a(f"s_mul_i32 s{S_R1}, s{S_R0}, {lstep}")
            a(f"s_add_u32 s{S_R1}, s{S_R1}, s{sl}")
            a(f"s_mul_i32 s{S_D5}, s{S_R0}, {gstep}")
            a(f"s_add_u32 s{S_D5}, s{S_D5}, s{sg}")
            dma(vb, tag, rsrc, vaddr, S_D5, g0, S_R1, l0)
        return f
    return [mk(k) for k in range(n)]
L_wo = rot_list("r1", R_WO, V_DA, S_D0, 0, 32768, S_D1, 0, 4096, 16)
L_w2 = [rot_list("r2" if k else "r1", R_W2, V_DA, S_D3, t0*16384, 16384, S_H[k], 0, 2048, n) for k, (t0, n) in enumerate(((0, 24), (24, 8), (32, 11)))]
L_w1 = rot_list("r2", R_W1, V_DB, S_D2, 0, 32*2752, S_D1, L_RING, 4096, 16)
def d_warm(k):
    def f():
        a(f"s_add_u32 s{T7}, s{S_D4}, {k*16*2752 + 128}")
        a(f"buffer_load_dword v{A_DUM}, v{A_W1}, {sr(R_W1,4)}, s{T7} offen")
        vb.issue("r2")
    return f
def d_rd(t):
    k, off = w2_home(t)
    return lambda: tr_read(F_W(t), 4 + k, off)
def share(L, tiles):
    return {t: L[k*len(L)//len(tiles):(k+1)*len(L)//len(tiles)] for k, t in enumerate(tiles)}
plan = {}
plan.update(share(L_wo + L_w2[0], list(range(T0B, TB1 - 1))))
plan.update(share([d_rd(t) for t in range(24)], list(range(TB1, TB1 + TB2))))
plan.update(share(L_w2[1] + L_w2[2] + L_w1 + [d_warm(0), d_warm(1)], list(range(TB1 + TB2, NB - TEND))))
if NODUTY:
    plan = {}
for t in range(NB):
    if t == TB1:
        stamp("B at bar1") if opt("ast", 0) else None
        vb.wait("r1")
        a("s_barrier")
        stamp("B past bar1") if opt("ast", 0) else None
    if t == TB1 + TB2:
        a("s_waitcnt lgkmcnt(0)")
        stamp("B at bar2") if opt("ast", 0) else None
        a("s_barrier")
        stamp("B past bar2") if opt("ast", 0) else None
    attn_tile(vb, t, 4, NB - 1, plan.get(t, []))
a("s_nop 1")
smf(OB, Vf(NB - 1, 1, 4), SB+8)
a("s_branch L_attn_end")

a.c("---- waves 0-3")
a.label("L_attn_s1")
stamp("A at bar1") if opt("ast", 0) else None
a("s_barrier")
for t in range(16):
    tr_read(P_W + 4*t, 7, t*2048)
a(f"s_mov_b32 s{S_LOOP}, {IT2}")
a("s_branch L_attn")
a.label("L_attn_s2")
a("s_waitcnt lgkmcnt(0)")
stamp("A at bar2") if opt("ast", 0) else None
a("s_barrier")
a(f"s_mov_b32 s{S_LOOP}, {NA//6 - IT1 - IT2}")
a("s_branch L_attn")
a.label("L_attn_a")
a("s_setprio 1")
va = vm.copy()
for t in range(5):
    kv_load(va, t, 6)
a(f"s_mov_b32 s{S_LOOP}, {IT1}")
a(f"s_mov_b32 s{S_STAGE}, 0")
attn_first(va)
a.raw(".p2align 4")
a.label("L_attn")
def loop_tail():
    a(f"s_sub_u32 s{S_LOOP}, s{S_LOOP}, 1")
    a(f"s_cmp_lg_u32 s{S_LOOP}, 0")
for t in range(6):
    attn_tile(va, t, 6, None, [], loop_tail if t == 5 else None)
a("s_cbranch_scc1 L_attn")
a(f"s_add_u32 s{S_STAGE}, s{S_STAGE}, 1")
a(f"s_cmp_eq_u32 s{S_STAGE}, 1")
a("s_cbranch_scc1 L_attn_s1")
a(f"s_cmp_eq_u32 s{S_STAGE}, 2")
a("s_cbranch_scc1 L_attn_s2")
for t in range(6, 6 + NA % 6):
    attn_tile(va, t, 6, 5 + NA % 6)
if NA % 6:
    a("s_nop 1")
smf(OB, Vf(5 + NA % 6, 1, 6), SB+8)
a("s_setprio 0")
a.label("L_attn_end")
stamp("attn loop done")
a.c("combine the two key ranges: keep A, send B")
a(f"s_lshl_b32 s{T2}, s{S_W}, 11")
a(f"v_add_u32 v10, s{T2}, v{V_L16}")
a(f"s_lshl_b32 s{T2}, s{S_W}, 8")
a(f"v_add_u32 v11, s{T2}, v249")
a(f"s_lshr_b32 s{T1}, s{S_W}, 2")
a(f"s_lshl_b32 s{T2}, s{S_TB}, 1")
a(f"s_add_u32 s{T2}, s{T2}, s{T1}")
a(f"s_lshl_b32 s{T2}, s{T2}, 5")
a(f"s_lshl_b32 s{T3}, s{S_HG}, 2")
a(f"s_add_u32 s{T2}, s{T2}, s{T3}")
a(f"s_and_b32 s{T0}, s{S_W}, 3")
a(f"s_add_u32 s{T2}, s{T2}, s{T0}")
a(f"ds_write_b128 v10, {vr(OB,4)} offset:{L_OX}")
a(f"ds_write_b128 v10, {vr(OB+4,4)} offset:{L_OX+1024}")
a(f"ds_write_b32 v11, v{OB+8} offset:{L_OX+16384}")
a(f"s_lshl_b32 s{T2}, s{T2}, 10")
a(f"s_add_u32 s{T2}, s{T2}, {WS_OF}")
a(f"v_xor_b32 v14, 8192, v10")
a(f"v_xor_b32 v{SB+2}, 1024, v11")
a(f"v_mov_b32 v{SB}, {f32(2.0**-64)}")
a(f"v_mov_b32 v{SB+1}, {f32(2.0**64)}")
a("s_waitcnt lgkmcnt(0)")
a("s_barrier")
a(f"ds_read_b32 v{SA+8}, v{SB+2} offset:{L_OX+16384}")
a(f"ds_read_b128 {vr(SA,4)}, v14 offset:{L_OX}")
a(f"ds_read_b128 {vr(SA+4,4)}, v14 offset:{L_OX+1024}")
a("s_waitcnt lgkmcnt(2)")
a(f"v_add_f32 v{OA+8}, v{OA+8}, v{SA+8}")
a.c("the loop subtracted no row maximum: a row sum outside [2^-64, 2^64] (or NaN) sends the wave to the true-max path")
a(f"v_cmp_ge_f32 vcc, v{OA+8}, v{SB}")
a(f"v_cmp_le_f32 {sr(S_SAVE,2)}, v{OA+8}, v{SB+1}")
a("s_waitcnt lgkmcnt(0)")
for i in range(4):
    a(f"v_pk_add_f32 {vr(OA+2*i,2)}, {vr(OA+2*i,2)}, {vr(SA+2*i,2)}")
a(f"s_and_b64 vcc, vcc, {sr(S_SAVE,2)}")
a(f"s_cmp_eq_u64 vcc, -1")
if FORCE_FB:
    a("s_branch L_attn_fb")
else:
    a("s_cbranch_scc0 L_attn_fb")
a.label("L_attn_fin")
a(f"v_rcp_f32 v10, v{OA+8}")
a("s_nop 0")
for i in range(8):
    a(f"v_mul_f32 v{OA+i}, v{OA+i}, v10")
for i in range(4):
    a(f"v_cvt_pk_bf16_f32 v{SA+i}, v{OA+2*i}, v{OA+2*i+1}")
a(f"buffer_store_dwordx4 {vr(SA,4)}, v{V_L16}, {sr(R_WS,4)}, s{T2} offen sc1")

a.c("======== phase 3: h = x + O Wo ; tile 64 tokens x 64 columns, computed by waves 0-3")
T_ACC, T_AF = 16, 48
a("s_waitcnt vmcnt(0)")
a("s_barrier")
flag_store(0)
stamp("O drained")
a(f"s_cmp_lt_u32 s{S_W}, 4")
a("s_cbranch_scc1 L_p3_nord")
for t in range(24, 43):
    d_rd(t)()
a("s_waitcnt lgkmcnt(0)")
a.label("L_p3_nord")
act_setup(16, WS_OF, True)
flag_poll(0, 8)
a("s_barrier")
stamp("O ready")
for q in range(4):
    act_issue(vm, q, q, 16, True)
flag_addr(WS_FH, S_TB2, S_J, S_TB2)
W1_SEG = [0, 128, 256]
a(f"s_cmp_lt_u32 s{S_W}, 4")
a("s_cbranch_scc1 L_p3_compute")
vl = vm.copy()
ring_setup(2752, None)
def p3_after(q):
    if q in (1, 2):
        ring_issue(vl, R_W1, 2752, W1_SEG, q + 3)
tile_loader(vl, 16, p3_after)
a("s_branch L_p3_done")
a.label("L_p3_compute")
tile_compute(vm.copy(), 16, [0, 1, 2, 3], lambda t: P_W + 4*t, T_ACC, T_AF)
a.label("L_p3_done")
tile_gather(16)
for x in unpack8(32, V_HRES):
    a(x)
a(f"s_add_u32 s{T2}, s{S_TILE}, {WS_H}")
for h in range(2):
    a(f"s_waitcnt lgkmcnt({2-2*h})")
    for i in range(2*h, 2*h+2):
        a(f"v_pk_add_f32 {vr(32+2*i,2)}, {vr(32+2*i,2)}, {vr(16+2*i,2)}")
        a(f"v_pk_add_f32 {vr(32+2*i,2)}, {vr(32+2*i,2)}, {vr(24+2*i,2)}")
    for i in range(2*h, 2*h+2):
        a(f"v_cvt_pk_bf16_f32 v{V_HRES+i}, v{32+2*i}, v{32+2*i+1}")
a(f"buffer_store_dwordx4 {vr(V_HRES,4)}, v{V_ROWOFF}, {sr(R_WS,4)}, s{T2} offen sc1")
stamp("h stored")

a.c("======== phase 4: g = gelu(LN(h) W1 + b1), everything scaled by GS so that the tanh argument is u*(u*u+k)")
c1 = -2.0*math.sqrt(2.0/math.pi)*math.log2(math.e)
c3 = c1*0.044715
GS = -((-c3) ** (1.0/3))
GK = c1/GS
a(f"s_cmp_ge_u32 s{S_W}, 4")
a("s_cbranch_scc1 L_p4_nobias")
a.c("bias -> accumulators through one-hot products")
a(f"v_cmp_gt_u32 vcc, 32, v{V_LANE}")
a(f"v_mov_b32 v16, 0x3f80")
a(f"v_mov_b32 v17, 0")
a(f"v_cndmask_b32 v16, v17, v16, vcc")
for i in range(1, 12):
    a(f"v_mov_b32 v{16+i}, {'v16' if i % 5 == 0 else '0'}")
a(f"v_mov_b32 v14, {f32(GS)}")
a(f"v_mov_b32 v15, v14")
for seg in range(3):
    a(f"v_mfma_f32_32x32x16_bf16 {vr(G_ACC+16*seg,16)}, {vr(V_B1,4)}, {vr(16+4*seg,4)}, 0")
gemm_addr()
for i in range(24):
    a(f"v_pk_mul_f32 {vr(G_ACC+2*i,2)}, {vr(G_ACC+2*i,2)}, v[14:15]")
a(f"v_mov_b32 v10, {f32(GK)}")
a(f"v_mov_b32 v11, v10")
a(f"v_mov_b32 v14, 1.0")
a(f"v_mov_b32 v15, 1.0")
a.label("L_p4_nobias")
ln_consts()
a("s_waitcnt vmcnt(0)")
vm.clear()
a.c("pull the stored tile back into this XCD's L2 while the flags travel")
a(f"buffer_load_dwordx4 {vr(LN_D,4)}, v{V_ROWOFF}, {sr(R_WS,4)}, s{T2} offen sc1")
vm.issue("rr")
a("s_barrier")
flag_store(0)
stamp("h drained")
a(f"s_lshl_b32 s{T4}, s{S_TB2}, 16")
a(f"s_add_u32 s{T4}, s{T4}, {WS_H}")
flag_poll(0, 8)
a("s_barrier")
stamp("h ready")
ln_loads(vm, R_WS, T4, "sc1")
flag_addr(WS_FG, S_TB2, S_J, S_TB2)
ln_stats(vm, GS)
ln_norm(GS)
stamp("ln2 done")
G_SLOTS = [2, 3, 4, 5, 6, 7, 8, 9, 0, 1, 2]
G_SLOTS = [0, 1, 2, 3, 4, 5, 6, 7, 8, 9, 2]
a(f"s_cmp_lt_u32 s{S_W}, 4")
a("s_cbranch_scc1 L_p4_compute")
a.c("---- waves 4-7: W1 ring, then phase 5 compute")
ring_setup(2752, None)
gemm_loader(vm.copy(), R_W1, 2752, W1_SEG)
act_setup(43, WS_GF, False)
a("s_barrier")
a("s_barrier")
a.c("======== phase 5: out = h + g W2 + b2, computed by waves 4-7")
vm.clear()
tile_compute(vm.copy(), 43, G_SLOTS, F_W, T_ACC, T_AF)
stamp("ffn2 done B")
a("s_branch L_p5_done")

a.label("L_p4_compute")
a(f"s_and_b32 s{T0}, s{S_W}, 1")
a(f"s_lshl_b32 s{T1}, s{S_TB2}, 1")
a(f"s_add_u32 s{T0}, s{T0}, s{T1}")
a(f"s_mul_i32 s{T0}, s{T0}, 86")
a(f"s_lshr_b32 s{T1}, s{S_W}, 1")
a(f"s_add_u32 s{T3}, s{T1}, 4")
a(f"s_add_u32 s{T1}, s{T1}, s{S_F0}")
a(f"s_lshl_b32 s{T1}, s{T1}, 1")
a(f"s_add_u32 s{T0}, s{T0}, s{T1}")
a(f"s_lshl_b32 s{T0}, s{T0}, 10")
a(f"s_add_u32 s{T0}, s{T0}, {WS_GF}")
a(f"s_add_u32 s{T1}, s{T0}, 4096")
a(f"s_add_u32 s{T2}, s{T0}, 8192")
GT = 208
def gelu(seg, pk):
    u = G_ACC + 16*seg
    L = []
    def two(op, f):
        if pk:
            for i in range(8):
                L.append((f"v_pk_{op}_f32 {vr(GT+2*i,2)}, " + f(lambda b: vr(b+2*i, 2), lambda b: vr(b, 2)), 1))
        else:
            for i in range(16):
                L.append((f"v_{op}_f32 v{GT+i}, " + f(lambda b: f"v{b+i}", lambda b: f"v{b}"), 1))
    two("fma", lambda e, k: f"{e(u)}, {e(u)}, {k(10)}")
    two("mul", lambda e, k: f"{e(GT)}, {e(u)}")
    for i in range(16):
        L.append((f"v_exp_f32 v{GT+i}, v{GT+i}", 2))
    two("add", lambda e, k: f"{e(GT)}, {k(14)}")
    for i in range(16):
        L.append((f"v_rcp_f32 v{GT+i}, v{GT+i}", 2))
    two("mul", lambda e, k: f"{e(GT)}, {e(u)}")
    for i in range(8):
        L.append((f"v_cvt_pk_bf16_f32 v{u+i}, v{GT+2*i}, v{GT+2*i+1}", 1))
        if i % 4 == 3:
            L.append(((f"buffer_store_dwordx4 {vr(u+i-3,4)}, v{V_L16}, {sr(R_WS,4)}, s{T0+seg} offen offset:{(i//4)*1024} sc1", "st"), 2))
    return L
inj = {}
spread(inj, gelu(0, 0), 35, 64)
spread(inj, gelu(1, 0), 68, 95)
gemm_compute(vm.copy(), set(), False, inj, False, 'p4')
stamp("ffn1 done")
a(f"v_lshrrev_b32 v4, 4, v{V_LANE}")
a(f"s_cmp_ge_u32 s{T3}, s{S_NT}")
a(f"s_cselect_b32 s{T5}, 1, 2")
a(f"v_min_u32 v4, s{T5}, v4")
a(f"v_and_b32 v5, 15, v{V_LANE}")
a(f"v_lshlrev_b32 v5, 7, v5")
a(f"v_lshl_add_u32 v16, v4, 12, v5")
a(f"s_mov_b32 s{T6}, s{T0}")
a("s_cbranch_scc1 L_p4_skip")
a("s_nop 3")
a.raw(".p2align 3")
for x, _ in gelu(2, 1):
    a(x[0] if isinstance(x, tuple) else x)
a.label("L_p4_skip")
stamp("g stored")
act_setup(43, WS_GF, False)
a("s_waitcnt vmcnt(0)")
a(f"buffer_load_dword v17, v16, {sr(R_WS,4)}, s{T6} offen sc1")
a("s_barrier")
flag_store(0)
stamp("g drained")
flag_poll(0, 8)
a("s_barrier")
stamp("g ready")
vl = vm.copy()
for q in range(4):
    act_issue(vl, q, G_SLOTS[q], 43, False)
def p5_after(q):
    if q + 4 <= 10:
        act_issue(vl, q + 4, G_SLOTS[q + 4], 43, False)
tile_loader(vl, 43, p5_after)
a.label("L_p5_done")
tile_gather(16)
for x in unpack8(32, V_HRES) + unpack8(40, V_B2):
    a(x)
for i in range(4):
    a(f"v_pk_add_f32 {vr(32+2*i,2)}, {vr(32+2*i,2)}, {vr(40+2*i,2)}")
a(f"v_mov_b32 v10, {f32(1.0/GS)}")
a("v_mov_b32 v11, v10")
for h in range(2):
    a(f"s_waitcnt lgkmcnt({2-2*h})")
    for i in range(2*h, 2*h+2):
        a(f"v_pk_add_f32 {vr(16+2*i,2)}, {vr(16+2*i,2)}, {vr(24+2*i,2)}")
        a(f"v_pk_fma_f32 {vr(32+2*i,2)}, {vr(16+2*i,2)}, v[10:11], {vr(32+2*i,2)}")
    for i in range(2*h, 2*h+2):
        a(f"v_cvt_pk_bf16_f32 v{40+i}, v{32+2*i}, v{32+2*i+1}")
a(f"buffer_store_dwordx4 v[40:43], v{V_ROWOFF}, {sr(R_OUT,4)}, s{S_TILE} offen")
if STAMPS:
    a("s_waitcnt vmcnt(0)")
stamp("end")
stamp_flush()
a.c("every workgroup has read the old tag by now: leave this launch's tag for the next launch to step past")
a(f"s_or_b32 s{T0}, s{S_WG}, s{S_W}")
a(f"s_cmp_lg_u32 s{T0}, 0")
a("s_cbranch_scc1 L_end")
a("s_mov_b64 exec, 1")
a(f"buffer_store_dword v248, v249, {sr(R_WS,4)}, 0 offen offset:{WS_NONCE} sc1")
a.label("L_end")
a("s_endpgm")
a.label("L_code_end")

a.c("======== attention with the row's true maximum: q-block A over all 2048 keys")
a.label("L_attn_fb")
FM = SB
a("s_waitcnt vmcnt(0)")
a(f"v_mov_b32 v{FM}, 0xff800000")
a(f"s_mov_b32 s{S_XOFF}, 0")
a(f"s_mov_b32 s{S_LOOP}, 64")
a.label("L_fb1")
a(f"buffer_load_dwordx4 {vr(Kf(0),4)}, v{A_AK}, {sr(R_WS,4)}, s{S_XOFF} offen sc1")
a("s_waitcnt vmcnt(0)")
a(f"v_mfma_f32_32x32x16_bf16 {vr(SA,16)}, {vr(Kf(0),4)}, {vr(QA,4)}, 0")
a(f"s_add_u32 s{S_XOFF}, s{S_XOFF}, 2048")
a("s_nop 7")
a("s_nop 3")
for i in range(8):
    a(f"v_max3_f32 v{FM}, v{FM}, v{SA+2*i}, v{SA+2*i+1}")
a(f"s_sub_u32 s{S_LOOP}, s{S_LOOP}, 1")
a(f"s_cmp_lg_u32 s{S_LOOP}, 0")
a("s_cbranch_scc1 L_fb1")
a(f"v_mov_b32 v{FM+1}, v{FM}")
a("s_nop 1")
a(f"v_permlane32_swap_b32 v{FM}, v{FM+1}")
a("s_nop 1")
a(f"v_max_f32 v{FM}, v{FM}, v{FM+1}")
for i in range(16):
    a(f"v_mov_b32 v{OA+i}, 0")
a(f"s_mov_b32 s{S_XOFF}, 0")
a(f"s_mov_b32 s{S_LOOP}, 64")
a.label("L_fb2")
kv_load(Cnt(a, "vmcnt", 63), 0, 4)
a("s_waitcnt vmcnt(0)")
a(f"v_mfma_f32_32x32x16_bf16 {vr(SA,16)}, {vr(Kf(0),4)}, {vr(QA,4)}, 0")
a(f"s_add_u32 s{S_XOFF}, s{S_XOFF}, 2048")
a("s_nop 7")
a("s_nop 3")
for i in range(16):
    a(f"v_sub_f32 v{SA+i}, v{SA+i}, v{FM}")
for i in range(16):
    a(f"v_exp_f32 v{SA+i}, v{SA+i}")
a("s_nop 1")
smf(OA, Vf(0, 0), SA)
smf(OA, Vf(0, 1), SA+8)
a(f"s_sub_u32 s{S_LOOP}, s{S_LOOP}, 1")
a(f"s_cmp_lg_u32 s{S_LOOP}, 0")
a("s_nop 7")
a("s_cbranch_scc1 L_fb2")
a("s_nop 7")
a("s_nop 3")
a("s_branch L_attn_fin")

a.raw('.section .rodata,"a"')
a.raw(".p2align 6")
a.raw(f".amdhsa_kernel {NAME}_kernel")
a.raw("  .amdhsa_next_free_vgpr 256")
a.raw("  .amdhsa_next_free_sgpr 102")
a.raw("  .amdhsa_accum_offset 256")
a.raw("  .amdhsa_group_segment_fixed_size 0")
a.raw("  .amdhsa_kernarg_size 88")
a.raw("  .amdhsa_user_sgpr_count 2")
a.raw("  .amdhsa_user_sgpr_kernarg_segment_ptr 1")
a.raw("  .amdhsa_system_sgpr_workgroup_id_x 1")
a.raw(".end_amdhsa_kernel")

out = [x for x in args if not x.startswith("--")]
open(out[0] if out else "cdna_kernels/" + NAME + ".s", "w").write(a.text())
```

```python
import sys, math
from lib import *

NAME = "sequential_preLN__softmax_full_mha__dense_activation_gelu__prompt"
args = sys.argv[1:]
def opt(n, d):
    for x in args:
        if x.startswith("--" + n + "="):
            return type(d)(x.split("=")[1])
    return d
STAMPS = "--stamps" in args
FORCE_FB = "--force-fallback" in args
LH = opt("lh", 2)
NA = opt("na", 52)
IT1 = opt("it1", 4)
TB1 = opt("tb1", 6)
MALLW = opt("mallw", 1)
ROT = opt("rot", 0)
NBLK = opt("nblk", 2)
TB2 = opt("tb2", 1)
IT2 = opt("it2", 1)
TEND = opt("tend", 1)
T0B = opt("t0b", 1)
KG = opt("kg", 0)
NODUTY = opt("noduty", 0)
NPA = opt("npa", 2)
NPB = opt("npb", 0)
WPF = opt("wpf", 0)
KROT = opt("krot", 1)
L2PF = opt("l2pf", 2)
PST = opt("pst", 1)
UFA = opt("ufa", 89)
GB = opt("gb", 1)
QP = opt("qp", 4)
NO = opt("no", 3)
NH = opt("nh", 2)
NG = opt("ng", 4)
NG0 = opt("ng0", 0)
NGB = opt("ngb", 3)
HW = opt("hw", 12)
FB = opt("fb", 128)
OWN = opt("own", 1)
XSW = opt("xsw", 0)
GST = opt("gst", 0)
PROBE = opt("probe", "").replace("_", " ")

S_WG, S_W = 2, 3
S_PC = 4
R_X, R_WQKV, R_WO, R_W1, R_W2, R_WS, R_OUT, R_B1, R_B2 = 8, 12, 16, 20, 24, 28, 32, 36, 40
KA = 44
S_HG, S_TB, S_TB2, S_J, S_N = 66, 67, 68, 69, 70
S_F0 = 71
T0, T1, T2, T3, T4, T5, T6, T7 = 72, 73, 74, 75, 76, 77, 78, 79
S_LOOP, S_XOFF, S_HEAD = 80, 81, 82
S_TILE = 83
S_MASKV = 84
S_D0, S_D1, S_D2, S_D3 = 86, 87, 88, 89
S_TS = 90
S_NT = 92
S_SPIN = 93
S_SAVE = 94
S_D4, S_D5 = 96, 97
S_STAGE = 101
S_SHR = 65 + 0 if False else 100
S_R0, S_R1 = 4, 5
S_FOWN, S_FPOLL = 98, 99

WS_NONCE = 0
WS_FKV = 0x1000
WS_FO = 0x2000
WS_FH = 0x4000
WS_FG = 0x6000
WS_FC = 0x8000
WS_CS = 0x60000
WS_HS = 0x40000
WS_STAMP = 0x10000
WS_KV = 0x100000
WS_OF = 0x500000
WS_H = 0x700000
WS_GF = 0x900000
WS_SIZE = 0x1000000

L_XN = 0
L_RING = 65536
L_Q = 32768
L_OX = 0
LDS_BYTES = 163840

V_LANE, V_ROWOFF, V_XNW = 1, 2, 3
V_DA, V_DB = 12, 13
V_B1 = 232
V_B2 = 236
V_REDW, V_REDR, V_L16 = 240, 244, 246
V_HRES = 252

a = Asm()
stamp_idx = [0]
def stamp(name):
    i = stamp_idx[0]
    stamp_idx[0] += 1
    if PROBE and name == "start":
        a("s_memrealtime s[6:7]")
    if PROBE and name == "setup":
        a("s_mov_b32 s1, 0")
    if PROBE == name:
        a(f"s_memrealtime {sr(S_TS,2)}")
        a("s_waitcnt lgkmcnt(0)")
        a(f"s_sub_u32 s1, s{S_TS}, s6")
    if PROBE and name == "end":
        a("s_mul_i32 s1, s1, 10")
        a("s_add_u32 s1, s1, 10000")
        a(f"s_cmp_lg_u32 s{S_WG}, 100")
        a("s_cbranch_scc1 L_nopin")
        a.label("L_pin")
        a(f"s_memrealtime {sr(S_TS,2)}")
        a("s_waitcnt lgkmcnt(0)")
        a(f"s_sub_u32 s{S_TS}, s{S_TS}, s6")
        a(f"s_cmp_lt_u32 s{S_TS}, s1")
        a("s_cbranch_scc1 L_pin")
        a.label("L_nopin")
    if not STAMPS:
        return
    a.c(f"stamp {i} {name}")
    a(f"s_memtime {sr(S_TS,2)}")
    a(f"s_waitcnt lgkmcnt(0)")
    a(f"v_writelane_b32 v250, s{S_TS}, {i}")
    a(f"s_memrealtime {sr(S_TS,2)}")
    a(f"s_waitcnt lgkmcnt(0)")
    a(f"v_writelane_b32 v250, s{S_TS}, {i+32}")

def stamp_flush():
    if not STAMPS:
        return
    l = a.uniq("L_st")
    a(f"s_and_b32 s{T7}, s{S_W}, 3")
    a(f"s_cmp_lg_u32 s{T7}, 0")
    a(f"s_cbranch_scc1 {l}")
    a(f"s_lshl_b32 s{T7}, s{S_WG}, 9")
    a(f"s_lshl_b32 s{T6}, s{S_W}, 6")
    a(f"s_add_u32 s{T7}, s{T7}, s{T6}")
    a(f"s_add_u32 s{T7}, s{T7}, {WS_STAMP}")
    a(f"v_lshlrev_b32 v251, 2, v{V_LANE}")
    a(f"buffer_store_dword v250, v251, {sr(R_WS,4)}, s{T7} offen")
    a.label(l)

def srd(r, ptr, size):
    a(f"s_mov_b32 s{r}, s{ptr}")
    a(f"s_mov_b32 s{r+1}, s{ptr+1}")
    a(f"s_mov_b32 s{r+2}, {size}")
    a(f"s_mov_b32 s{r+3}, 0x00020000")

def flag_addr(base, line_own, word_own, line_poll):
    a(f"s_lshl_b32 s{S_FOWN}, s{line_own}, 8")
    a(f"s_lshl_b32 s{T7}, s{word_own}, 2")
    a(f"s_add_u32 s{S_FOWN}, s{S_FOWN}, s{T7}")
    a(f"s_add_u32 s{S_FOWN}, s{S_FOWN}, {base}")
    a(f"s_lshl_b32 s{S_FPOLL}, s{line_poll}, 8")
    a(f"s_add_u32 s{S_FPOLL}, s{S_FPOLL}, {base}")

def flag_store(poller, off=0):
    l = a.uniq("L_nf")
    a(f"s_cmp_lg_u32 s{S_W}, {poller}")
    a(f"s_cbranch_scc1 {l}")
    a(f"s_mov_b64 exec, 1")
    a(f"buffer_store_dword v248, v249, {sr(R_WS,4)}, s{S_FOWN} offen offset:{off} sc1")
    a(f"s_mov_b64 exec, -1")
    a.label(l)

def flag_poll(poller, nflags, off=0):
    l_skip, l_poll, l_done = a.uniq("L_skip"), a.uniq("L_poll"), a.uniq("L_done")
    if poller is None:
        a(f"v_cmp_eq_u32 vcc, v247, v248")
        a("s_nop 0")
        a(f"s_and_b32 s{T7}, vcc_lo, {(1 << nflags) - 1:#x}")
        a(f"s_cmp_eq_u32 s{T7}, {(1 << nflags) - 1:#x}")
    else:
        a(f"s_cmp_lg_u32 s{S_W}, {poller}")
    a(f"s_cbranch_scc1 {l_skip}")
    a(f"s_mov_b32 exec_hi, 0")
    a(f"s_mov_b32 exec_lo, {(1 << nflags) - 1:#x}")
    a(f"s_mov_b32 s{S_SPIN}, 0")
    a.label(l_poll)
    a(f"buffer_load_dword v247, v249, {sr(R_WS,4)}, s{S_FPOLL} offen offset:{off} sc1")
    a(f"s_add_u32 s{S_SPIN}, s{S_SPIN}, 1")
    a("s_waitcnt vmcnt(0)")
    a(f"v_cmp_eq_u32 vcc, v247, v248")
    a(f"s_cmp_gt_u32 s{S_SPIN}, 200000")
    a(f"s_cbranch_scc1 {l_done}")
    a(f"s_cmp_eq_u64 vcc, exec")
    a(f"s_cbranch_scc0 {l_poll}")
    a.label(l_done)
    a("s_mov_b64 exec, -1")
    a.label(l_skip)

def spoll_issue(off):
    a(f"s_add_u32 s{KA+2}, s{S_FPOLL}, {off}")
    a(f"s_load_dwordx8 {sr(KA+4,8)}, {sr(KA+20,2)}, s{KA+2} glc")
    a(f"s_mov_b32 s{KA}, s{S_N}")
    a(f"s_mov_b32 s{KA+1}, s{S_N}")
    a(f"s_mov_b32 s{KA+3}, 0")

def spoll_check(off):
    l, l_ok = a.uniq("L_sp"), a.uniq("L_spok")
    a.label(l)
    a("s_waitcnt lgkmcnt(0)")
    for k in range(4):
        a(f"s_xor_b64 {sr(KA+4+2*k,2)}, {sr(KA+4+2*k,2)}, {sr(KA,2)}")
    for k in range(1, 4):
        a(f"s_or_b64 {sr(KA+4,2)}, {sr(KA+4,2)}, {sr(KA+4+2*k,2)}")
    a(f"s_cbranch_scc0 {l_ok}")
    a(f"s_load_dwordx8 {sr(KA+4,8)}, {sr(KA+20,2)}, s{KA+2} glc")
    a(f"s_add_u32 s{KA+3}, s{KA+3}, 1")
    a(f"s_cmp_lt_u32 s{KA+3}, 16")
    a(f"s_cbranch_scc1 {l}")
    a("s_waitcnt lgkmcnt(0)")
    a(f"v_not_b32 v247, v248")
    flag_poll(None, 8, off)
    a.label(l_ok)

LN_X, LN_D, LN_T = 16, 48, 56

def ln_loads(vm, rsrc, soff, flags=""):
    for i in range(8):
        so, imm = (soff[i >> 1], 128*(i & 1)) if isinstance(soff, list) else (soff, 128*i)
        a(f"buffer_load_dwordx4 {vr(LN_X+4*i,4)}, v{V_ROWOFF}, {sr(rsrc,4)}, s{so} offen offset:{imm} {flags}")
        vm.issue(("x", i))

def ln_consts():
    t = LN_T
    a(f"v_mov_b32 v{t+4}, 0x3f803f80")
    a(f"v_mov_b32 v{t+5}, 0x00003f80")
    a(f"v_mov_b32 v{t+6}, 0x3f800000")
    a(f"v_mov_b32 v{t}, 0")
    a(f"v_mov_b32 v{t+1}, 0")

def ln_stats(vm, scale):
    t = LN_T
    for i in range(8):
        vm.wait(("x", i))
        if i in (7,) and scale >= 1.0:
            stamp(f"x{i} in {scale}")
        a.raw(".p2align 3")
        for j in range(4):
            a(f"v_dot2_f32_bf16 v{t}, v{LN_X+4*i+j}, v{t+4}, v{t}")
            a(f"v_dot2_f32_bf16 v{t+1}, v{LN_X+4*i+j}, v{LN_X+4*i+j}, v{t+1}")

def sum8_pair(t):
    a("s_nop 1")
    for ctl in ("quad_perm:[1,0,3,2]", "quad_perm:[2,3,0,1]", "row_half_mirror"):
        a("s_nop 0")
        a(f"v_add_f32_dpp v{t}, v{t}, v{t} {ctl} row_mask:0xf bank_mask:0xf")
        a(f"v_add_f32_dpp v{t+1}, v{t+1}, v{t+1} {ctl} row_mask:0xf bank_mask:0xf")

def ln_norm(scale, vm=None):
    t = LN_T
    sum8_pair(t)
    a(f"v_mul_f32 v{t}, {f32(-1.0/512)}, v{t}")
    a(f"v_mul_f32 v{t+2}, v{t}, v{t}")
    a(f"v_mul_f32 v{t+1}, {f32(1.0/512)}, v{t+1}")
    a(f"v_sub_f32 v{t+1}, v{t+1}, v{t+2}")
    a(f"v_max_f32 v{t+1}, 0, v{t+1}")
    a(f"v_add_f32 v{t+1}, {f32(1e-5)}, v{t+1}")
    a(f"v_rsq_f32 v{t+2}, v{t+1}")
    a("s_nop 0")
    if scale != 1.0:
        a(f"v_mul_f32 v{t+2}, {f32(scale)}, v{t+2}")
    a(f"v_mov_b32 v{t+3}, v{t+2}")
    for i in range(8):
        if vm:
            vm.wait(("x", i))
        a.raw(".p2align 3")
        for j in range(4):
            a(f"v_dot2_f32_bf16 v{LN_D+2*j}, v{LN_X+4*i+j}, v{t+5}, v{t}")
            a(f"v_dot2_f32_bf16 v{LN_D+2*j+1}, v{LN_X+4*i+j}, v{t+6}, v{t}")
        for j in range(4):
            a(f"v_pk_mul_f32 {vr(LN_D+2*j,2)}, {vr(LN_D+2*j,2)}, {vr(t+2,2)}")
        for j in range(4):
            a(f"v_cvt_pk_bf16_f32 v{LN_X+4*i+j}, v{LN_D+2*j}, v{LN_D+2*j+1}")
        a(f"ds_write_b128 v{V_XNW}, {vr(LN_X+4*i,4)} offset:{L_XN + 4096*i}")

def dma_addr(dst, row_bytes, col_s):
    a(f"v_lshrrev_b32 v10, 3, v{V_LANE}")
    a(f"v_and_b32 v11, 7, v{V_LANE}")
    a(f"v_lshlrev_b32 v{dst}, 1, v10")
    a(f"v_and_b32 v{dst}, 4, v{dst}")
    a(f"v_xor_b32 v11, v11, v{dst}")
    a(f"v_mul_u32_u24 v10, {row_bytes}, v10")
    a(f"v_lshl_add_u32 v10, v11, 4, v10")
    a(f"v_add_u32 v{dst}, s{col_s}, v10")

def dma(vm, tag, rsrc, vaddr, sg, goff, sl, loff, flags=""):
    a(f"s_add_u32 m0, s{sl}, {loff}")
    a(f"s_add_u32 s{T7}, s{sg}, {goff}")
    a(f"buffer_load_dwordx4 v{vaddr}, {sr(rsrc,4)}, s{T7} offen {flags} lds")
    vm.issue(tag)

def tr_lane_addr(dst, hp_s, perm):
    a(f"v_bfe_u32 v10, v{V_LANE}, 2, 2")
    a(f"v_lshrrev_b32 v11, 1, v10")
    a(f"v_xor_b32 v11, s{hp_s}, v11")
    a(f"v_lshlrev_b32 v11, 6, v11")
    a(f"v_lshl_add_u32 v11, v10, 7, v11")
    a(f"v_bfe_u32 v10, v{V_LANE}, 4, 1")
    a(f"v_lshl_add_u32 v11, v10, 5, v11")
    if perm:
        a(f"v_and_b32 v10, 1, v{V_LANE}")
        a(f"v_lshl_add_u32 v11, v10, 4, v11")
        a(f"v_bfe_u32 v10, v{V_LANE}, 1, 1")
        a(f"v_lshl_add_u32 v11, v10, 3, v11")
    else:
        a(f"v_and_b32 v10, 3, v{V_LANE}")
        a(f"v_lshl_add_u32 v11, v10, 3, v11")
    a(f"v_lshrrev_b32 v10, 5, v{V_LANE}")
    a(f"v_lshl_add_u32 v{dst}, v10, 10, v11")

def tr_read(dst, vaddr, off):
    a(f"ds_read_b64_tr_b16 {vr(dst,2)}, v{vaddr} offset:{off}")
    a(f"ds_read_b64_tr_b16 {vr(dst+2,2)}, v{vaddr} offset:{off+512}")

G_X, G_ACC = 16, 144
G_WF = [192, 196, 200, 204, 224, 228]
G_XA, G_WA = 4, 8

def gemm_addr(raw=False):
    a(f"s_lshr_b32 s{T0}, s{S_W}, 1")
    a(f"s_and_b32 s{T0}, s{T0}, 1")
    tr_lane_addr(G_WA, T0, True)
    a(f"v_add_u32 v{G_WA}, {L_RING}, v{G_WA}")
    a(f"v_add_u32 v{G_WA+1}, 49152, v{G_WA}")
    a(f"s_and_b32 s{T0}, s{S_W}, 1")
    a(f"s_lshl_b32 s{T0}, s{T0}, 15")
    if raw:
        a(f"v_bfe_u32 v10, v{V_LANE}, 3, 2")
        a(f"v_lshlrev_b32 v10, 13, v10")
        a(f"v_and_b32 v11, 7, v{V_LANE}")
        a(f"v_lshl_add_u32 v10, v11, 7, v10")
        a(f"v_add_u32 v10, s{T0}, v10")
        a(f"v_bfe_u32 v11, v{V_LANE}, 1, 3")
        a(f"v_lshrrev_b32 v{G_XA}, 5, v{V_LANE}")
        a(f"v_xor_b32 v11, v11, v{G_XA}")
        for b in range(4):
            a(f"v_xor_b32 v{G_XA+b}, {2*b}, v11")
            a(f"v_lshl_add_u32 v{G_XA+b}, v{G_XA+b}, 4, v10")
        return
    for b in range(4):
        a(f"v_lshrrev_b32 v10, 5, v{V_LANE}")
        a(f"v_add_u32 v10, {2*b}, v10")
        a(f"v_and_b32 v11, 31, v{V_LANE}")
        a(f"v_xor_b32 v11, v11, v10")
        a(f"v_lshlrev_b32 v11, 4, v11")
        a(f"v_lshl_add_u32 v11, v10, 9, v11")
        a(f"v_add_u32 v{G_XA+b}, s{T0}, v11")

def gemm_compute(vm, swapped, zero_c, inject, before, nm, xstride=4096):
    lg = Cnt(a, "lgkmcnt", 15)
    nxt = [0]
    def rd(u):
        if u % 8 == 0 and u:
            vm.wait(("w", u >> 3), ("x", u >> 3))
            a("s_barrier")
        if u < 32:
            a(f"ds_read_b128 {vr(G_X+4*u,4)}, v{G_XA+(u&3)} offset:{L_XN + (u>>2)*xstride}")
            lg.issue(u)
        off = ((u >> 3) % 6)*16384 + (u & 7)*2048
        r = G_WA
        if off >= 49152:
            r, off = G_WA + 1, off - 49152
        tr_read(G_WF[u % 6], r, off)
        lg.issue(u, 2)
    def fill(upto):
        while nxt[0] <= min(upto, 95):
            rd(nxt[0]); nxt[0] += 1
    vm.wait(("w", 0), ("x", 0), extra="lgkmcnt(0)")
    a("s_barrier")
    fill(3)
    for u in range(96):
        seg, t = u >> 5, u & 31
        if t == 0 and GST:
            stamp(f"{nm} pass{seg}")
        if u < 32:
            lg.wait(u)
        elif u % 2 == 0:
            lg.wait(u + 1)
        if u in before:
            before[u]()
        x, w, acc = vr(G_X+4*t, 4), vr(G_WF[u % 6], 4), vr(G_ACC+16*seg, 16)
        c = "0" if (seg in zero_c and t == 0) else acc
        if seg in swapped:
            a(f"v_mfma_f32_32x32x16_bf16 {acc}, {x}, {w}, {c}")
        else:
            a(f"v_mfma_f32_32x32x16_bf16 {acc}, {w}, {x}, {c}")
        fill(u + (4 if u < 28 else 5 if u < 29 else 6))
        for ins in inject.get(u, []):
            if isinstance(ins, tuple):
                a(ins[0]); vm.issue(ins[1])
            else:
                a(ins)

def spread(inject, items, u0, u1):
    tot = sum(c for _, c in items)
    acc = 0
    for ins, c in items:
        u = u0 + min(u1 - u0 - 1, int(acc * (u1 - u0) / tot))
        inject.setdefault(u, []).append(ins)
        acc += c

S_RG = [S_D0, S_D1, S_D2, S_D3]
def ring_setup(row_bytes, rot):
    a(f"s_and_b32 s{T1}, s{S_W}, 3")
    a(f"s_mul_i32 s{T0}, s{T1}, {32*row_bytes}")
    a(f"s_lshl_b32 s{T1}, s{T1}, 12")
    for c in range(4):
        if rot:
            a(f"s_add_u32 s{T7}, s{rot}, {c}")
            a(f"s_and_b32 s{T7}, s{T7}, 3")
            a(f"s_mul_i32 s{T7}, s{T7}, {128*row_bytes}")
            a(f"s_add_u32 s{S_RG[c]}, s{T0}, s{T7}")
        else:
            a(f"s_add_u32 s{S_RG[c]}, s{T0}, {c*128*row_bytes}")

def ring_issue(vm, rsrc, row_bytes, seg_off, n):
    for p in range(4):
        dma(vm, ("w", n), rsrc, V_DB, S_RG[n & 3], seg_off[n >> 2] + p*8*row_bytes, T1, L_RING + (n % 6)*16384 + p*1024)

def gemm_loader(vm, rsrc, row_bytes, seg_off, after=None):
    for n in range(12):
        vm.wait(("w", n), ("x", n), extra="lgkmcnt(0)" if n == 0 else "")
        a("s_barrier")
        if 2 <= n <= 7:
            ring_issue(vm, rsrc, row_bytes, seg_off, n + 4)
        if after:
            after(n)

def act_setup(nsteps_half, base, pairs):
    a(f"s_and_b32 s{T0}, s{S_W}, 3")
    a(f"s_lshl_b32 s{T3}, s{T0}, 10")
    if pairs:
        a(f"s_lshl_b32 s{T0}, s{T0}, 1")
    a(f"s_mul_i32 s{T1}, s{S_TB2}, {4*nsteps_half}")
    a(f"s_add_u32 s{T0}, s{T0}, s{T1}")
    a(f"s_lshl_b32 s{T0}, s{T0}, 10")
    a(f"s_add_u32 s{T4}, s{T0}, {base}")
    a(f"s_and_b32 s{T0}, s{S_W}, 2")
    a(f"s_lshl_b32 s{T0}, s{T0}, 12")
    a(f"v_add_u32 v4, s{T0}, v{V_L16}")
    a(f"v_add_u32 v5, 65536, v4")
    a(f"v_add_u32 v6, 131072, v4")

def act_issue(vm, q, slot, nsteps_half, pairs):
    for kh in range(2):
        for tb32 in range(2):
            dma(vm, ("a", q), R_WS, V_L16, T4, (2*tb32*nsteps_half + (8*q + kh if pairs else 4*q + kh*nsteps_half))*1024, T3, slot*16384 + kh*8192 + tb32*4096, "sc1")

def tile_compute(vm, nsteps, slots, wreg, acc, af):
    lg = Cnt(a, "lgkmcnt", 15)
    n = 2*nsteps
    def rd(u):
        if u >= n: return
        t, tb32 = u >> 1, u & 1
        if u % 8 == 0:
            vm.wait(("a", t >> 2))
            a("s_barrier")
        off = slots[t >> 2]*16384 + tb32*4096 + (t & 3)*1024
        a(f"ds_read_b128 {vr(af+4*(u&3),4)}, v{4 + off//65536} offset:{off % 65536}")
        lg.issue(u)
    for u in range(4):
        rd(u)
    for u in range(n):
        t, tb32 = u >> 1, u & 1
        lg.wait(u)
        d = vr(acc + 16*tb32, 16)
        a(f"v_mfma_f32_32x32x16_bf16 {d}, {vr(wreg(t),4)}, {vr(af+4*(u&3),4)}, {'0' if t == 0 else d}")
        rd(u + 4)
    a("s_nop 7")
    for tb32 in range(2):
        if tb32 == 0:
            a("s_nop 2")
        for i in range(4):
            a(f"ds_write_b128 v{V_REDW+i}, {vr(acc+16*tb32+4*i,4)} offset:{tb32*8192}")
    a("s_waitcnt lgkmcnt(0)")

def tile_loader(vm, nsteps, after):
    for q in range((nsteps + 3)//4):
        vm.wait(("a", q))
        a("s_barrier")
        after(q)

def reduce_addr():
    a(f"s_and_b32 s{T0}, s{S_W}, 2")
    a(f"s_lshl_b32 s{T0}, s{T0}, 13")
    a(f"s_and_b32 s{T1}, s{S_W}, 1")
    a(f"s_lshl_b32 s{T1}, s{T1}, 2")
    a(f"v_and_b32 v10, 31, v{V_LANE}")
    a(f"v_lshlrev_b32 v10, 8, v10")
    a(f"v_lshrrev_b32 v11, 5, v{V_LANE}")
    a(f"v_xor_b32 v11, v11, v{V_LANE}")
    a(f"v_and_b32 v11, 1, v11")
    a(f"v_lshl_add_u32 v10, v11, 7, v10")
    a(f"v_add_u32 v10, s{T0}, v10")
    a(f"v_and_b32 v11, 7, v{V_LANE}")
    a(f"v_xor_b32 v11, s{T1}, v11")
    for i in range(4):
        a(f"v_xor_b32 v{V_REDW+i}, {i}, v11")
        a(f"v_lshl_add_u32 v{V_REDW+i}, v{V_REDW+i}, 4, v10")
    a(f"v_lshrrev_b32 v10, 3, v0")
    a(f"v_xor_b32 v11, v10, v0")
    a(f"v_and_b32 v11, 7, v11")
    a(f"v_lshlrev_b32 v11, 4, v11")
    a(f"v_lshl_add_u32 v11, v10, 8, v11")
    a(f"v_and_b32 v10, 1, v10")
    a(f"v_lshl_add_u32 v{V_REDR}, v10, 7, v11")
    a(f"v_xor_b32 v{V_REDR+1}, 128, v{V_REDR}")

def tile_gather(dst):
    a("s_barrier")
    a(f"ds_read_b128 {vr(dst,4)}, v{V_REDR}")
    a(f"ds_read_b128 {vr(dst+8,4)}, v{V_REDR} offset:16384")
    a(f"ds_read_b128 {vr(dst+4,4)}, v{V_REDR+1}")
    a(f"ds_read_b128 {vr(dst+12,4)}, v{V_REDR+1} offset:16384")

def unpack8(dst, src):
    L = []
    for i in range(4):
        L.append(f"v_lshlrev_b32 v{dst+2*i}, 16, v{src+i}")
        L.append(f"v_and_b32 v{dst+2*i+1}, 0xffff0000, v{src+i}")
    return L

hdr = open("cdna_kernels/" + NAME + ".s.ref").read().split("\n")
for line in hdr:
    if line.startswith("; Override"):
        break
    a.raw(line)
a.raw(f"; @launch grid=(256,1,1) block=(512,1,1) lds={LDS_BYTES}")
a.raw('.amdgcn_target "amdgcn-amd-amdhsa--gfx950"')
a.raw(".text")
a.raw(f".globl {NAME}_kernel")
a.raw(".p2align 8")
a.raw(f".type {NAME}_kernel,@function")
a.label(f"{NAME}_kernel")

vm = Cnt(a, "vmcnt", 63)
a(f"s_cmp_ge_u32 s{S_WG}, 256")
a("s_cbranch_scc1 L_end")
if STAMPS:
    a("v_mov_b32 v250, 0")
stamp("start")
a(f"s_load_dwordx16 {sr(KA,16)}, s[0:1], 0")
a(f"s_load_dwordx4 {sr(KA+16,4)}, s[0:1], 64")
a(f"s_load_dwordx2 {sr(KA+20,2)}, s[0:1], 80")
a(f"s_getpc_b64 {sr(S_PC,2)}")
a.label("L_pc")
a.c("pull this kernel's code into L2, one line per wave")
a("v_lshrrev_b32 v4, 6, v0")
a(f"s_and_b32 s{T0}, s{S_WG}, 0xf8")
a(f"v_readfirstlane_b32 s{S_W}, v4")
a(f"v_add_u32 v5, s{T0}, v4")
a(f"v_lshlrev_b32 v5, 7, v5")
a(f"v_min_u32 v5, L_code_end-L_pc-4, v5")
a("s_mov_b64 exec, 1")
a(f"global_load_dword v251, v5, {sr(S_PC,2)}")
vm.issue("pf")
a("s_mov_b64 exec, -1")
a.c("roles")
a(f"v_and_b32 v{V_LANE}, 63, v0")
a(f"s_and_b32 s{T0}, s{S_WG}, 7")
a(f"s_lshr_b32 s{T1}, s{S_WG}, 3")
if XSW:
    a.c("workgroups that share an x tile give its halves to opposite wave sets")
    a(f"s_and_b32 s{T2}, s{T1}, 1")
    a(f"s_lshl_b32 s{T2}, s{T2}, 8")
    a(f"v_xor_b32 v0, s{T2}, v0")
a(f"s_lshr_b32 s{T2}, s{T0}, {3 - LH}")
a(f"s_lshl_b32 s{T2}, s{T2}, {5 - LH}")
a(f"s_lshr_b32 s{S_SHR}, s{T1}, {LH}")
a(f"s_add_u32 s{S_TB}, s{T2}, s{S_SHR}")
a(f"v_lshrrev_b32 v4, 3, v0")
a(f"v_and_b32 v5, 7, v0")
a(f"v_lshlrev_b32 v{V_ROWOFF}, 10, v4")
a(f"v_lshl_add_u32 v{V_ROWOFF}, v5, 4, v{V_ROWOFF}")
a(f"s_lshl_b32 s{T6}, s{S_TB}, 16")
for c in range(4):
    if KROT:
        a(f"s_add_u32 s{T7}, s{S_SHR}, {c}")
        a(f"s_and_b32 s{T7}, s{T7}, 3")
        a(f"s_lshl_b32 s{T7}, s{T7}, 8")
        a(f"s_add_u32 s{S_RG[c]}, s{T6}, s{T7}")
    else:
        a(f"s_add_u32 s{S_RG[c]}, s{T6}, {c*256}")
a(f"s_mov_b32 s{R_X+2}, {2048*512*2}")
a(f"s_mov_b32 s{R_X+3}, 0x00020000")
a(f"s_mov_b32 s{R_WQKV+2}, {512*1536*2}")
a(f"s_mov_b32 s{R_WQKV+3}, 0x00020000")
if WPF == 3:
    a.c("first touch of Wqkv, six different lines by every wave")
    a(f"s_lshl_b32 s{T5}, s{S_WG}, 3")
    a(f"s_add_u32 s{T5}, s{T5}, s{S_W}")
    a(f"s_mul_i32 s{T5}, s{T5}, 768")
    a(f"v_lshlrev_b32 v6, 7, v{V_LANE}")
    a("s_mov_b64 exec, 63")
a("s_waitcnt lgkmcnt(0)")
a(f"s_mov_b64 {sr(R_WQKV,2)}, {sr(KA+2,2)}")
a(f"s_mov_b64 {sr(R_X,2)}, {sr(KA,2)}")
if WPF == 3:
    a(f"buffer_load_dword v251, v6, {sr(R_WQKV,4)}, s{T5} offen")
    vm.issue("pf")
    a("s_mov_b64 exec, -1")
ln_loads(vm, R_X, S_RG)

a(f"s_and_b32 s{T2}, s{T0}, {(8 >> LH) - 1}")
a(f"s_and_b32 s{T3}, s{T1}, {(1 << LH) - 1}")
a(f"s_lshl_b32 s{T3}, s{T3}, {3 - LH}")
a(f"s_add_u32 s{S_HG}, s{T2}, s{T3}")
a(f"s_lshl_b32 s{T4}, s{S_HG}, 7")
a(f"s_lshl_b32 s{T2}, s{T0}, 2")
a(f"s_and_b32 s{T3}, s{T1}, 3")
a(f"s_add_u32 s{S_TB2}, s{T2}, s{T3}")
a(f"s_lshr_b32 s{S_J}, s{T1}, 2")
dma_addr(V_DB, 3072, T4)
QKV_SEG = [1024, 2048, 0]
a(f"s_min_u32 s{T2}, s{S_J}, 3")
a(f"s_mul_i32 s{S_F0}, s{S_J}, 5")
a(f"s_add_u32 s{S_F0}, s{S_F0}, s{T2}")
a(f"s_cmp_lt_u32 s{S_J}, 3")
a(f"s_cselect_b32 s{S_NT}, 6, 5")
a(f"s_lshl_b32 s{T4}, s{S_J}, 7")
a(f"s_lshl_b32 s{T5}, s{S_TB2}, 16")
a(f"s_add_u32 s{S_TILE}, s{T5}, s{T4}")
a(f"v_and_b32 v6, 31, v4")
a(f"v_xor_b32 v6, v6, v5")
a(f"v_lshlrev_b32 v6, 4, v6")
a(f"v_lshl_add_u32 v6, v5, 9, v6")
a(f"v_lshrrev_b32 v4, 5, v4")
a(f"v_lshl_add_u32 v{V_XNW}, v4, 15, v6")
a(f"v_lshlrev_b32 v{V_L16}, 4, v{V_LANE}")
a(f"v_lshlrev_b32 v249, 2, v{V_LANE}")
ln_consts()
srd(R_WS, KA+20, WS_SIZE)

a.c("======== phase 1: LN1 + QKV projection")
def late_setup():
    srd(R_WO, KA+4, 512*512*2)
    srd(R_W1, KA+8, 512*1376*2)
    srd(R_B1, KA+10, 1376*2)
    srd(R_W2, KA+12, 1376*512*2)
    srd(R_B2, KA+14, 512*2)
    srd(R_OUT, KA+16, 2048*512*2)
    a.c("hand-off tag of this launch: next value of a full-period sequence after the one found in the workspace")
    a(f"s_mul_i32 s{S_N}, s{S_N}, 0x0019660d")
    a(f"s_add_u32 s{S_N}, s{S_N}, 0x3c6ef35f")
    a(f"v_mov_b32 v248, s{S_N}")
    flag_addr(WS_FKV, S_HG, S_TB, S_HG)
def misc_loads(vm):
    a.c("small operands needed much later: residual x tile, b2, b1")
    a(f"buffer_load_dwordx4 {vr(V_HRES,4)}, v{V_ROWOFF}, {sr(R_X,4)}, s{S_TILE} offen")
    a(f"v_and_b32 v10, 7, v0")
    a(f"v_lshlrev_b32 v10, 4, v10")
    a(f"s_lshl_b32 s{T4}, s{S_J}, 7")
    a(f"buffer_load_dwordx4 {vr(V_B2,4)}, v10, {sr(R_B2,4)}, s{T4} offen")
    a(f"v_and_b32 v10, 0x13, v{V_LANE}")
    a(f"v_bfe_u32 v11, v{V_LANE}, 2, 1")
    a(f"v_lshl_add_u32 v10, v11, 3, v10")
    a(f"v_bfe_u32 v11, v{V_LANE}, 3, 1")
    a(f"v_lshl_add_u32 v10, v11, 2, v10")
    a(f"v_lshlrev_b32 v10, 1, v10")
    a(f"s_bfe_u32 s{T5}, s{S_W}, 0x10001")
    a(f"s_add_u32 s{T5}, s{T5}, s{S_F0}")
    a(f"s_lshl_b32 s{T5}, s{T5}, 6")
    for seg in range(3):
        a(f"buffer_load_ushort v{V_B1+seg}, v10, {sr(R_B1,4)}, s{T5} offen offset:{seg*128}")
    vm.issue("misc", 5)
    a(f"v_mov_b32 v{V_B1+3}, 0")
ring_setup(3072, S_SHR if KROT else None)
stamp("setup")
va, vl = vm.copy(), vm.copy()
a(f"s_cmp_lt_u32 s{S_W}, 4")
a("s_cbranch_scc1 L_p1_a")
def w_prefetch(v, segs):
    RW = 4 << LH
    a(f"s_lshl_b32 s{T5}, s{S_SHR}, 2")
    a(f"s_and_b32 s{T7}, s{S_W}, 3")
    a(f"s_add_u32 s{T5}, s{T5}, s{T7}")
    a(f"s_mul_i32 s{T5}, s{T5}, {RW*3072}")
    a(f"s_lshl_b32 s{T7}, s{S_HG}, 7")
    a(f"s_add_u32 s{T5}, s{T5}, s{T7}")
    a(f"v_mul_u32_u24 v10, 3072, v{V_LANE}")
    a(f"s_mov_b32 exec_lo, {(1 << RW) - 1:#x}")
    a(f"s_mov_b32 exec_hi, 0")
    for o in segs:
        a(f"buffer_load_dword v251, v10, {sr(R_WQKV,4)}, s{T5} offen offset:{o}")
        v.issue("pf")
    a("s_mov_b64 exec, -1")
if L2PF:
    w_prefetch(vl, QKV_SEG[:L2PF])
for n in range(NPB):
    ring_issue(vl, R_WQKV, 3072, QKV_SEG, n)
a(f"s_load_dword s{S_N}, {sr(KA+20,2)}, {WS_NONCE}")
ln_stats(vl, 2.0)
a("s_branch L_p1_norm")
a.label("L_p1_a")
a.c("first touch (scalar path) of the flag lines and the biases")
a(f"s_lshl_b32 s{T2}, s{S_TB2}, 8")
a(f"s_lshl_b32 s{T3}, s{S_W}, 13")
a(f"s_add_u32 s{T2}, s{T2}, s{T3}")
a(f"s_lshl_b32 s{T3}, s{S_HG}, 8")
a(f"s_add_u32 s{T3}, s{T3}, {WS_FKV}")
a(f"s_cmp_eq_u32 s{S_W}, 0")
a(f"s_cselect_b32 s{T2}, s{T3}, s{T2}")
a(f"s_add_u32 s{T3}, s{T2}, 64")
a(f"s_load_dword s{S_SPIN}, {sr(KA+20,2)}, s{T2}")
a(f"s_load_dword s{S_SPIN}, {sr(KA+20,2)}, s{T3}")
a(f"s_add_u32 s{T3}, s{T2}, 128")
a(f"s_load_dword s{S_SPIN}, {sr(KA+20,2)}, s{T3}")
a(f"s_lshl_b32 s{T2}, s{S_WG}, 2")
a(f"s_add_u32 s{T2}, s{T2}, {WS_FC}")
a(f"s_load_dword s{S_SPIN}, {sr(KA+20,2)}, s{T2}")
a(f"s_lshl_b32 s{T2}, s{S_W}, 1")
a(f"s_add_u32 s{T2}, s{T2}, s{S_F0}")
a(f"s_min_u32 s{T2}, s{T2}, 41")
a(f"s_lshl_b32 s{T2}, s{T2}, 6")
a(f"s_add_u32 s{T3}, s{T2}, 64")
a(f"s_load_dword s{S_SPIN}, {sr(KA+10,2)}, s{T2}")
a(f"s_load_dword s{S_SPIN}, {sr(KA+10,2)}, s{T3}")
a(f"s_and_b32 s{T2}, s{S_W}, 1")
a(f"s_lshl_b32 s{T2}, s{T2}, 6")
a(f"s_add_u32 s{T2}, s{T2}, s{T4}")
a(f"s_load_dword s{S_SPIN}, {sr(KA+14,2)}, s{T2}")
a(f"s_load_dword s{S_N}, {sr(KA+20,2)}, {WS_NONCE}")
gemm_addr()
ln_stats(va, 1.0)
a.label("L_p1_norm")
ln_norm(1.0)
stamp("ln1 done")
a(f"s_cmp_lt_u32 s{S_W}, 4")
a("s_cbranch_scc1 L_p1_compute")
def p1_after(n):
    k0 = NPB + NPA
    if n == 0:
        for k in range(k0, min(6, k0 + 3)):
            ring_issue(vl, R_WQKV, 3072, QKV_SEG, k)
    if n == 1:
        for k in range(k0 + 3, 6):
            ring_issue(vl, R_WQKV, 3072, QKV_SEG, k)
    if n == 8:
        late_setup()
gemm_loader(vl, R_WQKV, 3072, QKV_SEG, p1_after)
a("s_branch L_p1_done")
a.label("L_p1_compute")
for n in range(NPB, NPB + NPA):
    ring_issue(va, R_WQKV, 3072, QKV_SEG, n)
if L2PF < 3:
    w_prefetch(va, QKV_SEG[L2PF:])
a("s_waitcnt lgkmcnt(0)")
late_setup()

a(f"s_and_b32 s{T0}, s{S_W}, 1")
a(f"s_lshr_b32 s{T1}, s{S_W}, 1")
a(f"s_lshl_b32 s{T2}, s{T0}, 12")
a(f"s_lshl_b32 s{T3}, s{T1}, 11")
a(f"s_add_u32 s{T4}, s{T2}, s{T3}")
a(f"s_lshl_b32 s{T2}, s{S_HG}, 1")
a(f"s_add_u32 s{T2}, s{T2}, s{T1}")
a(f"s_lshl_b32 s{T2}, s{T2}, 18")
a(f"s_lshl_b32 s{T3}, s{S_TB}, 1")
a(f"s_add_u32 s{T3}, s{T3}, s{T0}")
a(f"s_lshl_b32 s{T3}, s{T3}, 11")
a(f"s_add_u32 s{T2}, s{T2}, s{T3}")
a(f"s_add_u32 s{T2}, s{T2}, {WS_KV}")
a(f"s_add_u32 s{T3}, s{T2}, 0x20000")
E_K, E_V, E_Q, E_C = 208, 209, 210, 212
inj = {}
pre = [f"v_and_b32 v10, 0x33, v{V_LANE}", f"v_bfe_u32 v11, v{V_LANE}, 2, 1", "v_lshl_add_u32 v10, v11, 3, v10",
       f"v_bfe_u32 v11, v{V_LANE}, 3, 1", "v_lshl_add_u32 v10, v11, 2, v10", f"v_lshlrev_b32 v{E_K}, 4, v10",
       f"v_and_b32 v10, 15, v{V_LANE}", "v_lshlrev_b32 v10, 4, v10", f"v_lshrrev_b32 v11, 5, v{V_LANE}",
       "v_lshl_add_u32 v10, v11, 8, v10", f"v_bfe_u32 v11, v{V_LANE}, 4, 1", f"v_lshl_add_u32 v{E_V}, v11, 17, v10",
       f"v_add_u32 v{E_Q}, s{T4}, v{V_L16}", f"v_mov_b32 v{E_C}, {f32(0.25*math.log2(math.e))}", f"v_mov_b32 v{E_C+1}, v{E_C}"]
spread(inj, [(x, 1) for x in pre], 4, 19)
def cvt_inplace(b):
    return [f"v_cvt_pk_bf16_f32 v{b+i}, v{b+2*i}, v{b+2*i+1}" for i in range(8)]
aK, aV, aQ = G_ACC, G_ACC+16, G_ACC+32
items = [(x, 1) for x in cvt_inplace(aK)]
items += [((f"buffer_store_dwordx4 {vr(aK,4)}, v{E_K}, {sr(R_WS,4)}, s{T2} offen sc1", "st"), 2),
          ((f"buffer_store_dwordx4 {vr(aK+4,4)}, v{E_K}, {sr(R_WS,4)}, s{T3} offen sc1", "st"), 2)]
spread(inj, items, 36, 42)
items = [(x, 1) for x in cvt_inplace(aV)]
items += [((f"buffer_store_dwordx4 {vr(aV,4)}, v{E_V}, {sr(R_WS,4)}, s{T2} offen offset:1024 sc1", "st"), 2),
          ((f"buffer_store_dwordx4 {vr(aV+4,4)}, v{E_V}, {sr(R_WS,4)}, s{T2} offen offset:1536 sc1", "st"), 2)]
spread(inj, items, 68, 72)
gemm_compute(va, {1}, {0, 1, 2}, inj, {}, 'p1')
a("s_nop 7")
a("s_nop 3")
for i in range(8):
    a(f"v_pk_mul_f32 {vr(aQ+2*i,2)}, {vr(aQ+2*i,2)}, {vr(E_C,2)}")
for x in cvt_inplace(aQ):
    a(x)
a(f"ds_write_b128 v{E_Q}, {vr(aQ,4)} offset:{L_Q}")
a(f"ds_write_b128 v{E_Q}, {vr(aQ+4,4)} offset:{L_Q+1024}")
stamp("p1 done")
a("s_waitcnt vmcnt(0) lgkmcnt(0)")
a.label("L_p1_done")
vm.clear()
a("s_barrier")
flag_store(4)
stamp("kv drained")
misc_loads(Cnt(a, "vmcnt", 63))

a.c("======== phase 2: attention; wave = (head = w&3, key range by w>>2), 64 queries")
A_Q = 16
A_S = 24
A_O = 56
A_KV = 88
A_IDX, A_AV, A_AK = 8, 9, 15
A_W1, A_DUM = 14, 251
P_W = 160
QA, QB, SA, SB, OA, OB = A_Q, A_Q+4, A_S, A_S+16, A_O, A_O+16
def Kf(t, ns=4): return A_KV + 12*(t % ns)
def Vf(t, s, ns=4): return A_KV + 12*(t % ns) + 4 + 4*s
def F_W(t): return 140 + 4*t if t < 24 else 64 + 4*(t - 24)
a(f"s_and_b32 s{T0}, s{S_W}, 3")
a(f"s_lshr_b32 s{T1}, s{S_W}, 2")
a(f"s_lshl_b32 s{T2}, s{S_W}, 10")
a(f"v_add_u32 v4, s{T2}, v{V_L16}")
a(f"v_xor_b32 v5, 4096, v4")
a(f"ds_read_b128 {vr(QA,4)}, v4 offset:{L_Q}")
a(f"ds_read_b128 {vr(QB,4)}, v5 offset:{L_Q}")
a(f"v_and_b32 v4, 15, v{V_LANE}")
a(f"v_lshrrev_b32 v5, 5, v{V_LANE}")
a(f"v_lshl_add_u32 v6, v5, 4, v4")
a(f"v_lshlrev_b32 v{A_AV}, 4, v6")
a(f"s_lshl_b32 s{T2}, s{S_HG}, 2")
a(f"s_add_u32 s{T2}, s{T2}, s{T0}")
a(f"s_lshl_b32 s{T2}, s{T2}, 17")
a(f"s_add_u32 s{S_HEAD}, s{T2}, {WS_KV}")
a(f"v_add_u32 v{A_AV}, s{S_HEAD}, v{A_AV}")
a(f"v_add_u32 v{A_AK}, s{S_HEAD}, v{V_L16}")
a.c("workgroups that share the head start at different key tiles")
a(f"s_mul_i32 s{T3}, s{T1}, {NA*2048}")
a(f"s_lshl_b32 s{S_XOFF}, s{S_SHR}, {17 - KG}")
a(f"s_add_u32 s{S_XOFF}, s{S_XOFF}, s{T3}")
a(f"s_and_b32 s{S_XOFF}, s{S_XOFF}, 0x1ffff")
a(f"s_mov_b32 s{S_MASKV}, 0xffff")
a(f"s_mov_b32 s{S_MASKV+1}, 0xffff")
a(f"v_mov_b32 v{A_IDX}, 0xdddddddd")
a.c("rows 16 and 20 of the V operand are ones (row sums for both lane halves), the other spare rows zero")
a(f"v_and_b32 v4, 0x1b, v{V_LANE}")
a(f"v_cmp_eq_u32 vcc, 16, v4")
a(f"v_mov_b32 v4, 0x3f803f80")
a(f"v_mov_b32 v5, 0")
a(f"v_cndmask_b32 v4, v5, v4, vcc")
for t in range(6):
    for i in range(8):
        a(f"v_mov_b32 v{Vf(t,0,6)+i}, v4")
for i in range(32):
    a(f"v_mov_b32 v{A_O+i}, 0")
for i in range(8):
    a(f"v_mov_b32 v{SB+8+i}, 0")
reduce_addr()
a(f"s_and_b32 s{T0}, s{S_W}, 3")
a(f"s_lshl_b32 s{T4}, s{S_J}, 7")
dma_addr(V_DA, 1024, T4)
a.c("weight staging addresses")
a(f"s_lshl_b32 s{T4}, s{S_F0}, 6")
dma_addr(V_DB, 2752, T4)
a(f"v_lshrrev_b32 v4, 2, v{V_LANE}")
a(f"v_mul_u32_u24 v4, 2752, v4")
a(f"v_and_b32 v5, 3, v{V_LANE}")
a(f"v_lshlrev_b32 v5, 7, v5")
a(f"v_min_u32 v5, 252, v5")
a(f"v_add3_u32 v{A_W1}, v4, v5, s{T4}")
a(f"s_lshl_b32 s{S_D0}, s{T0}, 13")
a(f"s_lshl_b32 s{S_D1}, s{T0}, 10")
a(f"s_mul_i32 s{S_D2}, s{T0}, {8*2752}")
a(f"s_and_b32 s{T2}, s{S_W}, 1")
a(f"s_bfe_u32 s{T3}, s{S_W}, 0x10001")
a(f"s_and_b32 s{T4}, s{S_TB2}, 3")
a(f"s_lshl_b32 s{T4}, s{T4}, 2")
a(f"s_add_u32 s{T4}, s{T4}, s{T0}")
a(f"s_mul_i32 s{S_D4}, s{T4}, {32*2752}")
tr_lane_addr(7, T2, False)
W2_HOME = [(0, 65536, 49152), (24, 131072, 16384), (32, 20480, 22528)]
S_H = [T4, T5, T6]
for k, (t0, base, stride) in enumerate(W2_HOME):
    a(f"s_mul_i32 s{S_H[k]}, s{T3}, {stride}")
    a(f"s_add_u32 s{S_H[k]}, s{S_H[k]}, {base}")
    a(f"v_add_u32 v{4+k}, s{S_H[k]}, v7")
    a(f"s_lshl_b32 s{T7}, s{T2}, 10")
    a(f"s_add_u32 s{S_H[k]}, s{S_H[k]}, s{T7}")
a(f"s_lshl_b32 s{T7}, s{T3}, 15")
a(f"v_add_u32 v7, s{T7}, v7")
def w2_home(t):
    k = 0 if t < 24 else 1 if t < 32 else 2
    return k, (t - W2_HOME[k][0])*2048
flag_poll(4, 32)
a("s_waitcnt lgkmcnt(0)")
a("s_barrier")
stamp("kv ready")
def kv_load(v, t, ns):
    imm = 2048*(t & 1)
    a(f"buffer_load_dwordx4 {vr(Kf(t,ns),4)}, v{A_AK}, {sr(R_WS,4)}, s{S_XOFF} offen offset:{imm} sc1")
    a(f"s_mov_b64 exec, {sr(S_MASKV,2)}")
    a(f"buffer_load_dwordx4 {vr(Vf(t,0,ns),4)}, v{A_AV}, {sr(R_WS,4)}, s{S_XOFF} offen offset:{imm+1024} sc1")
    a(f"buffer_load_dwordx4 {vr(Vf(t,1,ns),4)}, v{A_AV}, {sr(R_WS,4)}, s{S_XOFF} offen offset:{imm+1536} sc1")
    a("s_mov_b64 exec, -1")
    if t & 1:
        a(f"s_add_u32 s{S_XOFF}, s{S_XOFF}, 4096")
        a(f"s_and_b32 s{S_XOFF}, s{S_XOFF}, 0x1ffff")
    v.issue(("kv", t), 3)
def smf(o, v, s):
    a(f"v_smfmac_f32_32x32x32_bf16 {vr(o,16)}, {vr(v,4)}, {vr(s,8)}, v{A_IDX}")
def attn_tile(v, t, ns, last=None, side=(), tail=None):
    side = list(side)
    order = {1: [(0, 13)], 2: [(0, 13), (1, 13)], 4: [(0, 4), (0, 13), (1, 4), (1, 13)]}[NBLK]
    at = {}
    for k, f in enumerate(side):
        at.setdefault(order[k*NBLK//len(side)], []).append(f)
    for ph in range(2):
        S, So, O, Oo, Qo = (SA, SB, OA, OB, QB) if ph == 0 else (SB, SA, OB, OA, QA)
        for i in range(16):
            for f in at.get((ph, i), []):
                f()
            if i == 2:
                smf(Oo, Vf(t - 1 + ph, 1, ns), So + 8)
            if i == 5 and not (ph == 1 and t == last):
                if ph == 1:
                    v.wait(("kv", t + 1))
                a(f"v_mfma_f32_32x32x16_bf16 {vr(So,16)}, {vr(Kf(t+ph,ns),4)}, {vr(Qo,4)}, 0")
            if i == 10:
                smf(O, Vf(t, 0, ns), S)
            if ph == 0 and i == 12 and (last is None or t + ns - 1 <= last):
                kv_load(v, t + ns - 1, ns)
            if ph == 1 and i == 12 and tail:
                tail()
            a(f"v_exp_f32 v{S+i}, v{S+i}")
def attn_first(v):
    v.wait(("kv", 0))
    a(f"v_mfma_f32_32x32x16_bf16 {vr(SA,16)}, {vr(Kf(0),4)}, {vr(QA,4)}, 0")
    flag_addr(WS_FO, S_TB, S_HG, S_TB2)
    a("s_nop 5")
a(f"s_cmp_lt_u32 s{S_W}, 4")
a("s_cbranch_scc1 L_attn_a")

a.c("---- waves 4-7: fewer key tiles, and the weights of the later phases go on chip")
vb = vm.copy()
NB = 64 - NA
for t in range(3):
    kv_load(vb, t, 4)
attn_first(vb)
if MALLW:
    a.c("first touch of the later weights, different lines by every wave")
    a(f"s_lshl_b32 s{T2}, s{S_WG}, 2")
    a(f"s_add_u32 s{T2}, s{T2}, s{T0}")
    a(f"s_lshl_b32 s{T3}, s{T2}, 9")
    a(f"s_mul_i32 s{T2}, s{T2}, {11*128}")
    a(f"v_lshlrev_b32 v10, 7, v{V_LANE}")
    for r, so, m in ((R_WO, T3, 15), (R_W2, T2, 0x7ff), (R_W1, T2, 0x7ff)):
        a(f"s_mov_b64 exec, {m:#x}")
        a(f"buffer_load_dword v251, v10, {sr(r,4)}, s{so} offen")
        vb.issue("pf")
    a("s_mov_b64 exec, -1")
F0 = [5*j + min(j, 3) for j in range(8)]
TL = [F0[j] + i for j in range(8) for i in range(4)] + [F0[j] + i for j in range(8) for i in range(4, 6 if j < 3 else 5)]
assert sorted(TL) == list(range(43))
def mk(*x): return lambda: dma(vb, *x)
L_wo = [mk("r1", R_WO, V_DA, S_D0, k*32768, S_D1, k*4096) for k in range(16)]
L_w2 = [mk("r1" if t < 24 else "r2", R_W2, V_DA, S_D0, TL[t]*32768, S_H[w2_home(t)[0]], w2_home(t)[1]) for t in range(43)]
L_w1 = [mk("r2", R_W1, V_DB, S_D2, k*32*2752, S_D1, L_RING + k*4096) for k in range(16)]
def d_warm(k):
    def f():
        a(f"s_add_u32 s{T7}, s{S_D4}, {k*16*2752 + 128}")
        a(f"buffer_load_dword v{A_DUM}, v{A_W1}, {sr(R_W1,4)}, s{T7} offen")
        vb.issue("r2")
    return f
def d_rd(t):
    k, off = w2_home(t)
    return lambda: tr_read(F_W(t), 4 + k, off)
def share(L, tiles):
    return {t: L[k*len(L)//len(tiles):(k+1)*len(L)//len(tiles)] for k, t in enumerate(tiles)}
plan = {}
plan.update(share(L_wo + L_w2[:24], list(range(T0B, TB1 - 1))))
plan.update(share([d_rd(t) for t in range(24)], list(range(TB1, TB1 + TB2))))
plan.update(share(L_w2[24:] + L_w1 + [d_warm(0), d_warm(1)], list(range(TB1 + TB2, NB - TEND))))
if NODUTY:
    plan = {}
for t in range(NB):
    if t == TB1:
        stamp("B at bar1") if opt("ast", 0) else None
        vb.wait("r1")
        a("s_barrier")
        stamp("B past bar1") if opt("ast", 0) else None
    if t == TB1 + TB2:
        a("s_waitcnt lgkmcnt(0)")
        stamp("B at bar2") if opt("ast", 0) else None
        a("s_barrier")
        stamp("B past bar2") if opt("ast", 0) else None
    attn_tile(vb, t, 4, NB - 1, plan.get(t, []))
a("s_nop 1")
smf(OB, Vf(NB - 1, 1, 4), SB+8)
a("s_branch L_attn_end")

a.c("---- waves 0-3")
a.label("L_attn_s1")
stamp("A at bar1") if opt("ast", 0) else None
a("s_barrier")
for t in range(16):
    tr_read(P_W + 4*t, 7, t*2048)
a(f"s_mov_b32 s{S_LOOP}, {IT2}")
a("s_branch L_attn")
a.label("L_attn_s2")
a("s_waitcnt lgkmcnt(0)")
stamp("A at bar2") if opt("ast", 0) else None
a("s_barrier")
a(f"s_mov_b32 s{S_LOOP}, {NA//6 - IT1 - IT2}")
a("s_branch L_attn")
a.label("L_attn_a")
a("s_setprio 1")
va = vm.copy()
for t in range(5):
    kv_load(va, t, 6)
a(f"s_mov_b32 s{S_LOOP}, {IT1}")
a(f"s_mov_b32 s{S_STAGE}, 0")
attn_first(va)
a.raw(".p2align 4")
a.label("L_attn")
def loop_tail():
    a(f"s_sub_u32 s{S_LOOP}, s{S_LOOP}, 1")
    a(f"s_cmp_lg_u32 s{S_LOOP}, 0")
for t in range(6):
    attn_tile(va, t, 6, None, [], loop_tail if t == 5 else None)
a("s_cbranch_scc1 L_attn")
a(f"s_add_u32 s{S_STAGE}, s{S_STAGE}, 1")
a(f"s_cmp_eq_u32 s{S_STAGE}, 1")
a("s_cbranch_scc1 L_attn_s1")
a(f"s_cmp_eq_u32 s{S_STAGE}, 2")
a("s_cbranch_scc1 L_attn_s2")
for t in range(6, 6 + NA % 6):
    attn_tile(va, t, 6, 5 + NA % 6)
if NA % 6:
    a("s_nop 1")
smf(OB, Vf(5 + NA % 6, 1, 6), SB+8)
a("s_setprio 0")
a.label("L_attn_end")
stamp("attn loop done")
a.c("combine the two key ranges: keep A, send B")
a(f"s_lshl_b32 s{T2}, s{S_W}, 11")
a(f"v_add_u32 v10, s{T2}, v{V_L16}")
a(f"s_lshl_b32 s{T2}, s{S_W}, 8")
a(f"v_add_u32 v11, s{T2}, v249")
a(f"s_lshr_b32 s{T1}, s{S_W}, 2")
a(f"s_lshl_b32 s{T2}, s{S_TB}, 1")
a(f"s_add_u32 s{T2}, s{T2}, s{T1}")
a(f"s_lshl_b32 s{T2}, s{T2}, 5")
a(f"s_lshl_b32 s{T3}, s{S_HG}, 2")
a(f"s_add_u32 s{T2}, s{T2}, s{T3}")
a(f"s_and_b32 s{T0}, s{S_W}, 3")
a(f"s_add_u32 s{T2}, s{T2}, s{T0}")
a(f"ds_write_b128 v10, {vr(OB,4)} offset:{L_OX}")
a(f"ds_write_b128 v10, {vr(OB+4,4)} offset:{L_OX+1024}")
a(f"ds_write_b32 v11, v{OB+8} offset:{L_OX+16384}")
a(f"s_lshl_b32 s{T2}, s{T2}, 10")
a(f"s_add_u32 s{T2}, s{T2}, {WS_OF}")
a(f"v_xor_b32 v14, 8192, v10")
a(f"v_xor_b32 v{SB+2}, 1024, v11")
a(f"v_mov_b32 v{SB}, {f32(2.0**-64)}")
a(f"v_mov_b32 v{SB+1}, {f32(2.0**64)}")
a("s_waitcnt lgkmcnt(0)")
a("s_barrier")
a(f"ds_read_b32 v{SA+8}, v{SB+2} offset:{L_OX+16384}")
a(f"ds_read_b128 {vr(SA,4)}, v14 offset:{L_OX}")
a(f"ds_read_b128 {vr(SA+4,4)}, v14 offset:{L_OX+1024}")
a("s_waitcnt lgkmcnt(2)")
a(f"v_add_f32 v{OA+8}, v{OA+8}, v{SA+8}")
a.c("the loop subtracted no row maximum: a row sum outside [2^-64, 2^64] (or NaN) sends the wave to the true-max path")
a(f"v_cmp_ge_f32 vcc, v{OA+8}, v{SB}")
a(f"v_cmp_le_f32 {sr(S_SAVE,2)}, v{OA+8}, v{SB+1}")
a("s_waitcnt lgkmcnt(0)")
for i in range(4):
    a(f"v_pk_add_f32 {vr(OA+2*i,2)}, {vr(OA+2*i,2)}, {vr(SA+2*i,2)}")
a(f"s_and_b64 vcc, vcc, {sr(S_SAVE,2)}")
a(f"s_cmp_eq_u64 vcc, -1")
if FORCE_FB:
    a("s_branch L_attn_fb")
else:
    a("s_cbranch_scc0 L_attn_fb")
a.label("L_attn_fin")
a(f"v_rcp_f32 v10, v{OA+8}")
a("s_nop 0")
for i in range(8):
    a(f"v_mul_f32 v{OA+i}, v{OA+i}, v10")
for i in range(4):
    a(f"v_cvt_pk_bf16_f32 v{SA+i}, v{OA+2*i}, v{OA+2*i+1}")
a(f"buffer_store_dwordx4 {vr(SA,4)}, v{V_L16}, {sr(R_WS,4)}, s{T2} offen sc1")

a.c("======== phase 3: h = x + O Wo ; tile 64 tokens x 64 columns, computed by waves 0-3")
T_ACC, T_AF = 16, 48
CJ, CA = 96, 128
a.c("wave 1 of workgroups 0-175 sums 64 rows of a 64-column strip of W1 (LayerNorm's mean term)")
a(f"s_cmp_lt_u32 s{S_WG}, 176")
a(f"s_cselect_b32 s{S_STAGE}, s{S_W}, 0")
a(f"s_cmp_lg_u32 s{S_STAGE}, 1")
a("s_cbranch_scc1 L_cs_noload")
a(f"v_lshrrev_b32 v10, 3, v{V_LANE}")
a(f"v_mul_u32_u24 v10, 2752, v10")
a(f"v_and_b32 v11, 7, v{V_LANE}")
a(f"v_lshl_add_u32 v10, v11, 4, v10")
a(f"s_and_b32 s{T0}, s{S_WG}, 7")
a(f"s_mul_i32 s{T0}, s{T0}, {64*2752}")
a(f"s_lshr_b32 s{T1}, s{S_WG}, 3")
a(f"s_lshl_b32 s{T1}, s{T1}, 7")
a(f"s_add_u32 s{T0}, s{T0}, s{T1}")
a("s_waitcnt vmcnt(1)")
for i in range(8):
    a(f"buffer_load_dwordx4 {vr(CJ+4*i,4)}, v10, {sr(R_W1,4)}, s{T0} offen")
    a(f"s_add_u32 s{T0}, s{T0}, {8*2752}")
a("s_waitcnt vmcnt(8)")
a("s_branch L_cs_loaded")
a.label("L_cs_noload")
a("s_waitcnt vmcnt(0)")
a.label("L_cs_loaded")
a("s_barrier")
flag_store(0)
stamp("O drained")
a(f"s_cmp_lg_u32 s{S_STAGE}, 1")
a("s_cbranch_scc1 L_cs_nojob")
a(f"v_mov_b32 v10, 0x00003f80")
a(f"v_mov_b32 v11, 0x3f800000")
for i in range(8):
    a(f"s_waitcnt vmcnt({7-i})")
    for j in range(4):
        for h in range(2):
            a(f"v_dot2_f32_bf16 v{CA+2*j+h}, v{CJ+4*i+j}, v{10+h}, {f'v{CA+2*j+h}' if i else '0'}")
a(f"s_and_b32 s{T0}, s{S_WG}, 7")
a(f"s_mul_i32 s{T0}, s{T0}, {1408*4}")
a(f"s_lshr_b32 s{T1}, s{S_WG}, 3")
a(f"s_lshl_b32 s{T1}, s{T1}, 8")
for k in range(4):
    a(f"v_permlane32_swap_b32 v{CA+k}, v{CA+4+k}")
a(f"s_add_u32 s{T0}, s{T0}, s{T1}")
a(f"s_add_u32 s{T0}, s{T0}, {WS_CS}")
for k in range(4):
    a(f"v_add_f32 v{CA+k}, v{CA+k}, v{CA+4+k}")
a("s_nop 1")
for k in range(2):
    a(f"v_permlane16_swap_b32 v{CA+k}, v{CA+2+k}")
a("s_nop 1")
for k in range(2):
    a(f"v_add_f32 v{CA+k}, v{CA+k}, v{CA+2+k}")
a(f"v_and_b32 v10, 7, v{V_LANE}")
a(f"v_lshrrev_b32 v11, 4, v{V_LANE}")
for k in range(2):
    a(f"v_add_f32_dpp v{CA+k}, v{CA+k}, v{CA+k} row_ror:8 row_mask:0xf bank_mask:0xf")
a(f"v_lshlrev_b32 v11, 3, v11")
a(f"v_lshl_add_u32 v10, v10, 5, v11")
a(f"s_mov_b32 exec_lo, 0x00ff00ff")
a(f"s_mov_b32 exec_hi, 0x00ff00ff")
a(f"buffer_store_dwordx2 {vr(CA,2)}, v10, {sr(R_WS,4)}, s{T0} offen sc1")
a("s_mov_b64 exec, -1")
a.label("L_cs_nojob")
a(f"s_cmp_lt_u32 s{S_W}, 4")
a("s_cbranch_scc1 L_p3_nord")
for t in range(24, 43):
    d_rd(t)()
a("s_waitcnt lgkmcnt(0)")
a.label("L_p3_nord")
act_setup(16, WS_OF, False)
flag_poll(0, 8)
a("s_barrier")
stamp("O ready")
W1_SEG = [0, 128, 256]
a(f"s_cmp_lt_u32 s{S_W}, 4")
a("s_cbranch_scc1 L_p3_compute")
vl = vm.copy()
for q in range(NO):
    act_issue(vl, q, q, 16, False)
tile_loader(vl, 16, lambda q: act_issue(vl, q + NO, q + NO, 16, False) if q + NO < 4 else None)
ring_setup(2752, None)
flag_addr(WS_FH, S_TB2, S_J, S_TB2)
a("s_branch L_p3_done")
a.label("L_p3_compute")
a(f"s_cmp_lg_u32 s{S_STAGE}, 1")
a("s_cbranch_scc1 L_cs_noflag")
a(f"s_lshl_b32 s{T0}, s{S_WG}, 2")
a(f"s_add_u32 s{T0}, s{T0}, {WS_FC}")
a("s_waitcnt vmcnt(0)")
a("s_mov_b64 exec, 1")
a(f"buffer_store_dword v248, v249, {sr(R_WS,4)}, s{T0} offen sc1")
a("s_mov_b64 exec, -1")
a.label("L_cs_noflag")
flag_addr(WS_FH, S_TB2, S_J, S_TB2)
tile_compute(vm.copy(), 16, [0, 1, 2, 3], lambda t: P_W + 4*t, T_ACC, T_AF)
a.label("L_p3_done")
tile_gather(16)
for x in unpack8(32, V_HRES):
    a(x)
a(f"s_add_u32 s{T2}, s{S_TILE}, {WS_H}")
for h in range(2):
    a(f"s_waitcnt lgkmcnt({2-2*h})")
    for i in range(2*h, 2*h+2):
        a(f"v_pk_add_f32 {vr(32+2*i,2)}, {vr(32+2*i,2)}, {vr(16+2*i,2)}")
        a(f"v_pk_add_f32 {vr(32+2*i,2)}, {vr(32+2*i,2)}, {vr(24+2*i,2)}")
    for i in range(2*h, 2*h+2):
        a(f"v_cvt_pk_bf16_f32 v{V_HRES+i}, v{32+2*i}, v{32+2*i+1}")
a(f"buffer_store_dwordx4 {vr(V_HRES,4)}, v{V_ROWOFF}, {sr(R_WS,4)}, s{T2} offen sc1")
if PST:
    a.c("partial row statistics of this 64-column slice")
    a(f"v_mov_b32 v18, 0x3f803f80")
    a(f"v_and_b32 v10, 0x1f8, v0")
    for i in range(4):
        a(f"v_dot2_f32_bf16 v16, v{V_HRES+i}, v18, {'v16' if i else '0'}")
        a(f"v_dot2_f32_bf16 v17, v{V_HRES+i}, v{V_HRES+i}, {'v17' if i else '0'}")
    a(f"s_lshl_b32 s{T5}, s{S_TB2}, 12")
    a(f"s_add_u32 s{T5}, s{T5}, {WS_HS}")
    a(f"s_lshl_b32 s{T6}, s{S_J}, 9")
    a(f"s_add_u32 s{T6}, s{T6}, s{T5}")
    a(f"s_mov_b32 s{S_SAVE}, 0x01010101")
    a(f"s_mov_b32 s{S_SAVE+1}, 0x01010101")
    sum8_pair(16)
    a(f"v_mov_b32 v{LN_D+4}, v10")
    a(f"s_mov_b64 exec, {sr(S_SAVE,2)}")
    a(f"buffer_store_dwordx2 v[16:17], v10, {sr(R_WS,4)}, s{T6} offen sc1")
    a("s_mov_b64 exec, -1")
stamp("h stored")

a.c("======== phase 4: g = gelu(LN(h) W1 + b1), everything scaled by GS so that the tanh argument is u*(u*u+k)")
c1 = -2.0*math.sqrt(2.0/math.pi)*math.log2(math.e)
c3 = c1*0.044715
GS = -((-c3) ** (1.0/3))
GK = c1/GS
a(f"s_cmp_lt_u32 s{S_W}, 4")
a("s_cbranch_scc1 L_p4_bias")
a("s_waitcnt vmcnt(0)")
a("s_branch L_p4_nobias")
a.label("L_p4_bias")
GT = 208
CS = 64
a.c("column sums of W1 for this wave's three tiles")
a(f"s_lshr_b32 s{T0}, s{S_F0}, 1")
a(f"s_min_u32 s{T0}, s{T0}, 18")
a(f"s_lshl_b32 s{T0}, s{T0}, 5")
a(f"s_add_u32 s{S_FPOLL}, s{T0}, {WS_FC}")
a("s_mov_b32 exec_hi, 0")
a(f"buffer_load_dword v247, v249, {sr(R_WS,4)}, s{S_FPOLL} offen sc1")
a("s_mov_b32 exec_hi, -1")
gemm_addr(True)
a(f"v_and_b32 v10, 0x13, v{V_LANE}")
a(f"v_bfe_u32 v11, v{V_LANE}, 2, 1")
a(f"v_lshl_add_u32 v10, v11, 3, v10")
a(f"v_bfe_u32 v11, v{V_LANE}, 3, 1")
a(f"v_lshl_add_u32 v10, v11, 2, v10")
a(f"v_lshrrev_b32 v11, 5, v{V_LANE}")
a(f"v_mul_u32_u24 v11, {4*1408*4}, v11")
a(f"v_lshl_add_u32 v10, v10, 2, v11")
a(f"s_lshr_b32 s{T0}, s{S_W}, 1")
a(f"s_add_u32 s{T0}, s{T0}, s{S_F0}")
a(f"s_lshl_b32 s{T0}, s{T0}, 7")
a(f"s_add_u32 s{T0}, s{T0}, {WS_CS}")
a("s_waitcnt vmcnt(1)")
a.label("L_p4_nobias")
vm.clear()
a.c("pull the stored tile back into this XCD's L2 while the flags travel")
a(f"buffer_load_dwordx4 {vr(LN_D,4)}, v{V_ROWOFF}, {sr(R_WS,4)}, s{T2} offen sc1")
a("s_mov_b64 exec, 1")
a(f"buffer_load_dword v251, v{LN_D+4}, {sr(R_WS,4)}, s{T6} offen sc1")
a("s_mov_b64 exec, -1")
a("s_barrier")
flag_store(4)
stamp("h drained")
a(f"s_cmp_lt_u32 s{S_W}, 4")
a("s_cbranch_scc1 L_p4_cs")
a.c("source offsets of the raw h image: wave 4+b loads row groups b and b+4")
a(f"v_lshrrev_b32 v10, 4, v0")
a(f"v_xor_b32 v10, v10, v0")
a(f"v_and_b32 v10, 7, v10")
a(f"v_and_b32 v{V_XNW}, 0x7c00, v{V_ROWOFF}")
a(f"v_lshl_add_u32 v{V_XNW}, v10, 4, v{V_XNW}")
a(f"s_lshl_b32 s{T4}, s{S_TB2}, 16")
a(f"s_add_u32 s{T4}, s{T4}, {WS_H}")
a(f"s_and_b32 s{T3}, s{S_W}, 3")
a(f"s_lshl_b32 s{T3}, s{T3}, 13")
for n in (4, 5):
    ring_issue(Cnt(a, "vmcnt", 63), R_W1, 2752, W1_SEG, n)
a(f"s_cmp_lg_u32 s{S_W}, 4")
a("s_cbranch_scc1 L_p4_nocs")
a(f"s_waitcnt vmcnt({HW})")
spoll_issue(0)
spoll_check(0)
a("s_branch L_p4_nocs")
a.label("L_p4_cs")
a("s_waitcnt vmcnt(2)")
flag_poll(None, 32)
for k in range(4):
    for seg in range(3):
        a(f"buffer_load_dword v{CS+4*seg+k}, v10, {sr(R_WS,4)}, s{T0} offen offset:{seg*256} sc1")
    a(f"s_add_u32 s{T0}, s{T0}, {1408*4}")
flag_addr(WS_FG, S_TB2, S_J, S_TB2)
a(f"s_and_b32 s{T0}, s{S_W}, 1")
a(f"s_lshl_b32 s{T1}, s{S_TB2}, 1")
a(f"s_add_u32 s{T0}, s{T0}, s{T1}")
a(f"s_mul_i32 s{T0}, s{T0}, 43")
a(f"s_lshr_b32 s{T1}, s{S_W}, 1")
a(f"s_add_u32 s{T3}, s{T1}, 4")
a(f"s_add_u32 s{T0}, s{T0}, s{T1}")
a(f"s_lshl_b32 s{T1}, s{S_J}, 2")
a(f"s_sub_u32 s{T2}, s{S_F0}, s{T1}")
a(f"s_add_u32 s{T2}, s{T2}, s{T0}")
a(f"s_lshl_b32 s{T2}, s{T2}, 11")
a(f"s_add_u32 s{T2}, s{T2}, {WS_GF + 32*2048}")
a(f"s_add_u32 s{T0}, s{T0}, s{T1}")
a(f"s_lshl_b32 s{T0}, s{T0}, 11")
a(f"s_add_u32 s{T0}, s{T0}, {WS_GF}")
a(f"s_add_u32 s{T1}, s{T0}, 4096")
a(f"s_and_b32 s{T7}, s{S_W}, 1")
a(f"s_lshl_b32 s{T7}, s{T7}, 8")
a(f"s_add_u32 s{T5}, s{T5}, s{T7}")
a(f"v_and_b32 v10, 31, v{V_LANE}")
a(f"v_lshlrev_b32 v10, 3, v10")
a(f"v_lshrrev_b32 v235, 5, v{V_LANE}")
a(f"v_lshl_add_u32 v235, v235, 11, v10")
a(f"v_mov_b32 v10, {f32(GK)}")
a(f"v_mov_b32 v11, v10")
a(f"v_mov_b32 v14, 1.0")
a(f"v_mov_b32 v15, 1.0")
a.label("L_p4_nocs")
a("s_barrier")
stamp("h ready")
def h_issue(v, n):
    for i in (2*n, 2*n + 1):
        for r in range(2):
            dma(v, ("x", n), R_WS, V_XNW, T4, r*32768 + i*128, T3, r*32768 + i*1024, "sc1")
G_SLOTS = [2, 3, 4, 5, 6, 7, 8, 9, 0, 1, 2]
G_SLOTS = [0, 1, 2, 3, 4, 5, 6, 7, 8, 9, 2]
a(f"s_cmp_lt_u32 s{S_W}, 4")
a("s_cbranch_scc1 L_p4_compute")
a.c("---- waves 4-7: W1 ring, then phase 5 compute")
vl = vm.copy()
for n in range(NH):
    h_issue(vl, n)
gemm_loader(vl, R_W1, 2752, W1_SEG, lambda n: h_issue(vl, n + NH) if n + NH < 4 else None)
flag_addr(WS_FG, S_TB2, S_J, S_TB2)
act_setup(43, WS_GF, True)
a("s_barrier")
flag_store(4)
stamp("gA drained")
flag_poll(4, 8)
a("s_barrier")
stamp("gA ready")
a.c("======== phase 5: out = h + g W2 + b2, computed by waves 4-7")
vm.clear()
vb = vm.copy()
for q in range(NGB):
    act_issue(vb, q, G_SLOTS[q], 43, True)
tile_compute(vb, 43, G_SLOTS, F_W, T_ACC, T_AF)
stamp("ffn2 done B")
a("s_branch L_p5_done")

a.label("L_p4_compute")
vc = vm.copy()
HS = G_ACC + 16
for k in range(4):
    a(f"buffer_load_dwordx2 {vr(HS+2*k,2)}, v235, {sr(R_WS,4)}, s{T5} offen offset:{k*512} sc1")
vc.issue(("x", 0), 4)
a("s_waitcnt vmcnt(4)")
for seg in range(3):
    c = CS + 4*seg
    a(f"v_add_f32 v{c}, v{c}, v{c+1}")
    a(f"v_add_f32 v{c+2}, v{c+2}, v{c+3}")
for seg in range(3):
    c = CS + 4*seg
    a(f"v_add_f32 v{c}, v{c}, v{c+2}")
for seg in range(3):
    c = CS + 4*seg
    a(f"v_mov_b32 v{c+1}, v{c}")
a("s_nop 1")
for seg in range(3):
    c = CS + 4*seg
    a(f"v_permlane32_swap_b32 v{c}, v{c+1}")
a("s_nop 1")
for seg in range(3):
    c, d = CS + 4*seg, GT + 4*seg
    a(f"v_add_f32 v{c}, v{c}, v{c+1}")
    a(f"v_and_b32 v{c+1}, 0xffff0000, v{c}")
    a(f"v_sub_f32 v{c}, v{c}, v{c+1}")
    a(f"v_cvt_pk_bf16_f32 v{d}, v{c+1}, v{c+1}")
    a(f"v_cvt_pk_bf16_f32 v{d+1}, v{c}, v{c}")
    a(f"v_lshl_or_b32 v{d+2}, v{V_B1+seg}, 16, v{V_B1+seg}")
    a(f"v_mov_b32 v{d+3}, 0")
a(f"v_mov_b32 v{GT+15}, 0")
a(f"v_lshrrev_b32 v232, 4, v{V_LANE}")
a(f"v_and_b32 v233, 15, v{V_LANE}")
a(f"v_lshlrev_b32 v233, 7, v233")
a(f"v_lshl_add_u32 v232, v232, 12, v233")
RS = 234
def gelu(seg, pk):
    u = G_ACC + 16*seg
    L = []
    def two(op, f, D=GT):
        if pk:
            for i in range(8):
                L.append((f"v_pk_{op}_f32 {vr(D+2*i,2)}, " + f(lambda b: vr(b+2*i, 2), lambda b: vr(b, 2)), 1))
        else:
            for i in range(16):
                L.append((f"v_{op}_f32 v{D+i}, " + f(lambda b: f"v{b+i}", lambda b: f"v{b}"), 1))
    two("mul", lambda e, k: f"{e(u)}, {k(RS)}", u)
    two("fma", lambda e, k: f"{e(u)}, {e(u)}, {k(10)}")
    two("mul", lambda e, k: f"{e(GT)}, {e(u)}")
    for i in range(16):
        L.append((f"v_exp_f32 v{GT+i}, v{GT+i}", 2))
    two("add", lambda e, k: f"{e(GT)}, {k(14)}")
    for i in range(16):
        L.append((f"v_rcp_f32 v{GT+i}, v{GT+i}", 2))
    two("mul", lambda e, k: f"{e(GT)}, {e(u)}")
    for i in range(8):
        L.append((f"v_cvt_pk_bf16_f32 v{u+i}, v{GT+2*i}, v{GT+2*i+1}", 1))
        if i % 4 == 3:
            L.append(((f"buffer_store_dwordx4 {vr(u+i-3,4)}, v{V_L16}, {sr(R_WS,4)}, s{T0+seg} offen offset:{(i//4)*1024} sc1", "st"), 2))
    return L
inj = {}
spread(inj, gelu(0, 0), 36, 63)
if not GB:
    spread(inj, gelu(1, 0), 68, 80)
BO = GT + 12
prep = [f"v_add_f32 v{HS}, v{HS}, v{HS+2}", f"v_add_f32 v{HS+1}, v{HS+1}, v{HS+3}",
        f"v_add_f32 v{HS+4}, v{HS+4}, v{HS+6}", f"v_add_f32 v{HS+5}, v{HS+5}, v{HS+7}",
        f"v_add_f32 v{HS}, v{HS}, v{HS+4}", f"v_add_f32 v{HS+1}, v{HS+1}, v{HS+5}",
        f"v_mov_b32 v{HS+2}, v{HS}", f"v_mov_b32 v{HS+3}, v{HS+1}",
        f"s_nop 1\nv_permlane32_swap_b32 v{HS}, v{HS+2}", f"v_permlane32_swap_b32 v{HS+1}, v{HS+3}\ns_nop 1",
        f"v_add_f32 v{HS}, v{HS}, v{HS+2}", f"v_add_f32 v{HS+1}, v{HS+1}, v{HS+3}",
        f"v_mul_f32 v{HS}, {f32(-1.0/512)}, v{HS}", f"v_mul_f32 v{HS+1}, {f32(1.0/512)}, v{HS+1}",
        f"v_fma_f32 v{HS+1}, -v{HS}, v{HS}, v{HS+1}", f"v_max_f32 v{HS+1}, 0, v{HS+1}",
        f"v_add_f32 v{HS+1}, {f32(1e-5)}, v{HS+1}", f"v_rsq_f32 v{HS+2}, v{HS+1}",
        f"v_and_b32 v{HS+3}, 0xffff0000, v{HS}", f"v_sub_f32 v{HS}, v{HS}, v{HS+3}",
        f"v_mul_f32 v{HS+1}, v{HS+1}, v{HS+2}", f"v_mul_f32 v{RS}, {f32(GS)}, v{HS+2}",
        f"v_cvt_pk_bf16_f32 v{BO}, v{HS+3}, v{HS}", f"v_and_b32 v{HS+3}, 0xffff0000, v{HS+1}",
        f"v_sub_f32 v{HS+1}, v{HS+1}, v{HS+3}", f"v_mov_b32 v{RS+1}, v{RS}",
        f"v_cvt_pk_bf16_f32 v{BO+2}, v{HS+3}, v{HS+1}",
        f"s_mov_b32 exec_lo, 0\nv_mov_b32 v{BO}, 0\nv_mov_b32 v{BO+2}, 0\ns_mov_b32 exec_lo, -1", f"v_mov_b32 v{BO+1}, v{BO}"]
spread(inj, [(x, 1) for x in prep], 0, 29)
def corr():
    a.c("accumulators += -mean x colsum + std x bias")
    for seg in (0, 2, 1):
        d = vr(G_ACC + 16*seg, 16)
        a(f"v_mfma_f32_32x32x16_bf16 {d}, {vr(GT+4*seg,4)}, {vr(BO,4)}, {'0' if seg else d}")
def gelu_block(seg):
    a.raw(".p2align 3")
    for x, _ in gelu(seg, 1):
        if isinstance(x, tuple):
            a(x[0]); vc.issue(x[1])
        else:
            a(x)
def blk1():
    a("s_nop 7")
    a("s_nop 1")
    gelu_block(1)
def pubA():
    vc.wait("st")
    a("s_mov_b32 exec_hi, 0")
    a(f"buffer_load_dword v251, v232, {sr(R_WS,4)}, s{T0} offen sc1")
    a("s_mov_b32 exec_hi, -1")
    a("s_barrier")
gemm_compute(vc, set(), {0}, inj, {32: corr, UFA: pubA, **({64: blk1} if GB else {})}, 'p4', 1024)
stamp("ffn1 done")
a(f"s_mov_b32 s{T6}, s{T2}")
a(f"s_cmp_ge_u32 s{T3}, s{S_NT}")
a(f"s_cselect_b32 s{T6}, s{T0}, s{T2}")
a("s_cbranch_scc1 L_p4_skip")
a("s_nop 7")
gelu_block(2)
a.label("L_p4_skip")
stamp("g stored")
act_setup(43, WS_GF, True)
a("s_barrier")
vl = vm.copy()
vl.issue(("a", 0))
nxt = [NGB]
def g_upto(n):
    while nxt[0] <= min(n, 10):
        act_issue(vl, nxt[0], G_SLOTS[nxt[0]], 43, True)
        nxt[0] += 1
g_upto(NG0 - 1)
def p5_after(q):
    if q in (0, 3, 5, 7, 10) and opt("fst", 0):
        stamp(f"p5 q{q}")
    if q == 0:
        a.c("the wait before this barrier covered the last stores of every wave")
        flag_store(0, FB)
        a("s_mov_b64 exec, 0xffff")
        a(f"buffer_load_dword v251, v232, {sr(R_WS,4)}, s{T6} offen sc1")
        a("s_mov_b64 exec, -1")
        vl.issue("rr")
    g_upto(q + NG if q > QP else min(7, q + NG))
    if q in (QP - 1, QP):
        l = a.uniq("L_gb")
        a(f"s_cmp_lg_u32 s{S_W}, 0")
        a(f"s_cbranch_scc1 {l}")
        spoll_issue(FB) if q < QP else spoll_check(FB)
        a.label(l)
tile_loader(vl, 43, p5_after)
a.label("L_p5_done")
tile_gather(16)
for x in unpack8(32, V_HRES) + unpack8(40, V_B2):
    a(x)
for i in range(4):
    a(f"v_pk_add_f32 {vr(32+2*i,2)}, {vr(32+2*i,2)}, {vr(40+2*i,2)}")
a(f"v_mov_b32 v10, {f32(1.0/GS)}")
a("v_mov_b32 v11, v10")
for h in range(2):
    a(f"s_waitcnt lgkmcnt({2-2*h})")
    for i in range(2*h, 2*h+2):
        a(f"v_pk_add_f32 {vr(16+2*i,2)}, {vr(16+2*i,2)}, {vr(24+2*i,2)}")
        a(f"v_pk_fma_f32 {vr(32+2*i,2)}, {vr(16+2*i,2)}, v[10:11], {vr(32+2*i,2)}")
    for i in range(2*h, 2*h+2):
        a(f"v_cvt_pk_bf16_f32 v{40+i}, v{32+2*i}, v{32+2*i+1}")
a(f"buffer_store_dwordx4 v[40:43], v{V_ROWOFF}, {sr(R_OUT,4)}, s{S_TILE} offen")
if STAMPS:
    a("s_waitcnt vmcnt(0)")
stamp("end")
stamp_flush()
a.c("every workgroup has read the old tag by now: leave this launch's tag for the next launch to step past")
a(f"s_or_b32 s{T0}, s{S_WG}, s{S_W}")
a(f"s_cmp_lg_u32 s{T0}, 0")
a("s_cbranch_scc1 L_end")
a("s_mov_b64 exec, 1")
a(f"buffer_store_dword v248, v249, {sr(R_WS,4)}, 0 offen offset:{WS_NONCE} sc1")
a.label("L_end")
a("s_endpgm")
a.label("L_code_end")

a.c("======== attention with the row's true maximum: q-block A over all 2048 keys")
a.label("L_attn_fb")
FM = SB
a("s_waitcnt vmcnt(0)")
a(f"v_mov_b32 v{FM}, 0xff800000")
a(f"s_mov_b32 s{S_XOFF}, 0")
a(f"s_mov_b32 s{S_LOOP}, 64")
a.label("L_fb1")
a(f"buffer_load_dwordx4 {vr(Kf(0),4)}, v{A_AK}, {sr(R_WS,4)}, s{S_XOFF} offen sc1")
a("s_waitcnt vmcnt(0)")
a(f"v_mfma_f32_32x32x16_bf16 {vr(SA,16)}, {vr(Kf(0),4)}, {vr(QA,4)}, 0")
a(f"s_add_u32 s{S_XOFF}, s{S_XOFF}, 2048")
a("s_nop 7")
a("s_nop 3")
for i in range(8):
    a(f"v_max3_f32 v{FM}, v{FM}, v{SA+2*i}, v{SA+2*i+1}")
a(f"s_sub_u32 s{S_LOOP}, s{S_LOOP}, 1")
a(f"s_cmp_lg_u32 s{S_LOOP}, 0")
a("s_cbranch_scc1 L_fb1")
a(f"v_mov_b32 v{FM+1}, v{FM}")
a("s_nop 1")
a(f"v_permlane32_swap_b32 v{FM}, v{FM+1}")
a("s_nop 1")
a(f"v_max_f32 v{FM}, v{FM}, v{FM+1}")
for i in range(16):
    a(f"v_mov_b32 v{OA+i}, 0")
a(f"s_mov_b32 s{S_XOFF}, 0")
a(f"s_mov_b32 s{S_LOOP}, 64")
a.label("L_fb2")
kv_load(Cnt(a, "vmcnt", 63), 0, 4)
a("s_waitcnt vmcnt(0)")
a(f"v_mfma_f32_32x32x16_bf16 {vr(SA,16)}, {vr(Kf(0),4)}, {vr(QA,4)}, 0")
a(f"s_add_u32 s{S_XOFF}, s{S_XOFF}, 2048")
a("s_nop 7")
a("s_nop 3")
for i in range(16):
    a(f"v_sub_f32 v{SA+i}, v{SA+i}, v{FM}")
for i in range(16):
    a(f"v_exp_f32 v{SA+i}, v{SA+i}")
a("s_nop 1")
smf(OA, Vf(0, 0), SA)
smf(OA, Vf(0, 1), SA+8)
a(f"s_sub_u32 s{S_LOOP}, s{S_LOOP}, 1")
a(f"s_cmp_lg_u32 s{S_LOOP}, 0")
a("s_nop 7")
a("s_cbranch_scc1 L_fb2")
a("s_nop 7")
a("s_nop 3")
a("s_branch L_attn_fin")

a.raw('.section .rodata,"a"')
a.raw(".p2align 6")
a.raw(f".amdhsa_kernel {NAME}_kernel")
a.raw("  .amdhsa_next_free_vgpr 256")
a.raw("  .amdhsa_next_free_sgpr 102")
a.raw("  .amdhsa_accum_offset 256")
a.raw("  .amdhsa_group_segment_fixed_size 0")
a.raw("  .amdhsa_kernarg_size 88")
a.raw("  .amdhsa_user_sgpr_count 2")
a.raw("  .amdhsa_user_sgpr_kernarg_segment_ptr 1")
a.raw("  .amdhsa_system_sgpr_workgroup_id_x 1")
a.raw(".end_amdhsa_kernel")

out = [x for x in args if not x.startswith("--")]
open(out[0] if out else "cdna_kernels/" + NAME + ".s", "w").write(a.text())
```

```python
import sys, math
from lib import *

NAME = "sequential_preLN__softmax_full_mha__dense_activation_gelu__prompt"
args = sys.argv[1:]
def opt(n, d):
    for x in args:
        if x.startswith("--" + n + "="):
            return type(d)(x.split("=")[1])
    return d
STAMPS = "--stamps" in args
FORCE_FB = "--force-fallback" in args
LH = 2
NA = opt("na", 52)
IT1 = opt("it1", 4)
IT2 = opt("it2", 1)
TB1 = opt("tb1", 6)
TB2 = opt("tb2", 1)
T0B = opt("t0b", 1)
TEND = opt("tend", 1)
NBLK = opt("nblk", 4)
NPA = opt("npa", 2)
UKV = opt("ukv", 93)
NO = opt("no", 3)
NH = opt("nh", 3)
UP0 = opt("up0", 58)
UP1 = opt("up1", 92)
QP = opt("qp", 6)
KVL = opt("kvl", 1)
KVP = opt("kvp", 0)
SLP = opt("slp", 0)
DO = opt("do", 0)
DH = opt("dh", 0)
BK = opt("bk", 0)
LATE = opt("late", 1)
RR2 = opt("rr2", 0)
OSP = opt("osp", 1)
GST = opt("gst", 0)
SEL = opt("sel", "").replace("_", " ")
PROBE = opt("probe", "").replace("_", " ")

S_WG, S_W = 2, 3
S_PC = 4
R_X, R_WQKV, R_WO, R_W1, R_W2, R_WS, R_OUT, R_B1, R_B2 = 8, 12, 16, 20, 24, 28, 32, 36, 40
KA = 44
S_HG, S_TB, S_TB2, S_J, S_N = 66, 67, 68, 69, 70
S_F0 = 71
T0, T1, T2, T3, T4, T5, T6, T7 = 72, 73, 74, 75, 76, 77, 78, 79
S_LOOP, S_XOFF, S_HEAD = 80, 81, 82
S_TILE = 83
S_MASKV = 84
S_D0, S_D1, S_D2, S_D3 = 86, 87, 88, 89
S_TS = 90
S_NT = 92
S_SPIN = 93
S_SAVE = 94
S_D4, S_D5 = 96, 97
S_STAGE = 101
S_SHR = 100
S_FOWN, S_FPOLL = 98, 99
S_OWN, S_OWN2 = 62, 63

WS_NONCE = 0
WS_FKV = 0x1000
WS_FO = 0x2000
WS_FG = 0x4000
WS_FC = 0x8000
WS_CS = 0x60000
WS_HS = 0x40000
WS_STAMP = 0x10000
WS_KV = 0x100000
WS_OF = 0x500000
WS_H = 0x700000
WS_GF = 0x900000
WS_SIZE = 0x1000000

L_XN = 0
L_RING = 65536
L_Q = 32768
L_OX = 0
LDS_BYTES = 163840

V_LANE, V_ROWOFF, V_XNW = 1, 2, 3
V_DA, V_DB = 12, 13
V_B1 = 232
V_B2 = 236
V_REDW, V_REDR, V_L16 = 240, 244, 246
V_HRES = 252

a = Asm()
stamp_idx = [0]
def stamp(name):
    i = stamp_idx[0]
    stamp_idx[0] += 1
    if PROBE and name == "start":
        a("s_memrealtime s[6:7]")
    if PROBE and name == "setup":
        a("s_mov_b32 s1, 0")
    if PROBE == name:
        a(f"s_memrealtime {sr(S_TS,2)}")
        a("s_waitcnt lgkmcnt(0)")
        a(f"s_sub_u32 s1, s{S_TS}, s6")
    if PROBE and name == "end":
        a("s_mul_i32 s1, s1, 10")
        a("s_add_u32 s1, s1, 10000")
        a(f"s_cmp_lg_u32 s{S_WG}, 100")
        a("s_cbranch_scc1 L_nopin")
        a.label("L_pin")
        a(f"s_memrealtime {sr(S_TS,2)}")
        a("s_waitcnt lgkmcnt(0)")
        a(f"s_sub_u32 s{S_TS}, s{S_TS}, s6")
        a(f"s_cmp_lt_u32 s{S_TS}, s1")
        a("s_cbranch_scc1 L_pin")
        a.label("L_nopin")
    if not STAMPS:
        return
    if SEL and name not in ("start", "end") and not any(k in name for k in SEL.split(",")):
        return
    a.c(f"stamp {i} {name}")
    a(f"s_memtime {sr(S_TS,2)}")
    a(f"s_waitcnt lgkmcnt(0)")
    a(f"v_writelane_b32 v250, s{S_TS}, {i}")
    a(f"s_memrealtime {sr(S_TS,2)}")
    a(f"s_waitcnt lgkmcnt(0)")
    a(f"v_writelane_b32 v250, s{S_TS}, {i+32}")

def stamp_flush():
    if not STAMPS:
        return
    l = a.uniq("L_st")
    a(f"s_and_b32 s{T7}, s{S_W}, 3")
    a(f"s_cmp_lg_u32 s{T7}, 0")
    a(f"s_cbranch_scc1 {l}")
    a(f"s_lshl_b32 s{T7}, s{S_WG}, 9")
    a(f"s_lshl_b32 s{T6}, s{S_W}, 6")
    a(f"s_add_u32 s{T7}, s{T7}, s{T6}")
    a(f"s_add_u32 s{T7}, s{T7}, {WS_STAMP}")
    a(f"v_lshlrev_b32 v251, 2, v{V_LANE}")
    a(f"buffer_store_dword v250, v251, {sr(R_WS,4)}, s{T7} offen")
    a.label(l)

def srd(r, ptr, size):
    a(f"s_mov_b32 s{r}, s{ptr}")
    a(f"s_mov_b32 s{r+1}, s{ptr+1}")
    a(f"s_mov_b32 s{r+2}, {size}")
    a(f"s_mov_b32 s{r+3}, 0x00020000")

def flag_addr(base, line_own, word_own, line_poll, sh=8):
    a(f"s_lshl_b32 s{S_FOWN}, s{line_own}, {sh}")
    a(f"s_lshl_b32 s{T7}, s{word_own}, 2")
    a(f"s_add_u32 s{S_FOWN}, s{S_FOWN}, s{T7}")
    a(f"s_add_u32 s{S_FOWN}, s{S_FOWN}, {base}")
    a(f"s_lshl_b32 s{S_FPOLL}, s{line_poll}, {sh}")
    a(f"s_add_u32 s{S_FPOLL}, s{S_FPOLL}, {base}")

def flag_store(poller, off=0):
    l = a.uniq("L_nf")
    a(f"s_cmp_lg_u32 s{S_W}, {poller}")
    a(f"s_cbranch_scc1 {l}")
    a(f"s_mov_b64 exec, 1")
    a(f"buffer_store_dword v248, v249, {sr(R_WS,4)}, s{S_FOWN} offen offset:{off} sc1")
    a(f"s_mov_b64 exec, -1")
    a.label(l)

def flag_poll(poller, nflags, off=0, va=249):
    l_skip, l_poll, l_done = a.uniq("L_skip"), a.uniq("L_poll"), a.uniq("L_done")
    if poller is None:
        a(f"v_cmp_eq_u32 vcc, v247, v248")
        a("s_nop 0")
        a(f"s_and_b32 s{T7}, vcc_lo, {(1 << nflags) - 1:#x}")
        a(f"s_cmp_eq_u32 s{T7}, {(1 << nflags) - 1:#x}")
    else:
        a(f"s_cmp_lg_u32 s{S_W}, {poller}")
    a(f"s_cbranch_scc1 {l_skip}")
    a(f"s_mov_b32 exec_hi, 0")
    a(f"s_mov_b32 exec_lo, {(1 << nflags) - 1:#x}")
    a(f"s_mov_b32 s{S_SPIN}, 0")
    a.label(l_poll)
    a(f"buffer_load_dword v247, v{va}, {sr(R_WS,4)}, s{S_FPOLL} offen offset:{off} sc1")
    a(f"s_add_u32 s{S_SPIN}, s{S_SPIN}, 1")
    a("s_waitcnt vmcnt(0)")
    a(f"v_cmp_eq_u32 vcc, v247, v248")
    a(f"s_cmp_gt_u32 s{S_SPIN}, 200000")
    a(f"s_cbranch_scc1 {l_done}")
    a(f"s_cmp_eq_u64 vcc, exec")
    if BK:
        a(f"s_cbranch_scc1 {l_done}")
        a(f"s_sleep {BK}")
        a(f"s_branch {l_poll}")
    else:
        a(f"s_cbranch_scc0 {l_poll}")
    a.label(l_done)
    a("s_mov_b64 exec, -1")
    a.label(l_skip)

def spoll_issue(off):
    a(f"s_add_u32 s{KA+2}, s{S_FPOLL}, {off}")
    a(f"s_load_dwordx8 {sr(KA+4,8)}, {sr(KA+20,2)}, s{KA+2} glc")
    a(f"s_mov_b32 s{KA}, s{S_N}")
    a(f"s_mov_b32 s{KA+1}, s{S_N}")
    a(f"s_mov_b32 s{KA+3}, 0")

def spoll_check(off):
    l, l_ok = a.uniq("L_sp"), a.uniq("L_spok")
    a.label(l)
    a("s_waitcnt lgkmcnt(0)")
    for k in range(4):
        a(f"s_xor_b64 {sr(KA+4+2*k,2)}, {sr(KA+4+2*k,2)}, {sr(KA,2)}")
    for k in range(1, 4):
        a(f"s_or_b64 {sr(KA+4,2)}, {sr(KA+4,2)}, {sr(KA+4+2*k,2)}")
    a(f"s_cbranch_scc0 {l_ok}")
    if BK:
        a(f"s_sleep {BK}")
    a(f"s_load_dwordx8 {sr(KA+4,8)}, {sr(KA+20,2)}, s{KA+2} glc")
    a(f"s_add_u32 s{KA+3}, s{KA+3}, 1")
    a(f"s_cmp_lt_u32 s{KA+3}, 16")
    a(f"s_cbranch_scc1 {l}")
    a("s_waitcnt lgkmcnt(0)")
    a(f"v_not_b32 v247, v248")
    flag_poll(None, 8, off)
    a.label(l_ok)

LN_X, LN_D, LN_T = 16, 48, 56

def ln_loads(vm, rsrc, soff, flags=""):
    for i in range(8):
        so, imm = (soff[i >> 1], 128*(i & 1)) if isinstance(soff, list) else (soff, 128*i)
        a(f"buffer_load_dwordx4 {vr(LN_X+4*i,4)}, v{V_ROWOFF}, {sr(rsrc,4)}, s{so} offen offset:{imm} {flags}")
        vm.issue(("x", i))

def ln_consts():
    t = LN_T
    a(f"v_mov_b32 v{t+4}, 0x3f803f80")
    a(f"v_mov_b32 v{t+5}, 0x00003f80")
    a(f"v_mov_b32 v{t+6}, 0x3f800000")
    a(f"v_mov_b32 v{t}, 0")
    a(f"v_mov_b32 v{t+1}, 0")

def ln_stats(vm, scale):
    t = LN_T
    for i in range(8):
        vm.wait(("x", i))
        if i in (7,) and scale >= 1.0:
            stamp(f"x{i} in {scale}")
        a.raw(".p2align 3")
        for j in range(4):
            a(f"v_dot2_f32_bf16 v{t}, v{LN_X+4*i+j}, v{t+4}, v{t}")
            a(f"v_dot2_f32_bf16 v{t+1}, v{LN_X+4*i+j}, v{LN_X+4*i+j}, v{t+1}")

def sum8_pair(t):
    a("s_nop 1")
    for ctl in ("quad_perm:[1,0,3,2]", "quad_perm:[2,3,0,1]", "row_half_mirror"):
        a("s_nop 0")
        a(f"v_add_f32_dpp v{t}, v{t}, v{t} {ctl} row_mask:0xf bank_mask:0xf")
        a(f"v_add_f32_dpp v{t+1}, v{t+1}, v{t+1} {ctl} row_mask:0xf bank_mask:0xf")

def ln_norm(scale, vm=None):
    t = LN_T
    sum8_pair(t)
    a(f"v_mul_f32 v{t}, {f32(-1.0/512)}, v{t}")
    a(f"v_mul_f32 v{t+2}, v{t}, v{t}")
    a(f"v_mul_f32 v{t+1}, {f32(1.0/512)}, v{t+1}")
    a(f"v_sub_f32 v{t+1}, v{t+1}, v{t+2}")
    a(f"v_max_f32 v{t+1}, 0, v{t+1}")
    a(f"v_add_f32 v{t+1}, {f32(1e-5)}, v{t+1}")
    a(f"v_rsq_f32 v{t+2}, v{t+1}")
    a("s_nop 0")
    if scale != 1.0:
        a(f"v_mul_f32 v{t+2}, {f32(scale)}, v{t+2}")
    a(f"v_mov_b32 v{t+3}, v{t+2}")
    for i in range(8):
        if vm:
            vm.wait(("x", i))
        a.raw(".p2align 3")
        for j in range(4):
            a(f"v_dot2_f32_bf16 v{LN_D+2*j}, v{LN_X+4*i+j}, v{t+5}, v{t}")
            a(f"v_dot2_f32_bf16 v{LN_D+2*j+1}, v{LN_X+4*i+j}, v{t+6}, v{t}")
        for j in range(4):
            a(f"v_pk_mul_f32 {vr(LN_D+2*j,2)}, {vr(LN_D+2*j,2)}, {vr(t+2,2)}")
        for j in range(4):
            a(f"v_cvt_pk_bf16_f32 v{LN_X+4*i+j}, v{LN_D+2*j}, v{LN_D+2*j+1}")
        a(f"ds_write_b128 v{V_XNW}, {vr(LN_X+4*i,4)} offset:{L_XN + 4096*i}")

def dma_addr(dst, row_bytes, col_s):
    a(f"v_lshrrev_b32 v10, 3, v{V_LANE}")
    a(f"v_and_b32 v11, 7, v{V_LANE}")
    a(f"v_lshlrev_b32 v{dst}, 1, v10")
    a(f"v_and_b32 v{dst}, 4, v{dst}")
    a(f"v_xor_b32 v11, v11, v{dst}")
    a(f"v_mul_u32_u24 v10, {row_bytes}, v10")
    a(f"v_lshl_add_u32 v10, v11, 4, v10")
    a(f"v_add_u32 v{dst}, s{col_s}, v10")

def dma(vm, tag, rsrc, vaddr, sg, goff, sl, loff, flags=""):
    a(f"s_add_u32 m0, s{sl}, {loff}")
    a(f"s_add_u32 s{T7}, s{sg}, {goff}")
    a(f"buffer_load_dwordx4 v{vaddr}, {sr(rsrc,4)}, s{T7} offen {flags} lds")
    vm.issue(tag)

def tr_lane_addr(dst, hp_s, perm):
    a(f"v_bfe_u32 v10, v{V_LANE}, 2, 2")
    a(f"v_lshrrev_b32 v11, 1, v10")
    a(f"v_xor_b32 v11, s{hp_s}, v11")
    a(f"v_lshlrev_b32 v11, 6, v11")
    a(f"v_lshl_add_u32 v11, v10, 7, v11")
    a(f"v_bfe_u32 v10, v{V_LANE}, 4, 1")
    a(f"v_lshl_add_u32 v11, v10, 5, v11")
    if perm:
        a(f"v_and_b32 v10, 1, v{V_LANE}")
        a(f"v_lshl_add_u32 v11, v10, 4, v11")
        a(f"v_bfe_u32 v10, v{V_LANE}, 1, 1")
        a(f"v_lshl_add_u32 v11, v10, 3, v11")
    else:
        a(f"v_and_b32 v10, 3, v{V_LANE}")
        a(f"v_lshl_add_u32 v11, v10, 3, v11")
    a(f"v_lshrrev_b32 v10, 5, v{V_LANE}")
    a(f"v_lshl_add_u32 v{dst}, v10, 10, v11")

def tr_read(dst, vaddr, off):
    a(f"ds_read_b64_tr_b16 {vr(dst,2)}, v{vaddr} offset:{off}")
    a(f"ds_read_b64_tr_b16 {vr(dst+2,2)}, v{vaddr} offset:{off+512}")

G_X = 16
G_XA, G_WA = 4, 8

def capture(f, *x):
    keep, a.L = a.L, []
    f(*x)
    out, a.L = [l.strip() for l in a.L if not l.strip().startswith(";")], keep
    return out

def w_addr():
    a(f"s_bfe_u32 s{T0}, s{S_W}, 0x10001")
    tr_lane_addr(G_WA, T0, True)
    a(f"v_add_u32 v{G_WA}, {L_RING}, v{G_WA}")
    a(f"v_add_u32 v{G_WA+1}, 49152, v{G_WA}")

def x_addr(raw):
    a(f"s_and_b32 s{T0}, s{S_W}, 1")
    a(f"s_lshl_b32 s{T0}, s{T0}, 15")
    if raw:
        a(f"v_bfe_u32 v10, v{V_LANE}, 3, 2")
        a(f"v_lshlrev_b32 v10, 13, v10")
        a(f"v_and_b32 v11, 7, v{V_LANE}")
        a(f"v_lshl_add_u32 v10, v11, 7, v10")
        a(f"v_add_u32 v10, s{T0}, v10")
        a(f"v_bfe_u32 v11, v{V_LANE}, 1, 3")
        a(f"v_lshrrev_b32 v{G_XA}, 5, v{V_LANE}")
        a(f"v_xor_b32 v11, v11, v{G_XA}")
        for b in range(4):
            a(f"v_xor_b32 v{G_XA+b}, {2*b}, v11")
            a(f"v_lshl_add_u32 v{G_XA+b}, v{G_XA+b}, 4, v10")
    else:
        for b in range(4):
            a(f"v_lshrrev_b32 v10, 5, v{V_LANE}")
            a(f"v_add_u32 v10, {2*b}, v10")
            a(f"v_and_b32 v11, 31, v{V_LANE}")
            a(f"v_xor_b32 v11, v11, v10")
            a(f"v_lshlrev_b32 v11, 4, v11")
            a(f"v_lshl_add_u32 v11, v10, 9, v11")
            a(f"v_add_u32 v{G_XA+b}, s{T0}, v11")

def w_read(dst, u):
    off = ((u >> 3) % 6)*16384 + (u & 7)*2048
    if off >= 49152:
        tr_read(dst, G_WA + 1, off - 49152)
    else:
        tr_read(dst, G_WA, off)

def gemm_compute(vm, acc, wf, swapped, zero_c, inject, before, bars, nm, xstride, w0=None):
    lg = Cnt(a, "lgkmcnt", 15)
    nxt = [0]
    def rd(u):
        if u % 8 == 0 and (u >> 3) in bars:
            vm.wait(("w", u >> 3), ("x", u >> 3), extra="" if u else "lgkmcnt(0)")
            a("s_barrier")
        if u < 32:
            a(f"ds_read_b128 {vr(G_X+4*u,4)}, v{G_XA+(u&3)} offset:{L_XN + (u>>2)*xstride}")
            lg.issue(u)
        if u >= 32 or not w0:
            w_read(wf[u % 6], u)
            lg.issue(u, 2)
    def fill(upto):
        while nxt[0] <= min(upto, 95):
            rd(nxt[0]); nxt[0] += 1
    fill(3)
    for u in range(96):
        seg, t = u >> 5, u & 31
        if t == 0 and GST:
            stamp(f"{nm} pass{seg}")
        if u in before:
            before[u]()
        if u < 32:
            lg.wait(u)
        elif u % 2 == 0:
            lg.wait(u + 1)
        x, d = vr(G_X+4*t, 4), vr(acc[seg], 16)
        w = vr(w0(t) if (w0 and u < 32) else wf[u % 6], 4)
        c = "0" if (seg in zero_c and t == 0) else d
        if seg in swapped:
            a(f"v_mfma_f32_32x32x16_bf16 {d}, {x}, {w}, {c}")
        else:
            a(f"v_mfma_f32_32x32x16_bf16 {d}, {w}, {x}, {c}")
        fill(u + (4 if u < 28 else 5 if u < 29 else 6))
        for ins in inject.get(u, []):
            if isinstance(ins, tuple):
                a(ins[0]); vm.issue(ins[1])
            else:
                a(ins)

def spread(inject, items, u0, u1):
    tot = sum(c for _, c in items)
    acc = 0
    for ins, c in items:
        u = u0 + min(u1 - u0 - 1, int(acc * (u1 - u0) / tot))
        inject.setdefault(u, []).append(ins)
        acc += c

S_RG = [S_D0, S_D1, S_D2, S_D3]
def ring_setup(row_bytes, rot):
    a(f"s_and_b32 s{S_D5}, s{S_W}, 3")
    a(f"s_mul_i32 s{T0}, s{S_D5}, {32*row_bytes}")
    a(f"s_lshl_b32 s{S_D5}, s{S_D5}, 12")
    for c in range(4):
        if rot:
            a(f"s_add_u32 s{T7}, s{rot}, {c}")
            a(f"s_and_b32 s{T7}, s{T7}, 3")
            a(f"s_mul_i32 s{T7}, s{T7}, {128*row_bytes}")
            a(f"s_add_u32 s{S_RG[c]}, s{T0}, s{T7}")
        else:
            a(f"s_add_u32 s{S_RG[c]}, s{T0}, {c*128*row_bytes}")

def ring_issue(vm, rsrc, row_bytes, seg_off, n):
    for p in range(4):
        dma(vm, ("w", n), rsrc, V_DB, S_RG[n & 3], seg_off[n >> 2] + p*8*row_bytes, S_D5, L_RING + (n % 6)*16384 + p*1024)

def swap23(dst, mask, tmp):
    a(f"v_and_b32 v{dst}, {mask & ~12:#x}, v{V_LANE}")
    a(f"v_bfe_u32 v{tmp}, v{V_LANE}, 2, 1")
    a(f"v_lshl_add_u32 v{dst}, v{tmp}, 3, v{dst}")
    a(f"v_bfe_u32 v{tmp}, v{V_LANE}, 3, 1")
    a(f"v_lshl_add_u32 v{dst}, v{tmp}, 2, v{dst}")

def only(w, f, *x):
    l = a.uniq("L_w")
    a(f"s_cmp_lg_u32 s{S_W}, {w}")
    a(f"s_cbranch_scc1 {l}")
    f(*x)
    a.label(l)

def is_a(label):
    a(f"s_cmp_lt_u32 s{S_W}, 4")
    a(f"s_cbranch_scc1 {label}")

def act_setup(nsteps_half, base, pairs):
    a(f"s_and_b32 s{T0}, s{S_W}, 3")
    a(f"s_lshl_b32 s{T3}, s{T0}, 10")
    if pairs:
        a(f"s_lshl_b32 s{T0}, s{T0}, 1")
    a(f"s_mul_i32 s{T1}, s{S_TB2}, {4*nsteps_half}")
    a(f"s_add_u32 s{T0}, s{T0}, s{T1}")
    a(f"s_lshl_b32 s{T0}, s{T0}, 10")
    a(f"s_add_u32 s{T4}, s{T0}, {base}")
    a(f"s_and_b32 s{T0}, s{S_W}, 2")
    a(f"s_lshl_b32 s{T0}, s{T0}, 12")
    a(f"v_add_u32 v4, s{T0}, v{V_L16}")
    a(f"v_add_u32 v5, 65536, v4")
    a(f"v_add_u32 v6, 131072, v4")

def act_issue(vm, q, slot, nsteps_half, pairs):
    for kh in range(2):
        for tb32 in range(2):
            dma(vm, ("a", q), R_WS, V_L16, T4, (2*tb32*nsteps_half + (8*q + kh if pairs else 4*q + kh*nsteps_half))*1024, T3, slot*16384 + kh*8192 + tb32*4096, "sc1")

def tile_compute(vm, nsteps, slots, wreg, acc, af):
    lg = Cnt(a, "lgkmcnt", 15)
    n = 2*nsteps
    def rd(u):
        if u >= n: return
        t, tb32 = u >> 1, u & 1
        if u % 8 == 0:
            vm.wait(("a", t >> 2))
            a("s_barrier")
        off = slots[t >> 2]*16384 + tb32*4096 + (t & 3)*1024
        a(f"ds_read_b128 {vr(af+4*(u&3),4)}, v{4 + off//65536} offset:{off % 65536}")
        lg.issue(u)
    for u in range(4):
        rd(u)
    for u in range(n):
        t, tb32 = u >> 1, u & 1
        lg.wait(u)
        d = vr(acc + 16*tb32, 16)
        a(f"v_mfma_f32_32x32x16_bf16 {d}, {vr(wreg(t),4)}, {vr(af+4*(u&3),4)}, {'0' if t == 0 else d}")
        rd(u + 4)
    a("s_nop 7")
    for tb32 in range(2):
        if tb32 == 0:
            a("s_nop 2")
        for i in range(4):
            a(f"ds_write_b128 v{V_REDW+i}, {vr(acc+16*tb32+4*i,4)} offset:{tb32*8192}")
    a("s_waitcnt lgkmcnt(0)")

def tile_loader(vm, nsteps, after):
    for q in range((nsteps + 3)//4):
        vm.wait(("a", q))
        a("s_barrier")
        after(q)

def reduce_addr():
    a(f"s_and_b32 s{T0}, s{S_W}, 2")
    a(f"s_lshl_b32 s{T0}, s{T0}, 13")
    a(f"s_and_b32 s{T1}, s{S_W}, 1")
    a(f"s_lshl_b32 s{T1}, s{T1}, 2")
    a(f"v_and_b32 v10, 31, v{V_LANE}")
    a(f"v_lshlrev_b32 v10, 8, v10")
    a(f"v_lshrrev_b32 v11, 5, v{V_LANE}")
    a(f"v_xor_b32 v11, v11, v{V_LANE}")
    a(f"v_and_b32 v11, 1, v11")
    a(f"v_lshl_add_u32 v10, v11, 7, v10")
    a(f"v_add_u32 v10, s{T0}, v10")
    a(f"v_and_b32 v11, 7, v{V_LANE}")
    a(f"v_xor_b32 v11, s{T1}, v11")
    for i in range(4):
        a(f"v_xor_b32 v{V_REDW+i}, {i}, v11")
        a(f"v_lshl_add_u32 v{V_REDW+i}, v{V_REDW+i}, 4, v10")
    a(f"v_lshrrev_b32 v10, 3, v0")
    a(f"v_xor_b32 v11, v10, v0")
    a(f"v_and_b32 v11, 7, v11")
    a(f"v_lshlrev_b32 v11, 4, v11")
    a(f"v_lshl_add_u32 v11, v10, 8, v11")
    a(f"v_and_b32 v10, 1, v10")
    a(f"v_lshl_add_u32 v{V_REDR}, v10, 7, v11")
    a(f"v_xor_b32 v{V_REDR+1}, 128, v{V_REDR}")

def tile_gather(dst):
    a("s_barrier")
    a(f"ds_read_b128 {vr(dst,4)}, v{V_REDR}")
    a(f"ds_read_b128 {vr(dst+8,4)}, v{V_REDR} offset:16384")
    a(f"ds_read_b128 {vr(dst+4,4)}, v{V_REDR+1}")
    a(f"ds_read_b128 {vr(dst+12,4)}, v{V_REDR+1} offset:16384")

def unpack8(dst, src):
    L = []
    for i in range(4):
        L.append(f"v_lshlrev_b32 v{dst+2*i}, 16, v{src+i}")
        L.append(f"v_and_b32 v{dst+2*i+1}, 0xffff0000, v{src+i}")
    return L

hdr = open("cdna_kernels/" + NAME + ".s.ref").read().split("\n")
for line in hdr:
    if line.startswith("; Override"):
        break
    a.raw(line)
a.raw(f"; @launch grid=(256,1,1) block=(512,1,1) lds={LDS_BYTES}")
a.raw('.amdgcn_target "amdgcn-amd-amdhsa--gfx950"')
a.raw(".text")
a.raw(f".globl {NAME}_kernel")
a.raw(".p2align 8")
a.raw(f".type {NAME}_kernel,@function")
a.label(f"{NAME}_kernel")

vm = Cnt(a, "vmcnt", 63)
def new_vm(): return Cnt(a, "vmcnt", 63)
a(f"s_cmp_ge_u32 s{S_WG}, 256")
a("s_cbranch_scc1 L_end")
if STAMPS:
    a("v_mov_b32 v250, 0")
stamp("start")
a(f"s_load_dwordx16 {sr(KA,16)}, s[0:1], 0")
a(f"s_load_dwordx4 {sr(KA+16,4)}, s[0:1], 64")
a(f"s_load_dwordx2 {sr(KA+20,2)}, s[0:1], 80")
a(f"s_getpc_b64 {sr(S_PC,2)}")
a.label("L_pc")
a.c("pull this kernel's code into L2, two lines per wave")
a("v_lshrrev_b32 v4, 6, v0")
a(f"s_and_b32 s{T0}, s{S_WG}, 0xf8")
a(f"v_readfirstlane_b32 s{S_W}, v4")
a(f"v_and_b32 v{V_LANE}, 63, v0")
a(f"v_lshl_add_u32 v5, v{V_LANE}, 8, v4")
a(f"v_add_u32 v5, s{T0}, v5")
a(f"v_lshlrev_b32 v5, 7, v5")
a(f"v_min_u32 v5, L_code_end-L_pc-4, v5")
a("s_mov_b64 exec, 3")
a(f"global_load_dword v251, v5, {sr(S_PC,2)}")
vm.issue("pf")
a("s_mov_b64 exec, -1")
a.c("roles: attention (hg, tb), MLP (tb2, j)")
a(f"s_and_b32 s{T0}, s{S_WG}, 7")
a(f"s_lshr_b32 s{T1}, s{S_WG}, 3")
a(f"s_lshr_b32 s{T2}, s{T0}, {3 - LH}")
a(f"s_lshl_b32 s{T2}, s{T2}, {5 - LH}")
a(f"s_lshr_b32 s{S_SHR}, s{T1}, {LH}")
a(f"s_add_u32 s{S_TB}, s{T2}, s{S_SHR}")
a(f"v_lshrrev_b32 v4, 3, v0")
a(f"v_and_b32 v5, 7, v0")
a(f"v_lshlrev_b32 v{V_ROWOFF}, 10, v4")
a(f"v_lshl_add_u32 v{V_ROWOFF}, v5, 4, v{V_ROWOFF}")
a(f"s_lshl_b32 s{T6}, s{S_TB}, 16")
for c in range(4):
    a(f"s_add_u32 s{T7}, s{S_SHR}, {c}")
    a(f"s_and_b32 s{T7}, s{T7}, 3")
    a(f"s_lshl_b32 s{T7}, s{T7}, 8")
    a(f"s_add_u32 s{S_RG[c]}, s{T6}, s{T7}")
a(f"s_mov_b32 s{R_X+2}, {2048*512*2}")
a(f"s_mov_b32 s{R_X+3}, 0x00020000")
a("s_waitcnt lgkmcnt(0)")
a(f"s_mov_b64 {sr(R_X,2)}, {sr(KA,2)}")
ln_loads(vm, R_X, S_RG)
a(f"s_load_dword s{S_N}, {sr(KA+20,2)}, {WS_NONCE}")
srd(R_WQKV, KA+2, 512*1536*2)
a(f"s_and_b32 s{T2}, s{T0}, {(8 >> LH) - 1}")
a(f"s_and_b32 s{T3}, s{T1}, {(1 << LH) - 1}")
a(f"s_lshl_b32 s{T3}, s{T3}, {3 - LH}")
a(f"s_add_u32 s{S_HG}, s{T2}, s{T3}")
a(f"s_lshl_b32 s{T2}, s{T0}, 2")
a(f"s_and_b32 s{T3}, s{T1}, 3")
a(f"s_add_u32 s{S_TB2}, s{T2}, s{T3}")
a(f"s_lshr_b32 s{S_J}, s{T1}, 2")
a(f"v_and_b32 v6, 31, v4")
a(f"v_xor_b32 v6, v6, v5")
a(f"v_lshlrev_b32 v6, 4, v6")
a(f"v_lshl_add_u32 v6, v5, 9, v6")
a(f"v_lshrrev_b32 v4, 5, v4")
a(f"v_lshl_add_u32 v{V_XNW}, v4, 15, v6")
ln_consts()
QKV_SEG = [1024, 2048, 0]
W1_SEG = [0, 128, 256]

QA, QB, SA, SB, OA, OB = 16, 20, 24, 40, 56, 72
A_KV = 88
A_IDX, A_AV, A_AK = 8, 14, 15
A_W1, A_WO = 3, 12
A_ONE, A_QA = 214, 215
P_W = 160
def Kf(t, ns=4): return A_KV + 12*(t % ns)
def Vf(t, s, ns=4): return A_KV + 12*(t % ns) + 4 + 4*s
def F_W(t): return 140 + 4*t if t < 24 else 64 + 4*(t - 24)

def qkv_ring_setup():
    a(f"s_lshl_b32 s{T4}, s{S_HG}, 7")
    dma_addr(V_DB, 3072, T4)
    ring_setup(3072, S_SHR)

def common_setup():
    srd(R_WS, KA+20, WS_SIZE)
    srd(R_WO, KA+4, 512*512*2)
    srd(R_W1, KA+8, 512*1376*2)
    srd(R_B1, KA+10, 1376*2)
    srd(R_W2, KA+12, 1376*512*2)
    srd(R_B2, KA+14, 512*2)
    srd(R_OUT, KA+16, 2048*512*2)
    a(f"s_min_u32 s{T2}, s{S_J}, 3")
    a(f"s_mul_i32 s{S_F0}, s{S_J}, 5")
    a(f"s_add_u32 s{S_F0}, s{S_F0}, s{T2}")
    a(f"s_cmp_lt_u32 s{S_J}, 3")
    a(f"s_cselect_b32 s{S_NT}, 6, 5")
    a(f"s_lshl_b32 s{T4}, s{S_J}, 7")
    a(f"s_lshl_b32 s{T5}, s{S_TB2}, 16")
    a(f"s_add_u32 s{S_TILE}, s{T5}, s{T4}")
    a(f"v_lshlrev_b32 v{V_L16}, 4, v{V_LANE}")
    a(f"v_lshlrev_b32 v249, 2, v{V_LANE}")
    reduce_addr()
    a(f"s_and_b32 s{T0}, s{S_W}, 3")
    a(f"s_lshl_b32 s{T2}, s{S_HG}, 2")
    a(f"s_add_u32 s{T2}, s{T2}, s{T0}")
    a(f"s_lshl_b32 s{T2}, s{T2}, 17")
    a(f"s_add_u32 s{T2}, s{T2}, {WS_KV}")
    a(f"v_and_b32 v10, 15, v{V_LANE}")
    a(f"v_lshrrev_b32 v11, 5, v{V_LANE}")
    a(f"v_lshl_add_u32 v10, v11, 4, v10")
    a(f"v_lshl_add_u32 v{A_AV}, v10, 4, s{T2}")
    a(f"v_add_u32 v{A_AK}, s{T2}, v{V_L16}")
    a.c("waves 0-3 start on this workgroup's own two key tiles; the sweep over the others skips them")
    a(f"s_lshr_b32 s{T1}, s{S_W}, 2")
    a(f"s_mul_i32 s{S_XOFF}, s{T1}, {(NA - 2)*2048}")
    a(f"s_lshl_b32 s{S_OWN}, s{S_TB}, 12")
    a(f"s_add_u32 s{S_OWN2}, s{S_OWN}, 4096")
    a(f"s_cmp_ge_u32 s{S_XOFF}, s{S_OWN}")
    a(f"s_cselect_b32 s{T3}, 4096, 0")
    a(f"s_add_u32 s{S_XOFF}, s{S_XOFF}, s{T3}")
    a(f"s_mov_b32 s{S_MASKV}, 0xffff")
    a(f"s_mov_b32 s{S_MASKV+1}, 0xffff")
    a.c("rows 16 and 20 of the V operand are ones (row sums for both lane halves), the other spare rows zero")
    a(f"v_and_b32 v10, 0x1b, v{V_LANE}")
    a(f"v_cmp_eq_u32 vcc, 16, v10")
    a(f"v_mov_b32 v10, 0x3f803f80")
    a(f"v_mov_b32 v11, 0")
    a(f"v_cndmask_b32 v{A_ONE}, v11, v10, vcc")
    a(f"s_lshl_b32 s{T2}, s{S_W}, 10")
    a(f"v_add_u32 v{A_QA}, s{T2}, v{V_L16}")
    a(f"s_lshl_b32 s{T2}, s{S_TB}, 1")
    a(f"s_add_u32 s{T2}, s{T2}, s{T1}")
    a(f"s_lshl_b32 s{T2}, s{T2}, 3")
    a(f"s_add_u32 s{T2}, s{T2}, s{S_HG}")
    a(f"s_lshl_b32 s{T2}, s{T2}, 2")
    a(f"s_add_u32 s{T2}, s{T2}, s{T0}")
    a(f"s_lshl_b32 s{T2}, s{T2}, 10")
    a(f"s_add_u32 s{S_HEAD}, s{T2}, {WS_OF}")

A_KF = 216
def kvflag_setup():
    if KVL:
        a(f"s_and_b32 s{S_SPIN}, s{S_TB}, 7")
        a(f"s_lshl_b32 s{S_FOWN}, s{S_TB}, 2")
        a(f"s_and_b32 s{S_FOWN}, s{S_FOWN}, 0x60")
        a(f"s_add_u32 s{S_SPIN}, s{S_SPIN}, s{S_FOWN}")
        flag_addr(WS_FKV, S_HG, S_SPIN, S_HG, 9)
        a(f"v_and_b32 v10, 7, v{V_LANE}")
        a(f"v_lshrrev_b32 v11, 3, v{V_LANE}")
        a(f"v_lshlrev_b32 v11, 7, v11")
        a(f"v_lshl_add_u32 v{A_KF}, v10, 2, v11")
    else:
        flag_addr(WS_FKV, S_HG, S_TB, S_HG, 9)
        a(f"v_mov_b32 v{A_KF}, v249")

def tag_setup():
    a.c("hand-off tag of this launch: next value of a full-period sequence after the one found in the workspace")
    a(f"s_mul_i32 s{S_N}, s{S_N}, 0x0019660d")
    a(f"s_add_u32 s{S_N}, s{S_N}, 0x3c6ef35f")
    a(f"v_mov_b32 v248, s{S_N}")

def misc_loads(v, with_b1):
    a.c("small operands needed much later: residual x tile, biases")
    a(f"buffer_load_dwordx4 {vr(V_HRES,4)}, v{V_ROWOFF}, {sr(R_X,4)}, s{S_TILE} offen")
    a(f"v_and_b32 v10, 0x70, v{V_L16}")
    a(f"s_lshl_b32 s{T7}, s{S_J}, 7")
    a(f"buffer_load_dwordx4 {vr(V_B2,4)}, v10, {sr(R_B2,4)}, s{T7} offen")
    v.issue("misc", 2)
    if with_b1:
        swap23(10, 31, 11)
        a(f"v_lshlrev_b32 v10, 1, v10")
        a(f"s_lshr_b32 s{T7}, s{S_W}, 1")
        a(f"s_add_u32 s{T7}, s{T7}, s{S_F0}")
        a(f"s_lshl_b32 s{T7}, s{T7}, 6")
        for seg in range(3):
            a(f"buffer_load_ushort v{V_B1+seg}, v10, {sr(R_B1,4)}, s{T7} offen offset:{seg*128}")
        v.issue("misc", 3)

def attn_zero(ns):
    L = [(SB+8+i, f"v_mov_b32 v{SB+8+i}, 0") for i in range(8)]
    L += [(o+i, f"v_mov_b32 v{o+i}, 0") for o in (OA, OB) for i in range(16)]
    L += [(Vf(t,0,ns)+i, f"v_mov_b32 v{Vf(t,0,ns)+i}, v{A_ONE}") for t in range(ns) for i in range(8)]
    return L

def q_reads():
    a(f"v_xor_b32 v10, 4096, v{A_QA}")
    a(f"ds_read_b128 {vr(QA,4)}, v{A_QA} offset:{L_Q}")
    a(f"ds_read_b128 {vr(QB,4)}, v10 offset:{L_Q}")

def kv_load(v, t, ns):
    imm = 2048*(t & 1)
    so = S_OWN if t < 0 else S_XOFF
    a(f"buffer_load_dwordx4 {vr(Kf(t,ns),4)}, v{A_AK}, {sr(R_WS,4)}, s{so} offen offset:{imm} sc1")
    a(f"s_mov_b64 exec, {sr(S_MASKV,2)}")
    a(f"buffer_load_dwordx4 {vr(Vf(t,0,ns),4)}, v{A_AV}, {sr(R_WS,4)}, s{so} offen offset:{imm+1024} sc1")
    a(f"buffer_load_dwordx4 {vr(Vf(t,1,ns),4)}, v{A_AV}, {sr(R_WS,4)}, s{so} offen offset:{imm+1536} sc1")
    a("s_mov_b64 exec, -1")
    if t & 1 and t >= 0:
        a(f"s_add_u32 s{S_XOFF}, s{S_XOFF}, 4096")
        a(f"s_cmp_eq_u32 s{S_XOFF}, s{S_OWN}")
        a(f"s_cselect_b32 s{S_XOFF}, s{S_OWN2}, s{S_XOFF}")
    v.issue(("kv", t), 3)
def smf(o, v, s):
    a(f"v_smfmac_f32_32x32x32_bf16 {vr(o,16)}, {vr(v,4)}, {vr(s,8)}, v{A_IDX}")
def attn_tile(v, t, ns, last=None, side=(), tail=None, load=True):
    side = list(side)
    order = {1: [(0, 13)], 2: [(0, 13), (1, 13)], 4: [(0, 4), (0, 13), (1, 4), (1, 13)]}[NBLK]
    at = {}
    for k, f in enumerate(side):
        at.setdefault(order[k*NBLK//len(side)], []).append(f)
    for ph in range(2):
        S, So, O, Oo, Qo = (SA, SB, OA, OB, QB) if ph == 0 else (SB, SA, OB, OA, QA)
        for i in range(16):
            for f in at.get((ph, i), []):
                f()
            if i == 2:
                smf(Oo, Vf(t - 1 + ph, 1, ns), So + 8)
            if i == 5 and not (ph == 1 and t == last):
                if ph == 1:
                    v.wait(("kv", t + 1))
                a(f"v_mfma_f32_32x32x16_bf16 {vr(So,16)}, {vr(Kf(t+ph,ns),4)}, {vr(Qo,4)}, 0")
            if i == 10:
                smf(O, Vf(t, 0, ns), S)
            if ph == 0 and i == 12 and load and (last is None or t + ns - 1 <= last):
                kv_load(v, t + ns - 1, ns)
            if ph == 1 and i == 12 and tail:
                tail()
            a(f"v_exp_f32 v{S+i}, v{S+i}")
def attn_first(v, t, ns, fill=None):
    v.wait(("kv", t), extra="lgkmcnt(0)")
    a(f"v_mfma_f32_32x32x16_bf16 {vr(SA,16)}, {vr(Kf(t,ns),4)}, {vr(QA,4)}, 0")
    if fill:
        fill()
    a("s_nop 7")
    a("s_nop 3")

a.c("======== phase 1: LN1 + QKV projection")
stamp("setup") if PROBE else None
va, vb = vm.copy(), vm.copy()
is_a("L_p1_a")
a.c("waves 4-7 pull 4 rows each of the XCD's Wqkv columns into L2, in pass order")
a(f"s_lshl_b32 s{T5}, s{T1}, 2")
a(f"s_add_u32 s{T5}, s{T5}, s{S_W}")
a(f"s_sub_u32 s{T5}, s{T5}, 4")
a(f"s_mul_i32 s{T5}, s{T5}, {4*3072}")
a(f"s_and_b32 s{T7}, s{S_HG}, {(8 >> LH) - 1}")
a(f"s_lshl_b32 s{T7}, s{T7}, 7")
a(f"s_add_u32 s{T5}, s{T5}, s{T7}")
a(f"v_lshrrev_b32 v10, {LH}, v{V_LANE}")
a(f"v_mul_u32_u24 v10, 3072, v10")
a(f"v_and_b32 v11, {(1 << LH) - 1}, v{V_LANE}")
a(f"v_lshl_add_u32 v10, v11, {10 - LH}, v10")
a(f"s_mov_b64 exec, {(1 << (4 << LH)) - 1:#x}")
for o in QKV_SEG:
    a(f"buffer_load_dword v251, v10, {sr(R_WQKV,4)}, s{T5} offen offset:{o}")
    vb.issue("pf")
a("s_mov_b64 exec, -1")
qkv_ring_setup()
ln_stats(vb, 2.0)
a("s_branch L_p1_norm")

a.label("L_p1_a")
common_setup()
a.c("first touch (scalar path) of the flag lines and the biases")
a(f"s_lshl_b32 s{T2}, s{S_TB2}, 2")
a(f"s_add_u32 s{T2}, s{T2}, s{S_W}")
a(f"s_lshl_b32 s{T2}, s{T2}, 7")
a(f"s_add_u32 s{T2}, s{T2}, {WS_FG}")
a(f"s_load_dword s{S_SPIN}, {sr(KA+20,2)}, s{T2}")
a(f"s_lshl_b32 s{T2}, s{S_HG}, 2")
a(f"s_add_u32 s{T2}, s{T2}, s{S_W}")
a(f"s_lshl_b32 s{T2}, s{T2}, {7 if KVL else 6}")
if not KVL:
    a(f"s_lshl_b32 s{T3}, s{S_HG}, 8")
    a(f"s_add_u32 s{T2}, s{T2}, s{T3}")
a(f"s_add_u32 s{T2}, s{T2}, {WS_FKV}")
a(f"s_load_dword s{S_SPIN}, {sr(KA+20,2)}, s{T2}")
a(f"s_lshl_b32 s{T2}, s{S_TB2}, 8")
a(f"s_add_u32 s{T2}, s{T2}, {WS_FO}")
a(f"s_load_dword s{S_SPIN}, {sr(KA+20,2)}, s{T2}")
a(f"s_lshl_b32 s{T2}, s{S_WG}, 2")
a(f"s_add_u32 s{T2}, s{T2}, {WS_FC}")
a(f"s_load_dword s{S_SPIN}, {sr(KA+20,2)}, s{T2}")
a(f"s_lshl_b32 s{T2}, s{S_W}, 1")
a(f"s_add_u32 s{T2}, s{T2}, s{S_F0}")
a(f"s_min_u32 s{T2}, s{T2}, 41")
a(f"s_lshl_b32 s{T2}, s{T2}, 6")
a(f"s_add_u32 s{T3}, s{T2}, 64")
a(f"s_load_dword s{S_SPIN}, {sr(KA+10,2)}, s{T2}")
a(f"s_load_dword s{S_SPIN}, {sr(KA+10,2)}, s{T3}")
a(f"s_and_b32 s{T2}, s{S_W}, 1")
a(f"s_lshl_b32 s{T2}, s{T2}, 6")
a(f"s_add_u32 s{T2}, s{T2}, s{T4}")
a(f"s_load_dword s{S_SPIN}, {sr(KA+14,2)}, s{T2}")
w_addr()
x_addr(False)
qkv_ring_setup()
a(f"s_and_b32 s{T0}, s{S_W}, 1")
a(f"s_lshr_b32 s{T1}, s{S_W}, 1")
tr_lane_addr(A_WO, T0, False)
a(f"s_lshl_b32 s{T7}, s{T1}, 15")
a(f"v_add_u32 v{A_WO}, s{T7}, v{A_WO}")
E_K, E_V, E_Q, E_C = 208, 209, 210, 212
swap23(10, 63, 11)
a(f"v_lshlrev_b32 v{E_K}, 4, v10")
a(f"v_and_b32 v10, 15, v{V_LANE}")
a("v_lshlrev_b32 v10, 4, v10")
a(f"v_lshrrev_b32 v11, 5, v{V_LANE}")
a("v_lshl_add_u32 v10, v11, 8, v10")
a(f"v_bfe_u32 v11, v{V_LANE}, 4, 1")
a(f"v_lshl_add_u32 v{E_V}, v11, 17, v10")
a(f"s_lshl_b32 s{T2}, s{T0}, 12")
a(f"s_lshl_b32 s{T3}, s{T1}, 11")
a(f"s_add_u32 s{T2}, s{T2}, s{T3}")
a(f"v_add_u32 v{E_Q}, s{T2}, v{V_L16}")
a(f"v_mov_b32 v{E_C}, {f32(0.25*math.log2(math.e))}")
a(f"v_mov_b32 v{E_C+1}, v{E_C}")
a(f"s_lshl_b32 s{T2}, s{S_HG}, 1")
a(f"s_add_u32 s{T2}, s{T2}, s{T1}")
a(f"s_lshl_b32 s{T2}, s{T2}, 18")
a(f"s_lshl_b32 s{T3}, s{S_TB}, 1")
a(f"s_add_u32 s{T3}, s{T3}, s{T0}")
a(f"s_lshl_b32 s{T3}, s{T3}, 11")
a(f"s_add_u32 s{T2}, s{T2}, s{T3}")
a(f"s_add_u32 s{T2}, s{T2}, {WS_KV}")
a(f"s_add_u32 s{T3}, s{T2}, 0x20000")
ln_stats(va, 1.0)
a.label("L_p1_norm")
ln_norm(1.0)
stamp("ln1 done")
is_a("L_p1_compute")

W2_HOME = [(0, 65536, 49152), (24, 131072, 16384), (32, 20480, 22528)]
S_H = [T4, T5, T6]
def w2_home(t):
    k = 0 if t < 24 else 1 if t < 32 else 2
    return k, (t - W2_HOME[k][0])*2048
def staging_setup():
    a(f"s_lshl_b32 s{T4}, s{S_J}, 7")
    dma_addr(V_DA, 1024, T4)
    a(f"s_lshl_b32 s{T4}, s{S_F0}, 6")
    dma_addr(V_DB, 2752, T4)
    a(f"v_lshrrev_b32 v10, 2, v{V_LANE}")
    a(f"v_mul_u32_u24 v10, 2752, v10")
    a(f"v_and_b32 v11, 3, v{V_LANE}")
    a(f"v_lshlrev_b32 v11, 7, v11")
    a(f"v_min_u32 v11, 252, v11")
    a(f"v_add3_u32 v{A_W1}, v10, v11, s{T4}")
    a(f"s_and_b32 s{T0}, s{S_W}, 3")
    a(f"s_lshl_b32 s{S_D0}, s{T0}, 13")
    a(f"s_lshl_b32 s{S_D1}, s{T0}, 10")
    a(f"s_mul_i32 s{S_D2}, s{T0}, {8*2752}")
    a(f"s_and_b32 s{T4}, s{S_TB2}, 3")
    a(f"s_lshl_b32 s{T4}, s{T4}, 2")
    a(f"s_add_u32 s{T4}, s{T4}, s{T0}")
    a(f"s_mul_i32 s{S_D4}, s{T4}, {32*2752}")
    a(f"s_and_b32 s{T2}, s{S_W}, 1")
    a(f"s_bfe_u32 s{T3}, s{S_W}, 0x10001")
    tr_lane_addr(7, T2, False)
    for k, (t0, base, stride) in enumerate(W2_HOME):
        a(f"s_mul_i32 s{S_H[k]}, s{T3}, {stride}")
        a(f"s_add_u32 s{S_H[k]}, s{S_H[k]}, {base}")
        a(f"v_add_u32 v{4+k}, s{S_H[k]}, v7")
        a(f"s_lshl_b32 s{T7}, s{T2}, 10")
        a(f"s_add_u32 s{S_H[k]}, s{S_H[k]}, s{T7}")
    a(f"v_mov_b32 v{A_IDX}, 0xdddddddd")
cs = capture(common_setup)
late = {3: cs[:40], 4: cs[40:80], 5: cs[80:], 6: [x for _, x in attn_zero(4)][:36], 7: [x for _, x in attn_zero(4)][36:],
        8: capture(staging_setup)[:38], 9: capture(staging_setup)[38:], 10: capture(tag_setup) + capture(kvflag_setup)}
later = []
if LATE:
    for k in ((8, 9) if LATE == 1 else (6, 7, 8, 9)):
        later += late.pop(k)
for k in (40, 80):
    assert not cs[k].startswith("s_cselect") and "vcc" not in cs[k]
for n in range(12):
    vb.wait(("w", n), extra="lgkmcnt(0)" if n == 0 else "")
    a("s_barrier")
    for k in {0: range(NPA, min(6, NPA + 3)), 1: range(NPA + 3, 6)}.get(n, [n + 4] if n <= 7 else []):
        ring_issue(vb, R_WQKV, 3072, QKV_SEG, k)
    for x in late.get(n, []):
        a(x)
misc_loads(vb, False)
a("s_barrier")
flag_store(4)
stamp("kv drained B")
a("s_barrier")
q_reads()
for x in later:
    a(x)
if not KVP:
    if SLP:
        a(f"s_sleep {SLP}")
    flag_poll(4, 32, 0, A_KF)
    stamp("kv seen B")
a("s_waitcnt lgkmcnt(0)")
a("s_barrier")
a.c("======== phase 2, waves 4-7: fewer key tiles, and the weights of the later phases go on chip")
NB = 64 - NA
for t in range(3):
    kv_load(vb, t, 4)
attn_first(vb, 0, 4)
a.c("first touch of the later weights, different lines by every wave")
a(f"s_lshl_b32 s{T2}, s{S_WG}, 2")
a(f"s_add_u32 s{T2}, s{T2}, s{T0}")
a(f"s_lshl_b32 s{T3}, s{T2}, 9")
a(f"s_mul_i32 s{T2}, s{T2}, {11*128}")
a(f"v_lshlrev_b32 v10, 7, v{V_LANE}")
for r, so, m in ((R_WO, T3, 15), (R_W2, T2, 0x7ff), (R_W1, T2, 0x7ff)):
    a(f"s_mov_b64 exec, {m:#x}")
    a(f"buffer_load_dword v251, v10, {sr(r,4)}, s{so} offen")
    vb.issue("pf")
a("s_mov_b64 exec, -1")
F0 = [5*j + min(j, 3) for j in range(8)]
TL = [F0[j] + 2*p + i for p in range(2) for j in range(8) for i in range(2)] + [F0[j] + i for j in range(8) for i in range(4, 6 if j < 3 else 5)]
assert sorted(TL) == list(range(43))
def mk(*x): return lambda: dma(vb, *x)
L_wo = [mk("r1", R_WO, V_DA, S_D0, k*32768, S_D1, k*4096) for k in range(16)]
L_w2 = [mk("r1" if t < 24 else "r2", R_W2, V_DA, S_D0, TL[t]*32768, S_H[w2_home(t)[0]], w2_home(t)[1]) for t in range(43)]
L_w1 = [mk("r2", R_W1, V_DB, S_D2, k*32*2752, S_D1, L_RING + k*4096) for k in range(16)]
def d_warm(k):
    def f():
        a(f"s_add_u32 s{T7}, s{S_D4}, {k*16*2752 + 128}")
        a(f"buffer_load_dword v251, v{A_W1}, {sr(R_W1,4)}, s{T7} offen")
        vb.issue("pf")
    return f
def d_rd(t):
    k, off = w2_home(t)
    return lambda: tr_read(F_W(t), 4 + k, off)
def d_c3():
    a.c("lines at 384 mod 1024 stream slowly past L2 into a single CU: every workgroup pulls a few of them")
    a(f"s_lshr_b32 s{T2}, s{S_WG}, 3")
    a(f"s_lshl_b32 s{T2}, s{T2}, 2")
    a(f"s_add_u32 s{T2}, s{T2}, s{T0}")
    a(f"s_lshl_b32 s{T3}, s{T2}, 12")
    a(f"s_mul_i32 s{T2}, s{T2}, {11*1024}")
    a(f"v_lshlrev_b32 v10, 10, v{V_LANE}")
    for r, so, m in ((R_WO, T3, 15), (R_W2, T2, 0x7ff)):
        a(f"s_mov_b64 exec, {m:#x}")
        a(f"buffer_load_dword v251, v10, {sr(r,4)}, s{so} offen offset:384")
        vb.issue("pf")
    a("s_mov_b64 exec, -1")
def share(L, tiles):
    return {t: L[k*len(L)//len(tiles):(k+1)*len(L)//len(tiles)] for k, t in enumerate(tiles)}
plan = {0: [lambda: None]*3 + [d_c3]}
plan.update(share(L_wo + L_w2[:24], list(range(T0B, TB1 - 1))))
plan.update(share([d_rd(t) for t in range(24)], list(range(TB1, TB1 + TB2))))
plan.update(share(L_w2[24:] + L_w1[:8] + [d_warm(0)] + L_w1[8:] + [d_warm(1)], list(range(TB1 + TB2, NB - TEND))))
for t in range(NB):
    if t == TB1:
        vb.wait("r1")
        a("s_barrier")
    if t == TB1 + TB2:
        a("s_waitcnt lgkmcnt(0)")
        a("s_barrier")
    attn_tile(vb, t, 4, NB - 1, plan.get(t, []))
vb.wait("r2")
a("s_nop 1")
smf(OB, Vf(NB - 1, 1, 4), SB+8)
a("s_branch L_attn_end")

a.label("L_p1_compute")
for n in range(NPA):
    ring_issue(va, R_WQKV, 3072, QKV_SEG, n)
def cvt_inplace(b):
    return [f"v_cvt_pk_bf16_f32 v{b+i}, v{b+2*i}, v{b+2*i+1}" for i in range(8)]
aK, aV, aQ = 144, 160, 176
inj = {2: capture(tag_setup)}
spread(inj, [(x, 1) for x in capture(kvflag_setup)], 4, 20)
items = [(x, 1) for x in cvt_inplace(aK)]
items += [((f"buffer_store_dwordx4 {vr(aK,4)}, v{E_K}, {sr(R_WS,4)}, s{T2} offen sc1", "st"), 2),
          ((f"buffer_store_dwordx4 {vr(aK+4,4)}, v{E_K}, {sr(R_WS,4)}, s{T3} offen sc1", "st"), 2)]
spread(inj, items, 36, 42)
items = [(x, 1) for x in cvt_inplace(aV)]
items += [((f"buffer_store_dwordx4 {vr(aV,4)}, v{E_V}, {sr(R_WS,4)}, s{T2} offen offset:1024 sc1", "st"), 2),
          ((f"buffer_store_dwordx4 {vr(aV+4,4)}, v{E_V}, {sr(R_WS,4)}, s{T2} offen offset:1536 sc1", "st"), 2)]
spread(inj, items, 67, 71)
a_zero = attn_zero(6)
spread(inj, [(x, 1) for r, x in a_zero if r >= 144], 48, 60)
for r, x in a_zero:
    if r < 144:
        inj.setdefault(64 + (r - G_X)//4, []).append(x)
def pub_kv():
    va.wait("st")
    a("s_barrier")
    stamp("kv drained")
gemm_compute(va, [aK, aV, aQ], [192, 196, 200, 204, 224, 228], {1}, {0, 1, 2}, inj, {UKV: pub_kv}, range(12), 'p1', 4096)
kv_load(va, -2, 6)
kv_load(va, -1, 6)
a(f"v_mov_b32 v{A_IDX}, 0xdddddddd")
for i in range(8):
    a(f"v_pk_mul_f32 {vr(aQ+2*i,2)}, {vr(aQ+2*i,2)}, {vr(E_C,2)}")
for x in cvt_inplace(aQ):
    a(x)
a(f"ds_write_b128 v{E_Q}, {vr(aQ,4)} offset:{L_Q}")
a(f"ds_write_b128 v{E_Q}, {vr(aQ+4,4)} offset:{L_Q+1024}")
a("s_waitcnt lgkmcnt(0)")
a("s_barrier")
stamp("p1 done")
q_reads()
misc_loads(va, True)
a.c("======== phase 2, waves 0-3: attention; wave = head, 64 queries")
a("s_setprio 1")
a(f"s_mov_b32 s{S_LOOP}, {IT1}")
a(f"s_mov_b32 s{S_STAGE}, 0")
def kv_try():
    a("s_mov_b32 exec_hi, 0")
    a(f"buffer_load_dword v247, v{A_KF}, {sr(R_WS,4)}, s{S_FPOLL} offen sc1")
    a("s_mov_b32 exec_hi, -1")
def kv_check():
    a("s_waitcnt vmcnt(0)")
    flag_poll(None, 32, 0, A_KF)
attn_first(va, -2, 6, (lambda: only(0, kv_try)) if KVP else None)
attn_tile(va, -2, 6, load=False)
stamp("own done")
if KVP:
    only(0, kv_check)
a("s_barrier")
stamp("kv ready")
for t in range(4):
    kv_load(va, t, 6)
flag_addr(WS_FO, S_TB, S_HG, S_TB2)
attn_tile(va, -1, 6)
a("s_branch L_attn")
a.label("L_attn_s1")
a("s_barrier")
for t in range(16):
    tr_read(P_W + 4*t, A_WO, t*2048)
a(f"s_mov_b32 s{S_LOOP}, {IT2}")
a("s_branch L_attn")
a.label("L_attn_s2")
a("s_waitcnt lgkmcnt(0)")
a("s_barrier")
a(f"s_mov_b32 s{S_LOOP}, {(NA - 2)//6 - IT1 - IT2}")
a.raw(".p2align 4")
a.label("L_attn")
def loop_tail():
    a(f"s_sub_u32 s{S_LOOP}, s{S_LOOP}, 1")
    a(f"s_cmp_lg_u32 s{S_LOOP}, 0")
for t in range(6):
    attn_tile(va, t, 6, None, [], loop_tail if t == 5 else None)
a("s_cbranch_scc1 L_attn")
a(f"s_add_u32 s{S_STAGE}, s{S_STAGE}, 1")
a(f"s_cmp_eq_u32 s{S_STAGE}, 1")
a("s_cbranch_scc1 L_attn_s1")
a(f"s_cmp_eq_u32 s{S_STAGE}, 2")
a("s_cbranch_scc1 L_attn_s2")
NT_ = (NA - 2) % 6
for t in range(6, 6 + NT_):
    attn_tile(va, t, 6, 5 + NT_)
if NT_:
    a("s_nop 1")
smf(OB, Vf(5 + NT_, 1, 6), SB+8)
a("s_setprio 0")

a.label("L_attn_end")
stamp("attn loop done")
a.c("combine the two key ranges: keep A, send B")
a(f"s_lshl_b32 s{T2}, s{S_W}, 11")
a(f"v_add_u32 v10, s{T2}, v{V_L16}")
a(f"s_lshl_b32 s{T2}, s{S_W}, 8")
a(f"v_add_u32 v11, s{T2}, v249")
a(f"v_xor_b32 v{SB+3}, 8192, v10")
a(f"v_xor_b32 v{SB+2}, 1024, v11")
a(f"v_mov_b32 v{SB}, {f32(2.0**-64)}")
a(f"v_mov_b32 v{SB+1}, {f32(2.0**64)}")
a("s_nop 2")
a(f"ds_write_b32 v11, v{OB+8} offset:{L_OX+16384}")
a(f"ds_write_b128 v10, {vr(OB,4)} offset:{L_OX}")
a(f"ds_write_b128 v10, {vr(OB+4,4)} offset:{L_OX+1024}")
a("s_waitcnt lgkmcnt(0)")
a("s_barrier")
a(f"ds_read_b32 v{SA+8}, v{SB+2} offset:{L_OX+16384}")
a(f"ds_read_b128 {vr(SA,4)}, v{SB+3} offset:{L_OX}")
a(f"ds_read_b128 {vr(SA+4,4)}, v{SB+3} offset:{L_OX+1024}")
a("s_waitcnt lgkmcnt(2)")
a(f"v_add_f32 v{OA+8}, v{OA+8}, v{SA+8}")
a.c("the loop subtracted no row maximum: a row sum outside [2^-64, 2^64] (or NaN) sends the wave to the true-max path")
a(f"v_cmp_ge_f32 vcc, v{OA+8}, v{SB}")
a(f"v_cmp_le_f32 {sr(S_SAVE,2)}, v{OA+8}, v{SB+1}")
a("s_waitcnt lgkmcnt(0)")
for i in range(4):
    a(f"v_pk_add_f32 {vr(OA+2*i,2)}, {vr(OA+2*i,2)}, {vr(SA+2*i,2)}")
a(f"s_and_b64 vcc, vcc, {sr(S_SAVE,2)}")
a(f"s_cmp_eq_u64 vcc, -1")
if FORCE_FB:
    a("s_branch L_attn_fb")
else:
    a("s_cbranch_scc0 L_attn_fb")
a.label("L_attn_fin")
a(f"v_rcp_f32 v10, v{OA+8}")
a("s_nop 0")
a("v_mov_b32 v11, v10")
for i in range(4):
    a(f"v_pk_mul_f32 {vr(OA+2*i,2)}, {vr(OA+2*i,2)}, v[10:11]")
for i in range(4):
    a(f"v_cvt_pk_bf16_f32 v{SA+i}, v{OA+2*i}, v{OA+2*i+1}")
a(f"buffer_store_dwordx4 {vr(SA,4)}, v{V_L16}, {sr(R_WS,4)}, s{S_HEAD} offen sc1")

a.c("======== phase 3: h = x + O Wo ; tile 64 tokens x 64 columns, computed by waves 0-3")
T_ACC, T_AF = 16, 48
def W0(t): return 64 + 4*t
is_a("L_p3_a")
vb = new_vm()
for t in range(24, 43):
    d_rd(t)()
ring_setup(2752, None)
a("s_waitcnt vmcnt(0) lgkmcnt(0)")
a("s_barrier")
for n in (4, 5):
    ring_issue(vb, R_W1, 2752, W1_SEG, n)
act_setup(16, WS_OF, False)
flag_addr(WS_FG, S_TB2, S_J, S_TB2, 9)
a("s_barrier")
for q in range(NO):
    act_issue(vb, q, q, 16, False)
tile_loader(vb, 16, lambda q: act_issue(vb, q + NO, q + NO, 16, False) if q + NO < 4 else None)
a("s_branch L_p3_done")
a.label("L_p3_a")
CJ, CA = 28, 16
a.c("wave 1 of workgroups 0-175 sums 64 rows of a 64-column strip of W1 (LayerNorm's mean term)")
a(f"s_cmp_lt_u32 s{S_WG}, 176")
a(f"s_cselect_b32 s{S_STAGE}, s{S_W}, 0")
a(f"s_cmp_lg_u32 s{S_STAGE}, 1")
a("s_cbranch_scc1 L_cs_noload")
a(f"v_lshrrev_b32 v10, 3, v{V_LANE}")
a(f"v_mul_u32_u24 v10, 2752, v10")
a(f"v_and_b32 v11, 7, v{V_LANE}")
a(f"v_lshl_add_u32 v10, v11, 4, v10")
a(f"s_and_b32 s{T0}, s{S_WG}, 7")
a(f"s_mul_i32 s{T0}, s{T0}, {64*2752}")
a(f"s_lshr_b32 s{T1}, s{S_WG}, 3")
a(f"s_lshl_b32 s{T1}, s{T1}, 7")
a(f"s_add_u32 s{T0}, s{T0}, s{T1}")
for i in range(8):
    a(f"buffer_load_dwordx4 {vr(CJ+4*i,4)}, v10, {sr(R_W1,4)}, s{T0} offen")
    a(f"s_add_u32 s{T0}, s{T0}, {8*2752}")
a.label("L_cs_noload")
w_addr()
act_setup(16, WS_OF, False)
a(f"s_cmp_eq_u32 s{S_STAGE}, 1")
a("s_waitcnt vmcnt(8)")
a("s_cbranch_scc1 L_cs_loaded")
a("s_waitcnt vmcnt(0)")
a.label("L_cs_loaded")
a("s_barrier")
flag_store(0)
stamp("O drained")
for t in range(24):
    w_read(W0(t), t)
a(f"s_cmp_lg_u32 s{S_STAGE}, 1")
a("s_cbranch_scc1 L_cs_nojob")
a(f"v_mov_b32 v10, 0x00003f80")
a(f"v_mov_b32 v11, 0x3f800000")
for i in range(8):
    a(f"s_waitcnt vmcnt({7-i})")
    for j in range(4):
        for h in range(2):
            a(f"v_dot2_f32_bf16 v{CA+2*j+h}, v{CJ+4*i+j}, v{10+h}, {f'v{CA+2*j+h}' if i else '0'}")
a(f"s_and_b32 s{T0}, s{S_WG}, 7")
a(f"s_mul_i32 s{T0}, s{T0}, {1408*4}")
a(f"s_lshr_b32 s{T1}, s{S_WG}, 3")
a(f"s_lshl_b32 s{T1}, s{T1}, 8")
for k in range(4):
    a(f"v_permlane32_swap_b32 v{CA+k}, v{CA+4+k}")
a(f"s_add_u32 s{T0}, s{T0}, s{T1}")
a(f"s_add_u32 s{T0}, s{T0}, {WS_CS}")
for k in range(4):
    a(f"v_add_f32 v{CA+k}, v{CA+k}, v{CA+4+k}")
a("s_nop 1")
for k in range(2):
    a(f"v_permlane16_swap_b32 v{CA+k}, v{CA+2+k}")
a("s_nop 1")
for k in range(2):
    a(f"v_add_f32 v{CA+k}, v{CA+k}, v{CA+2+k}")
a(f"v_and_b32 v10, 7, v{V_LANE}")
a(f"v_lshrrev_b32 v11, 4, v{V_LANE}")
for k in range(2):
    a(f"v_add_f32_dpp v{CA+k}, v{CA+k}, v{CA+k} row_ror:8 row_mask:0xf bank_mask:0xf")
a(f"v_lshlrev_b32 v11, 3, v11")
a(f"v_lshl_add_u32 v10, v10, 5, v11")
a(f"s_mov_b32 exec_lo, 0x00ff00ff")
a(f"s_mov_b32 exec_hi, 0x00ff00ff")
a(f"buffer_store_dwordx2 {vr(CA,2)}, v10, {sr(R_WS,4)}, s{T0} offen sc1")
a("s_mov_b64 exec, -1")
a.label("L_cs_nojob")
if OSP:
    a(f"s_cmp_lg_u32 s{S_W}, 0")
    a("s_cbranch_scc1 L_o_seen")
    if DO:
        a(f"s_sleep {DO}")
    spoll_issue(0)
    spoll_check(0)
    a.label("L_o_seen")
else:
    flag_poll(0, 8)
a("s_waitcnt lgkmcnt(0)")
a("s_barrier")
stamp("O ready")
a(f"s_cmp_lg_u32 s{S_STAGE}, 1")
a("s_cbranch_scc1 L_cs_noflag")
a(f"s_lshl_b32 s{T0}, s{S_WG}, 2")
a(f"s_add_u32 s{T0}, s{T0}, {WS_FC}")
a("s_waitcnt vmcnt(0)")
a("s_mov_b64 exec, 1")
a(f"buffer_store_dword v248, v249, {sr(R_WS,4)}, s{T0} offen sc1")
a("s_mov_b64 exec, -1")
a.label("L_cs_noflag")
tile_compute(new_vm(), 16, [0, 1, 2, 3], lambda t: P_W + 4*t, T_ACC, T_AF)
a.label("L_p3_done")
tile_gather(16)
for x in unpack8(32, V_HRES):
    a(x)
a(f"s_add_u32 s{T2}, s{S_TILE}, {WS_H}")
a(f"v_mov_b32 v40, 0x3f803f80")
a(f"v_and_b32 v41, 0x1f8, v0")
a(f"s_lshl_b32 s{T5}, s{S_TB2}, 12")
a(f"s_add_u32 s{T5}, s{T5}, {WS_HS}")
a(f"s_lshl_b32 s{T6}, s{S_J}, 9")
a(f"s_add_u32 s{T6}, s{T6}, s{T5}")
for h in range(2):
    a(f"s_waitcnt lgkmcnt({2-2*h})")
    for i in range(2*h, 2*h+2):
        a(f"v_pk_add_f32 {vr(32+2*i,2)}, {vr(32+2*i,2)}, {vr(16+2*i,2)}")
        a(f"v_pk_add_f32 {vr(32+2*i,2)}, {vr(32+2*i,2)}, {vr(24+2*i,2)}")
    for i in range(2*h, 2*h+2):
        a(f"v_cvt_pk_bf16_f32 v{V_HRES+i}, v{32+2*i}, v{32+2*i+1}")
a(f"buffer_store_dwordx4 {vr(V_HRES,4)}, v{V_ROWOFF}, {sr(R_WS,4)}, s{T2} offen sc1")
a.c("partial row statistics of this 64-column slice")
for i in range(4):
    a(f"v_dot2_f32_bf16 v16, v{V_HRES+i}, v40, {'v16' if i else '0'}")
    a(f"v_dot2_f32_bf16 v17, v{V_HRES+i}, v{V_HRES+i}, {'v17' if i else '0'}")
sum8_pair(16)
a(f"s_mov_b32 exec_lo, 0x01010101")
a(f"s_mov_b32 exec_hi, 0x01010101")
a(f"buffer_store_dwordx2 v[16:17], v41, {sr(R_WS,4)}, s{T6} offen sc1")
a("s_mov_b64 exec, -1")
stamp("h stored")
def h_reread():
    a.c("pull the stored lines back into this XCD's L2 while the flags travel")
    a(f"s_mov_b32 exec_lo, 0x01010101")
    a(f"s_mov_b32 exec_hi, 0x01010101")
    a(f"buffer_load_dword v251, v{V_ROWOFF}, {sr(R_WS,4)}, s{T2} offen sc1")
    a("s_mov_b64 exec, 1")
    a(f"buffer_load_dword v251, v41, {sr(R_WS,4)}, s{T6} offen sc1")
    a("s_mov_b64 exec, -1")

a.c("======== phase 4: g = gelu(LN(h) W1 + b1) with LN folded into the product, scaled by GS so that the tanh argument is u*(u*u+k)")
c1 = -2.0*math.sqrt(2.0/math.pi)*math.log2(math.e)
c3 = c1*0.044715
GS = -((-c3) ** (1.0/3))
GK = c1/GS
G_SLOTS = [0, 1, 2, 3, 4, 5, 6, 7, 8, 9, 2]
is_a("L_p4_a")
vb = new_vm()
a.c("source offsets of the raw h image: wave 4+b loads row groups b and b+4")
a(f"v_lshrrev_b32 v10, 4, v0")
a(f"v_xor_b32 v10, v10, v0")
a(f"v_and_b32 v10, 7, v10")
a(f"v_and_b32 v{V_XNW}, 0x7c00, v{V_ROWOFF}")
a(f"v_lshl_add_u32 v{V_XNW}, v10, 4, v{V_XNW}")
a(f"s_lshl_b32 s{T4}, s{S_TB2}, 16")
a(f"s_add_u32 s{T4}, s{T4}, {WS_H}")
a(f"s_and_b32 s{T3}, s{S_W}, 3")
a(f"s_lshl_b32 s{T3}, s{T3}, 13")
a("s_waitcnt vmcnt(0)")
h_reread()
a("s_barrier")
flag_store(4)
for n in (6, 7):
    ring_issue(vb, R_W1, 2752, W1_SEG, n)
a(f"s_cmp_lg_u32 s{S_W}, 4")
a("s_cbranch_scc1 L_h_seen")
if DH:
    a(f"s_sleep {DH}")
spoll_issue(0)
spoll_check(0)
a.label("L_h_seen")
a("s_barrier")
def h_issue(n):
    for i in (2*n, 2*n + 1):
        for r in range(2):
            dma(vb, ("x", n), R_WS, V_XNW, T4, r*32768 + i*128, T3, r*32768 + i*1024, "sc1")
for n in range(NH):
    h_issue(n)
for n in range(4):
    vb.wait(("x", n))
    a("s_barrier")
    if n + NH < 4:
        h_issue(n + NH)
    if n >= 2:
        ring_issue(vb, R_W1, 2752, W1_SEG, n + 6)
act_setup(43, WS_GF, True)
for n in (10, 11):
    a("s_barrier")
    ring_issue(vb, R_W1, 2752, W1_SEG, n)
vb.wait(("w", 9))
a("s_barrier")
flag_store(4, 128)
a("s_waitcnt vmcnt(0)")
vb.clear()
only(4, spoll_issue, 128)
a("s_barrier")
only(4, spoll_check, 128)
stamp("g0 ready")
a("s_barrier")
flag_store(4, 256)
a.c("======== phase 5: out = h + g W2 + b2, computed by waves 4-7")
for q in range(2):
    act_issue(vb, q, G_SLOTS[q], 43, True)
tile_compute(vb, 43, G_SLOTS, F_W, T_ACC, T_AF)
stamp("ffn2 done B")
a("s_branch L_p5_done")

a.label("L_p4_a")
F_ACC = [192, 208, 168]
F_WF = [144, 148, 152, 156, 160, 164]
GT = 224
CB = [224, 228, 224]
CS = 16
for t in range(24, 32):
    w_read(W0(t), t)
a.c("column sums of W1 for this wave's three tiles")
a(f"s_lshr_b32 s{T0}, s{S_F0}, 1")
a(f"s_min_u32 s{T0}, s{T0}, 18")
a(f"s_lshl_b32 s{T0}, s{T0}, 5")
a(f"s_add_u32 s{S_FPOLL}, s{T0}, {WS_FC}")
a("s_mov_b32 exec_hi, 0")
a(f"buffer_load_dword v247, v249, {sr(R_WS,4)}, s{S_FPOLL} offen sc1")
a("s_mov_b32 exec_hi, -1")
x_addr(True)
swap23(10, 31, 11)
a(f"v_lshrrev_b32 v11, 5, v{V_LANE}")
a(f"v_mul_u32_u24 v11, {4*1408*4}, v11")
a(f"v_lshl_add_u32 v10, v10, 2, v11")
a(f"s_lshr_b32 s{T0}, s{S_W}, 1")
a(f"s_add_u32 s{T0}, s{T0}, s{S_F0}")
a(f"s_lshl_b32 s{T0}, s{T0}, 7")
a(f"s_add_u32 s{T0}, s{T0}, {WS_CS}")
a("s_waitcnt vmcnt(1) lgkmcnt(0)")
h_reread()
a("s_barrier")
stamp("h drained")
a("s_waitcnt vmcnt(2)")
flag_poll(None, 32)
HS = 208
CP = 192
for k in range(4):
    for seg in range(3):
        a(f"buffer_load_dword v{CP+4*seg+k}, v10, {sr(R_WS,4)}, s{T0} offen offset:{seg*256} sc1")
    a(f"s_add_u32 s{T0}, s{T0}, {1408*4}")
flag_addr(WS_FG, S_TB2, S_J, S_TB2, 9)
a(f"s_and_b32 s{T0}, s{S_W}, 1")
a(f"s_lshl_b32 s{T7}, s{T0}, 8")
a(f"s_add_u32 s{T5}, s{T5}, s{T7}")
a(f"s_lshl_b32 s{T1}, s{S_TB2}, 1")
a(f"s_add_u32 s{T0}, s{T0}, s{T1}")
a(f"s_mul_i32 s{T0}, s{T0}, 43")
a(f"s_lshr_b32 s{T1}, s{S_W}, 1")
a(f"s_add_u32 s{S_STAGE}, s{T1}, 4")
a(f"s_add_u32 s{T0}, s{T0}, s{T1}")
a(f"s_lshl_b32 s{T1}, s{S_J}, 2")
a(f"s_sub_u32 s{T2}, s{S_F0}, s{T1}")
a(f"s_add_u32 s{T2}, s{T2}, s{T0}")
a(f"s_lshl_b32 s{T2}, s{T2}, 11")
a(f"s_add_u32 s{S_D2}, s{T2}, {WS_GF + 32*2048}")
a(f"s_lshl_b32 s{T1}, s{S_J}, 1")
a(f"s_add_u32 s{T0}, s{T0}, s{T1}")
a(f"s_lshl_b32 s{T0}, s{T0}, 11")
a(f"s_add_u32 s{S_D0}, s{T0}, {WS_GF}")
a(f"s_add_u32 s{S_D1}, s{S_D0}, 32768")
a(f"v_and_b32 v10, 31, v{V_LANE}")
a(f"v_lshlrev_b32 v10, 3, v10")
a(f"v_lshrrev_b32 v11, 5, v{V_LANE}")
a(f"v_lshl_add_u32 v235, v11, 11, v10")
a(f"v_lshlrev_b32 v3, 7, v{V_LANE}")
RS = 12
a(f"v_mov_b32 v10, {f32(GK)}")
a(f"v_mov_b32 v11, v10")
a(f"v_mov_b32 v14, 1.0")
a(f"v_mov_b32 v15, 1.0")
a("s_barrier")
stamp("h ready")
vc = new_vm()
for k in range(4):
    a(f"buffer_load_dwordx2 {vr(HS+2*k,2)}, v235, {sr(R_WS,4)}, s{T5} offen offset:{k*512} sc1")
vc.issue(("x", 0), 4)
a("s_waitcnt vmcnt(4)")
for seg in range(3):
    c = CP + 4*seg
    a(f"v_add_f32 v{c}, v{c}, v{c+1}")
    a(f"v_add_f32 v{c+2}, v{c+2}, v{c+3}")
for seg in range(3):
    c = CP + 4*seg
    a(f"v_add_f32 v{c}, v{c}, v{c+2}")
for seg in range(3):
    c = CP + 4*seg
    a(f"v_mov_b32 v{c+1}, v{c}")
a("s_nop 1")
for seg in range(3):
    c = CP + 4*seg
    a(f"v_permlane32_swap_b32 v{c}, v{c+1}")
a("s_nop 1")
AB = [224, 228, 216]
for seg in range(3):
    c, d = CP + 4*seg, AB[seg]
    a(f"v_add_f32 v{c}, v{c}, v{c+1}")
    a(f"v_and_b32 v{c+1}, 0xffff0000, v{c}")
    a(f"v_sub_f32 v{c}, v{c}, v{c+1}")
    a(f"v_cvt_pk_bf16_f32 v{d}, v{c+1}, v{c+1}")
    a(f"v_cvt_pk_bf16_f32 v{d+1}, v{c}, v{c}")
    a(f"v_lshl_or_b32 v{d+2}, v{V_B1+seg}, 16, v{V_B1+seg}")
    a(f"v_mov_b32 v{d+3}, 0")
BO = 232
a(f"v_mov_b32 v{BO+3}, 0")
def gt(i): return 224 + i if i < 8 else 176 + i
def gelu_block(seg):
    u = F_ACC[seg]
    a.raw(".p2align 3")
    def two(op, f, D=gt):
        for i in range(0, 16, 2):
            a(f"v_pk_{op}_f32 {vr(D(i),2)}, " + f(vr(u+i, 2), vr(gt(i), 2)))
    two("mul", lambda U, T: f"{U}, {vr(RS,2)}", lambda i: u + i)
    two("fma", lambda U, T: f"{U}, {U}, v[10:11]")
    two("mul", lambda U, T: f"{T}, {U}")
    for i in range(16):
        a(f"v_exp_f32 v{gt(i)}, v{gt(i)}")
    two("add", lambda U, T: f"{T}, v[14:15]")
    for h in range(2):
        for i in range(8*h, 8*h + 8):
            a(f"v_rcp_f32 v{gt(i)}, v{gt(i)}")
        for i in range(8*h, 8*h + 8, 2):
            a(f"v_pk_mul_f32 {vr(gt(i),2)}, {vr(gt(i),2)}, {vr(u+i,2)}")
        for i in range(4):
            a(f"v_cvt_pk_bf16_f32 v{u+8*h+i}, v{gt(8*h+2*i)}, v{gt(8*h+2*i+1)}")
        a(f"buffer_store_dwordx4 {vr(u+8*h,4)}, v{V_L16}, {sr(R_WS,4)}, s{S_D0+seg} offen offset:{h*1024} sc1")
        vc.issue("st")
inj = {}
prep = [f"v_add_f32 v{HS}, v{HS}, v{HS+2}", f"v_add_f32 v{HS+1}, v{HS+1}, v{HS+3}",
        f"v_add_f32 v{HS+4}, v{HS+4}, v{HS+6}", f"v_add_f32 v{HS+5}, v{HS+5}, v{HS+7}",
        f"v_add_f32 v{HS}, v{HS}, v{HS+4}", f"v_add_f32 v{HS+1}, v{HS+1}, v{HS+5}",
        f"v_mov_b32 v{HS+2}, v{HS}", f"v_mov_b32 v{HS+3}, v{HS+1}",
        f"s_nop 1\nv_permlane32_swap_b32 v{HS}, v{HS+2}", f"v_permlane32_swap_b32 v{HS+1}, v{HS+3}\ns_nop 1",
        f"v_add_f32 v{HS}, v{HS}, v{HS+2}", f"v_add_f32 v{HS+1}, v{HS+1}, v{HS+3}",
        f"v_mul_f32 v{HS}, {f32(-1.0/512)}, v{HS}", f"v_mul_f32 v{HS+1}, {f32(1.0/512)}, v{HS+1}",
        f"v_fma_f32 v{HS+1}, -v{HS}, v{HS}, v{HS+1}", f"v_max_f32 v{HS+1}, 0, v{HS+1}",
        f"v_add_f32 v{HS+1}, {f32(1e-5)}, v{HS+1}", f"v_rsq_f32 v{HS+2}, v{HS+1}",
        f"v_and_b32 v{HS+3}, 0xffff0000, v{HS}", f"v_sub_f32 v{HS}, v{HS}, v{HS+3}",
        f"v_mul_f32 v{HS+1}, v{HS+1}, v{HS+2}", f"v_mul_f32 v{RS}, {f32(GS)}, v{HS+2}",
        f"v_cvt_pk_bf16_f32 v{BO}, v{HS+3}, v{HS}", f"v_and_b32 v{HS+3}, 0xffff0000, v{HS+1}",
        f"v_sub_f32 v{HS+1}, v{HS+1}, v{HS+3}", f"v_mov_b32 v{RS+1}, v{RS}",
        f"v_cvt_pk_bf16_f32 v{BO+2}, v{HS+3}, v{HS+1}",
        f"s_mov_b32 exec_lo, 0\nv_mov_b32 v{BO}, 0\nv_mov_b32 v{BO+2}, 0\ns_mov_b32 exec_lo, -1", f"v_mov_b32 v{BO+1}, v{BO}"]
spread(inj, [(x, 1) for x in prep], 0, 20)
spread(inj, [(x, 1) for x in capture(act_setup, 43, WS_GF, True)[:-5]], 70, 80)
def corr(seg):
    d = vr(F_ACC[seg], 16)
    a(f"v_mfma_f32_32x32x16_bf16 {d}, {vr(AB[seg],4)}, {vr(BO,4)}, {'0' if seg else d}")
def blk0():
    a.c("the other accumulators start from -mean x colsum + std x bias")
    corr(2)
    corr(1)
    a("s_nop 7")
    gelu_block(0)
def blk1():
    a("s_nop 7")
    a("s_nop 1")
    gelu_block(1)
def g_reread(seg):
    a("s_mov_b64 exec, 0xffff")
    a(f"buffer_load_dword v251, v3, {sr(R_WS,4)}, s{S_D0+seg} offen sc1")
    a("s_mov_b64 exec, -1")
def pub(seg):
    def f():
        vc.wait("st")
        g_reread(seg)
        a("s_barrier")
    return f
gemm_compute(vc, F_ACC, F_WF, set(), {0}, inj, {24: lambda: corr(0), 32: blk0, UP0: pub(0), 64: blk1, UP1: pub(1)},
             (0, 1, 2, 3, 6, 7, 10), 'p4', 1024, W0)
stamp("ffn1 done")
a(f"s_cmp_ge_u32 s{S_STAGE}, s{S_NT}")
a(f"s_cselect_b32 s{S_D2}, s{S_D1}, s{S_D2}")
a("s_cbranch_scc1 L_p4_skip")
a("s_nop 7")
a("s_nop 0")
gelu_block(2)
a.label("L_p4_skip")
stamp("g stored")
vl = new_vm()
def g_issue(*L):
    for n in L:
        act_issue(vl, n, G_SLOTS[n], 43, True)
g_issue(2, 3)
only(0, spoll_issue, 256)
def p5_after(q):
    if q in (0, 2, 4, 7, 10) and opt("fst", 0):
        stamp(f"p5 q{q}")
    if q == 1:
        only(0, spoll_check, 256)
    if q == 2:
        a.c("the wait for chunk 2 covered the last stores of every wave")
        flag_store(0, 384)
        g_issue(4, 5)
        if RR2:
            g_reread(2)
            vl.issue("rr")
    if q in (3, 4):
        g_issue(q + 3)
    if q == QP - 2:
        only(0, spoll_issue, 384)
    if q == QP - 1:
        only(0, spoll_check, 384)
    if q == QP:
        g_issue(8, 9, 10)
tile_loader(vl, 43, p5_after)

a.label("L_p5_done")
tile_gather(16)
for x in unpack8(32, V_HRES) + unpack8(40, V_B2):
    a(x)
for i in range(4):
    a(f"v_pk_add_f32 {vr(32+2*i,2)}, {vr(32+2*i,2)}, {vr(40+2*i,2)}")
a(f"v_mov_b32 v10, {f32(1.0/GS)}")
a("v_mov_b32 v11, v10")
for h in range(2):
    a(f"s_waitcnt lgkmcnt({2-2*h})")
    for i in range(2*h, 2*h+2):
        a(f"v_pk_add_f32 {vr(16+2*i,2)}, {vr(16+2*i,2)}, {vr(24+2*i,2)}")
        a(f"v_pk_fma_f32 {vr(32+2*i,2)}, {vr(16+2*i,2)}, v[10:11], {vr(32+2*i,2)}")
    for i in range(2*h, 2*h+2):
        a(f"v_cvt_pk_bf16_f32 v{40+i}, v{32+2*i}, v{32+2*i+1}")
a(f"buffer_store_dwordx4 v[40:43], v{V_ROWOFF}, {sr(R_OUT,4)}, s{S_TILE} offen")
if STAMPS:
    a("s_waitcnt vmcnt(0)")
stamp("end")
stamp_flush()
a.c("every workgroup has read the old tag by now: leave this launch's tag for the next launch to step past")
a(f"s_or_b32 s{T0}, s{S_WG}, s{S_W}")
a(f"s_cmp_lg_u32 s{T0}, 0")
a("s_cbranch_scc1 L_end")
a("s_mov_b64 exec, 1")
a(f"buffer_store_dword v248, v249, {sr(R_WS,4)}, 0 offen offset:{WS_NONCE} sc1")
a.label("L_end")
a("s_endpgm")
a.label("L_code_end")

a.c("======== attention with the row's true maximum: q-block A over all 2048 keys")
a.label("L_attn_fb")
FM = SB
a("s_waitcnt vmcnt(0)")
a(f"v_mov_b32 v{FM}, 0xff800000")
a(f"s_mov_b32 s{S_XOFF}, 0")
a(f"s_mov_b32 s{S_LOOP}, 64")
a.label("L_fb1")
a(f"buffer_load_dwordx4 {vr(Kf(0),4)}, v{A_AK}, {sr(R_WS,4)}, s{S_XOFF} offen sc1")
a("s_waitcnt vmcnt(0)")
a(f"v_mfma_f32_32x32x16_bf16 {vr(SA,16)}, {vr(Kf(0),4)}, {vr(QA,4)}, 0")
a(f"s_add_u32 s{S_XOFF}, s{S_XOFF}, 2048")
a("s_nop 7")
a("s_nop 3")
for i in range(8):
    a(f"v_max3_f32 v{FM}, v{FM}, v{SA+2*i}, v{SA+2*i+1}")
a(f"s_sub_u32 s{S_LOOP}, s{S_LOOP}, 1")
a(f"s_cmp_lg_u32 s{S_LOOP}, 0")
a("s_cbranch_scc1 L_fb1")
a(f"v_mov_b32 v{FM+1}, v{FM}")
a("s_nop 1")
a(f"v_permlane32_swap_b32 v{FM}, v{FM+1}")
a("s_nop 1")
a(f"v_max_f32 v{FM}, v{FM}, v{FM+1}")
for i in range(16):
    a(f"v_mov_b32 v{OA+i}, 0")
a(f"s_mov_b32 s{S_XOFF}, 0")
a(f"s_mov_b32 s{S_LOOP}, 64")
a.label("L_fb2")
kv_load(Cnt(a, "vmcnt", 63), 0, 4)
a("s_waitcnt vmcnt(0)")
a(f"v_mfma_f32_32x32x16_bf16 {vr(SA,16)}, {vr(Kf(0),4)}, {vr(QA,4)}, 0")
a(f"s_add_u32 s{S_XOFF}, s{S_XOFF}, 2048")
a("s_nop 7")
a("s_nop 3")
for i in range(16):
    a(f"v_sub_f32 v{SA+i}, v{SA+i}, v{FM}")
for i in range(16):
    a(f"v_exp_f32 v{SA+i}, v{SA+i}")
a("s_nop 1")
smf(OA, Vf(0, 0), SA)
smf(OA, Vf(0, 1), SA+8)
a(f"s_sub_u32 s{S_LOOP}, s{S_LOOP}, 1")
a(f"s_cmp_lg_u32 s{S_LOOP}, 0")
a("s_nop 7")
a("s_cbranch_scc1 L_fb2")
a("s_nop 7")
a("s_nop 3")
a("s_branch L_attn_fin")

a.raw('.section .rodata,"a"')
a.raw(".p2align 6")
a.raw(f".amdhsa_kernel {NAME}_kernel")
a.raw("  .amdhsa_next_free_vgpr 256")
a.raw("  .amdhsa_next_free_sgpr 102")
a.raw("  .amdhsa_accum_offset 256")
a.raw("  .amdhsa_group_segment_fixed_size 0")
a.raw("  .amdhsa_kernarg_size 88")
a.raw("  .amdhsa_user_sgpr_count 2")
a.raw("  .amdhsa_user_sgpr_kernarg_segment_ptr 1")
a.raw("  .amdhsa_system_sgpr_workgroup_id_x 1")
a.raw(".end_amdhsa_kernel")

out = [x for x in args if not x.startswith("--")]
open(out[0] if out else "cdna_kernels/" + NAME + ".s", "w").write(a.text())
```

```python
import sys, math
from lib import *

NAME = "sequential_preLN__softmax_full_mha__dense_activation_gelu__prompt"
args = sys.argv[1:]
def opt(n, d):
    for x in args:
        if x.startswith("--" + n + "="):
            return type(d)(x.split("=")[1])
    return d
STAMPS = "--stamps" in args
FORCE_FB = "--force-fallback" in args
LH = 2
NA = opt("na", 52)
IT1 = opt("it1", 4)
IT2 = opt("it2", 1)
TB1 = opt("tb1", 6)
TB2 = opt("tb2", 1)
T0B = opt("t0b", 1)
TEND = opt("tend", 1)
NBLK = opt("nblk", 2)
NPA = opt("npa", 2)
UKV = opt("ukv", 93)
NO = opt("no", 3)
NH = opt("nh", 2)
UP0 = opt("up0", 61)
UP1 = opt("up1", 92)
QP = opt("qp", 7)
KVL = opt("kvl", 1)
KVP = opt("kvp", 0)
SLP = opt("slp", 0)
HPK = opt("hpk", 0)
OPK = opt("opk", 0)
DO = opt("do", 0)
DH = opt("dh", 0)
NW2 = opt("nw2", 2)
BK = opt("bk", 0)
LATE = opt("late", 0)
SPF = opt("spf", 0)
SPF2 = opt("spf2", -1)
L2PF = opt("l2pf", 2)
NPB = opt("npb", 0)
XSW = opt("xsw", 0)
KVJ = opt("kvj", 0)
QPF = opt("qpf", -1)
NB0 = opt("nb0", 3)
MW = opt("mw", -1)
WM = opt("wm", 0)
BAT = opt("bat", 0)
LPOS = opt("lpos", 12)
KPOS = opt("kpos", -1)
PRA = 2
FLIP = opt("flip", 6)
FEND = opt("fend", 1)
W2L = opt("w2l", 0)
WS1 = [int(c) for c in opt("ws1", "40202")]
WC = [sum(WS1[:k]) for k in range(6)]
LF = opt("lf", 1)
LOC = opt("loc", 1)
WPF = opt("wpf", 0)
RR2 = opt("rr2", 2)
OSP = opt("osp", 1)
GST = opt("gst", 0)
TSPLIT = opt("tsplit", 1)
PRE = opt("pre", 1)
SKIP5 = opt("skip5", 1)
SEL = opt("sel", "").replace("_", " ")
PROBE = opt("probe", "").replace("_", " ")

S_WG, S_W = 2, 3
S_PC = 4
R_X, R_WQKV, R_WO, R_W1, R_W2, R_WS, R_OUT, R_B1, R_B2 = 8, 12, 16, 20, 24, 28, 32, 36, 40
KA = 44
S_HG, S_TB, S_TB2, S_J, S_N = 66, 67, 68, 69, 70
S_F0 = 71
T0, T1, T2, T3, T4, T5, T6, T7 = 72, 73, 74, 75, 76, 77, 78, 79
S_LOOP, S_XOFF, S_HEAD = 80, 81, 82
S_TILE = 83
S_MASKV = 84
S_D0, S_D1, S_D2, S_D3 = 86, 87, 88, 89
S_TS = 90
S_NT = 92
S_SPIN = 93
S_SAVE = 94
S_D4, S_D5 = 96, 97
S_STAGE = 101
S_SHR = 100
S_FOWN, S_FPOLL = 98, 99
S_OWN, S_OWN2 = 62, 63

WS_NONCE = 0
WS_FKV = 0x1000
WS_FO = 0x2000
WS_FG = 0x4000
WS_FC = 0x8000
WS_CS = 0x60000
WS_HS = 0x40000
WS_STAMP = 0x10000
WS_KV = 0x100000
WS_OF = 0x500000
WS_H = 0x700000
WS_GF = 0x900000
WS_SIZE = 0x1000000

L_XN = 0
L_RING = 65536
L_Q = 32768
L_OX = 0
LDS_BYTES = 163840

V_LANE, V_ROWOFF, V_XNW = 1, 2, 3
V_DA, V_DB = 12, 13
V_B1 = 232
V_B2 = 236
V_REDW, V_REDR, V_L16 = 240, 244, 246
V_HRES = 252

a = Asm()
stamp_idx = [0]
def stamp(name):
    i = stamp_idx[0]
    stamp_idx[0] += 1
    if PROBE and name == "start":
        a("s_memrealtime s[6:7]")
    if PROBE and name == "setup":
        a("s_mov_b32 s1, 0")
    if PROBE == name:
        a(f"s_memrealtime {sr(S_TS,2)}")
        a("s_waitcnt lgkmcnt(0)")
        a(f"s_sub_u32 s1, s{S_TS}, s6")
    if PROBE and name == "end":
        a("s_mul_i32 s1, s1, 10")
        a("s_add_u32 s1, s1, 10000")
        a(f"s_cmp_lg_u32 s{S_WG}, 100")
        a("s_cbranch_scc1 L_nopin")
        a.label("L_pin")
        a(f"s_memrealtime {sr(S_TS,2)}")
        a("s_waitcnt lgkmcnt(0)")
        a(f"s_sub_u32 s{S_TS}, s{S_TS}, s6")
        a(f"s_cmp_lt_u32 s{S_TS}, s1")
        a("s_cbranch_scc1 L_pin")
        a.label("L_nopin")
    if not STAMPS:
        return
    if SEL and name not in ("start", "end") and not any(k in name for k in SEL.split(",")):
        return
    a.c(f"stamp {i} {name}")
    a(f"s_memtime {sr(S_TS,2)}")
    a(f"s_waitcnt lgkmcnt(0)")
    a(f"v_writelane_b32 v250, s{S_TS}, {i}")
    a(f"s_memrealtime {sr(S_TS,2)}")
    a(f"s_waitcnt lgkmcnt(0)")
    a(f"v_writelane_b32 v250, s{S_TS}, {i+32}")

def stamp_flush():
    if not STAMPS:
        return
    l = a.uniq("L_st")
    a(f"s_and_b32 s{T7}, s{S_W}, 3")
    a(f"s_cmp_lg_u32 s{T7}, {opt('sw', 0)}")
    a(f"s_cbranch_scc1 {l}")
    a(f"s_lshl_b32 s{T7}, s{S_WG}, 9")
    a(f"s_and_b32 s{T6}, s{S_W}, 4")
    a(f"s_lshl_b32 s{T6}, s{T6}, 6")
    a(f"s_add_u32 s{T7}, s{T7}, s{T6}")
    a(f"s_add_u32 s{T7}, s{T7}, {WS_STAMP}")
    a(f"v_lshlrev_b32 v251, 2, v{V_LANE}")
    a(f"buffer_store_dword v250, v251, {sr(R_WS,4)}, s{T7} offen")
    a.label(l)

def srd(r, ptr, size):
    a(f"s_mov_b32 s{r}, s{ptr}")
    a(f"s_mov_b32 s{r+1}, s{ptr+1}")
    a(f"s_mov_b32 s{r+2}, {size}")
    a(f"s_mov_b32 s{r+3}, 0x00020000")

def flag_addr(base, line_own, word_own, line_poll, sh=8):
    a(f"s_lshl_b32 s{S_FOWN}, s{line_own}, {sh}")
    a(f"s_lshl_b32 s{T7}, s{word_own}, 2")
    a(f"s_add_u32 s{S_FOWN}, s{S_FOWN}, s{T7}")
    a(f"s_add_u32 s{S_FOWN}, s{S_FOWN}, {base}")
    a(f"s_lshl_b32 s{S_FPOLL}, s{line_poll}, {sh}")
    a(f"s_add_u32 s{S_FPOLL}, s{S_FPOLL}, {base}")

def flag_store(poller, off=0, peek=False):
    l = a.uniq("L_nf")
    a(f"s_cmp_lg_u32 s{S_W}, {poller}")
    a(f"s_cbranch_scc1 {l}")
    a(f"s_mov_b64 exec, 1")
    a(f"buffer_store_dword v248, v249, {sr(R_WS,4)}, s{S_FOWN} offen offset:{off} sc1")
    if peek:
        a(f"s_mov_b64 exec, 0xff")
        a(f"buffer_load_dword v247, v249, {sr(R_WS,4)}, s{S_FPOLL} offen offset:{off} sc1")
    a(f"s_mov_b64 exec, -1")
    a.label(l)

def flag_poll(poller, nflags, off=0, va=249):
    l_skip, l_poll, l_done = a.uniq("L_skip"), a.uniq("L_poll"), a.uniq("L_done")
    if poller is None:
        a(f"v_cmp_eq_u32 vcc, v247, v248")
        a("s_nop 0")
        a(f"s_and_b32 s{T7}, vcc_lo, {(1 << nflags) - 1:#x}")
        a(f"s_cmp_eq_u32 s{T7}, {(1 << nflags) - 1:#x}")
    else:
        a(f"s_cmp_lg_u32 s{S_W}, {poller}")
    a(f"s_cbranch_scc1 {l_skip}")
    a(f"s_mov_b32 exec_hi, 0")
    a(f"s_mov_b32 exec_lo, {(1 << nflags) - 1:#x}")
    a(f"s_mov_b32 s{S_SPIN}, 0")
    a.label(l_poll)
    a(f"buffer_load_dword v247, v{va}, {sr(R_WS,4)}, s{S_FPOLL} offen offset:{off} sc1")
    a(f"s_add_u32 s{S_SPIN}, s{S_SPIN}, 1")
    a("s_waitcnt vmcnt(0)")
    a(f"v_cmp_eq_u32 vcc, v247, v248")
    a(f"s_cmp_gt_u32 s{S_SPIN}, 200000")
    a(f"s_cbranch_scc1 {l_done}")
    a(f"s_cmp_eq_u64 vcc, exec")
    if BK:
        a(f"s_cbranch_scc1 {l_done}")
        a(f"s_sleep {BK}")
        a(f"s_branch {l_poll}")
    else:
        a(f"s_cbranch_scc0 {l_poll}")
    a.label(l_done)
    a("s_mov_b64 exec, -1")
    a.label(l_skip)

def peek_check(n, ok):
    a(f"s_waitcnt vmcnt({n})")
    a(f"v_cmp_eq_u32 vcc, v247, v248")
    a("s_nop 0")
    a(f"s_and_b32 s{T7}, vcc_lo, 0xff")
    a(f"s_cmp_eq_u32 s{T7}, 0xff")
    a(f"s_cbranch_scc1 {ok}")

def spoll_issue(off):
    a(f"s_add_u32 s{KA+2}, s{S_FPOLL}, {off}")
    a(f"s_load_dwordx8 {sr(KA+4,8)}, {sr(KA+20,2)}, s{KA+2} glc")
    a(f"s_mov_b32 s{KA}, s{S_N}")
    a(f"s_mov_b32 s{KA+1}, s{S_N}")
    a(f"s_mov_b32 s{KA+3}, 0")

def spoll_check(off):
    l, l_ok = a.uniq("L_sp"), a.uniq("L_spok")
    a.label(l)
    a("s_waitcnt lgkmcnt(0)")
    for k in range(4):
        a(f"s_xor_b64 {sr(KA+4+2*k,2)}, {sr(KA+4+2*k,2)}, {sr(KA,2)}")
    for k in range(1, 4):
        a(f"s_or_b64 {sr(KA+4,2)}, {sr(KA+4,2)}, {sr(KA+4+2*k,2)}")
    a(f"s_cbranch_scc0 {l_ok}")
    if BK:
        a(f"s_sleep {BK}")
    a(f"s_load_dwordx8 {sr(KA+4,8)}, {sr(KA+20,2)}, s{KA+2} glc")
    a(f"s_add_u32 s{KA+3}, s{KA+3}, 1")
    a(f"s_cmp_lt_u32 s{KA+3}, 16")
    a(f"s_cbranch_scc1 {l}")
    a("s_waitcnt lgkmcnt(0)")
    a(f"v_not_b32 v247, v248")
    flag_poll(None, 8, off)
    a.label(l_ok)

LN_X, LN_D, LN_T = 16, 48, 56

def ln_loads(vm, rsrc, soff, flags=""):
    for i in range(8):
        so, imm = (soff[i >> 1], 128*(i & 1)) if isinstance(soff, list) else (soff, 128*i)
        a(f"buffer_load_dwordx4 {vr(LN_X+4*i,4)}, v{V_ROWOFF}, {sr(rsrc,4)}, s{so} offen offset:{imm} {flags}")
        vm.issue(("x", i))

def ln_consts():
    t = LN_T
    a(f"v_mov_b32 v{t+4}, 0x3f803f80")
    a(f"v_mov_b32 v{t+5}, 0x00003f80")
    a(f"v_mov_b32 v{t+6}, 0x3f800000")
    a(f"v_mov_b32 v{t}, 0")
    a(f"v_mov_b32 v{t+1}, 0")

def ln_stats(vm, scale):
    t = LN_T
    for i in range(8):
        vm.wait(("x", i))
        if i == SPF2 and SPF < 3:
            w_touch(QKV_SEG[SPF:])
        if i in (7,) and scale >= 1.0:
            stamp(f"x{i} in {scale}")
        a.raw(".p2align 3")
        for j in range(4):
            a(f"v_dot2_f32_bf16 v{t}, v{LN_X+4*i+j}, v{t+4}, v{t}")
            a(f"v_dot2_f32_bf16 v{t+1}, v{LN_X+4*i+j}, v{LN_X+4*i+j}, v{t+1}")

def sum8_pair(t):
    a("s_nop 1")
    for ctl in ("quad_perm:[1,0,3,2]", "quad_perm:[2,3,0,1]", "row_half_mirror"):
        a("s_nop 0")
        a(f"v_add_f32_dpp v{t}, v{t}, v{t} {ctl} row_mask:0xf bank_mask:0xf")
        a(f"v_add_f32_dpp v{t+1}, v{t+1}, v{t+1} {ctl} row_mask:0xf bank_mask:0xf")

def ln_norm(scale, vm=None):
    t = LN_T
    sum8_pair(t)
    a(f"v_mul_f32 v{t}, {f32(-1.0/512)}, v{t}")
    a(f"v_mul_f32 v{t+2}, v{t}, v{t}")
    a(f"v_mul_f32 v{t+1}, {f32(1.0/512)}, v{t+1}")
    a(f"v_sub_f32 v{t+1}, v{t+1}, v{t+2}")
    a(f"v_max_f32 v{t+1}, 0, v{t+1}")
    a(f"v_add_f32 v{t+1}, {f32(1e-5)}, v{t+1}")
    a(f"v_rsq_f32 v{t+2}, v{t+1}")
    a("s_nop 0")
    if scale != 1.0:
        a(f"v_mul_f32 v{t+2}, {f32(scale)}, v{t+2}")
    a(f"v_mov_b32 v{t+3}, v{t+2}")
    for i in range(8):
        if vm:
            vm.wait(("x", i))
        a.raw(".p2align 3")
        for j in range(4):
            a(f"v_dot2_f32_bf16 v{LN_D+2*j}, v{LN_X+4*i+j}, v{t+5}, v{t}")
            a(f"v_dot2_f32_bf16 v{LN_D+2*j+1}, v{LN_X+4*i+j}, v{t+6}, v{t}")
        for j in range(4):
            a(f"v_pk_mul_f32 {vr(LN_D+2*j,2)}, {vr(LN_D+2*j,2)}, {vr(t+2,2)}")
        for j in range(4):
            a(f"v_cvt_pk_bf16_f32 v{LN_X+4*i+j}, v{LN_D+2*j}, v{LN_D+2*j+1}")
        a(f"ds_write_b128 v{V_XNW}, {vr(LN_X+4*i,4)} offset:{L_XN + 4096*i}")

def dma_addr(dst, row_bytes, col_s):
    a(f"v_lshrrev_b32 v10, 3, v{V_LANE}")
    a(f"v_and_b32 v11, 7, v{V_LANE}")
    a(f"v_lshlrev_b32 v{dst}, 1, v10")
    a(f"v_and_b32 v{dst}, 4, v{dst}")
    a(f"v_xor_b32 v11, v11, v{dst}")
    a(f"v_mul_u32_u24 v10, {row_bytes}, v10")
    a(f"v_lshl_add_u32 v10, v11, 4, v10")
    a(f"v_add_u32 v{dst}, s{col_s}, v10")

def dma(vm, tag, rsrc, vaddr, sg, goff, sl, loff, flags=""):
    a(f"s_add_u32 m0, s{sl}, {loff}")
    a(f"s_add_u32 s{T7}, s{sg}, {goff}")
    a(f"buffer_load_dwordx4 v{vaddr}, {sr(rsrc,4)}, s{T7} offen {flags} lds")
    vm.issue(tag)

def tr_lane_addr(dst, hp_s, perm):
    a(f"v_bfe_u32 v10, v{V_LANE}, 2, 2")
    a(f"v_lshrrev_b32 v11, 1, v10")
    a(f"v_xor_b32 v11, s{hp_s}, v11")
    a(f"v_lshlrev_b32 v11, 6, v11")
    a(f"v_lshl_add_u32 v11, v10, 7, v11")
    a(f"v_bfe_u32 v10, v{V_LANE}, 4, 1")
    a(f"v_lshl_add_u32 v11, v10, 5, v11")
    if perm:
        a(f"v_and_b32 v10, 1, v{V_LANE}")
        a(f"v_lshl_add_u32 v11, v10, 4, v11")
        a(f"v_bfe_u32 v10, v{V_LANE}, 1, 1")
        a(f"v_lshl_add_u32 v11, v10, 3, v11")
    else:
        a(f"v_and_b32 v10, 3, v{V_LANE}")
        a(f"v_lshl_add_u32 v11, v10, 3, v11")
    a(f"v_lshrrev_b32 v10, 5, v{V_LANE}")
    a(f"v_lshl_add_u32 v{dst}, v10, 10, v11")

def tr_read(dst, vaddr, off):
    a(f"ds_read_b64_tr_b16 {vr(dst,2)}, v{vaddr} offset:{off}")
    a(f"ds_read_b64_tr_b16 {vr(dst+2,2)}, v{vaddr} offset:{off+512}")

G_X = 16
G_XA, G_WA = 4, 8

FAKE = opt("fake", "")
def mm(kind, acc, A, B, t, zero):
    if kind in FAKE:
        for k in range(2):
            d = vr(acc + 4*((2*t + k) % 4), 4)
            a(f"v_mfma_f32_16x16x32_bf16 {d}, {A}, {B}, {'0' if zero and t < 2 else d}")
    else:
        d = vr(acc, 16)
        a(f"v_mfma_f32_32x32x16_bf16 {d}, {A}, {B}, {'0' if zero and t == 0 else d}")

def capture(f, *x):
    keep, a.L = a.L, []
    f(*x)
    out, a.L = [l.strip() for l in a.L if not l.strip().startswith(";")], keep
    return out

def w_addr():
    a(f"s_bfe_u32 s{T0}, s{S_W}, 0x10001")
    tr_lane_addr(G_WA, T0, True)
    a(f"v_add_u32 v{G_WA}, {L_RING}, v{G_WA}")
    a(f"v_add_u32 v{G_WA+1}, 49152, v{G_WA}")

def x_addr(raw):
    a(f"s_and_b32 s{T0}, s{S_W}, 1")
    a(f"s_lshl_b32 s{T0}, s{T0}, 15")
    if raw:
        a(f"v_bfe_u32 v10, v{V_LANE}, 3, 2")
        a(f"v_lshlrev_b32 v10, 13, v10")
        a(f"v_and_b32 v11, 7, v{V_LANE}")
        a(f"v_lshl_add_u32 v10, v11, 7, v10")
        a(f"v_add_u32 v10, s{T0}, v10")
        a(f"v_bfe_u32 v11, v{V_LANE}, 1, 3")
        a(f"v_lshrrev_b32 v{G_XA}, 5, v{V_LANE}")
        a(f"v_xor_b32 v11, v11, v{G_XA}")
        for b in range(4):
            a(f"v_xor_b32 v{G_XA+b}, {2*b}, v11")
            a(f"v_lshl_add_u32 v{G_XA+b}, v{G_XA+b}, 4, v10")
    else:
        for b in range(4):
            a(f"v_lshrrev_b32 v10, 5, v{V_LANE}")
            a(f"v_add_u32 v10, {2*b}, v10")
            a(f"v_and_b32 v11, 31, v{V_LANE}")
            a(f"v_xor_b32 v11, v11, v10")
            a(f"v_lshlrev_b32 v11, 4, v11")
            a(f"v_lshl_add_u32 v11, v10, 9, v11")
            a(f"v_add_u32 v{G_XA+b}, s{T0}, v11")

def w_read(dst, u):
    off = ((u >> 3) % 6)*16384 + (u & 7)*2048
    if off >= 49152:
        tr_read(dst, G_WA + 1, off - 49152)
    else:
        tr_read(dst, G_WA, off)

def gemm_compute(vm, acc, wf, swapped, zero_c, inject, before, bars, nm, xstride, w0=None, joint=False):
    lg = Cnt(a, "lgkmcnt", 15)
    nxt = [0]
    def unit(u):
        return (u & 1, u >> 1) if (joint and u < 64) else (u >> 5, u & 31)
    def rd(u):
        if u % 8 == 0 and (u >> 3) in bars:
            vm.wait(("w", u >> 3), ("x", u >> 3), extra="" if u else "lgkmcnt(0)")
            if u == 0 and nm == "p1":
                stamp("w0 in")
            a("s_barrier")
        seg, t = unit(u)
        if seg == 0:
            a(f"ds_read_b128 {vr(G_X+4*t,4)}, v{G_XA+(t&3)} offset:{L_XN + (t>>2)*xstride}")
            lg.issue(u)
        if u >= 32 or not w0:
            w_read(wf[u % 6], u)
            lg.issue(u, 2)
    def fill(upto):
        while nxt[0] <= min(upto, 95):
            rd(nxt[0]); nxt[0] += 1
    fill(5 if joint else 3)
    for u in range(96):
        seg, t = unit(u)
        if u % 32 == 0 and GST:
            stamp(f"{nm} pass{u >> 5}")
        if u in before:
            before[u]()
        if u < 32 and not joint:
            lg.wait(u)
        elif u % 2 == 0:
            lg.wait(u + 1)
        x, d = vr(G_X+4*t, 4), vr(acc[seg], 16)
        w = vr(w0(t) if (w0 and u < 32) else wf[u % 6], 4)
        c = "0" if (seg in zero_c and t == 0) else d
        if seg in swapped:
            mm(nm[1], acc[seg], x, w, t, seg in zero_c)
        else:
            mm(nm[1], acc[seg], w, x, t, seg in zero_c)
        fill(u + (6 if joint else 4 if u < 28 else 5 if u < 29 else 6))
        for ins in inject.get(u, []):
            if isinstance(ins, tuple):
                a(ins[0]); vm.issue(ins[1])
            else:
                a(ins)

def spread(inject, items, u0, u1):
    tot = sum(c for _, c in items)
    acc = 0
    for ins, c in items:
        u = u0 + min(u1 - u0 - 1, int(acc * (u1 - u0) / tot))
        inject.setdefault(u, []).append(ins)
        acc += c

S_RG = [S_D0, S_D1, S_D2, S_D3]
def ring_setup(row_bytes, rot, rows=32):
    a(f"s_and_b32 s{S_D5}, s{S_W}, 3")
    a(f"s_mul_i32 s{T0}, s{S_D5}, {rows*row_bytes}")
    a(f"s_lshl_b32 s{S_D5}, s{S_D5}, 12")
    for c in range(4):
        if rot:
            a(f"s_add_u32 s{T7}, s{rot}, {c}")
            a(f"s_and_b32 s{T7}, s{T7}, 3")
            a(f"s_mul_i32 s{T7}, s{T7}, {128*row_bytes}")
            a(f"s_add_u32 s{S_RG[c]}, s{T0}, s{T7}")
        else:
            a(f"s_add_u32 s{S_RG[c]}, s{T0}, {c*128*row_bytes}")

def ring_issue(vm, rsrc, row_bytes, seg_off, n):
    if rsrc == R_W1 and "%x" % n in opt("skipw", ""):
        return
    for p in range(4):
        dma(vm, ("w", n), rsrc, V_DB, S_RG[n & 3], seg_off[n >> 2] + p*8*row_bytes, S_D5, L_RING + (n % 6)*16384 + p*1024)

def qkv_issue(vm, n):
    if not KVJ:
        return ring_issue(vm, R_WQKV, 3072, QKV_SEG, n)
    if n == 8:
        a(f"s_mul_i32 s{T7}, s{S_D5}, 12")
        for c in range(4):
            a(f"s_add_u32 s{S_RG[c]}, s{S_RG[c]}, s{T7}")
    if n >= 8:
        return ring_issue(vm, R_WQKV, 3072, QKV_SEG, n)
    for p in range(4):
        dma(vm, ("w", n), R_WQKV, V_DB, S_RG[n >> 1], QKV_SEG[p >> 1] + ((n & 1)*64 + (p & 1)*8)*3072, S_D5, L_RING + (n % 6)*16384 + p*1024)

def swap23(dst, mask, tmp):
    a(f"v_and_b32 v{dst}, {mask & ~12:#x}, v{V_LANE}")
    a(f"v_bfe_u32 v{tmp}, v{V_LANE}, 2, 1")
    a(f"v_lshl_add_u32 v{dst}, v{tmp}, 3, v{dst}")
    a(f"v_bfe_u32 v{tmp}, v{V_LANE}, 3, 1")
    a(f"v_lshl_add_u32 v{dst}, v{tmp}, 2, v{dst}")

def only(w, f, *x):
    l = a.uniq("L_w")
    a(f"s_cmp_lg_u32 s{S_W}, {w}")
    a(f"s_cbranch_scc1 {l}")
    f(*x)
    a.label(l)

def is_a(label):
    a(f"s_cmp_lt_u32 s{S_W}, 4")
    a(f"s_cbranch_scc1 {label}")

def act_setup(nsteps_half, base, pairs):
    a(f"s_and_b32 s{T0}, s{S_W}, 3")
    a(f"s_lshl_b32 s{T3}, s{T0}, 10")
    if pairs:
        a(f"s_lshl_b32 s{T0}, s{T0}, 1")
    a(f"s_mul_i32 s{T1}, s{S_TB2}, {4*nsteps_half}")
    a(f"s_add_u32 s{T0}, s{T0}, s{T1}")
    a(f"s_lshl_b32 s{T0}, s{T0}, 10")
    a(f"s_add_u32 s{T4}, s{T0}, {base}")
    a(f"s_and_b32 s{T0}, s{S_W}, 2")
    a(f"s_lshl_b32 s{T0}, s{T0}, 12")
    a(f"v_add_u32 v4, s{T0}, v{V_L16}")
    a(f"v_add_u32 v5, 65536, v4")
    a(f"v_add_u32 v6, 131072, v4")

def act_issue(vm, q, slot, nsteps_half, pairs):
    for kh in range(2):
        for tb32 in range(2):
            dma(vm, ("a", q), R_WS, V_L16, T4, (2*tb32*nsteps_half + (8*q + kh if pairs else 4*q + kh*nsteps_half))*1024, T3, slot*16384 + kh*8192 + tb32*4096, "sc1")

def tile_compute(vm, nsteps, slots, wreg, acc, af, inject={}):
    lg = Cnt(a, "lgkmcnt", 15)
    last = 4*((nsteps - 1)//4)
    seq = [(t, b) for t in range(last) for b in range(2)]
    if TSPLIT:
        seq += [(t, b) for b in range(2) for t in range(last, nsteps)]
    else:
        seq += [(t, b) for t in range(last, nsteps) for b in range(2)]
    n = len(seq)
    def rd(u):
        if u >= n: return
        t, tb32 = seq[u]
        if u % 8 == 0:
            vm.wait(("a", t >> 2))
            a("s_barrier")
        off = slots[t >> 2]*16384 + tb32*4096 + (t & 3)*1024
        a(f"ds_read_b128 {vr(af+4*(u&3),4)}, v{4 + off//65536} offset:{off % 65536}")
        lg.issue(u)
    def wr(tb32):
        for i in range(4):
            a(f"ds_write_b128 v{V_REDW+i}, {vr(acc+16*tb32+4*i,4)} offset:{tb32*8192}")
    for u in range(4):
        rd(u)
    for u in range(n):
        t, tb32 = seq[u]
        lg.wait(u)
        d = vr(acc + 16*tb32, 16)
        mm("t", acc + 16*tb32, vr(wreg(t),4), vr(af+4*(u&3),4), t, True)
        rd(u + 4)
        for x in inject.get(u, []):
            a(x)
    if TSPLIT:
        k = 2*(nsteps - last)
        a(f"s_nop {11 - k}")
        wr(0)
        if k > 4:
            a(f"s_nop {k - 5}")
        wr(1)
    else:
        a("s_nop 7")
        a("s_nop 2")
        wr(0)
        wr(1)
    a("s_waitcnt lgkmcnt(0)")

def tile_loader(vm, nsteps, after):
    for q in range((nsteps + 3)//4):
        vm.wait(("a", q))
        a("s_barrier")
        after(q)

def reduce_addr():
    a(f"s_and_b32 s{T0}, s{S_W}, 2")
    a(f"s_lshl_b32 s{T0}, s{T0}, 13")
    a(f"s_and_b32 s{T1}, s{S_W}, 1")
    a(f"s_lshl_b32 s{T1}, s{T1}, 2")
    a(f"v_and_b32 v10, 31, v{V_LANE}")
    a(f"v_lshlrev_b32 v10, 8, v10")
    a(f"v_lshrrev_b32 v11, 5, v{V_LANE}")
    a(f"v_xor_b32 v11, v11, v{V_LANE}")
    a(f"v_and_b32 v11, 1, v11")
    a(f"v_lshl_add_u32 v10, v11, 7, v10")
    a(f"v_add_u32 v10, s{T0}, v10")
    a(f"v_and_b32 v11, 7, v{V_LANE}")
    a(f"v_xor_b32 v11, s{T1}, v11")
    for i in range(4):
        a(f"v_xor_b32 v{V_REDW+i}, {i}, v11")
        a(f"v_lshl_add_u32 v{V_REDW+i}, v{V_REDW+i}, 4, v10")
    a(f"v_lshrrev_b32 v10, 3, v0")
    a(f"v_xor_b32 v11, v10, v0")
    a(f"v_and_b32 v11, 7, v11")
    a(f"v_lshlrev_b32 v11, 4, v11")
    a(f"v_lshl_add_u32 v11, v10, 8, v11")
    a(f"v_and_b32 v10, 1, v10")
    a(f"v_lshl_add_u32 v{V_REDR}, v10, 7, v11")
    a(f"v_xor_b32 v{V_REDR+1}, 128, v{V_REDR}")

def tile_gather(dst):
    a("s_barrier")
    a(f"ds_read_b128 {vr(dst,4)}, v{V_REDR}")
    a(f"ds_read_b128 {vr(dst+8,4)}, v{V_REDR} offset:16384")
    a(f"ds_read_b128 {vr(dst+4,4)}, v{V_REDR+1}")
    a(f"ds_read_b128 {vr(dst+12,4)}, v{V_REDR+1} offset:16384")

def unpack8(dst, src):
    L = []
    for i in range(4):
        L.append(f"v_lshlrev_b32 v{dst+2*i}, 16, v{src+i}")
        L.append(f"v_and_b32 v{dst+2*i+1}, 0xffff0000, v{src+i}")
    return L

hdr = open("cdna_kernels/" + NAME + ".s.ref").read().split("\n")
for line in hdr:
    if line.startswith("; Override"):
        break
    a.raw(line)
a.raw(f"; @launch grid=(256,1,1) block=(512,1,1) lds={LDS_BYTES}")
a.raw('.amdgcn_target "amdgcn-amd-amdhsa--gfx950"')
a.raw(".text")
a.raw(f".globl {NAME}_kernel")
a.raw(".p2align 8")
a.raw(f".type {NAME}_kernel,@function")
a.label(f"{NAME}_kernel")

vm = Cnt(a, "vmcnt", 63)
def new_vm(): return Cnt(a, "vmcnt", 63)
a(f"s_cmp_ge_u32 s{S_WG}, 256")
a("s_cbranch_scc1 L_end")
if STAMPS:
    a("v_mov_b32 v250, 0")
stamp("start")
a(f"s_load_dwordx16 {sr(KA,16)}, s[0:1], 0")
a(f"s_load_dwordx4 {sr(KA+16,4)}, s[0:1], 64")
a(f"s_load_dwordx2 {sr(KA+20,2)}, s[0:1], 80")
a(f"s_getpc_b64 {sr(S_PC,2)}")
a.label("L_pc")
a.c("pull this kernel's code into L2, two lines per wave")
a("v_lshrrev_b32 v4, 6, v0")
a(f"s_and_b32 s{T0}, s{S_WG}, 0xf8")
a(f"v_readfirstlane_b32 s{S_W}, v4")
a(f"v_and_b32 v{V_LANE}, 63, v0")
a(f"v_lshl_add_u32 v5, v{V_LANE}, 8, v4")
a(f"v_add_u32 v5, s{T0}, v5")
a(f"v_lshlrev_b32 v5, 7, v5")
a(f"v_min_u32 v5, L_code_end-L_pc-4, v5")
a("s_mov_b64 exec, 3")
a(f"global_load_dword v251, v5, {sr(S_PC,2)}")
vm.issue("pf")
a("s_mov_b64 exec, -1")
a.c("roles: attention (hg, tb), MLP (tb2, j)")
a(f"s_and_b32 s{T0}, s{S_WG}, 7")
a(f"s_lshr_b32 s{T1}, s{S_WG}, 3")
a(f"s_lshr_b32 s{T2}, s{T0}, {3 - LH}")
a(f"s_lshl_b32 s{T2}, s{T2}, {5 - LH}")
a(f"s_lshr_b32 s{S_SHR}, s{T1}, {LH}")
a(f"s_add_u32 s{S_TB}, s{T2}, s{S_SHR}")
a(f"v_lshrrev_b32 v4, 3, v0")
if XSW:
    a(f"s_and_b32 s{T2}, s{T1}, 1")
    a(f"s_lshl_b32 s{S_STAGE}, s{T2}, 15")
    a(f"s_lshl_b32 s{T2}, s{T2}, 5")
    a(f"v_xor_b32 v4, s{T2}, v4")
a(f"v_and_b32 v5, 7, v0")
a(f"v_lshlrev_b32 v{V_ROWOFF}, 10, v4")
a(f"v_lshl_add_u32 v{V_ROWOFF}, v5, 4, v{V_ROWOFF}")
a(f"s_lshl_b32 s{T6}, s{S_TB}, 16")
for c in range(4):
    a(f"s_add_u32 s{T7}, s{S_SHR}, {c}")
    a(f"s_and_b32 s{T7}, s{T7}, 3")
    a(f"s_lshl_b32 s{T7}, s{T7}, 8")
    a(f"s_add_u32 s{S_RG[c]}, s{T6}, s{T7}")
a(f"s_mov_b32 s{R_X+2}, {2048*512*2}")
a(f"s_mov_b32 s{R_X+3}, 0x00020000")
QKV_SEG = [1024, 2048, 0]
a(f"s_lshl_b32 s{T4}, s{S_WG}, 1")
a(f"s_lshr_b32 s{T5}, s{S_W}, 2")
a(f"s_add_u32 s{T4}, s{T4}, s{T5}")
a(f"s_mul_i32 s{T4}, s{T4}, 3072")
a(f"s_and_b32 s{T5}, s{S_W}, 3")
a(f"s_lshl_b32 s{T5}, s{T5}, 8")
a(f"s_add_u32 s{T4}, s{T4}, s{T5}")
a("s_waitcnt lgkmcnt(0)")
a(f"s_mov_b64 {sr(R_X,2)}, {sr(KA,2)}")
a(f"s_add_u32 s{S_PC}, s{KA+2}, s{T4}")
a(f"s_addc_u32 s{S_PC+1}, s{KA+3}, 0")
def w_touch(segs):
    a.c("first touch of Wqkv (scalar path), a different quarter row by every wave")
    for o in segs:
        for i in range(4):
            a(f"s_load_dword s{S_SPIN}, {sr(S_PC,2)}, {o + 64*i}")
w_touch(QKV_SEG[:SPF])
if WPF:
    a(f"v_lshrrev_b32 v6, 1, v{V_LANE}")
    a(f"v_add_u32 v6, 1, v6")
    a(f"v_mul_u32_u24 v7, 11, v6")
    a(f"v_lshrrev_b32 v7, 5, v7")
    a(f"v_mul_u32_u24 v7, 3, v7")
    a(f"v_sub_u32 v6, v6, v7")
    a(f"v_lshlrev_b32 v6, 10, v6")
    a(f"v_and_b32 v7, 1, v{V_LANE}")
    a(f"v_lshl_add_u32 v6, v7, 7, v6")
    a(f"s_mov_b64 exec, {(1 << (2*WPF)) - 1}")
    a(f"global_load_dword v251, v6, {sr(S_PC,2)}")
    vm.issue("pf")
    a("s_mov_b64 exec, -1")
ln_loads(vm, R_X, S_RG)
if XSW:
    a(f"v_xor_b32 v{V_ROWOFF}, s{S_STAGE}, v{V_ROWOFF}")
a(f"s_load_dword s{S_N}, {sr(KA+20,2)}, {WS_NONCE}")
srd(R_WQKV, KA+2, 512*1536*2)
a(f"s_and_b32 s{T2}, s{T0}, {(8 >> LH) - 1}")
a(f"s_and_b32 s{T3}, s{T1}, {(1 << LH) - 1}")
a(f"s_lshl_b32 s{T3}, s{T3}, {3 - LH}")
a(f"s_add_u32 s{S_HG}, s{T2}, s{T3}")
a(f"s_lshl_b32 s{T2}, s{T0}, 2")
a(f"s_and_b32 s{T3}, s{T1}, 3")
a(f"s_add_u32 s{S_TB2}, s{T2}, s{T3}")
a(f"s_lshr_b32 s{S_J}, s{T1}, 2")
a(f"v_and_b32 v6, 31, v4")
a(f"v_xor_b32 v6, v6, v5")
a(f"v_lshlrev_b32 v6, 4, v6")
a(f"v_lshl_add_u32 v6, v5, 9, v6")
a(f"v_lshrrev_b32 v4, 5, v4")
a(f"v_lshl_add_u32 v{V_XNW}, v4, 15, v6")
ln_consts()
W1_SEG = [0, 128, 256]

QA, QB, SA, SB, OA, OB = 16, 20, 24, 40, 56, 72
A_KV = 88
A_IDX, A_AV, A_AK = 8, 14, 15
A_W1, A_WO = 3, 12
A_ONE, A_QA = 214, 215
P_W = 160
def Kf(t, ns=4): return A_KV + 12*(t % ns)
def Vf(t, s, ns=4): return A_KV + 12*(t % ns) + 4 + 4*s
def F_W(t): return 140 + 4*t if t < 24 else 64 + 4*(t - 24)

def qkv_ring_setup():
    a(f"s_lshl_b32 s{T4}, s{S_HG}, 7")
    dma_addr(V_DB, 3072, T4)
    ring_setup(3072, S_SHR, 16 if KVJ else 32)

def common_setup():
    srd(R_WS, KA+20, WS_SIZE)
    srd(R_WO, KA+4, 512*512*2)
    srd(R_W1, KA+8, 512*1376*2)
    srd(R_B1, KA+10, 1376*2)
    srd(R_W2, KA+12, 1376*512*2)
    srd(R_B2, KA+14, 512*2)
    srd(R_OUT, KA+16, 2048*512*2)
    a(f"s_min_u32 s{T2}, s{S_J}, 3")
    a(f"s_mul_i32 s{S_F0}, s{S_J}, 5")
    a(f"s_add_u32 s{S_F0}, s{S_F0}, s{T2}")
    a(f"s_cmp_lt_u32 s{S_J}, 3")
    a(f"s_cselect_b32 s{S_NT}, 6, 5")
    a(f"s_lshl_b32 s{T4}, s{S_J}, 7")
    a(f"s_lshl_b32 s{T5}, s{S_TB2}, 16")
    a(f"s_add_u32 s{S_TILE}, s{T5}, s{T4}")
    a(f"v_lshlrev_b32 v{V_L16}, 4, v{V_LANE}")
    a(f"v_lshlrev_b32 v249, 2, v{V_LANE}")
    reduce_addr()
    a(f"s_and_b32 s{T0}, s{S_W}, 3")
    a(f"s_lshl_b32 s{T2}, s{S_HG}, 2")
    a(f"s_add_u32 s{T2}, s{T2}, s{T0}")
    a(f"s_lshl_b32 s{T2}, s{T2}, 17")
    a(f"s_add_u32 s{T2}, s{T2}, {WS_KV}")
    a(f"v_and_b32 v10, 15, v{V_LANE}")
    a(f"v_lshrrev_b32 v11, 5, v{V_LANE}")
    a(f"v_lshl_add_u32 v10, v11, 4, v10")
    a(f"v_lshl_add_u32 v{A_AV}, v10, 4, s{T2}")
    a(f"v_add_u32 v{A_AK}, s{T2}, v{V_L16}")
    a.c("waves 0-3 start on this workgroup's own two key tiles; the sweep over the others skips them")
    a(f"s_lshr_b32 s{T1}, s{S_W}, 2")
    a(f"s_mul_i32 s{S_XOFF}, s{T1}, {(NA - 2)*2048}")
    a(f"s_lshl_b32 s{S_OWN}, s{S_TB}, 12")
    a(f"s_add_u32 s{S_OWN2}, s{S_OWN}, 4096")
    if LOC:
        a(f"s_and_b32 s{S_OWN2}, s{S_OWN2}, 0x1ffff")
        a(f"s_and_b32 s{T2}, s{S_OWN}, 0x7fff")
        a(f"s_cmp_ge_u32 s{S_XOFF}, s{T2}")
        a(f"s_cselect_b32 s{T3}, 4096, 0")
        a(f"s_add_u32 s{S_XOFF}, s{S_XOFF}, s{T3}")
        a(f"s_and_b32 s{T2}, s{S_OWN}, 0x18000")
        a(f"s_add_u32 s{S_XOFF}, s{S_XOFF}, s{T2}")
        a(f"s_and_b32 s{S_XOFF}, s{S_XOFF}, 0x1ffff")
    else:
        a(f"s_cmp_ge_u32 s{S_XOFF}, s{S_OWN}")
        a(f"s_cselect_b32 s{T3}, 4096, 0")
        a(f"s_add_u32 s{S_XOFF}, s{S_XOFF}, s{T3}")
    a(f"s_mov_b32 s{S_MASKV}, 0xffff")
    a(f"s_mov_b32 s{S_MASKV+1}, 0xffff")
    a.c("rows 16 and 20 of the V operand are ones (row sums for both lane halves), the other spare rows zero")
    a(f"v_and_b32 v10, 0x1b, v{V_LANE}")
    a(f"v_cmp_eq_u32 vcc, 16, v10")
    a(f"v_mov_b32 v10, 0x3f803f80")
    a(f"v_mov_b32 v11, 0")
    a(f"v_cndmask_b32 v{A_ONE}, v11, v10, vcc")
    a(f"s_lshl_b32 s{T2}, s{S_W}, 10")
    a(f"v_add_u32 v{A_QA}, s{T2}, v{V_L16}")
    a(f"s_lshl_b32 s{T2}, s{S_TB}, 1")
    a(f"s_add_u32 s{T2}, s{T2}, s{T1}")
    a(f"s_lshl_b32 s{T2}, s{T2}, 3")
    a(f"s_add_u32 s{T2}, s{T2}, s{S_HG}")
    a(f"s_lshl_b32 s{T2}, s{T2}, 2")
    a(f"s_add_u32 s{T2}, s{T2}, s{T0}")
    a(f"s_lshl_b32 s{T2}, s{T2}, 10")
    a(f"s_add_u32 s{S_HEAD}, s{T2}, {WS_OF}")

A_KF = 216
def kvflag_setup():
    if KVL:
        a(f"s_and_b32 s{S_SPIN}, s{S_TB}, 7")
        a(f"s_lshl_b32 s{S_FOWN}, s{S_TB}, 2")
        a(f"s_and_b32 s{S_FOWN}, s{S_FOWN}, 0x60")
        a(f"s_add_u32 s{S_SPIN}, s{S_SPIN}, s{S_FOWN}")
        flag_addr(WS_FKV, S_HG, S_SPIN, S_HG, 9)
        a(f"v_and_b32 v10, 7, v{V_LANE}")
        a(f"v_lshrrev_b32 v11, 3, v{V_LANE}")
        a(f"v_lshlrev_b32 v11, 7, v11")
        a(f"v_lshl_add_u32 v{A_KF}, v10, 2, v11")
    else:
        flag_addr(WS_FKV, S_HG, S_TB, S_HG, 9)
        a(f"v_mov_b32 v{A_KF}, v249")

def tag_setup():
    a.c("hand-off tag of this launch: next value of a full-period sequence after the one found in the workspace")
    a(f"s_mul_i32 s{S_N}, s{S_N}, 0x0019660d")
    a(f"s_add_u32 s{S_N}, s{S_N}, 0x3c6ef35f")
    a(f"v_mov_b32 v248, s{S_N}")

def misc_loads(v, with_b1):
    a.c("small operands needed much later: residual x tile, biases")
    a(f"buffer_load_dwordx4 {vr(V_HRES,4)}, v{V_ROWOFF}, {sr(R_X,4)}, s{S_TILE} offen")
    a(f"v_and_b32 v10, 0x70, v{V_L16}")
    a(f"s_lshl_b32 s{T7}, s{S_J}, 7")
    a(f"buffer_load_dwordx4 {vr(V_B2,4)}, v10, {sr(R_B2,4)}, s{T7} offen")
    v.issue("misc", 2)
    if with_b1:
        swap23(10, 31, 11)
        a(f"v_lshlrev_b32 v10, 1, v10")
        a(f"s_lshr_b32 s{T7}, s{S_W}, 1")
        a(f"s_add_u32 s{T7}, s{T7}, s{S_F0}")
        a(f"s_lshl_b32 s{T7}, s{T7}, 6")
        for seg in range(3):
            a(f"buffer_load_ushort v{V_B1+seg}, v10, {sr(R_B1,4)}, s{T7} offen offset:{seg*128}")
        v.issue("misc", 3)

def attn_zero(ns):
    L = [(SB+8+i, f"v_mov_b32 v{SB+8+i}, 0") for i in range(8)]
    L += [(o+i, f"v_mov_b32 v{o+i}, 0") for o in (OA, OB) for i in range(16)]
    L += [(Vf(t,0,ns)+i, f"v_mov_b32 v{Vf(t,0,ns)+i}, v{A_ONE}") for t in range(ns) for i in range(8)]
    return L

def q_reads():
    a(f"v_xor_b32 v10, 4096, v{A_QA}")
    a(f"ds_read_b128 {vr(QA,4)}, v{A_QA} offset:{L_Q}")
    a(f"ds_read_b128 {vr(QB,4)}, v10 offset:{L_Q}")

def kv_load(v, t, ns, part=None):
    imm = 2048*(t & 1)
    so = S_OWN if t < 0 else S_XOFF
    if part != "v":
        a(f"buffer_load_dwordx4 {vr(Kf(t,ns),4)}, v{A_AK}, {sr(R_WS,4)}, s{so} offen offset:{imm} sc1")
    if part == "k":
        return
    a(f"s_mov_b64 exec, {sr(S_MASKV,2)}")
    a(f"buffer_load_dwordx4 {vr(Vf(t,0,ns),4)}, v{A_AV}, {sr(R_WS,4)}, s{so} offen offset:{imm+1024} sc1")
    a(f"buffer_load_dwordx4 {vr(Vf(t,1,ns),4)}, v{A_AV}, {sr(R_WS,4)}, s{so} offen offset:{imm+1536} sc1")
    a("s_mov_b64 exec, -1")
    if t & 1 and t >= 0:
        a(f"s_add_u32 s{S_XOFF}, s{S_XOFF}, 4096")
        if LOC:
            a(f"s_and_b32 s{S_XOFF}, s{S_XOFF}, 0x1ffff")
        if ns == 6 or not LOC:
            a(f"s_cmp_eq_u32 s{S_XOFF}, s{S_OWN}")
            a(f"s_cselect_b32 s{S_XOFF}, s{S_OWN2}, s{S_XOFF}")
    v.issue(("kv", t), 3)
def kv_load2(v, t, ns):
    for k in range(2):
        a(f"buffer_load_dwordx4 {vr(Kf(t+k,ns),4)}, v{A_AK}, {sr(R_WS,4)}, s{S_XOFF} offen offset:{2048*k} sc1")
    a(f"s_mov_b64 exec, {sr(S_MASKV,2)}")
    for k in range(2):
        for h in range(2):
            a(f"buffer_load_dwordx4 {vr(Vf(t+k,h,ns),4)}, v{A_AV}, {sr(R_WS,4)}, s{S_XOFF} offen offset:{2048*k+1024+512*h} sc1")
    a("s_mov_b64 exec, -1")
    a(f"s_add_u32 s{S_XOFF}, s{S_XOFF}, 4096")
    a(f"s_and_b32 s{S_XOFF}, s{S_XOFF}, 0x1ffff")
    a(f"s_cmp_eq_u32 s{S_XOFF}, s{S_OWN}")
    a(f"s_cselect_b32 s{S_XOFF}, s{S_OWN2}, s{S_XOFF}")
    v.issue(("kv", t + 1), 5)
    v.issue(("kv", t), 1)
def smf(o, v, s):
    a(f"v_smfmac_f32_32x32x32_bf16 {vr(o,16)}, {vr(v,4)}, {vr(s,8)}, v{A_IDX}")
def attn_tile(v, t, ns, last=None, side=(), tail=None, load=True):
    side = list(side)
    order = {1: [(0, 13)], 2: [(0, 13), (1, 13)], 4: [(0, 4), (0, 13), (1, 4), (1, 13)]}[NBLK]
    at = {}
    for k, f in enumerate(side):
        at.setdefault(order[k*NBLK//len(side)], []).append(f)
    for ph in range(2):
        S, So, O, Oo, Qo = (SA, SB, OA, OB, QB) if ph == 0 else (SB, SA, OB, OA, QA)
        for i in range(16):
            for f in at.get((ph, i), []):
                f()
            if i == 2:
                smf(Oo, Vf(t - 1 + ph, 1, ns), So + 8)
            if i == 5 and not (ph == 1 and t == last):
                if ph == 1:
                    v.wait(("kv", t + 1))
                a(f"v_mfma_f32_32x32x16_bf16 {vr(So,16)}, {vr(Kf(t+ph,ns),4)}, {vr(Qo,4)}, 0")
            if i == 10:
                smf(O, Vf(t, 0, ns), S)
            if ph == 0 and i == KPOS and ns == 6 and load and (last is None or t + ns - 1 <= last):
                kv_load(v, t + ns - 1, ns, "k")
            if ph == 0 and i == LPOS and load and (last is None or t + ns - 1 <= last):
                if BAT and ns == 6 and t >= 0:
                    if t % 2 == 0:
                        kv_load2(v, t + 4, ns)
                        if BAT == 1:
                            v.wait(("kv", t + 2))
                else:
                    kv_load(v, t + ns - 1, ns, "v" if KPOS >= 0 and ns == 6 else None)
                    if WM and t >= 0 and ns == 6:
                        v.wait(("kv", t + 1))
            if ph == 1 and i == 12 and tail:
                tail()
            a(f"v_exp_f32 v{S+i}, v{S+i}")
def attn_first(v, t, ns, fill=None):
    v.wait(("kv", t), extra="lgkmcnt(0)")
    a(f"v_mfma_f32_32x32x16_bf16 {vr(SA,16)}, {vr(Kf(t,ns),4)}, {vr(QA,4)}, 0")
    if fill:
        fill()
    a("s_nop 7")
    a("s_nop 3")

a.c("======== phase 1: LN1 + QKV projection")
stamp("setup") if PROBE else None
va, vb = vm.copy(), vm.copy()
is_a("L_p1_a")
def w_prefetch(v, segs):
    if not segs:
        return
    a.c("4 rows per wave of the XCD's Wqkv columns into L2")
    a(f"s_lshr_b32 s{T5}, s{S_WG}, 3")
    a(f"s_lshl_b32 s{T5}, s{T5}, 2")
    a(f"s_and_b32 s{T7}, s{S_W}, 3")
    a(f"s_add_u32 s{T5}, s{T5}, s{T7}")
    a(f"s_mul_i32 s{T5}, s{T5}, {4*3072}")
    a(f"s_and_b32 s{T7}, s{S_HG}, {(8 >> LH) - 1}")
    a(f"s_lshl_b32 s{T7}, s{T7}, 7")
    a(f"s_add_u32 s{T5}, s{T5}, s{T7}")
    a(f"v_lshrrev_b32 v10, {LH}, v{V_LANE}")
    a(f"v_mul_u32_u24 v10, 3072, v10")
    a(f"v_and_b32 v11, {(1 << LH) - 1}, v{V_LANE}")
    a(f"v_lshl_add_u32 v10, v11, {10 - LH}, v10")
    a(f"s_mov_b64 exec, {(1 << (4 << LH)) - 1:#x}")
    for o in segs:
        a(f"buffer_load_dword v251, v10, {sr(R_WQKV,4)}, s{T5} offen offset:{o}")
        v.issue("pf")
    a("s_mov_b64 exec, -1")
w_prefetch(vb, QKV_SEG[:L2PF])
if opt("diag", 0):
    stamp("pf issued")
    a(f"s_waitcnt vmcnt({L2PF})")
    stamp("pf xin")
    for k in range(L2PF):
        a(f"s_waitcnt vmcnt({L2PF - 1 - k})")
        stamp(f"pf done{k}")
qkv_ring_setup()
for n in range(NPB):
    qkv_issue(vb, n)
ln_stats(vb, 2.0)
a("s_branch L_p1_norm")

a.label("L_p1_a")
common_setup()
a.c("first touch (scalar path) of the flag lines and the biases")
a(f"s_lshl_b32 s{T2}, s{S_TB2}, 2")
a(f"s_add_u32 s{T2}, s{T2}, s{S_W}")
a(f"s_lshl_b32 s{T2}, s{T2}, 7")
a(f"s_add_u32 s{T2}, s{T2}, {WS_FG}")
a(f"s_load_dword s{S_SPIN}, {sr(KA+20,2)}, s{T2}")
a(f"s_lshl_b32 s{T2}, s{S_HG}, 2")
a(f"s_add_u32 s{T2}, s{T2}, s{S_W}")
a(f"s_lshl_b32 s{T2}, s{T2}, {7 if KVL else 6}")
if not KVL:
    a(f"s_lshl_b32 s{T3}, s{S_HG}, 8")
    a(f"s_add_u32 s{T2}, s{T2}, s{T3}")
a(f"s_add_u32 s{T2}, s{T2}, {WS_FKV}")
a(f"s_load_dword s{S_SPIN}, {sr(KA+20,2)}, s{T2}")
a(f"s_lshl_b32 s{T2}, s{S_TB2}, 8")
a(f"s_add_u32 s{T2}, s{T2}, {WS_FO}")
a(f"s_load_dword s{S_SPIN}, {sr(KA+20,2)}, s{T2}")
a(f"s_lshl_b32 s{T2}, s{S_WG}, 2")
a(f"s_add_u32 s{T2}, s{T2}, {WS_FC}")
a(f"s_load_dword s{S_SPIN}, {sr(KA+20,2)}, s{T2}")
if opt("hst", 0):
    a(f"s_lshl_b32 s{T2}, s{S_WG}, 2")
    a(f"s_add_u32 s{T2}, s{T2}, s{S_W}")
    a(f"s_lshl_b32 s{T2}, s{T2}, 7")
    a(f"s_add_u32 s{T2}, s{T2}, {WS_HS}")
    a(f"s_add_u32 s{T3}, s{T2}, 64")
    a(f"s_load_dword s{S_SPIN}, {sr(KA+20,2)}, s{T2}")
    a(f"s_load_dword s{S_SPIN}, {sr(KA+20,2)}, s{T3}")
a(f"s_lshl_b32 s{T2}, s{S_W}, 1")
a(f"s_add_u32 s{T2}, s{T2}, s{S_F0}")
a(f"s_min_u32 s{T2}, s{T2}, 41")
a(f"s_lshl_b32 s{T2}, s{T2}, 6")
a(f"s_add_u32 s{T3}, s{T2}, 64")
a(f"s_load_dword s{S_SPIN}, {sr(KA+10,2)}, s{T2}")
a(f"s_load_dword s{S_SPIN}, {sr(KA+10,2)}, s{T3}")
a(f"s_and_b32 s{T2}, s{S_W}, 1")
a(f"s_lshl_b32 s{T2}, s{T2}, 6")
a(f"s_add_u32 s{T2}, s{T2}, s{T4}")
a(f"s_load_dword s{S_SPIN}, {sr(KA+14,2)}, s{T2}")
if opt("tlb", 0):
    a.c("... and of the pages used later")
    a(f"s_lshr_b32 s{T2}, s{S_WG}, 3")
    a(f"s_lshl_b32 s{T2}, s{T2}, 2")
    a(f"s_add_u32 s{T2}, s{T2}, s{S_W}")
    a(f"s_lshl_b32 s{T3}, s{T2}, 12")
    a(f"s_load_dword s{S_SPIN}, {sr(KA+4,2)}, s{T3}")
    a(f"s_mul_i32 s{T3}, s{T2}, 11008")
    a(f"s_load_dword s{S_SPIN}, {sr(KA+8,2)}, s{T3}")
    a(f"s_load_dword s{S_SPIN}, {sr(KA+12,2)}, s{T3}")
    if opt("tlb", 0) > 1:
        a(f"s_lshl_b32 s{T3}, s{T2}, 17")
        a(f"s_load_dword s{S_SPIN}, {sr(KA+20,2)}, s{T3}")
        a(f"s_lshl_b32 s{T3}, s{T2}, 14")
        a(f"s_load_dword s{S_SPIN}, {sr(KA+16,2)}, s{T3}")
w_addr()
x_addr(False)
qkv_ring_setup()
a(f"s_and_b32 s{T0}, s{S_W}, 1")
a(f"s_lshr_b32 s{T1}, s{S_W}, 1")
tr_lane_addr(A_WO, T0, False)
a(f"s_lshl_b32 s{T7}, s{T1}, 15")
a(f"v_add_u32 v{A_WO}, s{T7}, v{A_WO}")
E_K, E_V, E_Q, E_C = 208, 209, 210, 212
swap23(10, 63, 11)
a(f"v_lshlrev_b32 v{E_K}, 4, v10")
a(f"v_and_b32 v10, 15, v{V_LANE}")
a("v_lshlrev_b32 v10, 4, v10")
a(f"v_lshrrev_b32 v11, 5, v{V_LANE}")
a("v_lshl_add_u32 v10, v11, 8, v10")
a(f"v_bfe_u32 v11, v{V_LANE}, 4, 1")
a(f"v_lshl_add_u32 v{E_V}, v11, 17, v10")
a(f"s_lshl_b32 s{T2}, s{T0}, 12")
a(f"s_lshl_b32 s{T3}, s{T1}, 11")
a(f"s_add_u32 s{T2}, s{T2}, s{T3}")
a(f"v_add_u32 v{E_Q}, s{T2}, v{V_L16}")
a(f"v_mov_b32 v{E_C}, {f32(0.25*math.log2(math.e))}")
a(f"v_mov_b32 v{E_C+1}, v{E_C}")
a(f"s_lshl_b32 s{T2}, s{S_HG}, 1")
a(f"s_add_u32 s{T2}, s{T2}, s{T1}")
a(f"s_lshl_b32 s{T2}, s{T2}, 18")
a(f"s_lshl_b32 s{T3}, s{S_TB}, 1")
a(f"s_add_u32 s{T3}, s{T3}, s{T0}")
a(f"s_lshl_b32 s{T3}, s{T3}, 11")
a(f"s_add_u32 s{T2}, s{T2}, s{T3}")
a(f"s_add_u32 s{T2}, s{T2}, {WS_KV}")
a(f"s_add_u32 s{T3}, s{T2}, 0x20000")
ln_stats(va, 1.0)
a.label("L_p1_norm")
ln_norm(1.0)
stamp("ln1 done")
is_a("L_p1_compute")

W2_HOME = [(0, 65536, 49152), (24, 131072, 16384), (32, 20480, 22528)]
if W2L:
    W2_HOME = [(0, 65536, 49152), (24, 20480, 6144), (27, 0, 32768)]
W2_END = 27 if W2L else 43
S_H = [T4, T5, T6]
def w2_home(t):
    k = 0 if t < 24 else 1 if t < W2_HOME[2][0] else 2
    return k, (t - W2_HOME[k][0])*2048
def staging_setup():
    a(f"s_lshl_b32 s{T4}, s{S_J}, 7")
    dma_addr(V_DA, 1024, T4)
    a(f"s_lshl_b32 s{T4}, s{S_F0}, 6")
    dma_addr(V_DB, 2752, T4)
    a(f"v_lshrrev_b32 v10, 2, v{V_LANE}")
    a(f"v_mul_u32_u24 v10, 2752, v10")
    a(f"v_and_b32 v11, 3, v{V_LANE}")
    a(f"v_lshlrev_b32 v11, 7, v11")
    a(f"v_min_u32 v11, {252 if WS1[0] == 4 else 380}, v11")
    a(f"v_add3_u32 v{A_W1}, v10, v11, s{T4}")
    a(f"s_and_b32 s{T0}, s{S_W}, 3")
    a(f"s_lshl_b32 s{S_D0}, s{T0}, 13")
    a(f"s_lshl_b32 s{S_D1}, s{T0}, 10")
    a(f"s_mul_i32 s{S_D2}, s{T0}, {8*2752}")
    a(f"s_and_b32 s{T4}, s{S_TB2}, 3")
    a(f"s_lshl_b32 s{T4}, s{T4}, 2")
    a(f"s_add_u32 s{T4}, s{T4}, s{T0}")
    a(f"s_mul_i32 s{S_D4}, s{T4}, {32*2752}")
    a(f"s_and_b32 s{T2}, s{S_W}, 1")
    a(f"s_bfe_u32 s{T3}, s{S_W}, 0x10001")
    tr_lane_addr(7, T2, False)
    for k, (t0, base, stride) in enumerate(W2_HOME):
        a(f"s_mul_i32 s{S_H[k]}, s{T3}, {stride}")
        a(f"s_add_u32 s{S_H[k]}, s{S_H[k]}, {base}")
        a(f"v_add_u32 v{4+k}, s{S_H[k]}, v7")
        a(f"s_lshl_b32 s{T7}, s{T2}, 10")
        a(f"s_add_u32 s{S_H[k]}, s{S_H[k]}, s{T7}")
    a(f"v_mov_b32 v{A_IDX}, 0xdddddddd")
def mall_touch():
    a.c("first touch of the later weights, different lines by every wave")
    a(f"s_lshl_b32 s{T2}, s{S_WG}, 2")
    a(f"s_add_u32 s{T2}, s{T2}, s{S_W}")
    a(f"s_sub_u32 s{T2}, s{T2}, 4")
    a(f"s_lshl_b32 s{T3}, s{T2}, 9")
    a(f"s_mul_i32 s{T2}, s{T2}, {11*128}")
    a(f"v_lshlrev_b32 v10, 7, v{V_LANE}")
    for r, so, m in ((R_WO, T3, 15), (R_W2, T2, 0x7ff), (R_W1, T2, 0x7ff)):
        a(f"s_mov_b64 exec, {m:#x}")
        a(f"buffer_load_dword v251, v10, {sr(r,4)}, s{so} offen")
        vb.issue("pf")
    a("s_mov_b64 exec, -1")
cs = capture(common_setup)
late = {3: cs[:40], 4: cs[40:80], 5: cs[80:], 6: [x for _, x in attn_zero(4)][:36], 7: [x for _, x in attn_zero(4)][36:],
        8: capture(staging_setup)[:38], 9: capture(staging_setup)[38:], 10: capture(tag_setup) + capture(kvflag_setup)}
later = []
if LATE:
    for k in ((8, 9) if LATE == 1 else (6, 7, 8, 9)):
        later += late.pop(k)
for k in (40, 80):
    assert not cs[k].startswith("s_cselect") and "vcc" not in cs[k]
nxw = NPA
for n in range(12):
    vb.wait(("w", n), extra="lgkmcnt(0)" if n == 0 else "")
    if opt("bst", -1) == n:
        stamp(f"bw{n}")
    a("s_barrier")
    if opt("bst", -1) == n:
        stamp(f"bb{n}")
    while nxw <= min(11, n + NB0 + 1, n + 4 if n >= 2 else 5):
        qkv_issue(vb, nxw)
        nxw += 1
    if n == QPF:
        w_prefetch(vb, QKV_SEG[2:])
    for x in late.get(n, []):
        a(x)
    if n == MW:
        mall_touch()
misc_loads(vb, False)
a("s_barrier")
flag_store(4)
L_GO = L_Q + 8192
if LF:
    a("v_mov_b32 v9, 0")
    a(f"ds_write_b32 v9, v9 offset:{L_GO}")
    a("s_waitcnt lgkmcnt(0)")
a("s_barrier")
q_reads()
for x in later:
    a(x)
if not KVP:
    if SLP:
        a(f"s_sleep {SLP}")
    if LF:
        a(f"s_lshr_b32 s{T7}, s{S_TB}, 3")
        a(f"s_lshl_b32 s{T7}, s{T7}, 7")
        a(f"v_add_u32 v10, s{T7}, v249")
        flag_poll(4, 8, 0, 10)
    else:
        flag_poll(4, 32, 0, A_KF)
    stamp("kv seen B")
a("s_waitcnt lgkmcnt(0)")
a("s_barrier")
if LF:
    a.c("the remaining flags: wave 4 polls, waves 5-7 watch an LDS word")
    flag_poll(4, 32, 0, A_KF)
    def go():
        a("v_mov_b32 v10, 1")
        a(f"ds_write_b32 v9, v10 offset:{L_GO}")
    only(4, go)
    a(f"s_mov_b32 s{S_SPIN}, 0")
    a.label("L_go")
    a(f"ds_read_b32 v10, v9 offset:{L_GO}")
    a(f"s_add_u32 s{S_SPIN}, s{S_SPIN}, 1")
    a(f"s_lshr_b32 s{T2}, s{S_SPIN}, 22")
    a("s_waitcnt lgkmcnt(0)")
    a(f"v_readfirstlane_b32 s{T7}, v10")
    a("s_nop 0")
    a(f"s_or_b32 s{T7}, s{T7}, s{T2}")
    a("s_cbranch_scc0 L_go")
    stamp("kv all B")
a.c("======== phase 2, waves 4-7: fewer key tiles, and the weights of the later phases go on chip")
NB = 64 - NA
a("s_setprio 1")
for t in range(3):
    kv_load(vb, t, 4)
attn_first(vb, 0, 4)
if MW == -1:
    mall_touch()
F0 = [5*j + min(j, 3) for j in range(8)]
TL = [F0[j] + 2*p + i for p in range(2) for j in range(8) for i in range(2)] + [F0[j] + i for j in range(8) for i in range(4, 6 if j < 3 else 5)]
assert sorted(TL) == list(range(43))
ND = opt("nd", 0)
def mk(*x):
    if ND == 1:
        return lambda: None
    if ND == 2:
        return lambda: a("\n".join(capture(dma, new_vm(), *x)[:2]))
    if ND == 3:
        return lambda: dma(vb, x[0], x[1], x[2], x[3], 0, x[5], x[6])
    return lambda: dma(vb, *x)
L_wo = [mk("r1", R_WO, V_DA, S_D0, k*32768, S_D1, k*4096) for k in range(16)]
L_w2 = [mk("r1" if t < 24 else "r2", R_W2, V_DA, S_D0, TL[t]*32768, S_H[w2_home(t)[0]], w2_home(t)[1]) for t in range(43)]
L_w1 = [mk("r2", R_W1, V_DB, S_D2, k*32*2752, S_D1, L_RING + k*4096) for k in range(16)]
def d_warm(k):
    def f():
        a(f"s_add_u32 s{T7}, s{S_D4}, {k*16*2752 + (128 if WS1[0] == 4 else 0)}")
        a(f"buffer_load_dword v251, v{A_W1}, {sr(R_W1,4)}, s{T7} offen")
        vb.issue("pf")
    return f
def d_rd(t):
    k, off = w2_home(t)
    return lambda: tr_read(F_W(t), 4 + k, off)
def d_c3():
    a.c("lines at 384 mod 1024 stream slowly past L2 into a single CU: every workgroup pulls a few of them")
    a(f"s_lshr_b32 s{T2}, s{S_WG}, 3")
    a(f"s_lshl_b32 s{T2}, s{T2}, 2")
    a(f"s_add_u32 s{T2}, s{T2}, s{T0}")
    a(f"s_lshl_b32 s{T3}, s{T2}, 12")
    a(f"s_mul_i32 s{T2}, s{T2}, {11*1024}")
    a(f"v_lshlrev_b32 v10, 10, v{V_LANE}")
    for r, so, m in ((R_WO, T3, 15), (R_W2, T2, 0x7ff)):
        a(f"s_mov_b64 exec, {m:#x}")
        a(f"buffer_load_dword v251, v10, {sr(r,4)}, s{so} offen offset:384")
        vb.issue("pf")
    a("s_mov_b64 exec, -1")
def d_code():
    a.c("the code of the later phases back into L2, two lines per wave")
    a(f"s_getpc_b64 {sr(S_PC,2)}")
    a.label("L_pc2")
    a(f"s_lshr_b32 s{T2}, s{S_WG}, 3")
    a(f"s_lshl_b32 s{T2}, s{T2}, 2")
    a(f"s_add_u32 s{T2}, s{T2}, s{T0}")
    a(f"s_lshl_b32 s{T2}, s{T2}, 7")
    a(f"s_add_u32 s{T2}, s{T2}, L_attn_end-L_pc2")
    a(f"v_lshl_add_u32 v10, v{V_LANE}, 14, s{T2}")
    a(f"v_min_u32 v10, L_code_end-L_pc2-4, v10")
    a("s_mov_b64 exec, 3")
    a(f"global_load_dword v251, v10, {sr(S_PC,2)}")
    vb.issue("pf")
    a("s_mov_b64 exec, -1")
def share(L, tiles):
    return {t: L[k*len(L)//len(tiles):(k+1)*len(L)//len(tiles)] for k, t in enumerate(tiles)}
plan = {0: [lambda: None]*3 + [d_c3]}
plan.update(share(L_wo + L_w2[:24], list(range(T0B, TB1 - 1))))
if ND != 4:
    plan.update(share([d_rd(t) for t in range(24)], list(range(TB1, TB1 + TB2))))
plan.update(share(L_w2[24:W2_END] + L_w1[:2*WS1[0]] + [d_warm(0)] + L_w1[2*WS1[0]:4*WS1[0]] + [d_warm(1)], list(range(TB1 + TB2, NB - TEND))))
if opt("cpf", 1):
    plan[NB - opt("cpf", 1)] = [d_code] + plan.get(NB - opt("cpf", 1), [])
for t in range(NB):
    if t == 1 and LF:
        a("s_barrier")
    if t == TB1:
        vb.wait("r1")
        a("s_barrier")
    if t == TB1 + TB2:
        a("s_waitcnt lgkmcnt(0)")
        a("s_barrier")
    attn_tile(vb, t, 4, NB - 1, plan.get(t, []))
vb.wait("r2")
a("s_setprio 0")
a("s_nop 0")
smf(OB, Vf(NB - 1, 1, 4), SB+8)
a("s_branch L_attn_end")

a.label("L_p1_compute")
for n in range(NPB, NPA):
    qkv_issue(va, n)
stamp("w0 issued")
w_prefetch(va, QKV_SEG[L2PF:opt("l2e", 2)])
def cvt_inplace(b):
    return [f"v_cvt_pk_bf16_f32 v{b+i}, v{b+2*i}, v{b+2*i+1}" for i in range(8)]
aK, aV, aQ = 144, 160, 176
inj = {2: capture(tag_setup)}
spread(inj, [(x, 1) for x in capture(kvflag_setup)], 4, 20)
items = [(x, 1) for x in cvt_inplace(aK)]
items += [((f"buffer_store_dwordx4 {vr(aK,4)}, v{E_K}, {sr(R_WS,4)}, s{T2} offen sc1", "st"), 2),
          ((f"buffer_store_dwordx4 {vr(aK+4,4)}, v{E_K}, {sr(R_WS,4)}, s{T3} offen sc1", "st"), 2)]
spread(inj, items, *((67, 70) if KVJ else (36, 42)))
items = [(x, 1) for x in cvt_inplace(aV)]
items += [((f"buffer_store_dwordx4 {vr(aV,4)}, v{E_V}, {sr(R_WS,4)}, s{T2} offen offset:1024 sc1", "st"), 2),
          ((f"buffer_store_dwordx4 {vr(aV+4,4)}, v{E_V}, {sr(R_WS,4)}, s{T2} offen offset:1536 sc1", "st"), 2)]
spread(inj, items, *((70, 73) if KVJ else (67, 71)))
a_zero = attn_zero(6)
spread(inj, [(x, 1) for r, x in a_zero if r >= 144], *((80, 92) if KVJ else (48, 60)))
for r, x in a_zero:
    if r < 144:
        inj.setdefault(64 + (r - G_X)//4, []).append(x)
def pub_kv():
    va.wait("st")
    a("s_barrier")
    stamp("kv drained")
gemm_compute(va, [aK, aV, aQ], [192, 196, 200, 204, 224, 228], {1}, {0, 1, 2}, inj, {UKV: pub_kv}, range(12), 'p1', 4096, None, KVJ)
kv_load(va, -2, 6)
kv_load(va, -1, 6)
a(f"v_mov_b32 v{A_IDX}, 0xdddddddd")
for i in range(8):
    a(f"v_pk_mul_f32 {vr(aQ+2*i,2)}, {vr(aQ+2*i,2)}, {vr(E_C,2)}")
for x in cvt_inplace(aQ):
    a(x)
a(f"ds_write_b128 v{E_Q}, {vr(aQ,4)} offset:{L_Q}")
a(f"ds_write_b128 v{E_Q}, {vr(aQ+4,4)} offset:{L_Q+1024}")
a("s_waitcnt lgkmcnt(0)")
a("s_barrier")
stamp("p1 done")
q_reads()
misc_loads(va, True)
a.c("======== phase 2, waves 0-3: attention; wave = head, 64 queries")
a(f"s_setprio {PRA}")
a(f"s_mov_b32 s{S_D4}, 1")
a(f"s_mov_b32 s{S_LOOP}, {1 if LF else IT1}")
a(f"s_mov_b32 s{S_STAGE}, {0 if LF else 1}")
def kv_try():
    a("s_mov_b32 exec_hi, 0")
    a(f"buffer_load_dword v247, v{A_KF}, {sr(R_WS,4)}, s{S_FPOLL} offen sc1")
    a("s_mov_b32 exec_hi, -1")
def kv_check():
    a("s_waitcnt vmcnt(0)")
    flag_poll(None, 32, 0, A_KF)
attn_first(va, -2, 6, (lambda: only(0, kv_try)) if KVP else None)
attn_tile(va, -2, 6, load=False)
stamp("own done")
if KVP:
    only(0, kv_check)
a("s_barrier")
stamp("kv ready")
for t in range(4):
    kv_load(va, t, 6)
flag_addr(WS_FO, S_TB, S_HG, S_TB2)
attn_tile(va, -1, 6, load=not BAT)
if BAT:
    va.wait(('kv', 1))
    va.q = [('kv', 3)]*5 + [('kv', 2)]
a("s_branch L_attn")
a.label("L_attn_s0")
a("s_barrier")
a(f"s_setprio {PRA}")
a(f"s_mov_b32 s{S_LOOP}, {IT1 - 1}")
a("s_branch L_attn")
a.label("L_attn_s1")
a("s_barrier")
a(f"s_setprio {PRA}")
for t in range(16 if ND != 4 else 0):
    tr_read(P_W + 4*t, A_WO, t*2048)
a(f"s_mov_b32 s{S_LOOP}, {IT2}")
a("s_branch L_attn")
a.label("L_attn_s2")
a("s_waitcnt lgkmcnt(0)")
a("s_barrier")
a(f"s_setprio {PRA}")
if FEND <= (NA - 2) % 6:
    a(f"s_mov_b32 s{S_D4}, 0")
a(f"s_mov_b32 s{S_LOOP}, {(NA - 2)//6 - IT1 - IT2}")
a.raw(".p2align 4")
a.label("L_attn")
def loop_tail():
    a(f"s_sub_u32 s{S_LOOP}, s{S_LOOP}, 1")
    a(f"s_cmp_lg_u32 s{S_LOOP}, 0")
for t in range(6):
    if t == FLIP:
        a(f"s_cmp_lg_u32 s{S_LOOP}, s{S_D4}")
        a("s_cbranch_scc1 L_keep")
        a("s_setprio 0")
        a.label("L_keep")
    attn_tile(va, t, 6, None, [], loop_tail if t == 5 else None)
a("s_cbranch_scc1 L_attn")
a(f"s_add_u32 s{S_STAGE}, s{S_STAGE}, 1")
for k in range(3):
    a(f"s_cmp_eq_u32 s{S_STAGE}, {k + 1}")
    a(f"s_cbranch_scc1 L_attn_s{k}")
NT_ = (NA - 2) % 6
for t in range(6, 6 + NT_):
    if 6 + NT_ - t == FEND:
        a("s_setprio 0")
    attn_tile(va, t, 6, 5 + NT_)
if NT_:
    a("s_nop 1")
smf(OB, Vf(5 + NT_, 1, 6), SB+8)
a("s_setprio 0")

a.label("L_attn_end")
stamp("attn loop done")
a.c("combine the two key ranges: keep A, send B")
a(f"s_lshl_b32 s{T2}, s{S_W}, 11")
a(f"v_add_u32 v10, s{T2}, v{V_L16}")
a(f"s_lshl_b32 s{T2}, s{S_W}, 8")
a(f"v_add_u32 v11, s{T2}, v249")
a(f"v_xor_b32 v{SB+3}, 8192, v10")
a(f"v_xor_b32 v{SB+2}, 1024, v11")
a(f"v_mov_b32 v{SB}, {f32(2.0**-64)}")
a(f"v_mov_b32 v{SB+1}, {f32(2.0**64)}")
a("s_nop 2")
a(f"ds_write_b32 v11, v{OB+8} offset:{L_OX+16384}")
a(f"ds_write_b128 v10, {vr(OB,4)} offset:{L_OX}")
a(f"ds_write_b128 v10, {vr(OB+4,4)} offset:{L_OX+1024}")
a("s_waitcnt lgkmcnt(0)")
a("s_barrier")
a(f"ds_read_b32 v{SA+8}, v{SB+2} offset:{L_OX+16384}")
a(f"ds_read_b128 {vr(SA,4)}, v{SB+3} offset:{L_OX}")
a(f"ds_read_b128 {vr(SA+4,4)}, v{SB+3} offset:{L_OX+1024}")
a("s_waitcnt lgkmcnt(2)")
a(f"v_add_f32 v{OA+8}, v{OA+8}, v{SA+8}")
a.c("the loop subtracted no row maximum: a row sum outside [2^-64, 2^64] (or NaN) sends the wave to the true-max path")
a(f"v_cmp_ge_f32 vcc, v{OA+8}, v{SB}")
a(f"v_cmp_le_f32 {sr(S_SAVE,2)}, v{OA+8}, v{SB+1}")
a("s_waitcnt lgkmcnt(0)")
for i in range(4):
    a(f"v_pk_add_f32 {vr(OA+2*i,2)}, {vr(OA+2*i,2)}, {vr(SA+2*i,2)}")
a(f"s_and_b64 vcc, vcc, {sr(S_SAVE,2)}")
a(f"s_cmp_eq_u64 vcc, -1")
if FORCE_FB:
    a("s_branch L_attn_fb")
else:
    a("s_cbranch_scc0 L_attn_fb")
a.label("L_attn_fin")
a(f"v_rcp_f32 v10, v{OA+8}")
a("s_nop 0")
a("v_mov_b32 v11, v10")
for i in range(4):
    a(f"v_pk_mul_f32 {vr(OA+2*i,2)}, {vr(OA+2*i,2)}, v[10:11]")
for i in range(4):
    a(f"v_cvt_pk_bf16_f32 v{SA+i}, v{OA+2*i}, v{OA+2*i+1}")
a(f"buffer_store_dwordx4 {vr(SA,4)}, v{V_L16}, {sr(R_WS,4)}, s{S_HEAD} offen sc1")

a.c("======== phase 3: h = x + O Wo ; tile 64 tokens x 64 columns, computed by waves 0-3")
T_ACC, T_AF = 16, 48
def W0(t): return 64 + 4*t
is_a("L_p3_a")
vb = new_vm()
for t in range(24, W2_END):
    d_rd(t)()
if W2L:
    a(f"s_mov_b32 s{S_OWN}, s{S_D0}")
    a(f"s_mov_b32 s{S_OWN2}, s{S_H[2]}")
    a(f"v_mov_b32 v8, v6")
ring_setup(2752, None)
assert WC[2] <= 4 and WC[3] <= 6 and WC[5] >= 6
for n in range(WC[1], WC[2]):
    ring_issue(vb, R_W1, 2752, W1_SEG, n)
a(f"s_waitcnt vmcnt({4*WS1[1]}) lgkmcnt(0)")
a("s_barrier")
for n in range(WC[2], WC[3]):
    ring_issue(vb, R_W1, 2752, W1_SEG, n)
act_setup(16, WS_OF, False)
flag_addr(WS_FG, S_TB2, S_J, S_TB2, 9)
a("s_barrier")
for q in range(NO):
    act_issue(vb, q, q, 16, False)
def h_pre(B):
    L = unpack8(B, V_HRES) + [f"s_add_u32 s{T2}, s{S_TILE}, {WS_H}", "v_mov_b32 v10, 0x3f803f80", "v_and_b32 v7, 0x1f8, v0",
         f"s_lshl_b32 s{T5}, s{S_TB2}, 12", f"s_add_u32 s{T5}, s{T5}, {WS_HS}", f"s_lshl_b32 s{T6}, s{S_J}, 9", f"s_add_u32 s{T6}, s{T6}, s{T5}"]
    return L
def h_epilogue(B):
    tile_gather(16)
    for h in range(2):
        a(f"s_waitcnt lgkmcnt({2-2*h})")
        for i in range(2*h, 2*h+2):
            a(f"v_pk_add_f32 {vr(B+2*i,2)}, {vr(B+2*i,2)}, {vr(16+2*i,2)}")
            a(f"v_pk_add_f32 {vr(B+2*i,2)}, {vr(B+2*i,2)}, {vr(24+2*i,2)}")
        for i in range(2*h, 2*h+2):
            a(f"v_cvt_pk_bf16_f32 v{V_HRES+i}, v{B+2*i}, v{B+2*i+1}")
tile_loader(vb, 16, lambda q: act_issue(vb, q + NO, q + NO, 16, False) if q + NO < 4 else None)
for x in h_pre(32):
    a(x)
h_epilogue(32)
a("s_branch L_p3_done")
a.label("L_p3_a")
CJ, CA = 28, 16
a.c("wave 1 of workgroups 0-175 sums 64 rows of a 64-column strip of W1 (LayerNorm's mean term)")
a(f"s_cmp_lt_u32 s{S_WG}, 176")
a(f"s_cselect_b32 s{S_STAGE}, s{S_W}, 0")
a(f"s_cmp_lg_u32 s{S_STAGE}, 1")
a("s_cbranch_scc1 L_cs_noload")
a(f"v_lshrrev_b32 v10, 3, v{V_LANE}")
a(f"v_mul_u32_u24 v10, 2752, v10")
a(f"v_and_b32 v11, 7, v{V_LANE}")
a(f"v_lshl_add_u32 v10, v11, 4, v10")
a(f"s_and_b32 s{T0}, s{S_WG}, 7")
a(f"s_mul_i32 s{T0}, s{T0}, {64*2752}")
a(f"s_lshr_b32 s{T1}, s{S_WG}, 3")
a(f"s_lshl_b32 s{T1}, s{T1}, 7")
a(f"s_add_u32 s{T0}, s{T0}, s{T1}")
for i in range(8):
    a(f"buffer_load_dwordx4 {vr(CJ+4*i,4)}, v10, {sr(R_W1,4)}, s{T0} offen")
    a(f"s_add_u32 s{T0}, s{T0}, {8*2752}")
a.label("L_cs_noload")
w_addr()
act_setup(16, WS_OF, False)
a(f"s_cmp_eq_u32 s{S_STAGE}, 1")
a("s_waitcnt vmcnt(8)")
a("s_cbranch_scc1 L_cs_loaded")
a("s_waitcnt vmcnt(0)")
a.label("L_cs_loaded")
a("s_barrier")
flag_store(0, 0, OPK)
stamp("O drained")
R0 = min(24, 8*WC[1])
R1 = min(32, 8*WC[3])
for t in range(R0):
    w_read(W0(t), t)
a(f"s_cmp_lg_u32 s{S_STAGE}, 1")
a("s_cbranch_scc1 L_cs_nojob")
a(f"v_mov_b32 v10, 0x00003f80")
a(f"v_mov_b32 v11, 0x3f800000")
for i in range(8):
    a(f"s_waitcnt vmcnt({7-i})")
    for j in range(4):
        for h in range(2):
            a(f"v_dot2_f32_bf16 v{CA+2*j+h}, v{CJ+4*i+j}, v{10+h}, {f'v{CA+2*j+h}' if i else '0'}")
a(f"s_and_b32 s{T0}, s{S_WG}, 7")
a(f"s_mul_i32 s{T0}, s{T0}, {1408*4}")
a(f"s_lshr_b32 s{T1}, s{S_WG}, 3")
a(f"s_lshl_b32 s{T1}, s{T1}, 8")
for k in range(4):
    a(f"v_permlane32_swap_b32 v{CA+k}, v{CA+4+k}")
a(f"s_add_u32 s{T0}, s{T0}, s{T1}")
a(f"s_add_u32 s{T0}, s{T0}, {WS_CS}")
for k in range(4):
    a(f"v_add_f32 v{CA+k}, v{CA+k}, v{CA+4+k}")
a("s_nop 1")
for k in range(2):
    a(f"v_permlane16_swap_b32 v{CA+k}, v{CA+2+k}")
a("s_nop 1")
for k in range(2):
    a(f"v_add_f32 v{CA+k}, v{CA+k}, v{CA+2+k}")
a(f"v_and_b32 v10, 7, v{V_LANE}")
a(f"v_lshrrev_b32 v11, 4, v{V_LANE}")
for k in range(2):
    a(f"v_add_f32_dpp v{CA+k}, v{CA+k}, v{CA+k} row_ror:8 row_mask:0xf bank_mask:0xf")
a(f"v_lshlrev_b32 v11, 3, v11")
a(f"v_lshl_add_u32 v10, v10, 5, v11")
a(f"s_mov_b32 exec_lo, 0x00ff00ff")
a(f"s_mov_b32 exec_hi, 0x00ff00ff")
a(f"buffer_store_dwordx2 {vr(CA,2)}, v10, {sr(R_WS,4)}, s{T0} offen sc1")
a("s_mov_b64 exec, -1")
a.label("L_cs_nojob")
if OSP:
    a(f"s_cmp_lg_u32 s{S_W}, 0")
    a("s_cbranch_scc1 L_o_seen")
    if OPK:
        peek_check(0, "L_o_seen")
    if DO:
        a(f"s_sleep {DO}")
    spoll_issue(0)
    spoll_check(0)
    a.label("L_o_seen")
else:
    flag_poll(0, 8)
a("s_waitcnt lgkmcnt(0)")
a("s_barrier")
stamp("O ready")
a(f"s_cmp_lg_u32 s{S_STAGE}, 1")
a("s_cbranch_scc1 L_cs_noflag")
a(f"s_lshl_b32 s{T0}, s{S_WG}, 2")
a(f"s_add_u32 s{T0}, s{T0}, {WS_FC}")
a("s_waitcnt vmcnt(0)")
a("s_mov_b64 exec, 1")
a(f"buffer_store_dword v248, v249, {sr(R_WS,4)}, s{T0} offen sc1")
a("s_mov_b64 exec, -1")
a.label("L_cs_noflag")
a.c("every workgroup has read the old tag by now: leave this launch's tag for the next launch to step past")
a(f"s_or_b32 s{T0}, s{S_WG}, s{S_W}")
a("s_cbranch_scc1 L_notag")
a("s_mov_b64 exec, 1")
a(f"buffer_store_dword v248, v249, {sr(R_WS,4)}, 0 offen offset:{WS_NONCE} sc1")
a("s_mov_b64 exec, -1")
a.label("L_notag")
for x in h_pre(224):
    a(x)
tile_compute(new_vm(), 16, [0, 1, 2, 3], lambda t: P_W + 4*t, T_ACC, T_AF)
h_epilogue(224)
a.label("L_p3_done")
a(f"buffer_store_dwordx4 {vr(V_HRES,4)}, v{V_ROWOFF}, {sr(R_WS,4)}, s{T2} offen sc1")
a.c("partial row statistics of this 64-column slice")
for i in range(4):
    a(f"v_dot2_f32_bf16 v16, v{V_HRES+i}, v10, {'v16' if i else '0'}")
    a(f"v_dot2_f32_bf16 v17, v{V_HRES+i}, v{V_HRES+i}, {'v17' if i else '0'}")
sum8_pair(16)
a(f"s_mov_b32 exec_lo, 0x01010101")
a(f"s_mov_b32 exec_hi, 0x01010101")
a(f"buffer_store_dwordx2 v[16:17], v7, {sr(R_WS,4)}, s{T6} offen sc1")
a("s_mov_b64 exec, -1")
a("v_mov_b32 v41, v7")
stamp("h stored")
def h_reread():
    a.c("pull the stored lines back into this XCD's L2 while the flags travel")
    a(f"s_mov_b32 exec_lo, 0x01010101")
    a(f"s_mov_b32 exec_hi, 0x01010101")
    a(f"buffer_load_dword v251, v{V_ROWOFF}, {sr(R_WS,4)}, s{T2} offen sc1")
    a("s_mov_b64 exec, 1")
    a(f"buffer_load_dword v251, v41, {sr(R_WS,4)}, s{T6} offen sc1")
    a("s_mov_b64 exec, -1")

a.c("======== phase 4: g = gelu(LN(h) W1 + b1) with LN folded into the product, scaled by GS so that the tanh argument is u*(u*u+k)")
c1 = -2.0*math.sqrt(2.0/math.pi)*math.log2(math.e)
c3 = c1*0.044715
GS = -((-c3) ** (1.0/3))
GK = c1/GS
G_SLOTS = [0, 1, 2, 3, 4, 5, 6, 7, 8, 9, 2]
is_a("L_p4_a")
vb = new_vm()
a.c("source offsets of the raw h image: wave 4+b loads row groups b and b+4")
a(f"v_lshrrev_b32 v10, 4, v0")
a(f"v_xor_b32 v10, v10, v0")
a(f"v_and_b32 v10, 7, v10")
a(f"v_and_b32 v{V_XNW}, 0x7c00, v{V_ROWOFF}")
a(f"v_lshl_add_u32 v{V_XNW}, v10, 4, v{V_XNW}")
a(f"s_lshl_b32 s{T4}, s{S_TB2}, 16")
a(f"s_add_u32 s{T4}, s{T4}, {WS_H}")
a(f"s_and_b32 s{T3}, s{S_W}, 3")
a(f"s_lshl_b32 s{T3}, s{T3}, 13")
assert WC[4] <= 6 + R0//8 and WC[5] <= 6 + R1//8
for n in range(WC[3], WC[4]):
    ring_issue(vb, R_W1, 2752, W1_SEG, n)
a(f"s_waitcnt vmcnt({4*WS1[3]})")
h_reread()
vb.issue("rr", 2)
a("s_barrier")
flag_store(4, 0, HPK)
for n in range(WC[4], WC[5]):
    ring_issue(vb, R_W1, 2752, W1_SEG, n)
a(f"s_cmp_lg_u32 s{S_W}, 4")
a("s_cbranch_scc1 L_h_seen")
if HPK:
    peek_check(4*NW2, "L_h_seen")
if DH:
    a(f"s_sleep {DH}")
spoll_issue(0)
spoll_check(0)
a.label("L_h_seen")
vb.wait(("w", 3))
a("s_barrier")
def h_issue(n):
    for i in (2*n, 2*n + 1):
        for r in range(2):
            dma(vb, ("x", n), R_WS, V_XNW, T4, r*32768 + i*128, T3, r*32768 + i*1024, "sc1")
for n in range(NH):
    h_issue(n)
for n in range(4):
    vb.wait(("x", n))
    a("s_barrier")
    if n + NH < 4:
        h_issue(n + NH)
    for k in {2: range(WC[5], WC[5] + 1), 3: range(WC[5] + 1, 10)}.get(n, []):
        ring_issue(vb, R_W1, 2752, W1_SEG, k)
act_setup(43, WS_GF, True)
TH = opt("th", 4)
GRP = [int(c, 16) for c in opt("grp", "8008")]
assert sum(GRP) == 16
w2n = [27]
def w2_late(k):
    for t in range(w2n[0], w2n[0] + k if W2L else 0):
        if len(vb.q) > TH:
            a(f"s_waitcnt vmcnt({TH})")
            vb.q = vb.q[len(vb.q) - TH:]
        dma(vb, "w2", R_W2, V_DA, S_OWN, TL[t]*32768, S_OWN2, w2_home(t)[1])
    w2n[0] += k
if W2L:
    a("s_barrier")
w2_late(GRP[0])
for n in (10, 11):
    vb.wait(("w", n - 4), *([("w", 9)] if n == 11 else []))
    a("s_barrier")
    ring_issue(vb, R_W1, 2752, W1_SEG, n)
    w2_late(GRP[n - 9])
vb.wait(("w", 9))
a("s_barrier")
flag_store(4, 128)
w2_late(GRP[3])
a("s_waitcnt vmcnt(0)")
vb.clear()
only(4, spoll_issue, 128)
a("s_barrier")
if W2L:
    for t in range(27, 43):
        tr_read(F_W(t), 8, w2_home(t)[1])
    a("s_waitcnt lgkmcnt(0)")
only(4, spoll_check, 128)
stamp("g0 ready")
a("s_barrier")
flag_store(4, 256)
a.c("======== phase 5: out = h + g W2 + b2, computed by waves 4-7")
if opt("pb", 0):
    a("s_setprio 1")
for q in range(2):
    act_issue(vb, q, G_SLOTS[q], 43, True)
OE = 140
out_pre = unpack8(OE, V_HRES) + unpack8(OE + 8, V_B2) + [f"v_add_f32 v{OE+i}, v{OE+i}, v{OE+8+i}" for i in range(8)]
out_pre += [f"v_mov_b32 v10, {f32(1.0/GS)}", "v_mov_b32 v11, v10"]
inj = {}
spread(inj, [(x, 1) for x in out_pre], 12, 40)
tile_compute(vb, 43, G_SLOTS, F_W, T_ACC, T_AF, inj)
stamp("ffn2 done B")
a("s_branch L_p5_done")

a.label("L_p4_a")
F_ACC = [192, 208, 168]
F_WF = [144, 148, 152, 156, 160, 164]
GT = 224
CB = [224, 228, 224]
CS = 16
for t in range(R0, R1):
    w_read(W0(t), t)
a.c("column sums of W1 for this wave's three tiles")
a(f"s_lshr_b32 s{T0}, s{S_F0}, 1")
a(f"s_min_u32 s{T0}, s{T0}, 18")
a(f"s_lshl_b32 s{T0}, s{T0}, 5")
a(f"s_add_u32 s{S_FPOLL}, s{T0}, {WS_FC}")
a("s_mov_b32 exec_hi, 0")
a(f"buffer_load_dword v247, v249, {sr(R_WS,4)}, s{S_FPOLL} offen sc1")
a("s_mov_b32 exec_hi, -1")
x_addr(True)
swap23(10, 31, 11)
a(f"v_lshrrev_b32 v11, 5, v{V_LANE}")
a(f"v_mul_u32_u24 v11, {4*1408*4}, v11")
a(f"v_lshl_add_u32 v10, v10, 2, v11")
a(f"s_lshr_b32 s{T0}, s{S_W}, 1")
a(f"s_add_u32 s{T0}, s{T0}, s{S_F0}")
a(f"s_lshl_b32 s{T0}, s{T0}, 7")
a(f"s_add_u32 s{T0}, s{T0}, {WS_CS}")
a("s_waitcnt vmcnt(1) lgkmcnt(0)")
h_reread()
a("s_barrier")
stamp("h drained")
a("s_waitcnt vmcnt(2)")
flag_poll(None, 32)
HS = 208
CP = 192
for k in range(4):
    for seg in range(3):
        a(f"buffer_load_dword v{CP+4*seg+k}, v10, {sr(R_WS,4)}, s{T0} offen offset:{seg*256} sc1")
    a(f"s_add_u32 s{T0}, s{T0}, {1408*4}")
flag_addr(WS_FG, S_TB2, S_J, S_TB2, 9)
a(f"s_and_b32 s{T0}, s{S_W}, 1")
a(f"s_lshl_b32 s{T7}, s{T0}, 8")
a(f"s_add_u32 s{T5}, s{T5}, s{T7}")
a(f"s_lshl_b32 s{T1}, s{S_TB2}, 1")
a(f"s_add_u32 s{T0}, s{T0}, s{T1}")
a(f"s_mul_i32 s{T0}, s{T0}, 43")
a(f"s_lshr_b32 s{T1}, s{S_W}, 1")
a(f"s_add_u32 s{S_STAGE}, s{T1}, 4")
a(f"s_add_u32 s{T0}, s{T0}, s{T1}")
a(f"s_lshl_b32 s{T1}, s{S_J}, 2")
a(f"s_sub_u32 s{T2}, s{S_F0}, s{T1}")
a(f"s_add_u32 s{T2}, s{T2}, s{T0}")
a(f"s_lshl_b32 s{T2}, s{T2}, 11")
a(f"s_add_u32 s{S_D2}, s{T2}, {WS_GF + 32*2048}")
a(f"s_lshl_b32 s{T1}, s{S_J}, 1")
a(f"s_add_u32 s{T0}, s{T0}, s{T1}")
a(f"s_lshl_b32 s{T0}, s{T0}, 11")
a(f"s_add_u32 s{S_D0}, s{T0}, {WS_GF}")
a(f"s_add_u32 s{S_D1}, s{S_D0}, 32768")
a(f"v_and_b32 v10, 31, v{V_LANE}")
a(f"v_lshlrev_b32 v10, 3, v10")
a(f"v_lshrrev_b32 v11, 5, v{V_LANE}")
a(f"v_lshl_add_u32 v235, v11, 11, v10")
a(f"v_lshlrev_b32 v3, 7, v{V_LANE}")
RS = 12
a(f"v_mov_b32 v10, {f32(GK)}")
a(f"v_mov_b32 v11, v10")
a(f"v_mov_b32 v14, 1.0")
a(f"v_mov_b32 v15, 1.0")
a("s_barrier")
stamp("h ready")
for t in range(R1, 32):
    w_read(W0(t), t)
vc = new_vm()
for k in range(4):
    a(f"buffer_load_dwordx2 {vr(HS+2*k,2)}, v235, {sr(R_WS,4)}, s{T5} offen offset:{k*512} sc1")
vc.issue(("x", 0), 4)
a("s_waitcnt vmcnt(4)")
for seg in range(3):
    c = CP + 4*seg
    a(f"v_add_f32 v{c}, v{c}, v{c+1}")
    a(f"v_add_f32 v{c+2}, v{c+2}, v{c+3}")
for seg in range(3):
    c = CP + 4*seg
    a(f"v_add_f32 v{c}, v{c}, v{c+2}")
for seg in range(3):
    c = CP + 4*seg
    a(f"v_mov_b32 v{c+1}, v{c}")
a("s_nop 1")
for seg in range(3):
    c = CP + 4*seg
    a(f"v_permlane32_swap_b32 v{c}, v{c+1}")
a("s_nop 1")
AB = [224, 228, 216]
for seg in range(3):
    c, d = CP + 4*seg, AB[seg]
    a(f"v_add_f32 v{c}, v{c}, v{c+1}")
    a(f"v_and_b32 v{c+1}, 0xffff0000, v{c}")
    a(f"v_sub_f32 v{c}, v{c}, v{c+1}")
    a(f"v_cvt_pk_bf16_f32 v{d}, v{c+1}, v{c+1}")
    a(f"v_cvt_pk_bf16_f32 v{d+1}, v{c}, v{c}")
    a(f"v_lshl_or_b32 v{d+2}, v{V_B1+seg}, 16, v{V_B1+seg}")
    a(f"v_mov_b32 v{d+3}, 0")
BO = 232
a(f"v_mov_b32 v{BO+3}, 0")
def gt(i): return 224 + i if i < 8 else 176 + i
def gelu_block(seg):
    u = F_ACC[seg]
    a.raw(".p2align 3")
    def two(op, f, D=gt):
        for i in range(0, 16, 2):
            a(f"v_pk_{op}_f32 {vr(D(i),2)}, " + f(vr(u+i, 2), vr(gt(i), 2)))
    two("mul", lambda U, T: f"{U}, {vr(RS,2)}", lambda i: u + i)
    two("fma", lambda U, T: f"{U}, {U}, v[10:11]")
    two("mul", lambda U, T: f"{T}, {U}")
    for i in range(16):
        a(f"v_exp_f32 v{gt(i)}, v{gt(i)}")
    two("add", lambda U, T: f"{T}, v[14:15]")
    for h in range(2):
        for i in range(8*h, 8*h + 8):
            a(f"v_rcp_f32 v{gt(i)}, v{gt(i)}")
        for i in range(8*h, 8*h + 8, 2):
            a(f"v_pk_mul_f32 {vr(gt(i),2)}, {vr(gt(i),2)}, {vr(u+i,2)}")
        for i in range(4):
            a(f"v_cvt_pk_bf16_f32 v{u+8*h+i}, v{gt(8*h+2*i)}, v{gt(8*h+2*i+1)}")
        a(f"buffer_store_dwordx4 {vr(u+8*h,4)}, v{V_L16}, {sr(R_WS,4)}, s{S_D0+seg} offen offset:{h*1024} sc1")
        vc.issue("st")
inj = {}
prep = [f"v_add_f32 v{HS}, v{HS}, v{HS+2}", f"v_add_f32 v{HS+1}, v{HS+1}, v{HS+3}",
        f"v_add_f32 v{HS+4}, v{HS+4}, v{HS+6}", f"v_add_f32 v{HS+5}, v{HS+5}, v{HS+7}",
        f"v_add_f32 v{HS}, v{HS}, v{HS+4}", f"v_add_f32 v{HS+1}, v{HS+1}, v{HS+5}",
        f"v_mov_b32 v{HS+2}, v{HS}", f"v_mov_b32 v{HS+3}, v{HS+1}",
        f"s_nop 1\nv_permlane32_swap_b32 v{HS}, v{HS+2}", f"v_permlane32_swap_b32 v{HS+1}, v{HS+3}\ns_nop 1",
        f"v_add_f32 v{HS}, v{HS}, v{HS+2}", f"v_add_f32 v{HS+1}, v{HS+1}, v{HS+3}",
        f"v_mul_f32 v{HS}, {f32(-1.0/512)}, v{HS}", f"v_mul_f32 v{HS+1}, {f32(1.0/512)}, v{HS+1}",
        f"v_fma_f32 v{HS+1}, -v{HS}, v{HS}, v{HS+1}", f"v_max_f32 v{HS+1}, 0, v{HS+1}",
        f"v_add_f32 v{HS+1}, {f32(1e-5)}, v{HS+1}", f"v_rsq_f32 v{HS+2}, v{HS+1}",
        f"v_and_b32 v{HS+3}, 0xffff0000, v{HS}", f"v_sub_f32 v{HS}, v{HS}, v{HS+3}",
        f"v_mul_f32 v{HS+1}, v{HS+1}, v{HS+2}", f"v_mul_f32 v{RS}, {f32(GS)}, v{HS+2}",
        f"v_cvt_pk_bf16_f32 v{BO}, v{HS+3}, v{HS}", f"v_and_b32 v{HS+3}, 0xffff0000, v{HS+1}",
        f"v_sub_f32 v{HS+1}, v{HS+1}, v{HS+3}", f"v_mov_b32 v{RS+1}, v{RS}",
        f"v_cvt_pk_bf16_f32 v{BO+2}, v{HS+3}, v{HS+1}",
        f"s_mov_b32 exec_lo, 0\nv_mov_b32 v{BO}, 0\nv_mov_b32 v{BO+2}, 0\ns_mov_b32 exec_lo, -1", f"v_mov_b32 v{BO+1}, v{BO}"]
spread(inj, [(x, 1) for x in prep], 0, 20)
spread(inj, [(x, 1) for x in capture(act_setup, 43, WS_GF, True)[:-5]], 70, 80)
def corr(seg):
    d = vr(F_ACC[seg], 16)
    a(f"v_mfma_f32_32x32x16_bf16 {d}, {vr(AB[seg],4)}, {vr(BO,4)}, {'0' if seg else d}")
def blk0():
    if W2L:
        a("s_barrier")
    a.c("the other accumulators start from -mean x colsum + std x bias")
    corr(2)
    corr(1)
    a("s_nop 7")
    gelu_block(0)
def blk1():
    a("s_nop 7")
    a("s_nop 1")
    gelu_block(1)
    if SKIP5:
        a(f"s_cmp_ge_u32 s{S_STAGE}, s{S_NT}")
        a("s_cbranch_scc1 L_p4_idle")
def g_reread(seg):
    a("s_mov_b64 exec, 0xffff")
    a(f"buffer_load_dword v251, v3, {sr(R_WS,4)}, s{S_D0+seg} offen sc1")
    a("s_mov_b64 exec, -1")
def pub(seg):
    def f():
        vc.wait("st")
        g_reread(seg)
        a("s_barrier")
    return f
gemm_compute(vc, F_ACC, F_WF, set(), {0}, inj, {24: lambda: corr(0), 32: blk0, UP0: pub(0), 64: blk1, UP1: pub(1)},
             (0, 1, 2, 3, 6, 7, 10), 'p4', 1024, W0)
stamp("ffn1 done")
if SKIP5:
    a("s_nop 7")
    a("s_nop 3")
    gelu_block(2)
    a("s_branch L_p4_skip")
    a.label("L_p4_idle")
    for x in capture(act_setup, 43, WS_GF, True)[:-5]:
        a(x)
    a(f"s_mov_b32 s{S_D2}, s{S_D1}")
    a("s_barrier")
    a("s_waitcnt vmcnt(0) lgkmcnt(0)")
    g_reread(1)
    a("s_barrier")
else:
    a(f"s_cmp_ge_u32 s{S_STAGE}, s{S_NT}")
    a(f"s_cselect_b32 s{S_D2}, s{S_D1}, s{S_D2}")
    a("s_cbranch_scc1 L_p4_skip")
    a("s_nop 7")
    a("s_nop 0")
    gelu_block(2)
a.label("L_p4_skip")
stamp("g stored")
vl = new_vm()
def g_issue(*L):
    for n in L:
        if n == 10:
            a.c("the last chunk has three tiles: wave 3 repeats wave 2's")
            a(f"s_cmp_eq_u32 s{S_W}, 3")
            a(f"s_cselect_b32 s{T7}, 2048, 0")
            a(f"s_sub_u32 s{T4}, s{T4}, s{T7}")
        act_issue(vl, n, G_SLOTS[n], 43, True)
g_issue(2, 3)
only(0, spoll_issue, 256)
Q1, QI = opt("q1", 1), opt("qi", 5)
def p5_after(q):
    if q in (0, 2, 4, 7, 10) and opt("fst", 0):
        stamp(f"p5 q{q}")
    if q == Q1 - 1:
        only(0, spoll_check, 256)
    if q == 2:
        a.c("the wait for chunk 2 covered the last stores of every wave")
        flag_store(0, 384)
        if RR2 == 1:
            g_reread(2)
            vl.issue("rr")
    if q == Q1:
        g_issue(*range(4, Q1 + 4))
    elif Q1 < q <= 4:
        g_issue(q + 3)
    if q == 2 and RR2 == 2:
        g_reread(2)
        vl.issue("rr")
    if q == QI:
        only(0, spoll_issue, 384)
    if q == QP - 1:
        only(0, spoll_check, 384)
    if q == QP:
        g_issue(8, 9, 10)
tile_loader(vl, 43, p5_after)
for x in out_pre:
    a(x)

a.label("L_p5_done")
tile_gather(16)
for h in range(2):
    a(f"s_waitcnt lgkmcnt({2-2*h})")
    for i in range(2*h, 2*h+2):
        a(f"v_pk_add_f32 {vr(16+2*i,2)}, {vr(16+2*i,2)}, {vr(24+2*i,2)}")
        a(f"v_pk_fma_f32 {vr(OE+2*i,2)}, {vr(16+2*i,2)}, v[10:11], {vr(OE+2*i,2)}")
    for i in range(2*h, 2*h+2):
        a(f"v_cvt_pk_bf16_f32 v{40+i}, v{OE+2*i}, v{OE+2*i+1}")
a(f"buffer_store_dwordx4 v[40:43], v{V_ROWOFF}, {sr(R_OUT,4)}, s{S_TILE} offen {opt('of', 'sc0_sc1').replace('_', ' ')}")
if STAMPS:
    a("s_waitcnt vmcnt(0)")
stamp("end")
stamp_flush()
a.label("L_end")
a("s_endpgm")
a.label("L_code_end")

a.c("======== attention with the row's true maximum: q-block A over all 2048 keys")
a.label("L_attn_fb")
FM = SB
a("s_waitcnt vmcnt(0)")
a(f"v_mov_b32 v{FM}, 0xff800000")
a(f"s_mov_b32 s{S_XOFF}, 0")
a(f"s_mov_b32 s{S_LOOP}, 64")
a.label("L_fb1")
a(f"buffer_load_dwordx4 {vr(Kf(0),4)}, v{A_AK}, {sr(R_WS,4)}, s{S_XOFF} offen sc1")
a("s_waitcnt vmcnt(0)")
a(f"v_mfma_f32_32x32x16_bf16 {vr(SA,16)}, {vr(Kf(0),4)}, {vr(QA,4)}, 0")
a(f"s_add_u32 s{S_XOFF}, s{S_XOFF}, 2048")
a("s_nop 7")
a("s_nop 3")
for i in range(8):
    a(f"v_max3_f32 v{FM}, v{FM}, v{SA+2*i}, v{SA+2*i+1}")
a(f"s_sub_u32 s{S_LOOP}, s{S_LOOP}, 1")
a(f"s_cmp_lg_u32 s{S_LOOP}, 0")
a("s_cbranch_scc1 L_fb1")
a(f"v_mov_b32 v{FM+1}, v{FM}")
a("s_nop 1")
a(f"v_permlane32_swap_b32 v{FM}, v{FM+1}")
a("s_nop 1")
a(f"v_max_f32 v{FM}, v{FM}, v{FM+1}")
for i in range(16):
    a(f"v_mov_b32 v{OA+i}, 0")
a(f"s_mov_b32 s{S_XOFF}, 0")
a(f"s_mov_b32 s{S_LOOP}, 64")
a.label("L_fb2")
kv_load(Cnt(a, "vmcnt", 63), 0, 4)
a("s_waitcnt vmcnt(0)")
a(f"v_mfma_f32_32x32x16_bf16 {vr(SA,16)}, {vr(Kf(0),4)}, {vr(QA,4)}, 0")
a(f"s_add_u32 s{S_XOFF}, s{S_XOFF}, 2048")
a("s_nop 7")
a("s_nop 3")
for i in range(16):
    a(f"v_sub_f32 v{SA+i}, v{SA+i}, v{FM}")
for i in range(16):
    a(f"v_exp_f32 v{SA+i}, v{SA+i}")
a("s_nop 1")
smf(OA, Vf(0, 0), SA)
smf(OA, Vf(0, 1), SA+8)
a(f"s_sub_u32 s{S_LOOP}, s{S_LOOP}, 1")
a(f"s_cmp_lg_u32 s{S_LOOP}, 0")
a("s_nop 7")
a("s_cbranch_scc1 L_fb2")
a("s_nop 7")
a("s_nop 3")
a("s_branch L_attn_fin")

a.raw('.section .rodata,"a"')
a.raw(".p2align 6")
a.raw(f".amdhsa_kernel {NAME}_kernel")
a.raw("  .amdhsa_next_free_vgpr 256")
a.raw("  .amdhsa_next_free_sgpr 102")
a.raw("  .amdhsa_accum_offset 256")
a.raw("  .amdhsa_group_segment_fixed_size 0")
a.raw("  .amdhsa_kernarg_size 88")
a.raw("  .amdhsa_user_sgpr_count 2")
a.raw("  .amdhsa_user_sgpr_kernarg_segment_ptr 1")
a.raw("  .amdhsa_system_sgpr_workgroup_id_x 1")
a.raw(".end_amdhsa_kernel")

out = [x for x in args if not x.startswith("--")]
open(out[0] if out else "cdna_kernels/" + NAME + ".s", "w").write(a.text())
```

```python
import sys, math
from lib import *

NAME = "sequential_preLN__softmax_full_mha__dense_activation_gelu__prompt"
args = sys.argv[1:]
def opt(n, d):
    for x in args:
        if x.startswith("--" + n + "="):
            return type(d)(x.split("=")[1])
    return d
STAMPS = "--stamps" in args
FORCE_FB = "--force-fallback" in args
LH = 2
NA = opt("na", 52)
IT1 = opt("it1", 4)
IT2 = opt("it2", 1)
TB1 = opt("tb1", 6)
TB2 = opt("tb2", 1)
T0B = opt("t0b", 1)
TEND = opt("tend", 1)
NBLK = opt("nblk", 2)
NPA = opt("npa", 2)
UKV = opt("ukv", 93)
NO = opt("no", 3)
NH = opt("nh", 2)
UP0 = opt("up0", 61)
UP1 = opt("up1", 92)
QP = opt("qp", 7)
KVL = opt("kvl", 1)
KVP = opt("kvp", 0)
SLP = opt("slp", 0)
HPK = opt("hpk", 0)
OPK = opt("opk", 0)
DO = opt("do", 0)
DH = opt("dh", 0)
NW2 = opt("nw2", 2)
BK = opt("bk", 0)
LATE = opt("late", 0)
SPF = opt("spf", 0)
SPF2 = opt("spf2", -1)
L2PF = opt("l2pf", 2)
NPB = opt("npb", 0)
XSW = opt("xsw", 0)
KVJ = opt("kvj", 0)
QPF = opt("qpf", -1)
NB0 = opt("nb0", 3)
EARLY = opt("early", 0)
MW = opt("mw", -1)
WM = opt("wm", 0)
BAT = opt("bat", 0)
LPOS = opt("lpos", 12)
KPOS = opt("kpos", -1)
PRA = 2
FLIP = opt("flip", 6)
FEND = opt("fend", 1)
STM = opt("stm", 0)
ORD = opt("ord", 1)
W2L = opt("w2l", 0)
WS1 = [int(c) for c in opt("ws1", "40202")]
WC = [sum(WS1[:k]) for k in range(6)]
LF = opt("lf", 1)
LOC = opt("loc", 1)
WPF = opt("wpf", 0)
RR2 = opt("rr2", 2)
OSP = opt("osp", 1)
NEAR = opt("near", 1)
GST = opt("gst", 0)
TSPLIT = opt("tsplit", 1)
PRE = opt("pre", 1)
SKIP5 = opt("skip5", 1)
SEL = opt("sel", "").replace("_", " ")
PROBE = opt("probe", "").replace("_", " ")

S_WG, S_W = 2, 3
S_PC = 4
R_X, R_WQKV, R_WO, R_W1, R_W2, R_WS, R_OUT, R_B1, R_B2 = 8, 12, 16, 20, 24, 28, 32, 36, 40
KA = 44
S_HG, S_TB, S_TB2, S_J, S_N = 66, 67, 68, 69, 70
S_F0 = 71
T0, T1, T2, T3, T4, T5, T6, T7 = 72, 73, 74, 75, 76, 77, 78, 79
S_LOOP, S_XOFF, S_HEAD = 80, 81, 82
S_TILE = 83
S_MASKV = 84
S_D0, S_D1, S_D2, S_D3 = 86, 87, 88, 89
S_TS = 90
S_NT = 92
S_SPIN = 93
S_SAVE = 94
S_D4, S_D5 = 96, 97
S_STAGE = 101
S_SHR = 100
S_FOWN, S_FPOLL = 98, 99
S_ZG, S_ZO = 60, 61
S_OWN, S_OWN2 = 62, 63

WS_NONCE = 0
WS_PL = 0x1000
WS_FKV = 0x4000
WS_FC = 0x8000
WS_STAMP = 0x10000
WS_CS = 0x60000
WS_KV = 0x100000
WS_OF = 0x600000
WS_H = WS_OF + 0x20000
WS_GF = WS_OF + 0x40000
WS_GRP = WS_OF + 0xA0000
WS_SIZE = WS_OF + 0x2000000
F_PROBE = 768
F_O, F_H, F_G0, F_G1, F_G2 = 0, 128, 256, 384, 512

L_XN = 0
L_RING = 65536
L_Q = 32768
L_OX = 0
LDS_BYTES = 163840

V_LANE, V_ROWOFF, V_XNW = 1, 2, 3
V_DA, V_DB = 12, 13
V_B1 = 232
V_B2 = 236
V_REDW, V_REDR, V_L16 = 240, 244, 246
V_HRES = 252

a = Asm()
stamp_idx = [0]
def stamp(name):
    i = stamp_idx[0]
    stamp_idx[0] += 1
    if PROBE and name == "start":
        a("s_memrealtime s[6:7]")
    if PROBE and name == "setup":
        a("s_mov_b32 s1, 0")
    if PROBE == name:
        a(f"s_memrealtime {sr(S_TS,2)}")
        a("s_waitcnt lgkmcnt(0)")
        a(f"s_sub_u32 s1, s{S_TS}, s6")
    if PROBE and name == "end":
        a("s_mul_i32 s1, s1, 10")
        a("s_add_u32 s1, s1, 10000")
        a(f"s_cmp_lg_u32 s{S_WG}, 100")
        a("s_cbranch_scc1 L_nopin")
        a.label("L_pin")
        a(f"s_memrealtime {sr(S_TS,2)}")
        a("s_waitcnt lgkmcnt(0)")
        a(f"s_sub_u32 s{S_TS}, s{S_TS}, s6")
        a(f"s_cmp_lt_u32 s{S_TS}, s1")
        a("s_cbranch_scc1 L_pin")
        a.label("L_nopin")
    if not STAMPS:
        return
    if SEL and name not in ("start", "end") and not any(k in name for k in SEL.split(",")):
        return
    a.c(f"stamp {i} {name}")
    a(f"s_memtime {sr(S_TS,2)}")
    a(f"s_waitcnt lgkmcnt(0)")
    a(f"v_writelane_b32 v250, s{S_TS}, {i}")
    a(f"s_memrealtime {sr(S_TS,2)}")
    a(f"s_waitcnt lgkmcnt(0)")
    a(f"v_writelane_b32 v250, s{S_TS}, {i+32}")

def stamp_flush():
    if not STAMPS:
        return
    l = a.uniq("L_st")
    a(f"s_and_b32 s{T7}, s{S_W}, 3")
    a(f"s_cmp_lg_u32 s{T7}, {opt('sw', 0)}")
    a(f"s_cbranch_scc1 {l}")
    a(f"s_lshl_b32 s{T7}, s{S_WG}, 9")
    a(f"s_and_b32 s{T6}, s{S_W}, 4")
    a(f"s_lshl_b32 s{T6}, s{T6}, 6")
    a(f"s_add_u32 s{T7}, s{T7}, s{T6}")
    a(f"s_add_u32 s{T7}, s{T7}, {WS_STAMP}")
    a(f"v_lshlrev_b32 v251, 2, v{V_LANE}")
    a(f"buffer_store_dword v250, v251, {sr(R_WS,4)}, s{T7} offen")
    a.label(l)

def srd(r, ptr, size):
    a(f"s_mov_b32 s{r}, s{ptr}")
    a(f"s_mov_b32 s{r+1}, s{ptr+1}")
    a(f"s_mov_b32 s{r+2}, {size}")
    a(f"s_mov_b32 s{r+3}, 0x00020000")

def flag_addr(base, line_own, word_own, line_poll, sh=8):
    a(f"s_lshl_b32 s{S_FOWN}, s{line_own}, {sh}")
    a(f"s_lshl_b32 s{T7}, s{word_own}, 2")
    a(f"s_add_u32 s{S_FOWN}, s{S_FOWN}, s{T7}")
    a(f"s_add_u32 s{S_FOWN}, s{S_FOWN}, {base}")
    a(f"s_lshl_b32 s{S_FPOLL}, s{line_poll}, {sh}")
    a(f"s_add_u32 s{S_FPOLL}, s{S_FPOLL}, {base}")

def grp_flags(tb_own, z_own, word):
    a(f"s_add_u32 s{S_FPOLL}, s{S_ZG}, {WS_GRP}")
    a(f"s_lshl_b32 s{T7}, s{word}, 2")
    a(f"s_add_u32 s{S_FOWN}, s{z_own}, s{T7}")
    a(f"s_add_u32 s{S_FOWN}, s{S_FOWN}, {WS_GRP}")

def half_issue():
    a(f"s_lshl_b32 s{S_ZG}, s{S_TB2}, 6")
    a(f"s_add_u32 s{S_ZG}, s{S_ZG}, {WS_PL}")
    a(f"s_lshl_b32 s{S_ZO}, s{S_TB}, 6")
    a(f"s_add_u32 s{S_ZO}, s{S_ZO}, {WS_PL}")
    a(f"s_mov_b32 s{S_SPIN}, 0")
    a.c("cached first try: an old copy only fails the tag test")
    a(f"s_load_dwordx2 {sr(KA+12,2)}, {sr(KA+20,2)}, s{S_ZG}")
    a(f"s_load_dwordx2 {sr(KA+14,2)}, {sr(KA+20,2)}, s{S_ZO}")

def half_check():
    l, l_ok = a.uniq("L_hp"), a.uniq("L_hok")
    a.label(l)
    a("s_waitcnt lgkmcnt(0)")
    for k in range(4):
        a(f"s_cmp_eq_u32 s{KA+12+k}, s{S_N}")
        a(f"s_cselect_b32 s{KA+12+k}, 8192, 0")
    a(f"s_or_b32 s{KA+12}, s{KA+12}, s{KA+13}")
    a(f"s_or_b32 s{KA+14}, s{KA+14}, s{KA+15}")
    a(f"s_and_b32 s{KA+12}, s{KA+12}, s{KA+14}")
    a(f"s_cbranch_scc1 {l_ok}")
    a(f"s_add_u32 s{S_SPIN}, s{S_SPIN}, 1")
    a(f"s_cmp_gt_u32 s{S_SPIN}, 200000")
    a(f"s_cbranch_scc1 {l_ok}")
    a(f"s_load_dwordx2 {sr(KA+12,2)}, {sr(KA+20,2)}, s{S_ZG} glc")
    a(f"s_load_dwordx2 {sr(KA+14,2)}, {sr(KA+20,2)}, s{S_ZO} glc")
    a(f"s_branch {l}")
    a.label(l_ok)
    a(f"s_lshl_b32 s{S_ZG}, s{S_TB2}, 20")
    a(f"s_add_u32 s{S_ZG}, s{S_ZG}, s{KA+13}")
    a(f"s_lshl_b32 s{S_ZO}, s{S_TB}, 20")
    a(f"s_add_u32 s{S_ZO}, s{S_ZO}, s{KA+15}")
    a(f"s_add_u32 s{S_HEAD}, s{S_HEAD}, s{S_ZO}")

def flag_store(poller, off=0, peek=False):
    l = a.uniq("L_nf")
    a(f"s_cmp_lg_u32 s{S_W}, {poller}")
    a(f"s_cbranch_scc1 {l}")
    a(f"s_mov_b64 exec, 1")
    a(f"buffer_store_dword v248, v249, {sr(R_WS,4)}, s{S_FOWN} offen offset:{off} sc1")
    if peek:
        a(f"s_mov_b64 exec, 0xff")
        a(f"buffer_load_dword v247, v249, {sr(R_WS,4)}, s{S_FPOLL} offen offset:{off} sc1")
    a(f"s_mov_b64 exec, -1")
    a.label(l)

def flag_poll(poller, nflags, off=0, va=249):
    l_skip, l_poll, l_done = a.uniq("L_skip"), a.uniq("L_poll"), a.uniq("L_done")
    if poller is None:
        a(f"v_cmp_eq_u32 vcc, v247, v248")
        a("s_nop 0")
        a(f"s_and_b32 s{T7}, vcc_lo, {(1 << nflags) - 1:#x}")
        a(f"s_cmp_eq_u32 s{T7}, {(1 << nflags) - 1:#x}")
    else:
        a(f"s_cmp_lg_u32 s{S_W}, {poller}")
    a(f"s_cbranch_scc1 {l_skip}")
    a(f"s_mov_b32 exec_hi, 0")
    a(f"s_mov_b32 exec_lo, {(1 << nflags) - 1:#x}")
    a(f"s_mov_b32 s{S_SPIN}, 0")
    a.label(l_poll)
    a(f"buffer_load_dword v247, v{va}, {sr(R_WS,4)}, s{S_FPOLL} offen offset:{off} sc1")
    a(f"s_add_u32 s{S_SPIN}, s{S_SPIN}, 1")
    a("s_waitcnt vmcnt(0)")
    a(f"v_cmp_eq_u32 vcc, v247, v248")
    a(f"s_cmp_gt_u32 s{S_SPIN}, 200000")
    a(f"s_cbranch_scc1 {l_done}")
    a(f"s_cmp_eq_u64 vcc, exec")
    if BK:
        a(f"s_cbranch_scc1 {l_done}")
        a(f"s_sleep {BK}")
        a(f"s_branch {l_poll}")
    else:
        a(f"s_cbranch_scc0 {l_poll}")
    a.label(l_done)
    a("s_mov_b64 exec, -1")
    a.label(l_skip)

def peek_check(n, ok):
    a(f"s_waitcnt vmcnt({n})")
    a(f"v_cmp_eq_u32 vcc, v247, v248")
    a("s_nop 0")
    a(f"s_and_b32 s{T7}, vcc_lo, 0xff")
    a(f"s_cmp_eq_u32 s{T7}, 0xff")
    a(f"s_cbranch_scc1 {ok}")

def spoll_issue(off):
    a(f"s_add_u32 s{KA+2}, s{S_FPOLL}, {off}")
    a(f"s_load_dwordx8 {sr(KA+4,8)}, {sr(KA+20,2)}, s{KA+2} glc")
    a(f"s_mov_b32 s{KA}, s{S_N}")
    a(f"s_mov_b32 s{KA+1}, s{S_N}")
    a(f"s_mov_b32 s{KA+3}, 0")

def spoll_check(off):
    l, l_ok = a.uniq("L_sp"), a.uniq("L_spok")
    a.label(l)
    a("s_waitcnt lgkmcnt(0)")
    for k in range(4):
        a(f"s_xor_b64 {sr(KA+4+2*k,2)}, {sr(KA+4+2*k,2)}, {sr(KA,2)}")
    for k in range(1, 4):
        a(f"s_or_b64 {sr(KA+4,2)}, {sr(KA+4,2)}, {sr(KA+4+2*k,2)}")
    a(f"s_cbranch_scc0 {l_ok}")
    if BK:
        a(f"s_sleep {BK}")
    a(f"s_load_dwordx8 {sr(KA+4,8)}, {sr(KA+20,2)}, s{KA+2} glc")
    a(f"s_add_u32 s{KA+3}, s{KA+3}, 1")
    a(f"s_cmp_lt_u32 s{KA+3}, 16")
    a(f"s_cbranch_scc1 {l}")
    a("s_waitcnt lgkmcnt(0)")
    a(f"v_not_b32 v247, v248")
    flag_poll(None, 8, off)
    a.label(l_ok)

LN_X, LN_D, LN_T = 16, 48, 56

def ln_loads(vm, rsrc, soff, flags=""):
    for i in range(8):
        so, imm = (soff[i >> 1], 128*(i & 1)) if isinstance(soff, list) else (soff, 128*i)
        a(f"buffer_load_dwordx4 {vr(LN_X+4*i,4)}, v{V_ROWOFF}, {sr(rsrc,4)}, s{so} offen offset:{imm} {flags}")
        vm.issue(("x", i))

def ln_consts():
    t = LN_T
    a(f"v_mov_b32 v{t+4}, 0x3f803f80")
    a(f"v_mov_b32 v{t+5}, 0x00003f80")
    a(f"v_mov_b32 v{t+6}, 0x3f800000")
    a(f"v_mov_b32 v{t}, 0")
    a(f"v_mov_b32 v{t+1}, 0")

def ln_stats(vm, scale):
    t = LN_T
    for i in range(8):
        vm.wait(("x", i))
        if i == SPF2 and SPF < 3:
            w_touch(QKV_SEG[SPF:])
        if i in (7,) and scale >= 1.0:
            stamp(f"x{i} in {scale}")
        a.raw(".p2align 3")
        for j in range(4):
            a(f"v_dot2_f32_bf16 v{t}, v{LN_X+4*i+j}, v{t+4}, v{t}")
            a(f"v_dot2_f32_bf16 v{t+1}, v{LN_X+4*i+j}, v{LN_X+4*i+j}, v{t+1}")

def sum8_pair(t):
    a("s_nop 1")
    for ctl in ("quad_perm:[1,0,3,2]", "quad_perm:[2,3,0,1]", "row_half_mirror"):
        a("s_nop 0")
        a(f"v_add_f32_dpp v{t}, v{t}, v{t} {ctl} row_mask:0xf bank_mask:0xf")
        a(f"v_add_f32_dpp v{t+1}, v{t+1}, v{t+1} {ctl} row_mask:0xf bank_mask:0xf")

def ln_norm(scale, vm=None):
    t = LN_T
    sum8_pair(t)
    a(f"v_mul_f32 v{t}, {f32(-1.0/512)}, v{t}")
    a(f"v_mul_f32 v{t+2}, v{t}, v{t}")
    a(f"v_mul_f32 v{t+1}, {f32(1.0/512)}, v{t+1}")
    a(f"v_sub_f32 v{t+1}, v{t+1}, v{t+2}")
    a(f"v_max_f32 v{t+1}, 0, v{t+1}")
    a(f"v_add_f32 v{t+1}, {f32(1e-5)}, v{t+1}")
    a(f"v_rsq_f32 v{t+2}, v{t+1}")
    a("s_nop 0")
    if scale != 1.0:
        a(f"v_mul_f32 v{t+2}, {f32(scale)}, v{t+2}")
    a(f"v_mov_b32 v{t+3}, v{t+2}")
    for i in range(8):
        if vm:
            vm.wait(("x", i))
        a.raw(".p2align 3")
        for j in range(4):
            a(f"v_dot2_f32_bf16 v{LN_D+2*j}, v{LN_X+4*i+j}, v{t+5}, v{t}")
            a(f"v_dot2_f32_bf16 v{LN_D+2*j+1}, v{LN_X+4*i+j}, v{t+6}, v{t}")
        for j in range(4):
            a(f"v_pk_mul_f32 {vr(LN_D+2*j,2)}, {vr(LN_D+2*j,2)}, {vr(t+2,2)}")
        for j in range(4):
            a(f"v_cvt_pk_bf16_f32 v{LN_X+4*i+j}, v{LN_D+2*j}, v{LN_D+2*j+1}")
        a(f"ds_write_b128 v{V_XNW}, {vr(LN_X+4*i,4)} offset:{L_XN + 4096*i}")

def dma_addr(dst, row_bytes, col_s):
    a(f"v_lshrrev_b32 v10, 3, v{V_LANE}")
    a(f"v_and_b32 v11, 7, v{V_LANE}")
    a(f"v_lshlrev_b32 v{dst}, 1, v10")
    a(f"v_and_b32 v{dst}, 4, v{dst}")
    a(f"v_xor_b32 v11, v11, v{dst}")
    a(f"v_mul_u32_u24 v10, {row_bytes}, v10")
    a(f"v_lshl_add_u32 v10, v11, 4, v10")
    a(f"v_add_u32 v{dst}, s{col_s}, v10")

def dma(vm, tag, rsrc, vaddr, sg, goff, sl, loff, flags=""):
    a(f"s_add_u32 m0, s{sl}, {loff}")
    a(f"s_add_u32 s{T7}, s{sg}, {goff}")
    a(f"buffer_load_dwordx4 v{vaddr}, {sr(rsrc,4)}, s{T7} offen {flags} lds")
    vm.issue(tag)

def tr_lane_addr(dst, hp_s, perm):
    a(f"v_bfe_u32 v10, v{V_LANE}, 2, 2")
    a(f"v_lshrrev_b32 v11, 1, v10")
    a(f"v_xor_b32 v11, s{hp_s}, v11")
    a(f"v_lshlrev_b32 v11, 6, v11")
    a(f"v_lshl_add_u32 v11, v10, 7, v11")
    a(f"v_bfe_u32 v10, v{V_LANE}, 4, 1")
    a(f"v_lshl_add_u32 v11, v10, 5, v11")
    if perm:
        a(f"v_and_b32 v10, 1, v{V_LANE}")
        a(f"v_lshl_add_u32 v11, v10, 4, v11")
        a(f"v_bfe_u32 v10, v{V_LANE}, 1, 1")
        a(f"v_lshl_add_u32 v11, v10, 3, v11")
    else:
        a(f"v_and_b32 v10, 3, v{V_LANE}")
        a(f"v_lshl_add_u32 v11, v10, 3, v11")
    a(f"v_lshrrev_b32 v10, 5, v{V_LANE}")
    a(f"v_lshl_add_u32 v{dst}, v10, 10, v11")

def tr_read(dst, vaddr, off):
    a(f"ds_read_b64_tr_b16 {vr(dst,2)}, v{vaddr} offset:{off}")
    a(f"ds_read_b64_tr_b16 {vr(dst+2,2)}, v{vaddr} offset:{off+512}")

G_X = 16
G_XA, G_WA = 4, 8

FAKE = opt("fake", "")
def mm(kind, acc, A, B, t, zero):
    if kind in FAKE:
        for k in range(2):
            d = vr(acc + 4*((2*t + k) % 4), 4)
            a(f"v_mfma_f32_16x16x32_bf16 {d}, {A}, {B}, {'0' if zero and t < 2 else d}")
    else:
        d = vr(acc, 16)
        a(f"v_mfma_f32_32x32x16_bf16 {d}, {A}, {B}, {'0' if zero and t == 0 else d}")

def capture(f, *x):
    keep, a.L = a.L, []
    f(*x)
    out, a.L = [l.strip() for l in a.L if not l.strip().startswith(";")], keep
    return out

def w_addr():
    a(f"s_bfe_u32 s{T0}, s{S_W}, 0x10001")
    tr_lane_addr(G_WA, T0, True)
    a(f"v_add_u32 v{G_WA}, {L_RING}, v{G_WA}")
    a(f"v_add_u32 v{G_WA+1}, 49152, v{G_WA}")

def x_addr(raw):
    a(f"s_and_b32 s{T0}, s{S_W}, 1")
    a(f"s_lshl_b32 s{T0}, s{T0}, 15")
    if raw:
        a(f"v_bfe_u32 v10, v{V_LANE}, 3, 2")
        a(f"v_lshlrev_b32 v10, 13, v10")
        a(f"v_and_b32 v11, 7, v{V_LANE}")
        a(f"v_lshl_add_u32 v10, v11, 7, v10")
        a(f"v_add_u32 v10, s{T0}, v10")
        a(f"v_bfe_u32 v11, v{V_LANE}, 1, 3")
        a(f"v_lshrrev_b32 v{G_XA}, 5, v{V_LANE}")
        a(f"v_xor_b32 v11, v11, v{G_XA}")
        for b in range(4):
            a(f"v_xor_b32 v{G_XA+b}, {2*b}, v11")
            a(f"v_lshl_add_u32 v{G_XA+b}, v{G_XA+b}, 4, v10")
    else:
        for b in range(4):
            a(f"v_lshrrev_b32 v10, 5, v{V_LANE}")
            a(f"v_add_u32 v10, {2*b}, v10")
            a(f"v_and_b32 v11, 31, v{V_LANE}")
            a(f"v_xor_b32 v11, v11, v10")
            a(f"v_lshlrev_b32 v11, 4, v11")
            a(f"v_lshl_add_u32 v11, v10, 9, v11")
            a(f"v_add_u32 v{G_XA+b}, s{T0}, v11")

def w_read(dst, u):
    off = ((u >> 3) % 6)*16384 + (u & 7)*2048
    if off >= 49152:
        tr_read(dst, G_WA + 1, off - 49152)
    else:
        tr_read(dst, G_WA, off)

def gemm_compute(vm, acc, wf, swapped, zero_c, inject, before, bars, nm, xstride, w0=None, joint=False):
    lg = Cnt(a, "lgkmcnt", 15)
    nxt = [0]
    def unit(u):
        return (u & 1, u >> 1) if (joint and u < 64) else (u >> 5, u & 31)
    def rd(u):
        if u % 8 == 0 and (u >> 3) in bars:
            vm.wait(("w", u >> 3), ("x", u >> 3), extra="" if u else "lgkmcnt(0)")
            if u == 0 and nm == "p1":
                stamp("w0 in")
            a("s_barrier")
        seg, t = unit(u)
        if seg == 0:
            a(f"ds_read_b128 {vr(G_X+4*t,4)}, v{G_XA+(t&3)} offset:{L_XN + (t>>2)*xstride}")
            lg.issue(u)
        if u >= 32 or not w0:
            w_read(wf[u % 6], u)
            lg.issue(u, 2)
    def fill(upto):
        while nxt[0] <= min(upto, 95):
            rd(nxt[0]); nxt[0] += 1
    fill(5 if joint else 3)
    for u in range(96):
        seg, t = unit(u)
        if u % 32 == 0 and GST:
            stamp(f"{nm} pass{u >> 5}")
        if u in before:
            before[u]()
        if u < 32 and not joint:
            lg.wait(u)
        elif u % 2 == 0:
            lg.wait(u + 1)
        x, d = vr(G_X+4*t, 4), vr(acc[seg], 16)
        w = vr(w0(t) if (w0 and u < 32) else wf[u % 6], 4)
        c = "0" if (seg in zero_c and t == 0) else d
        if seg in swapped:
            mm(nm[1], acc[seg], x, w, t, seg in zero_c)
        else:
            mm(nm[1], acc[seg], w, x, t, seg in zero_c)
        fill(u + (6 if joint else 4 if u < 28 else 5 if u < 29 else 6))
        for ins in inject.get(u, []):
            if isinstance(ins, tuple):
                a(ins[0]); vm.issue(ins[1])
            else:
                a(ins)

def spread(inject, items, u0, u1):
    tot = sum(c for _, c in items)
    acc = 0
    for ins, c in items:
        u = u0 + min(u1 - u0 - 1, int(acc * (u1 - u0) / tot))
        inject.setdefault(u, []).append(ins)
        acc += c

S_RG = [S_D0, S_D1, S_D2, S_D3]
def ring_setup(row_bytes, rot, rows=32):
    a(f"s_and_b32 s{S_D5}, s{S_W}, 3")
    a(f"s_mul_i32 s{T0}, s{S_D5}, {rows*row_bytes}")
    a(f"s_lshl_b32 s{S_D5}, s{S_D5}, 12")
    for c in range(4):
        if rot:
            a(f"s_add_u32 s{T7}, s{rot}, {c}")
            a(f"s_and_b32 s{T7}, s{T7}, 3")
            a(f"s_mul_i32 s{T7}, s{T7}, {128*row_bytes}")
            a(f"s_add_u32 s{S_RG[c]}, s{T0}, s{T7}")
        else:
            a(f"s_add_u32 s{S_RG[c]}, s{T0}, {c*128*row_bytes}")

def ring_issue(vm, rsrc, row_bytes, seg_off, n):
    if rsrc == R_W1 and "%x" % n in opt("skipw", ""):
        return
    for p in range(4):
        dma(vm, ("w", n), rsrc, V_DB, S_RG[n & 3], seg_off[n >> 2] + p*8*row_bytes, S_D5, L_RING + (n % 6)*16384 + p*1024)

def qkv_issue(vm, n):
    if not KVJ:
        return ring_issue(vm, R_WQKV, 3072, QKV_SEG, n)
    if n == 8:
        a(f"s_mul_i32 s{T7}, s{S_D5}, 12")
        for c in range(4):
            a(f"s_add_u32 s{S_RG[c]}, s{S_RG[c]}, s{T7}")
    if n >= 8:
        return ring_issue(vm, R_WQKV, 3072, QKV_SEG, n)
    for p in range(4):
        dma(vm, ("w", n), R_WQKV, V_DB, S_RG[n >> 1], QKV_SEG[p >> 1] + ((n & 1)*64 + (p & 1)*8)*3072, S_D5, L_RING + (n % 6)*16384 + p*1024)

def swap23(dst, mask, tmp):
    a(f"v_and_b32 v{dst}, {mask & ~12:#x}, v{V_LANE}")
    a(f"v_bfe_u32 v{tmp}, v{V_LANE}, 2, 1")
    a(f"v_lshl_add_u32 v{dst}, v{tmp}, 3, v{dst}")
    a(f"v_bfe_u32 v{tmp}, v{V_LANE}, 3, 1")
    a(f"v_lshl_add_u32 v{dst}, v{tmp}, 2, v{dst}")

def only(w, f, *x):
    l = a.uniq("L_w")
    a(f"s_cmp_lg_u32 s{S_W}, {w}")
    a(f"s_cbranch_scc1 {l}")
    f(*x)
    a.label(l)

def is_a(label):
    a(f"s_cmp_lt_u32 s{S_W}, 4")
    a(f"s_cbranch_scc1 {label}")

def act_setup(nblk, base, pairs):
    a(f"s_and_b32 s{T0}, s{S_W}, 3")
    a(f"s_lshl_b32 s{T3}, s{T0}, 10")
    a(f"s_lshl_b32 s{T0}, s{T0}, {11 if pairs else 10}")
    a(f"s_add_u32 s{T0}, s{T0}, s{S_ZG}")
    a(f"s_add_u32 s{T4}, s{T0}, {base}")
    a(f"s_and_b32 s{T0}, s{S_W}, 2")
    a(f"s_lshl_b32 s{T0}, s{T0}, 12")
    a(f"v_add_u32 v4, s{T0}, v{V_L16}")
    a(f"v_add_u32 v5, 65536, v4")
    a(f"v_add_u32 v6, 131072, v4")

def act_issue(vm, q, slot, nblk, pairs):
    for kh in range(2):
        for tb32 in range(2):
            g = (tb32*nblk + q)*16384 + kh*1024 if pairs else (tb32*nblk + 2*kh + (q >> 1))*16384 + (q & 1)*4096
            dma(vm, ("a", q), R_WS, V_L16, T0 if (ORD and not pairs and q & 1) else T4, g, T3, slot*16384 + kh*8192 + tb32*4096, "sc1")

def tile_compute(vm, nsteps, slots, wreg, acc, af, inject={}):
    lg = Cnt(a, "lgkmcnt", 15)
    last = 4*((nsteps - 1)//4)
    seq = [(t, b) for t in range(last) for b in range(2)]
    if TSPLIT:
        seq += [(t, b) for b in range(2) for t in range(last, nsteps)]
    else:
        seq += [(t, b) for t in range(last, nsteps) for b in range(2)]
    n = len(seq)
    def rd(u):
        if u >= n: return
        t, tb32 = seq[u]
        if u % 8 == 0:
            vm.wait(("a", t >> 2))
            a("s_barrier")
        off = slots[t >> 2]*16384 + tb32*4096 + (t & 3)*1024
        a(f"ds_read_b128 {vr(af+4*(u&3),4)}, v{4 + off//65536} offset:{off % 65536}")
        lg.issue(u)
    def wr(tb32):
        for i in range(4):
            a(f"ds_write_b128 v{V_REDW+i}, {vr(acc+16*tb32+4*i,4)} offset:{tb32*8192}")
    for u in range(4):
        rd(u)
    for u in range(n):
        t, tb32 = seq[u]
        lg.wait(u)
        d = vr(acc + 16*tb32, 16)
        mm("t", acc + 16*tb32, vr(wreg(t),4), vr(af+4*(u&3),4), t, True)
        rd(u + 4)
        for x in inject.get(u, []):
            a(x)
    if TSPLIT:
        k = 2*(nsteps - last)
        a(f"s_nop {11 - k}")
        wr(0)
        if k > 4:
            a(f"s_nop {k - 5}")
        wr(1)
    else:
        a("s_nop 7")
        a("s_nop 2")
        wr(0)
        wr(1)
    a("s_waitcnt lgkmcnt(0)")

def tile_loader(vm, nsteps, after):
    for q in range((nsteps + 3)//4):
        vm.wait(("a", q))
        a("s_barrier")
        after(q)

def reduce_addr():
    a(f"s_and_b32 s{T0}, s{S_W}, 2")
    a(f"s_lshl_b32 s{T0}, s{T0}, 13")
    a(f"s_and_b32 s{T1}, s{S_W}, 1")
    a(f"s_lshl_b32 s{T1}, s{T1}, 2")
    a(f"v_and_b32 v10, 31, v{V_LANE}")
    a(f"v_lshlrev_b32 v10, 8, v10")
    a(f"v_lshrrev_b32 v11, 5, v{V_LANE}")
    a(f"v_xor_b32 v11, v11, v{V_LANE}")
    a(f"v_and_b32 v11, 1, v11")
    a(f"v_lshl_add_u32 v10, v11, 7, v10")
    a(f"v_add_u32 v10, s{T0}, v10")
    a(f"v_and_b32 v11, 7, v{V_LANE}")
    a(f"v_xor_b32 v11, s{T1}, v11")
    for i in range(4):
        a(f"v_xor_b32 v{V_REDW+i}, {i}, v11")
        a(f"v_lshl_add_u32 v{V_REDW+i}, v{V_REDW+i}, 4, v10")
    a(f"v_lshrrev_b32 v10, 3, v0")
    a(f"v_xor_b32 v11, v10, v0")
    a(f"v_and_b32 v11, 7, v11")
    a(f"v_lshlrev_b32 v11, 4, v11")
    a(f"v_lshl_add_u32 v11, v10, 8, v11")
    a(f"v_and_b32 v10, 1, v10")
    a(f"v_lshl_add_u32 v{V_REDR}, v10, 7, v11")
    a(f"v_xor_b32 v{V_REDR+1}, 128, v{V_REDR}")

def tile_gather(dst):
    a("s_barrier")
    a(f"ds_read_b128 {vr(dst,4)}, v{V_REDR}")
    a(f"ds_read_b128 {vr(dst+8,4)}, v{V_REDR} offset:16384")
    a(f"ds_read_b128 {vr(dst+4,4)}, v{V_REDR+1}")
    a(f"ds_read_b128 {vr(dst+12,4)}, v{V_REDR+1} offset:16384")

def unpack8(dst, src):
    L = []
    for i in range(4):
        L.append(f"v_lshlrev_b32 v{dst+2*i}, 16, v{src+i}")
        L.append(f"v_and_b32 v{dst+2*i+1}, 0xffff0000, v{src+i}")
    return L

hdr = open("cdna_kernels/" + NAME + ".s.ref").read().split("\n")
for line in hdr:
    if line.startswith("; Override"):
        break
    a.raw(line)
a.raw(f"; @launch grid=(256,1,1) block=(512,1,1) lds={LDS_BYTES}")
a.raw('.amdgcn_target "amdgcn-amd-amdhsa--gfx950"')
a.raw(".text")
a.raw(f".globl {NAME}_kernel")
a.raw(".p2align 8")
a.raw(f".type {NAME}_kernel,@function")
a.label(f"{NAME}_kernel")

vm = Cnt(a, "vmcnt", 63)
def new_vm(): return Cnt(a, "vmcnt", 63)
a(f"s_cmp_ge_u32 s{S_WG}, 256")
a("s_cbranch_scc1 L_end")
if STAMPS:
    a("v_mov_b32 v250, 0")
stamp("start")
a(f"s_load_dwordx16 {sr(KA,16)}, s[0:1], 0")
a(f"s_load_dwordx4 {sr(KA+16,4)}, s[0:1], 64")
a(f"s_load_dwordx2 {sr(KA+20,2)}, s[0:1], 80")
a(f"s_getpc_b64 {sr(S_PC,2)}")
a.label("L_pc")
a.c("pull this kernel's code into L2, two lines per wave")
a("v_lshrrev_b32 v4, 6, v0")
a(f"s_and_b32 s{T0}, s{S_WG}, 0xf8")
a(f"v_readfirstlane_b32 s{S_W}, v4")
a(f"v_and_b32 v{V_LANE}, 63, v0")
a(f"v_lshl_add_u32 v5, v{V_LANE}, 8, v4")
a(f"v_add_u32 v5, s{T0}, v5")
a(f"v_lshlrev_b32 v5, 7, v5")
a(f"v_min_u32 v5, L_code_end-L_pc-4, v5")
a("s_mov_b64 exec, 3")
a(f"global_load_dword v251, v5, {sr(S_PC,2)}")
vm.issue("pf")
a("s_mov_b64 exec, -1")
a.c("roles: attention (hg, tb), MLP (tb2, j)")
a(f"s_and_b32 s{T0}, s{S_WG}, 7")
a(f"s_lshr_b32 s{T1}, s{S_WG}, 3")
a(f"s_lshr_b32 s{T2}, s{T0}, {3 - LH}")
a(f"s_lshl_b32 s{T2}, s{T2}, {5 - LH}")
a(f"s_lshr_b32 s{S_SHR}, s{T1}, {LH}")
a(f"s_add_u32 s{S_TB}, s{T2}, s{S_SHR}")
a(f"v_lshrrev_b32 v4, 3, v0")
if XSW:
    a(f"s_and_b32 s{T2}, s{T1}, 1")
    a(f"s_lshl_b32 s{S_STAGE}, s{T2}, 15")
    a(f"s_lshl_b32 s{T2}, s{T2}, 5")
    a(f"v_xor_b32 v4, s{T2}, v4")
a(f"v_and_b32 v5, 7, v0")
a(f"v_lshlrev_b32 v{V_ROWOFF}, 10, v4")
a(f"v_lshl_add_u32 v{V_ROWOFF}, v5, 4, v{V_ROWOFF}")
a(f"s_lshl_b32 s{T6}, s{S_TB}, 16")
for c in range(4):
    a(f"s_add_u32 s{T7}, s{S_SHR}, {c}")
    a(f"s_and_b32 s{T7}, s{T7}, 3")
    a(f"s_lshl_b32 s{T7}, s{T7}, 8")
    a(f"s_add_u32 s{S_RG[c]}, s{T6}, s{T7}")
a(f"s_mov_b32 s{R_X+2}, {2048*512*2}")
a(f"s_mov_b32 s{R_X+3}, 0x00020000")
QKV_SEG = [1024, 2048, 0]
a(f"s_lshl_b32 s{T4}, s{S_WG}, 1")
a(f"s_lshr_b32 s{T5}, s{S_W}, 2")
a(f"s_add_u32 s{T4}, s{T4}, s{T5}")
a(f"s_mul_i32 s{T4}, s{T4}, 3072")
a(f"s_and_b32 s{T5}, s{S_W}, 3")
a(f"s_lshl_b32 s{T5}, s{T5}, 8")
a(f"s_add_u32 s{T4}, s{T4}, s{T5}")
a("s_waitcnt lgkmcnt(0)")
a(f"s_mov_b64 {sr(R_X,2)}, {sr(KA,2)}")
a(f"s_add_u32 s{S_PC}, s{KA+2}, s{T4}")
a(f"s_addc_u32 s{S_PC+1}, s{KA+3}, 0")
def w_touch(segs):
    a.c("first touch of Wqkv (scalar path), a different quarter row by every wave")
    for o in segs:
        for i in range(4):
            a(f"s_load_dword s{S_SPIN}, {sr(S_PC,2)}, {o + 64*i}")
w_touch(QKV_SEG[:SPF])
if WPF:
    a(f"v_lshrrev_b32 v6, 1, v{V_LANE}")
    a(f"v_add_u32 v6, 1, v6")
    a(f"v_mul_u32_u24 v7, 11, v6")
    a(f"v_lshrrev_b32 v7, 5, v7")
    a(f"v_mul_u32_u24 v7, 3, v7")
    a(f"v_sub_u32 v6, v6, v7")
    a(f"v_lshlrev_b32 v6, 10, v6")
    a(f"v_and_b32 v7, 1, v{V_LANE}")
    a(f"v_lshl_add_u32 v6, v7, 7, v6")
    a(f"s_mov_b64 exec, {(1 << (2*WPF)) - 1}")
    a(f"global_load_dword v251, v6, {sr(S_PC,2)}")
    vm.issue("pf")
    a("s_mov_b64 exec, -1")
if EARLY:
    a(f"s_cmp_ge_u32 s{S_W}, 4")
    a("s_cbranch_scc1 L_x_later")
ln_loads(vm, R_X, S_RG)
if EARLY:
    a.label("L_x_later")
if XSW:
    a(f"v_xor_b32 v{V_ROWOFF}, s{S_STAGE}, v{V_ROWOFF}")
a(f"s_load_dword s{S_N}, {sr(KA+20,2)}, {WS_NONCE}")
srd(R_WQKV, KA+2, 512*1536*2)
a(f"s_and_b32 s{T2}, s{T0}, {(8 >> LH) - 1}")
a(f"s_and_b32 s{T3}, s{T1}, {(1 << LH) - 1}")
a(f"s_lshl_b32 s{T3}, s{T3}, {3 - LH}")
a(f"s_add_u32 s{S_HG}, s{T2}, s{T3}")
a(f"s_lshl_b32 s{T2}, s{T0}, 2")
a(f"s_and_b32 s{T3}, s{T1}, 3")
a(f"s_add_u32 s{S_TB2}, s{T2}, s{T3}")
a(f"s_lshr_b32 s{S_J}, s{T1}, 2")
a(f"v_and_b32 v6, 31, v4")
a(f"v_xor_b32 v6, v6, v5")
a(f"v_lshlrev_b32 v6, 4, v6")
a(f"v_lshl_add_u32 v6, v5, 9, v6")
a(f"v_lshrrev_b32 v4, 5, v4")
a(f"v_lshl_add_u32 v{V_XNW}, v4, 15, v6")
ln_consts()
W1_SEG = [0, 128, 256]

QA, QB, SA, SB, OA, OB = 16, 20, 24, 40, 56, 72
A_KV = 88
A_IDX, A_AV, A_AK = 8, 14, 15
A_W1, A_WO = 3, 12
A_ONE, A_QA = 214, 215
P_W = 160
def Kf(t, ns=4): return A_KV + 12*(t % ns)
def Vf(t, s, ns=4): return A_KV + 12*(t % ns) + 4 + 4*s
def F_W(t): return 140 + 4*t if t < 24 else 64 + 4*(t - 24)

def qkv_ring_setup():
    a(f"s_lshl_b32 s{T4}, s{S_HG}, 7")
    dma_addr(V_DB, 3072, T4)
    ring_setup(3072, S_SHR, 16 if KVJ else 32)

def common_setup():
    srd(R_WS, KA+20, WS_SIZE)
    srd(R_WO, KA+4, 512*512*2)
    srd(R_W1, KA+8, 512*1376*2)
    srd(R_B1, KA+10, 1376*2)
    srd(R_W2, KA+12, 1376*512*2)
    srd(R_B2, KA+14, 512*2)
    srd(R_OUT, KA+16, 2048*512*2)
    a(f"s_min_u32 s{T2}, s{S_J}, 3")
    a(f"s_mul_i32 s{S_F0}, s{S_J}, 5")
    a(f"s_add_u32 s{S_F0}, s{S_F0}, s{T2}")
    a(f"s_cmp_lt_u32 s{S_J}, 3")
    a(f"s_cselect_b32 s{S_NT}, 6, 5")
    a(f"s_lshl_b32 s{T4}, s{S_J}, 7")
    a(f"s_lshl_b32 s{T5}, s{S_TB2}, 16")
    a(f"s_add_u32 s{S_TILE}, s{T5}, s{T4}")
    a(f"v_lshlrev_b32 v{V_L16}, 4, v{V_LANE}")
    a(f"v_lshlrev_b32 v249, 2, v{V_LANE}")
    reduce_addr()
    a(f"s_and_b32 s{T0}, s{S_W}, 3")
    a(f"s_lshl_b32 s{T2}, s{S_HG}, 2")
    a(f"s_add_u32 s{T2}, s{T2}, s{T0}")
    a(f"s_lshl_b32 s{T2}, s{T2}, 17")
    a(f"s_add_u32 s{T2}, s{T2}, {WS_KV}")
    a(f"v_and_b32 v10, 15, v{V_LANE}")
    a(f"v_lshrrev_b32 v11, 5, v{V_LANE}")
    a(f"v_lshl_add_u32 v10, v11, 4, v10")
    a(f"v_lshl_add_u32 v{A_AV}, v10, 4, s{T2}")
    a(f"v_add_u32 v{A_AK}, s{T2}, v{V_L16}")
    a.c("waves 0-3 start on this workgroup's own two key tiles; the sweep over the others skips them")
    a(f"s_lshr_b32 s{T1}, s{S_W}, 2")
    a(f"s_mul_i32 s{S_XOFF}, s{T1}, {(NA - 2)*2048}")
    a(f"s_lshl_b32 s{S_OWN}, s{S_TB}, 12")
    a(f"s_add_u32 s{S_OWN2}, s{S_OWN}, 4096")
    if LOC:
        a(f"s_and_b32 s{S_OWN2}, s{S_OWN2}, 0x1ffff")
        a(f"s_and_b32 s{T2}, s{S_OWN}, 0x7fff")
        a(f"s_cmp_ge_u32 s{S_XOFF}, s{T2}")
        a(f"s_cselect_b32 s{T3}, 4096, 0")
        a(f"s_add_u32 s{S_XOFF}, s{S_XOFF}, s{T3}")
        a(f"s_and_b32 s{T2}, s{S_OWN}, 0x18000")
        a(f"s_add_u32 s{S_XOFF}, s{S_XOFF}, s{T2}")
        a(f"s_and_b32 s{S_XOFF}, s{S_XOFF}, 0x1ffff")
    else:
        a(f"s_cmp_ge_u32 s{S_XOFF}, s{S_OWN}")
        a(f"s_cselect_b32 s{T3}, 4096, 0")
        a(f"s_add_u32 s{S_XOFF}, s{S_XOFF}, s{T3}")
    a(f"s_mov_b32 s{S_MASKV}, 0xffff")
    a(f"s_mov_b32 s{S_MASKV+1}, 0xffff")
    a.c("rows 16 and 20 of the V operand are ones (row sums for both lane halves), the other spare rows zero")
    a(f"v_and_b32 v10, 0x1b, v{V_LANE}")
    a(f"v_cmp_eq_u32 vcc, 16, v10")
    a(f"v_mov_b32 v10, 0x3f803f80")
    a(f"v_mov_b32 v11, 0")
    a(f"v_cndmask_b32 v{A_ONE}, v11, v10, vcc")
    a(f"s_lshl_b32 s{T2}, s{S_W}, 10")
    a(f"v_add_u32 v{A_QA}, s{T2}, v{V_L16}")
    a(f"s_lshl_b32 s{T2}, s{T1}, 3")
    a(f"s_add_u32 s{T2}, s{T2}, s{S_HG}")
    a(f"s_lshl_b32 s{T2}, s{T2}, 2")
    a(f"s_add_u32 s{T2}, s{T2}, s{T0}")
    a(f"s_lshl_b32 s{T2}, s{T2}, 10")
    a(f"s_and_b32 s{T3}, s{T2}, 0xffffe000")
    a(f"s_add_u32 s{T2}, s{T2}, s{T3}")
    a(f"s_add_u32 s{S_HEAD}, s{T2}, {WS_OF}")

A_KF = 216
def kvflag_setup():
    if KVL:
        a(f"s_and_b32 s{S_SPIN}, s{S_TB}, 7")
        a(f"s_lshl_b32 s{S_FOWN}, s{S_TB}, 2")
        a(f"s_and_b32 s{S_FOWN}, s{S_FOWN}, 0x60")
        a(f"s_add_u32 s{S_SPIN}, s{S_SPIN}, s{S_FOWN}")
        flag_addr(WS_FKV, S_HG, S_SPIN, S_HG, 9)
        a(f"v_and_b32 v10, 7, v{V_LANE}")
        a(f"v_lshrrev_b32 v11, 3, v{V_LANE}")
        a(f"v_lshlrev_b32 v11, 7, v11")
        a(f"v_lshl_add_u32 v{A_KF}, v10, 2, v11")
    else:
        flag_addr(WS_FKV, S_HG, S_TB, S_HG, 9)
        a(f"v_mov_b32 v{A_KF}, v249")

def tag_setup():
    a.c("hand-off tag of this launch: next value of a full-period sequence after the one found in the workspace")
    a(f"s_mul_i32 s{S_N}, s{S_N}, 0x0019660d")
    a(f"s_add_u32 s{S_N}, s{S_N}, 0x3c6ef35f")
    a(f"v_mov_b32 v248, s{S_N}")

def misc_loads(v, with_b1):
    a.c("small operands needed much later: residual x tile, biases")
    a(f"buffer_load_dwordx4 {vr(V_HRES,4)}, v{V_ROWOFF}, {sr(R_X,4)}, s{S_TILE} offen")
    a(f"v_and_b32 v10, 0x70, v{V_L16}")
    a(f"s_lshl_b32 s{T7}, s{S_J}, 7")
    a(f"buffer_load_dwordx4 {vr(V_B2,4)}, v10, {sr(R_B2,4)}, s{T7} offen")
    v.issue("misc", 2)
    if with_b1:
        swap23(10, 31, 11)
        a(f"v_lshlrev_b32 v10, 1, v10")
        a(f"s_lshr_b32 s{T7}, s{S_W}, 1")
        a(f"s_add_u32 s{T7}, s{T7}, s{S_F0}")
        a(f"s_lshl_b32 s{T7}, s{T7}, 6")
        for seg in range(3):
            a(f"buffer_load_ushort v{V_B1+seg}, v10, {sr(R_B1,4)}, s{T7} offen offset:{seg*128}")
        v.issue("misc", 3)

def attn_zero(ns):
    L = [(SB+8+i, f"v_mov_b32 v{SB+8+i}, 0") for i in range(8)]
    L += [(o+i, f"v_mov_b32 v{o+i}, 0") for o in (OA, OB) for i in range(16)]
    L += [(Vf(t,0,ns)+i, f"v_mov_b32 v{Vf(t,0,ns)+i}, v{A_ONE}") for t in range(ns) for i in range(8)]
    return L

def q_reads():
    a(f"v_xor_b32 v10, 4096, v{A_QA}")
    a(f"ds_read_b128 {vr(QA,4)}, v{A_QA} offset:{L_Q}")
    a(f"ds_read_b128 {vr(QB,4)}, v10 offset:{L_Q}")

def kv_load(v, t, ns, part=None):
    imm = 2048*(t & 1)
    so = S_OWN if t < 0 else S_XOFF
    if part != "v":
        a(f"buffer_load_dwordx4 {vr(Kf(t,ns),4)}, v{A_AK}, {sr(R_WS,4)}, s{so} offen offset:{imm} sc1")
    if part == "k":
        return
    a(f"s_mov_b64 exec, {sr(S_MASKV,2)}")
    a(f"buffer_load_dwordx4 {vr(Vf(t,0,ns),4)}, v{A_AV}, {sr(R_WS,4)}, s{so} offen offset:{imm+1024} sc1")
    a(f"buffer_load_dwordx4 {vr(Vf(t,1,ns),4)}, v{A_AV}, {sr(R_WS,4)}, s{so} offen offset:{imm+1536} sc1")
    a("s_mov_b64 exec, -1")
    if t & 1 and t >= 0:
        a(f"s_add_u32 s{S_XOFF}, s{S_XOFF}, 4096")
        if LOC:
            a(f"s_and_b32 s{S_XOFF}, s{S_XOFF}, 0x1ffff")
        if ns == 6 or not LOC:
            a(f"s_cmp_eq_u32 s{S_XOFF}, s{S_OWN}")
            a(f"s_cselect_b32 s{S_XOFF}, s{S_OWN2}, s{S_XOFF}")
    v.issue(("kv", t), 3)
def kv_load2(v, t, ns):
    for k in range(2):
        a(f"buffer_load_dwordx4 {vr(Kf(t+k,ns),4)}, v{A_AK}, {sr(R_WS,4)}, s{S_XOFF} offen offset:{2048*k} sc1")
    a(f"s_mov_b64 exec, {sr(S_MASKV,2)}")
    for k in range(2):
        for h in range(2):
            a(f"buffer_load_dwordx4 {vr(Vf(t+k,h,ns),4)}, v{A_AV}, {sr(R_WS,4)}, s{S_XOFF} offen offset:{2048*k+1024+512*h} sc1")
    a("s_mov_b64 exec, -1")
    a(f"s_add_u32 s{S_XOFF}, s{S_XOFF}, 4096")
    a(f"s_and_b32 s{S_XOFF}, s{S_XOFF}, 0x1ffff")
    a(f"s_cmp_eq_u32 s{S_XOFF}, s{S_OWN}")
    a(f"s_cselect_b32 s{S_XOFF}, s{S_OWN2}, s{S_XOFF}")
    v.issue(("kv", t + 1), 5)
    v.issue(("kv", t), 1)
def smf(o, v, s):
    a(f"v_smfmac_f32_32x32x32_bf16 {vr(o,16)}, {vr(v,4)}, {vr(s,8)}, v{A_IDX}")
def attn_tile(v, t, ns, last=None, side=(), tail=None, load=True):
    side = list(side)
    order = {1: [(0, 13)], 2: [(0, 13), (1, 13)], 4: [(0, 4), (0, 13), (1, 4), (1, 13)]}[NBLK]
    at = {}
    for k, f in enumerate(side):
        at.setdefault(order[k*NBLK//len(side)], []).append(f)
    for ph in range(2):
        S, So, O, Oo, Qo = (SA, SB, OA, OB, QB) if ph == 0 else (SB, SA, OB, OA, QA)
        for i in range(16):
            for f in at.get((ph, i), []):
                f()
            if i == 2:
                smf(Oo, Vf(t - 1 + ph, 1, ns), So + 8)
            if i == 5 and not (ph == 1 and t == last):
                if ph == 1:
                    v.wait(("kv", t + 1))
                a(f"v_mfma_f32_32x32x16_bf16 {vr(So,16)}, {vr(Kf(t+ph,ns),4)}, {vr(Qo,4)}, 0")
            if i == 10:
                smf(O, Vf(t, 0, ns), S)
            if ph == 0 and i == KPOS and ns == 6 and load and (last is None or t + ns - 1 <= last):
                kv_load(v, t + ns - 1, ns, "k")
            if ph == 0 and i == LPOS and load and (last is None or t + ns - 1 <= last):
                if BAT and ns == 6 and t >= 0:
                    if t % 2 == 0:
                        kv_load2(v, t + 4, ns)
                        if BAT == 1:
                            v.wait(("kv", t + 2))
                else:
                    kv_load(v, t + ns - 1, ns, "v" if KPOS >= 0 and ns == 6 else None)
                    if WM and t >= 0 and ns == 6:
                        v.wait(("kv", t + 1))
            if ph == 1 and i == 12 and tail:
                tail()
            a(f"v_exp_f32 v{S+i}, v{S+i}")
def attn_first(v, t, ns, fill=None):
    v.wait(("kv", t), extra="lgkmcnt(0)")
    a(f"v_mfma_f32_32x32x16_bf16 {vr(SA,16)}, {vr(Kf(t,ns),4)}, {vr(QA,4)}, 0")
    if fill:
        fill()
    a("s_nop 7")
    a("s_nop 3")

a.c("======== phase 1: LN1 + QKV projection")
stamp("setup") if PROBE else None
va, vb = vm.copy(), vm.copy()
is_a("L_p1_a")
def w_prefetch(v, segs):
    if not segs:
        return
    a.c("4 rows per wave of the XCD's Wqkv columns into L2")
    a(f"s_lshr_b32 s{T5}, s{S_WG}, 3")
    a(f"s_lshl_b32 s{T5}, s{T5}, 2")
    a(f"s_and_b32 s{T7}, s{S_W}, 3")
    a(f"s_add_u32 s{T5}, s{T5}, s{T7}")
    a(f"s_mul_i32 s{T5}, s{T5}, {4*3072}")
    a(f"s_and_b32 s{T7}, s{S_HG}, {(8 >> LH) - 1}")
    a(f"s_lshl_b32 s{T7}, s{T7}, 7")
    a(f"s_add_u32 s{T5}, s{T5}, s{T7}")
    a(f"v_lshrrev_b32 v10, {LH}, v{V_LANE}")
    a(f"v_mul_u32_u24 v10, 3072, v10")
    a(f"v_and_b32 v11, {(1 << LH) - 1}, v{V_LANE}")
    a(f"v_lshl_add_u32 v10, v11, {10 - LH}, v10")
    a(f"s_mov_b64 exec, {(1 << (4 << LH)) - 1:#x}")
    for o in segs:
        a(f"buffer_load_dword v251, v10, {sr(R_WQKV,4)}, s{T5} offen offset:{o}")
        v.issue("pf")
    a("s_mov_b64 exec, -1")
L2A = opt('l2a', 0)
if EARLY:
    common_setup()
    a("v_mov_b32 v208, 0")
    a("v_mov_b32 v209, 0")
    if EARLY > 1:
        for r, x in attn_zero(4):
            if r >= 64:
                a(x)
    ln_loads(new_vm(), R_X, S_RG)
w_prefetch(vb, QKV_SEG[L2A:L2PF])
if opt("diag", 0):
    stamp("pf issued")
    a(f"s_waitcnt vmcnt({L2PF})")
    stamp("pf xin")
    for k in range(L2PF):
        a(f"s_waitcnt vmcnt({L2PF - 1 - k})")
        stamp(f"pf done{k}")
qkv_ring_setup()
for n in range(NPB):
    qkv_issue(vb, n)
ln_stats(vb, 2.0)
a("s_branch L_p1_norm")

a.label("L_p1_a")
w_prefetch(va, QKV_SEG[:L2A])
common_setup()
a.c("first touch (scalar path) of the flag lines and the biases")
a(f"s_lshl_b32 s{T2}, s{S_TB2}, 20")
a(f"s_lshl_b32 s{T3}, s{S_J}, 7")
a(f"s_add_u32 s{T2}, s{T2}, s{T3}")
a(f"s_and_b32 s{T3}, s{S_W}, 1")
a(f"s_lshl_b32 s{T3}, s{T3}, 13")
a(f"s_add_u32 s{T2}, s{T2}, s{T3}")
a(f"s_add_u32 s{T2}, s{T2}, {WS_GRP}")
a(f"s_load_dword s{S_SPIN}, {sr(KA+20,2)}, s{T2}")
a(f"s_lshl_b32 s{T3}, s{S_W}, 7")
a(f"s_lshl_b32 s{T2}, s{S_HG}, 9")
a(f"s_add_u32 s{T2}, s{T2}, s{T3}")
a(f"s_add_u32 s{T2}, s{T2}, {WS_FKV}")
a(f"s_load_dword s{S_SPIN}, {sr(KA+20,2)}, s{T2}")
a(f"s_lshl_b32 s{T2}, s{S_WG}, 2")
a(f"s_add_u32 s{T2}, s{T2}, {WS_FC}")
a(f"s_load_dword s{S_SPIN}, {sr(KA+20,2)}, s{T2}")
a(f"s_lshl_b32 s{T2}, s{S_W}, 1")
a(f"s_add_u32 s{T2}, s{T2}, s{S_F0}")
a(f"s_min_u32 s{T2}, s{T2}, 41")
a(f"s_lshl_b32 s{T2}, s{T2}, 6")
a(f"s_add_u32 s{T3}, s{T2}, 64")
a(f"s_load_dword s{S_SPIN}, {sr(KA+10,2)}, s{T2}")
a(f"s_load_dword s{S_SPIN}, {sr(KA+10,2)}, s{T3}")
a(f"s_and_b32 s{T2}, s{S_W}, 1")
a(f"s_lshl_b32 s{T2}, s{T2}, 6")
a(f"s_add_u32 s{T2}, s{T2}, s{T4}")
a(f"s_load_dword s{S_SPIN}, {sr(KA+14,2)}, s{T2}")
if opt("tlb", 0):
    a.c("... and of the pages used later")
    a(f"s_lshr_b32 s{T2}, s{S_WG}, 3")
    a(f"s_lshl_b32 s{T2}, s{T2}, 2")
    a(f"s_add_u32 s{T2}, s{T2}, s{S_W}")
    a(f"s_lshl_b32 s{T3}, s{T2}, 12")
    a(f"s_load_dword s{S_SPIN}, {sr(KA+4,2)}, s{T3}")
    a(f"s_mul_i32 s{T3}, s{T2}, 11008")
    a(f"s_load_dword s{S_SPIN}, {sr(KA+8,2)}, s{T3}")
    a(f"s_load_dword s{S_SPIN}, {sr(KA+12,2)}, s{T3}")
    if opt("tlb", 0) > 1:
        a(f"s_lshl_b32 s{T3}, s{T2}, 17")
        a(f"s_load_dword s{S_SPIN}, {sr(KA+20,2)}, s{T3}")
        a(f"s_lshl_b32 s{T3}, s{T2}, 14")
        a(f"s_load_dword s{S_SPIN}, {sr(KA+16,2)}, s{T3}")
w_addr()
x_addr(False)
qkv_ring_setup()
a(f"s_and_b32 s{T0}, s{S_W}, 1")
a(f"s_lshr_b32 s{T1}, s{S_W}, 1")
tr_lane_addr(A_WO, T0, False)
a(f"s_lshl_b32 s{T7}, s{T1}, 15")
a(f"v_add_u32 v{A_WO}, s{T7}, v{A_WO}")
E_K, E_V, E_Q, E_C = 208, 209, 210, 212
swap23(10, 63, 11)
a(f"v_lshlrev_b32 v{E_K}, 4, v10")
a(f"v_and_b32 v10, 15, v{V_LANE}")
a("v_lshlrev_b32 v10, 4, v10")
a(f"v_lshrrev_b32 v11, 5, v{V_LANE}")
a("v_lshl_add_u32 v10, v11, 8, v10")
a(f"v_bfe_u32 v11, v{V_LANE}, 4, 1")
a(f"v_lshl_add_u32 v{E_V}, v11, 17, v10")
a(f"s_lshl_b32 s{T2}, s{T0}, 12")
a(f"s_lshl_b32 s{T3}, s{T1}, 11")
a(f"s_add_u32 s{T2}, s{T2}, s{T3}")
a(f"v_add_u32 v{E_Q}, s{T2}, v{V_L16}")
a(f"v_mov_b32 v{E_C}, {f32(0.25*math.log2(math.e))}")
a(f"v_mov_b32 v{E_C+1}, v{E_C}")
a(f"s_lshl_b32 s{T2}, s{S_HG}, 1")
a(f"s_add_u32 s{T2}, s{T2}, s{T1}")
a(f"s_lshl_b32 s{T2}, s{T2}, 18")
a(f"s_lshl_b32 s{T3}, s{S_TB}, 1")
a(f"s_add_u32 s{T3}, s{T3}, s{T0}")
a(f"s_lshl_b32 s{T3}, s{T3}, 11")
a(f"s_add_u32 s{T2}, s{T2}, s{T3}")
a(f"s_add_u32 s{T2}, s{T2}, {WS_KV}")
a(f"s_add_u32 s{T3}, s{T2}, 0x20000")
ln_stats(va, 1.0)
a.label("L_p1_norm")
ln_norm(1.0)
stamp("ln1 done")
is_a("L_p1_compute")

W2_HOME = [(0, 65536, 49152), (24, 131072, 16384), (32, 20480, 22528)]
if W2L:
    W2_HOME = [(0, 65536, 49152), (24, 20480, 6144), (27, 0, 32768)]
W2_END = 27 if W2L else 43
S_H = [T4, T5, T6]
def w2_home(t):
    k = 0 if t < 24 else 1 if t < W2_HOME[2][0] else 2
    return k, (t - W2_HOME[k][0])*2048
def staging_setup():
    a(f"s_lshl_b32 s{T4}, s{S_J}, 7")
    dma_addr(V_DA, 1024, T4)
    a(f"s_lshl_b32 s{T4}, s{S_F0}, 6")
    dma_addr(V_DB, 2752, T4)
    a(f"v_lshrrev_b32 v10, 2, v{V_LANE}")
    a(f"v_mul_u32_u24 v10, 2752, v10")
    a(f"v_and_b32 v11, 3, v{V_LANE}")
    a(f"v_lshlrev_b32 v11, 7, v11")
    a(f"v_min_u32 v11, {252 if WS1[0] == 4 else 380}, v11")
    a(f"v_add3_u32 v{A_W1}, v10, v11, s{T4}")
    a(f"s_and_b32 s{T0}, s{S_W}, 3")
    a(f"s_lshl_b32 s{S_D0}, s{T0}, 13")
    a(f"s_lshl_b32 s{S_D1}, s{T0}, 10")
    a(f"s_mul_i32 s{S_D2}, s{T0}, {8*2752}")
    a(f"s_and_b32 s{T4}, s{S_TB2}, 3")
    a(f"s_lshl_b32 s{T4}, s{T4}, 2")
    a(f"s_add_u32 s{T4}, s{T4}, s{T0}")
    a(f"s_mul_i32 s{S_D4}, s{T4}, {32*2752}")
    a(f"s_and_b32 s{T2}, s{S_W}, 1")
    a(f"s_bfe_u32 s{T3}, s{S_W}, 0x10001")
    tr_lane_addr(7, T2, False)
    for k, (t0, base, stride) in enumerate(W2_HOME):
        a(f"s_mul_i32 s{S_H[k]}, s{T3}, {stride}")
        a(f"s_add_u32 s{S_H[k]}, s{S_H[k]}, {base}")
        a(f"v_add_u32 v{4+k}, s{S_H[k]}, v7")
        a(f"s_lshl_b32 s{T7}, s{T2}, 10")
        a(f"s_add_u32 s{S_H[k]}, s{S_H[k]}, s{T7}")
    a(f"v_mov_b32 v{A_IDX}, 0xdddddddd")
def mall_touch():
    a.c("first touch of the later weights, different lines by every wave")
    a(f"s_lshl_b32 s{T2}, s{S_WG}, 2")
    a(f"s_add_u32 s{T2}, s{T2}, s{S_W}")
    a(f"s_sub_u32 s{T2}, s{T2}, 4")
    a(f"s_lshl_b32 s{T3}, s{T2}, 9")
    a(f"s_mul_i32 s{T2}, s{T2}, {11*128}")
    a(f"v_lshlrev_b32 v10, 7, v{V_LANE}")
    for r, so, m in ((R_WO, T3, 15), (R_W2, T2, 0x7ff), (R_W1, T2, 0x7ff)):
        a(f"s_mov_b64 exec, {m:#x}")
        a(f"buffer_load_dword v251, v10, {sr(r,4)}, s{so} offen")
        vb.issue("pf")
    a("s_mov_b64 exec, -1")
def s_touch(k):
    def f():
        if k == 0:
            a(f"s_lshl_b32 s{T7}, s{S_WG}, 2")
            a(f"s_add_u32 s{T7}, s{T7}, s{S_W}")
            a(f"s_sub_u32 s{T7}, s{T7}, 4")
            a(f"s_lshl_b32 s{S_SPIN}, s{T7}, 9")
            a(f"s_add_u32 s{KA+4}, s{KA+4}, s{S_SPIN}")
            a(f"s_addc_u32 s{KA+5}, s{KA+5}, 0")
            a(f"s_mul_i32 s{T7}, s{T7}, {11*128}")
            a(f"s_min_u32 s{T7}, s{T7}, {512*1376*2 - 11*128}")
            for p in (KA+8, KA+12):
                a(f"s_add_u32 s{p}, s{p}, s{T7}")
                a(f"s_addc_u32 s{p+1}, s{p+1}, 0")
        L = [(KA+4, i) for i in range(8)] + [(KA+12, i) for i in range(22)] + [(KA+8, i) for i in range(22)]
        for p, i in L[13*k:13*k + 13]:
            a(f"s_load_dword s{KA+6}, {sr(p,2)}, {64*i}")
    return f
cs = capture(common_setup)
late = {3: cs[:40], 4: cs[40:80], 5: cs[80:], 6: [x for _, x in attn_zero(4)][:36], 7: [x for _, x in attn_zero(4)][36:],
        8: capture(staging_setup)[:38], 9: capture(staging_setup)[38:], 10: capture(tag_setup) + capture(kvflag_setup)}
if EARLY:
    zz = [x for r, x in attn_zero(4) if r < 64 or EARLY == 1]
    late.update({3: zz[:15], 4: zz[15:30], 5: zz[30:45], 6: zz[45:60], 7: zz[60:]})
later = []
if LATE:
    for k in ((8, 9) if LATE == 1 else (6, 7, 8, 9)):
        later += late.pop(k)
for k in (40, 80):
    assert not cs[k].startswith("s_cselect") and "vcc" not in cs[k]
nxw = NPA
for n in range(12):
    vb.wait(("w", n), extra="lgkmcnt(0)" if n == 0 else "")
    if opt("bst", -1) == n:
        stamp(f"bw{n}")
    a("s_barrier")
    if opt("bst", -1) == n:
        stamp(f"bb{n}")
    while nxw <= min(11, n + NB0 + 1, n + 4 if n >= 2 else 5):
        qkv_issue(vb, nxw)
        nxw += 1
    if n == QPF:
        w_prefetch(vb, QKV_SEG[2:])
    for x in late.get(n, []):
        a(x)
    if n == MW:
        mall_touch()
    if STM and n == STM:
        s_touch(0)()
    if STM and n == 11 and opt("stm2", 1):
        s_touch(1)()
misc_loads(vb, False)
a("s_barrier")
flag_store(4)
def lead():
    l = a.uniq("L_nl")
    a(f"s_cmp_lg_u32 s{S_J}, 0")
    a(f"s_cbranch_scc1 {l}")
    a.c("group leader: which half answers faster?")
    a(f"s_lshl_b32 s{T2}, s{S_TB2}, 20")
    a(f"s_add_u32 s{T2}, s{T2}, {WS_GRP + F_PROBE}")
    a(f"s_add_u32 s{T3}, s{T2}, 8192")
    NP = opt("np", 1)
    for k in range(2*NP):
        a(f"s_memtime {sr(KA+2*k,2)}")
        a("s_waitcnt lgkmcnt(0)")
        a(f"s_load_dword s{KA+14}, {sr(KA+20,2)}, s{(T2, T3)[k & 1]} glc")
        a("s_waitcnt lgkmcnt(0)")
    a(f"s_memtime {sr(KA+4*NP,2)}")
    a("s_waitcnt lgkmcnt(0)")
    for k in range(2*NP):
        a(f"s_sub_u32 s{KA+2*k}, s{KA+2*k+2}, s{KA+2*k}")
    for k in range(2, 2*NP):
        a(f"s_min_u32 s{KA+2*(k&1)}, s{KA+2*(k&1)}, s{KA+2*k}")
    a(f"s_mov_b32 s{T2}, s{KA}")
    a(f"s_mov_b32 s{T3}, s{KA+2}")
    a(f"s_cmp_lt_u32 s{T3}, s{T2}")
    a(f"s_cselect_b32 s{T2}, " + {1: "4, 0", 2: "0, 4", 0: "0, 0"}[NEAR])
    a(f"s_lshl_b32 s{T7}, s{S_TB2}, 6")
    a(f"s_add_u32 s{T7}, s{T7}, s{T2}")
    a(f"s_add_u32 s{T7}, s{T7}, {WS_PL}")
    a("s_mov_b64 exec, 1")
    a(f"buffer_store_dword v248, v249, {sr(R_WS,4)}, s{T7} offen sc1")
    a("s_mov_b64 exec, -1")
    a.label(l)
L_GO = L_Q + 8192
if LF:
    a("v_mov_b32 v9, 0")
    a(f"ds_write_b32 v9, v9 offset:{L_GO}")
    a("s_waitcnt lgkmcnt(0)")
a("s_barrier")
q_reads()
for x in later:
    a(x)
if not KVP:
    if SLP:
        a(f"s_sleep {SLP}")
    if LF:
        a(f"s_lshr_b32 s{T7}, s{S_TB}, 3")
        a(f"s_lshl_b32 s{T7}, s{T7}, 7")
        a(f"v_add_u32 v10, s{T7}, v249")
        flag_poll(4, 8, 0, 10)
    else:
        flag_poll(4, 32, 0, A_KF)
    stamp("kv seen B")
a("s_waitcnt lgkmcnt(0)")
a("s_barrier")
if LF:
    a.c("the remaining flags: wave 4 polls, waves 5-7 watch an LDS word")
    flag_poll(4, 32, 0, A_KF)
    def go():
        a("v_mov_b32 v10, 1")
        a(f"ds_write_b32 v9, v10 offset:{L_GO}")
    only(4, go)
    only(5, lead)
    a(f"s_mov_b32 s{S_SPIN}, 0")
    a.label("L_go")
    a(f"ds_read_b32 v10, v9 offset:{L_GO}")
    a(f"s_add_u32 s{S_SPIN}, s{S_SPIN}, 1")
    a(f"s_lshr_b32 s{T2}, s{S_SPIN}, 22")
    a("s_waitcnt lgkmcnt(0)")
    a(f"v_readfirstlane_b32 s{T7}, v10")
    a("s_nop 0")
    a(f"s_or_b32 s{T7}, s{T7}, s{T2}")
    a("s_cbranch_scc0 L_go")
    stamp("kv all B")
a.c("======== phase 2, waves 4-7: fewer key tiles, and the weights of the later phases go on chip")
NB = 64 - NA
a("s_setprio 1")
for t in range(3):
    kv_load(vb, t, 4)
attn_first(vb, 0, 4)
if STM:
    s_touch(1 + opt("stm2", 1))()
elif MW == -1:
    mall_touch()
F0 = [5*j + min(j, 3) for j in range(8)]
TL = [F0[j] + 2*p + i for p in range(2) for j in range(8) for i in range(2)] + [F0[j] + i for j in range(8) for i in range(4, 6 if j < 3 else 5)]
assert sorted(TL) == list(range(43))
ND = opt("nd", 0)
def mk(*x):
    if ND == 1:
        return lambda: None
    if ND == 2:
        return lambda: a("\n".join(capture(dma, new_vm(), *x)[:2]))
    if ND == 3:
        return lambda: dma(vb, x[0], x[1], x[2], x[3], 0, x[5], x[6])
    return lambda: dma(vb, *x)
L_wo = [mk("r1", R_WO, V_DA, S_D0, k*32768, S_D1, k*4096) for k in range(16)]
L_w2 = [mk("r1" if t < 24 else "r2", R_W2, V_DA, S_D0, TL[t]*32768, S_H[w2_home(t)[0]], w2_home(t)[1]) for t in range(43)]
L_w1 = [mk("r2", R_W1, V_DB, S_D2, k*32*2752, S_D1, L_RING + k*4096) for k in range(16)]
def d_warm(k):
    def f():
        a(f"s_add_u32 s{T7}, s{S_D4}, {k*16*2752 + (128 if WS1[0] == 4 else 0)}")
        a(f"buffer_load_dword v251, v{A_W1}, {sr(R_W1,4)}, s{T7} offen")
        vb.issue("pf")
    return f
def d_rd(t):
    k, off = w2_home(t)
    return lambda: tr_read(F_W(t), 4 + k, off)
def d_c3():
    a.c("lines at 384 mod 1024 stream slowly past L2 into a single CU: every workgroup pulls a few of them")
    a(f"s_lshr_b32 s{T2}, s{S_WG}, 3")
    a(f"s_lshl_b32 s{T2}, s{T2}, 2")
    a(f"s_add_u32 s{T2}, s{T2}, s{T0}")
    a(f"s_lshl_b32 s{T3}, s{T2}, 12")
    a(f"s_mul_i32 s{T2}, s{T2}, {11*1024}")
    a(f"v_lshlrev_b32 v10, 10, v{V_LANE}")
    for r, so, m in ((R_WO, T3, 15), (R_W2, T2, 0x7ff)):
        a(f"s_mov_b64 exec, {m:#x}")
        a(f"buffer_load_dword v251, v10, {sr(r,4)}, s{so} offen offset:384")
        vb.issue("pf")
    a("s_mov_b64 exec, -1")
def d_code():
    a.c("the code of the later phases back into L2, two lines per wave")
    a(f"s_getpc_b64 {sr(S_PC,2)}")
    a.label("L_pc2")
    a(f"s_lshr_b32 s{T2}, s{S_WG}, 3")
    a(f"s_lshl_b32 s{T2}, s{T2}, 2")
    a(f"s_add_u32 s{T2}, s{T2}, s{T0}")
    a(f"s_lshl_b32 s{T2}, s{T2}, 7")
    a(f"s_add_u32 s{T2}, s{T2}, L_attn_end-L_pc2")
    a(f"v_lshl_add_u32 v10, v{V_LANE}, 14, s{T2}")
    a(f"v_min_u32 v10, L_code_end-L_pc2-4, v10")
    a("s_mov_b64 exec, 3")
    a(f"global_load_dword v251, v10, {sr(S_PC,2)}")
    vb.issue("pf")
    a("s_mov_b64 exec, -1")
def share(L, tiles):
    return {t: L[k*len(L)//len(tiles):(k+1)*len(L)//len(tiles)] for k, t in enumerate(tiles)}
plan = {0: [lambda: None]*3 + [d_c3]}
plan.update(share(L_wo + L_w2[:24], list(range(T0B, TB1 - 1))))
if ND != 4:
    plan.update(share([d_rd(t) for t in range(24)], list(range(TB1, TB1 + TB2))))
plan.update(share(L_w2[24:W2_END] + L_w1[:2*WS1[0]] + [d_warm(0)] + L_w1[2*WS1[0]:4*WS1[0]] + [d_warm(1)], list(range(TB1 + TB2, NB - TEND))))
if STM:
    for k in range(2 + opt("stm2", 1), 4):
        t = k - 1 - opt("stm2", 1)
        plan[t] = [s_touch(k)] + plan.get(t, [])
if opt("cpf", 1):
    plan[NB - opt("cpf", 1)] = [d_code] + plan.get(NB - opt("cpf", 1), [])
for t in range(NB):
    if t == 1 and LF:
        a("s_barrier")
    if t == TB1:
        vb.wait("r1")
        a("s_barrier")
        half_issue()
    if t == TB1 + TB2:
        a("s_waitcnt lgkmcnt(0)")
        a("s_barrier")
        half_check()
    attn_tile(vb, t, 4, NB - 1, plan.get(t, []))
vb.wait("r2")
a("s_setprio 0")
a("s_nop 0")
smf(OB, Vf(NB - 1, 1, 4), SB+8)
a("s_branch L_attn_end")

a.label("L_p1_compute")
for n in range(NPB, NPA):
    qkv_issue(va, n)
stamp("w0 issued")
w_prefetch(va, QKV_SEG[L2PF:opt("l2e", 2)])
def cvt_inplace(b):
    return [f"v_cvt_pk_bf16_f32 v{b+i}, v{b+2*i}, v{b+2*i+1}" for i in range(8)]
aK, aV, aQ = 144, 160, 176
inj = {2: capture(tag_setup)}
spread(inj, [(x, 1) for x in capture(kvflag_setup)], 4, 20)
items = [(x, 1) for x in cvt_inplace(aK)]
items += [((f"buffer_store_dwordx4 {vr(aK,4)}, v{E_K}, {sr(R_WS,4)}, s{T2} offen sc1", "st"), 2),
          ((f"buffer_store_dwordx4 {vr(aK+4,4)}, v{E_K}, {sr(R_WS,4)}, s{T3} offen sc1", "st"), 2)]
spread(inj, items, *((67, 70) if KVJ else (36, 42)))
items = [(x, 1) for x in cvt_inplace(aV)]
items += [((f"buffer_store_dwordx4 {vr(aV,4)}, v{E_V}, {sr(R_WS,4)}, s{T2} offen offset:1024 sc1", "st"), 2),
          ((f"buffer_store_dwordx4 {vr(aV+4,4)}, v{E_V}, {sr(R_WS,4)}, s{T2} offen offset:1536 sc1", "st"), 2)]
spread(inj, items, *((70, 73) if KVJ else (67, 71)))
a_zero = attn_zero(6)
spread(inj, [(x, 1) for r, x in a_zero if r >= 144], *((80, 92) if KVJ else (48, 60)))
for r, x in a_zero:
    if r < 144:
        inj.setdefault(64 + (r - G_X)//4, []).append(x)
def pub_kv():
    va.wait("st")
    a("s_barrier")
    stamp("kv drained")
gemm_compute(va, [aK, aV, aQ], [192, 196, 200, 204, 224, 228], {1}, {0, 1, 2}, inj, {UKV: pub_kv}, range(12), 'p1', 4096, None, KVJ)
kv_load(va, -2, 6)
kv_load(va, -1, 6)
a(f"v_mov_b32 v{A_IDX}, 0xdddddddd")
for i in range(8):
    a(f"v_pk_mul_f32 {vr(aQ+2*i,2)}, {vr(aQ+2*i,2)}, {vr(E_C,2)}")
for x in cvt_inplace(aQ):
    a(x)
a(f"ds_write_b128 v{E_Q}, {vr(aQ,4)} offset:{L_Q}")
a(f"ds_write_b128 v{E_Q}, {vr(aQ+4,4)} offset:{L_Q+1024}")
a("s_waitcnt lgkmcnt(0)")
a("s_barrier")
stamp("p1 done")
q_reads()
misc_loads(va, True)
a.c("======== phase 2, waves 0-3: attention; wave = head, 64 queries")
a(f"s_setprio {PRA}")
a(f"s_mov_b32 s{S_D4}, 1")
a(f"s_mov_b32 s{S_LOOP}, {1 if LF else IT1}")
a(f"s_mov_b32 s{S_STAGE}, {0 if LF else 1}")
def kv_try():
    a("s_mov_b32 exec_hi, 0")
    a(f"buffer_load_dword v247, v{A_KF}, {sr(R_WS,4)}, s{S_FPOLL} offen sc1")
    a("s_mov_b32 exec_hi, -1")
def kv_check():
    a("s_waitcnt vmcnt(0)")
    flag_poll(None, 32, 0, A_KF)
attn_first(va, -2, 6, (lambda: only(0, kv_try)) if KVP else None)
attn_tile(va, -2, 6, load=False)
stamp("own done")
if KVP:
    only(0, kv_check)
a("s_barrier")
stamp("kv ready")
for t in range(4):
    kv_load(va, t, 6)
attn_tile(va, -1, 6, load=not BAT)
if BAT:
    va.wait(('kv', 1))
    va.q = [('kv', 3)]*5 + [('kv', 2)]
a("s_branch L_attn")
a.label("L_attn_s0")
a("s_barrier")
a(f"s_setprio {PRA}")
a(f"s_mov_b32 s{S_LOOP}, {IT1 - 1}")
a("s_branch L_attn")
a.label("L_attn_s1")
a("s_barrier")
a(f"s_setprio {PRA}")
if ORD:
    a(f"s_and_b32 s{T7}, s{S_WG}, 1")
    a(f"s_lshl_b32 s{T7}, s{T7}, 13")
    a(f"v_add_u32 v10, s{T7}, v{A_WO}")
    a(f"s_sub_u32 s{T7}, 8192, s{T7}")
    a(f"v_add_u32 v11, s{T7}, v{A_WO}")
for t in range(16 if ND != 4 else 0):
    if ORD:
        tr_read(P_W + 4*t, 10 + ((t >> 2) & 1), (t & ~4)*2048)
    else:
        tr_read(P_W + 4*t, A_WO, t*2048)
half_issue()
a(f"s_mov_b32 s{S_LOOP}, {IT2}")
a("s_branch L_attn")
a.label("L_attn_s2")
half_check()
a("s_barrier")
a(f"s_setprio {PRA}")
if FEND <= (NA - 2) % 6:
    a(f"s_mov_b32 s{S_D4}, 0")
a(f"s_mov_b32 s{S_LOOP}, {(NA - 2)//6 - IT1 - IT2}")
a.raw(".p2align 4")
a.label("L_attn")
def loop_tail():
    a(f"s_sub_u32 s{S_LOOP}, s{S_LOOP}, 1")
    a(f"s_cmp_lg_u32 s{S_LOOP}, 0")
for t in range(6):
    if t == FLIP:
        a(f"s_cmp_lg_u32 s{S_LOOP}, s{S_D4}")
        a("s_cbranch_scc1 L_keep")
        a("s_setprio 0")
        a.label("L_keep")
    attn_tile(va, t, 6, None, [], loop_tail if t == 5 else None)
a("s_cbranch_scc1 L_attn")
a(f"s_add_u32 s{S_STAGE}, s{S_STAGE}, 1")
for k in range(3):
    a(f"s_cmp_eq_u32 s{S_STAGE}, {k + 1}")
    a(f"s_cbranch_scc1 L_attn_s{k}")
NT_ = (NA - 2) % 6
for t in range(6, 6 + NT_):
    if 6 + NT_ - t == FEND:
        a("s_setprio 0")
    attn_tile(va, t, 6, 5 + NT_)
if NT_:
    a("s_nop 1")
smf(OB, Vf(5 + NT_, 1, 6), SB+8)
a("s_setprio 0")

a.label("L_attn_end")
stamp("attn loop done")
a.c("combine the two key ranges: keep A, send B")
a(f"s_lshl_b32 s{T2}, s{S_W}, 11")
a(f"v_add_u32 v10, s{T2}, v{V_L16}")
a(f"s_lshl_b32 s{T2}, s{S_W}, 8")
a(f"v_add_u32 v11, s{T2}, v249")
a(f"v_xor_b32 v{SB+3}, 8192, v10")
a(f"v_xor_b32 v{SB+2}, 1024, v11")
a(f"v_mov_b32 v{SB}, {f32(2.0**-64)}")
a(f"v_mov_b32 v{SB+1}, {f32(2.0**64)}")
a("s_nop 2")
a(f"ds_write_b32 v11, v{OB+8} offset:{L_OX+16384}")
a(f"ds_write_b128 v10, {vr(OB,4)} offset:{L_OX}")
a(f"ds_write_b128 v10, {vr(OB+4,4)} offset:{L_OX+1024}")
a("s_waitcnt lgkmcnt(0)")
a("s_barrier")
a(f"ds_read_b32 v{SA+8}, v{SB+2} offset:{L_OX+16384}")
a(f"ds_read_b128 {vr(SA,4)}, v{SB+3} offset:{L_OX}")
a(f"ds_read_b128 {vr(SA+4,4)}, v{SB+3} offset:{L_OX+1024}")
a("s_waitcnt lgkmcnt(2)")
a(f"v_add_f32 v{OA+8}, v{OA+8}, v{SA+8}")
a.c("the loop subtracted no row maximum: a row sum outside [2^-64, 2^64] (or NaN) sends the wave to the true-max path")
a(f"v_cmp_ge_f32 vcc, v{OA+8}, v{SB}")
a(f"v_cmp_le_f32 {sr(S_SAVE,2)}, v{OA+8}, v{SB+1}")
a("s_waitcnt lgkmcnt(0)")
for i in range(4):
    a(f"v_pk_add_f32 {vr(OA+2*i,2)}, {vr(OA+2*i,2)}, {vr(SA+2*i,2)}")
a(f"s_and_b64 vcc, vcc, {sr(S_SAVE,2)}")
a(f"s_cmp_eq_u64 vcc, -1")
if FORCE_FB:
    a("s_branch L_attn_fb")
else:
    a("s_cbranch_scc0 L_attn_fb")
a.label("L_attn_fin")
a(f"v_rcp_f32 v10, v{OA+8}")
a("s_nop 0")
a("v_mov_b32 v11, v10")
for i in range(4):
    a(f"v_pk_mul_f32 {vr(OA+2*i,2)}, {vr(OA+2*i,2)}, v[10:11]")
for i in range(4):
    a(f"v_cvt_pk_bf16_f32 v{SA+i}, v{OA+2*i}, v{OA+2*i+1}")
a(f"buffer_store_dwordx4 {vr(SA,4)}, v{V_L16}, {sr(R_WS,4)}, s{S_HEAD} offen sc1")

a.c("======== phase 3: h = x + O Wo ; tile 64 tokens x 64 columns, computed by waves 0-3")
T_ACC, T_AF = 16, 48
def o_reread():
    if ORD:
        a("s_mov_b32 exec_lo, 0x01010101")
        a("s_mov_b32 exec_hi, 0x01010101")
        a(f"buffer_load_dword v251, v{V_L16}, {sr(R_WS,4)}, s{S_HEAD} offen sc1")
        a("s_mov_b64 exec, -1")
def W0(t): return 64 + 4*t
is_a("L_p3_a")
vb = new_vm()
for t in range(24, W2_END):
    d_rd(t)()
if W2L:
    a(f"s_mov_b32 s{S_OWN}, s{S_D0}")
    a(f"s_mov_b32 s{S_OWN2}, s{S_H[2]}")
    a(f"v_mov_b32 v8, v6")
ring_setup(2752, None)
assert WC[2] <= 4 and WC[3] <= 6 and WC[5] >= 6
for n in range(WC[1], WC[2]):
    ring_issue(vb, R_W1, 2752, W1_SEG, n)
a(f"s_waitcnt vmcnt({4*WS1[1]}) lgkmcnt(0)")
o_reread()
a("s_barrier")
for n in range(WC[2], WC[3]):
    ring_issue(vb, R_W1, 2752, W1_SEG, n)
act_setup(4, WS_OF, False)
if ORD:
    a(f"s_and_b32 s{T7}, s{S_WG}, 1")
    a(f"s_lshl_b32 s{T7}, s{T7}, 12")
    a(f"s_sub_u32 s{T0}, s{T4}, s{T7}")
    a(f"s_add_u32 s{T4}, s{T4}, s{T7}")
grp_flags(S_TB2, S_ZG, S_J)
a("s_barrier")
for q in range(NO):
    act_issue(vb, q, q, 4, False)
def h_pre(B):
    L = unpack8(B, V_HRES) + ["v_mov_b32 v10, 0x3f803f80", "v_and_b32 v7, 0x1f8, v0",
         f"s_lshl_b32 s{T2}, s{S_W}, 6", f"s_add_u32 s{T2}, s{T2}, s{S_J}", f"s_lshl_b32 s{T2}, s{T2}, 7",
         f"s_add_u32 s{T2}, s{T2}, s{S_ZG}", f"s_add_u32 s{T2}, s{T2}, {WS_H}",
         f"s_add_u32 s{T5}, s{S_ZG}, {WS_GRP + 4096}",
         f"s_lshl_b32 s{T6}, s{S_J}, 9", f"s_add_u32 s{T6}, s{T6}, s{T5}"]
    return L
def h_epilogue(B):
    tile_gather(16)
    for h in range(2):
        a(f"s_waitcnt lgkmcnt({2-2*h})")
        for i in range(2*h, 2*h+2):
            a(f"v_pk_add_f32 {vr(B+2*i,2)}, {vr(B+2*i,2)}, {vr(16+2*i,2)}")
            a(f"v_pk_add_f32 {vr(B+2*i,2)}, {vr(B+2*i,2)}, {vr(24+2*i,2)}")
        for i in range(2*h, 2*h+2):
            a(f"v_cvt_pk_bf16_f32 v{V_HRES+i}, v{B+2*i}, v{B+2*i+1}")
tile_loader(vb, 16, lambda q: act_issue(vb, q + NO, q + NO, 4, False) if q + NO < 4 else None)
for x in h_pre(32):
    a(x)
h_epilogue(32)
a("s_branch L_p3_done")
a.label("L_p3_a")
CJ, CA = 28, 16
a.c("wave 1 of workgroups 0-175 sums 64 rows of a 64-column strip of W1 (LayerNorm's mean term)")
a(f"s_cmp_lt_u32 s{S_WG}, 176")
a(f"s_cselect_b32 s{S_STAGE}, s{S_W}, 0")
a(f"s_cmp_lg_u32 s{S_STAGE}, 1")
a("s_cbranch_scc1 L_cs_noload")
a(f"v_lshrrev_b32 v10, 3, v{V_LANE}")
a(f"v_mul_u32_u24 v10, 2752, v10")
a(f"v_and_b32 v11, 7, v{V_LANE}")
a(f"v_lshl_add_u32 v10, v11, 4, v10")
a(f"s_and_b32 s{T0}, s{S_WG}, 7")
a(f"s_mul_i32 s{T0}, s{T0}, {64*2752}")
a(f"s_lshr_b32 s{T1}, s{S_WG}, 3")
a(f"s_lshl_b32 s{T1}, s{T1}, 7")
a(f"s_add_u32 s{T0}, s{T0}, s{T1}")
for i in range(8):
    a(f"buffer_load_dwordx4 {vr(CJ+4*i,4)}, v10, {sr(R_W1,4)}, s{T0} offen")
    a(f"s_add_u32 s{T0}, s{T0}, {8*2752}")
a.label("L_cs_noload")
grp_flags(S_TB, S_ZO, S_HG)
w_addr()
act_setup(4, WS_OF, False)
a(f"s_cmp_eq_u32 s{S_STAGE}, 1")
a("s_waitcnt vmcnt(8)")
a("s_cbranch_scc1 L_cs_loaded")
a("s_waitcnt vmcnt(0)")
a.label("L_cs_loaded")
o_reread()
a("s_barrier")
flag_store(0, 0, OPK)
stamp("O drained")
R0 = min(24, 8*WC[1])
R1 = min(32, 8*WC[3])
for t in range(R0):
    w_read(W0(t), t)
a(f"s_cmp_lg_u32 s{S_STAGE}, 1")
a("s_cbranch_scc1 L_cs_nojob")
a(f"v_mov_b32 v10, 0x00003f80")
a(f"v_mov_b32 v11, 0x3f800000")
for i in range(8):
    a(f"s_waitcnt vmcnt({7-i+ORD})")
    for j in range(4):
        for h in range(2):
            a(f"v_dot2_f32_bf16 v{CA+2*j+h}, v{CJ+4*i+j}, v{10+h}, {f'v{CA+2*j+h}' if i else '0'}")
a(f"s_and_b32 s{T0}, s{S_WG}, 7")
a(f"s_mul_i32 s{T0}, s{T0}, {1408*4}")
a(f"s_lshr_b32 s{T1}, s{S_WG}, 3")
a(f"s_lshl_b32 s{T1}, s{T1}, 8")
for k in range(4):
    a(f"v_permlane32_swap_b32 v{CA+k}, v{CA+4+k}")
a(f"s_add_u32 s{T0}, s{T0}, s{T1}")
a(f"s_add_u32 s{T0}, s{T0}, {WS_CS}")
for k in range(4):
    a(f"v_add_f32 v{CA+k}, v{CA+k}, v{CA+4+k}")
a("s_nop 1")
for k in range(2):
    a(f"v_permlane16_swap_b32 v{CA+k}, v{CA+2+k}")
a("s_nop 1")
for k in range(2):
    a(f"v_add_f32 v{CA+k}, v{CA+k}, v{CA+2+k}")
a(f"v_and_b32 v10, 7, v{V_LANE}")
a(f"v_lshrrev_b32 v11, 4, v{V_LANE}")
for k in range(2):
    a(f"v_add_f32_dpp v{CA+k}, v{CA+k}, v{CA+k} row_ror:8 row_mask:0xf bank_mask:0xf")
a(f"v_lshlrev_b32 v11, 3, v11")
a(f"v_lshl_add_u32 v10, v10, 5, v11")
a(f"s_mov_b32 exec_lo, 0x00ff00ff")
a(f"s_mov_b32 exec_hi, 0x00ff00ff")
a(f"buffer_store_dwordx2 {vr(CA,2)}, v10, {sr(R_WS,4)}, s{T0} offen sc1")
a("s_mov_b64 exec, -1")
a.label("L_cs_nojob")
if OSP:
    a(f"s_cmp_lg_u32 s{S_W}, 0")
    a("s_cbranch_scc1 L_o_seen")
    if OPK:
        peek_check(0, "L_o_seen")
    if DO:
        a(f"s_sleep {DO}")
    spoll_issue(0)
    spoll_check(0)
    a.label("L_o_seen")
else:
    flag_poll(0, 8)
a("s_waitcnt lgkmcnt(0)")
a("s_barrier")
stamp("O ready")
a(f"s_cmp_lg_u32 s{S_STAGE}, 1")
a("s_cbranch_scc1 L_cs_noflag")
a(f"s_lshl_b32 s{T0}, s{S_WG}, 2")
a(f"s_add_u32 s{T0}, s{T0}, {WS_FC}")
a("s_waitcnt vmcnt(0)")
a("s_mov_b64 exec, 1")
a(f"buffer_store_dword v248, v249, {sr(R_WS,4)}, s{T0} offen sc1")
a("s_mov_b64 exec, -1")
a.label("L_cs_noflag")
a.c("every workgroup has read the old tag by now: leave this launch's tag for the next launch to step past")
a(f"s_or_b32 s{T0}, s{S_WG}, s{S_W}")
a("s_cbranch_scc1 L_notag")
a("s_mov_b64 exec, 1")
a(f"buffer_store_dword v248, v249, {sr(R_WS,4)}, 0 offen offset:{WS_NONCE} sc1")
a("s_mov_b64 exec, -1")
a.label("L_notag")
for x in h_pre(224):
    a(x)
tile_compute(new_vm(), 16, [0, 1, 2, 3], lambda t: P_W + 4*t, T_ACC, T_AF)
h_epilogue(224)
a.label("L_p3_done")
a(f"buffer_store_dwordx4 {vr(V_HRES,4)}, v{V_ROWOFF}, {sr(R_WS,4)}, s{T2} offen sc1")
a.c("partial row statistics of this 64-column slice")
for i in range(4):
    a(f"v_dot2_f32_bf16 v16, v{V_HRES+i}, v10, {'v16' if i else '0'}")
    a(f"v_dot2_f32_bf16 v17, v{V_HRES+i}, v{V_HRES+i}, {'v17' if i else '0'}")
sum8_pair(16)
a(f"s_mov_b32 exec_lo, 0x01010101")
a(f"s_mov_b32 exec_hi, 0x01010101")
a(f"buffer_store_dwordx2 v[16:17], v7, {sr(R_WS,4)}, s{T6} offen sc1")
a("s_mov_b64 exec, -1")
a("v_mov_b32 v41, v7")
stamp("h stored")
def h_reread():
    a.c("pull the stored lines back into this XCD's L2 while the flags travel")
    a(f"s_mov_b32 exec_lo, 0x01010101")
    a(f"s_mov_b32 exec_hi, 0x01010101")
    a(f"buffer_load_dword v251, v{V_ROWOFF}, {sr(R_WS,4)}, s{T2} offen sc1")
    a("s_mov_b64 exec, 1")
    a(f"buffer_load_dword v251, v41, {sr(R_WS,4)}, s{T6} offen sc1")
    a("s_mov_b64 exec, -1")

a.c("======== phase 4: g = gelu(LN(h) W1 + b1) with LN folded into the product, scaled by GS so that the tanh argument is u*(u*u+k)")
c1 = -2.0*math.sqrt(2.0/math.pi)*math.log2(math.e)
c3 = c1*0.044715
GS = -((-c3) ** (1.0/3))
GK = c1/GS
G_SLOTS = [0, 1, 2, 3, 4, 5, 6, 7, 8, 9, 2]
is_a("L_p4_a")
vb = new_vm()
a.c("source offsets of the raw h image: wave 4+b loads row groups b and b+4")
a(f"v_lshrrev_b32 v10, 4, v0")
a(f"v_xor_b32 v10, v10, v0")
a(f"v_and_b32 v10, 7, v10")
a(f"v_and_b32 v{V_XNW}, 0x7c00, v{V_ROWOFF}")
a(f"v_lshl_add_u32 v{V_XNW}, v10, 4, v{V_XNW}")
a(f"s_and_b32 s{T3}, s{S_W}, 3")
a(f"s_lshl_b32 s{T3}, s{T3}, 13")
a(f"s_add_u32 s{T4}, s{T3}, {WS_H}")
a(f"s_add_u32 s{T4}, s{T4}, s{S_ZG}")
assert WC[4] <= 6 + R0//8 and WC[5] <= 6 + R1//8
for n in range(WC[3], WC[4]):
    ring_issue(vb, R_W1, 2752, W1_SEG, n)
a(f"s_waitcnt vmcnt({4*WS1[3]})")
h_reread()
vb.issue("rr", 2)
a("s_barrier")
flag_store(4, F_H, HPK)
for n in range(WC[4], WC[5]):
    ring_issue(vb, R_W1, 2752, W1_SEG, n)
a(f"s_cmp_lg_u32 s{S_W}, 4")
a("s_cbranch_scc1 L_h_seen")
if HPK:
    peek_check(4*NW2, "L_h_seen")
if DH:
    a(f"s_sleep {DH}")
spoll_issue(F_H)
spoll_check(F_H)
a.label("L_h_seen")
vb.wait(("w", 3))
a("s_barrier")
def h_issue(n):
    for i in (2*n, 2*n + 1):
        for r in range(2):
            dma(vb, ("x", n), R_WS, V_XNW, T4, r*65536 + i*128, T3, r*32768 + i*1024, "sc1")
for n in range(NH):
    h_issue(n)
for n in range(4):
    vb.wait(("x", n))
    a("s_barrier")
    if n + NH < 4:
        h_issue(n + NH)
    for k in {2: range(WC[5], WC[5] + 1), 3: range(WC[5] + 1, 10)}.get(n, []):
        ring_issue(vb, R_W1, 2752, W1_SEG, k)
act_setup(11, WS_GF, True)
TH = opt("th", 4)
GRP = [int(c, 16) for c in opt("grp", "8008")]
assert sum(GRP) == 16
w2n = [27]
def w2_late(k):
    for t in range(w2n[0], w2n[0] + k if W2L else 0):
        if len(vb.q) > TH:
            a(f"s_waitcnt vmcnt({TH})")
            vb.q = vb.q[len(vb.q) - TH:]
        dma(vb, "w2", R_W2, V_DA, S_OWN, TL[t]*32768, S_OWN2, w2_home(t)[1])
    w2n[0] += k
if W2L:
    a("s_barrier")
w2_late(GRP[0])
for n in (10, 11):
    vb.wait(("w", n - 4), *([("w", 9)] if n == 11 else []))
    a("s_barrier")
    ring_issue(vb, R_W1, 2752, W1_SEG, n)
    w2_late(GRP[n - 9])
vb.wait(("w", 9))
a("s_barrier")
flag_store(4, F_G0)
w2_late(GRP[3])
a("s_waitcnt vmcnt(0)")
vb.clear()
only(4, spoll_issue, F_G0)
a("s_barrier")
if W2L:
    for t in range(27, 43):
        tr_read(F_W(t), 8, w2_home(t)[1])
    a("s_waitcnt lgkmcnt(0)")
only(4, spoll_check, F_G0)
stamp("g0 ready")
a("s_barrier")
flag_store(4, F_G1)
a.c("======== phase 5: out = h + g W2 + b2, computed by waves 4-7")
if opt("pb", 0):
    a("s_setprio 1")
for q in range(2):
    act_issue(vb, q, G_SLOTS[q], 11, True)
OE = 140
out_pre = unpack8(OE, V_HRES) + unpack8(OE + 8, V_B2) + [f"v_add_f32 v{OE+i}, v{OE+i}, v{OE+8+i}" for i in range(8)]
out_pre += [f"v_mov_b32 v10, {f32(1.0/GS)}", "v_mov_b32 v11, v10"]
inj = {}
spread(inj, [(x, 1) for x in out_pre], 12, 40)
tile_compute(vb, 43, G_SLOTS, F_W, T_ACC, T_AF, inj)
stamp("ffn2 done B")
a("s_branch L_p5_done")

a.label("L_p4_a")
F_ACC = [192, 208, 168]
F_WF = [144, 148, 152, 156, 160, 164]
GT = 224
CB = [224, 228, 224]
CS = 16
for t in range(R0, R1):
    w_read(W0(t), t)
a.c("column sums of W1 for this wave's three tiles")
a(f"s_lshr_b32 s{T0}, s{S_F0}, 1")
a(f"s_min_u32 s{T0}, s{T0}, 18")
a(f"s_lshl_b32 s{T0}, s{T0}, 5")
a(f"s_add_u32 s{S_FPOLL}, s{T0}, {WS_FC}")
a("s_mov_b32 exec_hi, 0")
a(f"buffer_load_dword v247, v249, {sr(R_WS,4)}, s{S_FPOLL} offen sc1")
a("s_mov_b32 exec_hi, -1")
x_addr(True)
swap23(10, 31, 11)
a(f"v_lshrrev_b32 v11, 5, v{V_LANE}")
a(f"v_mul_u32_u24 v11, {4*1408*4}, v11")
a(f"v_lshl_add_u32 v10, v10, 2, v11")
a(f"s_lshr_b32 s{T0}, s{S_W}, 1")
a(f"s_add_u32 s{T0}, s{T0}, s{S_F0}")
a(f"s_lshl_b32 s{T0}, s{T0}, 7")
a(f"s_add_u32 s{T0}, s{T0}, {WS_CS}")
a("s_waitcnt vmcnt(1) lgkmcnt(0)")
h_reread()
a("s_barrier")
stamp("h drained")
a("s_waitcnt vmcnt(2)")
flag_poll(None, 32)
HS = 208
CP = 192
for k in range(4):
    for seg in range(3):
        a(f"buffer_load_dword v{CP+4*seg+k}, v10, {sr(R_WS,4)}, s{T0} offen offset:{seg*256} sc1")
    a(f"s_add_u32 s{T0}, s{T0}, {1408*4}")
grp_flags(S_TB2, S_ZG, S_J)
a(f"s_and_b32 s{T0}, s{S_W}, 1")
a(f"s_lshl_b32 s{T7}, s{T0}, 8")
a(f"s_add_u32 s{T5}, s{T5}, s{T7}")
a(f"s_mul_i32 s{T0}, s{T0}, {11*16384}")
a(f"s_add_u32 s{T0}, s{T0}, s{S_ZG}")
a(f"s_add_u32 s{T0}, s{T0}, {WS_GF}")
a(f"s_lshr_b32 s{T1}, s{S_W}, 1")
a(f"s_add_u32 s{S_STAGE}, s{T1}, 4")
a(f"s_lshl_b32 s{T7}, s{S_J}, 2")
a(f"s_sub_u32 s{T2}, s{S_F0}, s{T7}")
a(f"s_add_u32 s{T2}, s{T2}, s{T1}")
a(f"s_and_b32 s{T7}, s{T2}, 0xfc")
a(f"s_add_u32 s{T2}, s{T2}, s{T7}")
a(f"s_lshl_b32 s{T2}, s{T2}, 11")
a(f"s_add_u32 s{T2}, s{T2}, s{T0}")
a(f"s_add_u32 s{S_D2}, s{T2}, {8*16384}")
a(f"s_lshl_b32 s{T2}, s{S_J}, 1")
a(f"s_add_u32 s{T2}, s{T2}, s{T1}")
a(f"s_and_b32 s{T7}, s{T2}, 0xfc")
a(f"s_add_u32 s{T2}, s{T2}, s{T7}")
a(f"s_lshl_b32 s{T2}, s{T2}, 11")
a(f"s_add_u32 s{S_D0}, s{T2}, s{T0}")
a(f"s_add_u32 s{S_D1}, s{S_D0}, {4*16384}")
a(f"v_and_b32 v10, 31, v{V_LANE}")
a(f"v_lshlrev_b32 v10, 3, v10")
a(f"v_lshrrev_b32 v11, 5, v{V_LANE}")
a(f"v_lshl_add_u32 v235, v11, 11, v10")
a(f"v_lshlrev_b32 v3, 7, v{V_LANE}")
RS = 12
a(f"v_mov_b32 v10, {f32(GK)}")
a(f"v_mov_b32 v11, v10")
a(f"v_mov_b32 v14, 1.0")
a(f"v_mov_b32 v15, 1.0")
a("s_barrier")
stamp("h ready")
for t in range(R1, 32):
    w_read(W0(t), t)
vc = new_vm()
for k in range(4):
    a(f"buffer_load_dwordx2 {vr(HS+2*k,2)}, v235, {sr(R_WS,4)}, s{T5} offen offset:{k*512} sc1")
vc.issue(("x", 0), 4)
a("s_waitcnt vmcnt(4)")
for seg in range(3):
    c = CP + 4*seg
    a(f"v_add_f32 v{c}, v{c}, v{c+1}")
    a(f"v_add_f32 v{c+2}, v{c+2}, v{c+3}")
for seg in range(3):
    c = CP + 4*seg
    a(f"v_add_f32 v{c}, v{c}, v{c+2}")
for seg in range(3):
    c = CP + 4*seg
    a(f"v_mov_b32 v{c+1}, v{c}")
a("s_nop 1")
for seg in range(3):
    c = CP + 4*seg
    a(f"v_permlane32_swap_b32 v{c}, v{c+1}")
a("s_nop 1")
AB = [224, 228, 216]
for seg in range(3):
    c, d = CP + 4*seg, AB[seg]
    a(f"v_add_f32 v{c}, v{c}, v{c+1}")
    a(f"v_and_b32 v{c+1}, 0xffff0000, v{c}")
    a(f"v_sub_f32 v{c}, v{c}, v{c+1}")
    a(f"v_cvt_pk_bf16_f32 v{d}, v{c+1}, v{c+1}")
    a(f"v_cvt_pk_bf16_f32 v{d+1}, v{c}, v{c}")
    a(f"v_lshl_or_b32 v{d+2}, v{V_B1+seg}, 16, v{V_B1+seg}")
    a(f"v_mov_b32 v{d+3}, 0")
BO = 232
a(f"v_mov_b32 v{BO+3}, 0")
def gt(i): return 224 + i if i < 8 else 176 + i
def gelu_block(seg):
    u = F_ACC[seg]
    a.raw(".p2align 3")
    def two(op, f, D=gt):
        for i in range(0, 16, 2):
            a(f"v_pk_{op}_f32 {vr(D(i),2)}, " + f(vr(u+i, 2), vr(gt(i), 2)))
    two("mul", lambda U, T: f"{U}, {vr(RS,2)}", lambda i: u + i)
    two("fma", lambda U, T: f"{U}, {U}, v[10:11]")
    two("mul", lambda U, T: f"{T}, {U}")
    for i in range(16):
        a(f"v_exp_f32 v{gt(i)}, v{gt(i)}")
    two("add", lambda U, T: f"{T}, v[14:15]")
    for h in range(2):
        for i in range(8*h, 8*h + 8):
            a(f"v_rcp_f32 v{gt(i)}, v{gt(i)}")
        for i in range(8*h, 8*h + 8, 2):
            a(f"v_pk_mul_f32 {vr(gt(i),2)}, {vr(gt(i),2)}, {vr(u+i,2)}")
        for i in range(4):
            a(f"v_cvt_pk_bf16_f32 v{u+8*h+i}, v{gt(8*h+2*i)}, v{gt(8*h+2*i+1)}")
        a(f"buffer_store_dwordx4 {vr(u+8*h,4)}, v{V_L16}, {sr(R_WS,4)}, s{S_D0+seg} offen offset:{h*1024} sc1")
        vc.issue("st")
inj = {}
prep = [f"v_add_f32 v{HS}, v{HS}, v{HS+2}", f"v_add_f32 v{HS+1}, v{HS+1}, v{HS+3}",
        f"v_add_f32 v{HS+4}, v{HS+4}, v{HS+6}", f"v_add_f32 v{HS+5}, v{HS+5}, v{HS+7}",
        f"v_add_f32 v{HS}, v{HS}, v{HS+4}", f"v_add_f32 v{HS+1}, v{HS+1}, v{HS+5}",
        f"v_mov_b32 v{HS+2}, v{HS}", f"v_mov_b32 v{HS+3}, v{HS+1}",
        f"s_nop 1\nv_permlane32_swap_b32 v{HS}, v{HS+2}", f"v_permlane32_swap_b32 v{HS+1}, v{HS+3}\ns_nop 1",
        f"v_add_f32 v{HS}, v{HS}, v{HS+2}", f"v_add_f32 v{HS+1}, v{HS+1}, v{HS+3}",
        f"v_mul_f32 v{HS}, {f32(-1.0/512)}, v{HS}", f"v_mul_f32 v{HS+1}, {f32(1.0/512)}, v{HS+1}",
        f"v_fma_f32 v{HS+1}, -v{HS}, v{HS}, v{HS+1}", f"v_max_f32 v{HS+1}, 0, v{HS+1}",
        f"v_add_f32 v{HS+1}, {f32(1e-5)}, v{HS+1}", f"v_rsq_f32 v{HS+2}, v{HS+1}",
        f"v_and_b32 v{HS+3}, 0xffff0000, v{HS}", f"v_sub_f32 v{HS}, v{HS}, v{HS+3}",
        f"v_mul_f32 v{HS+1}, v{HS+1}, v{HS+2}", f"v_mul_f32 v{RS}, {f32(GS)}, v{HS+2}",
        f"v_cvt_pk_bf16_f32 v{BO}, v{HS+3}, v{HS}", f"v_and_b32 v{HS+3}, 0xffff0000, v{HS+1}",
        f"v_sub_f32 v{HS+1}, v{HS+1}, v{HS+3}", f"v_mov_b32 v{RS+1}, v{RS}",
        f"v_cvt_pk_bf16_f32 v{BO+2}, v{HS+3}, v{HS+1}",
        f"s_mov_b32 exec_lo, 0\nv_mov_b32 v{BO}, 0\nv_mov_b32 v{BO+2}, 0\ns_mov_b32 exec_lo, -1", f"v_mov_b32 v{BO+1}, v{BO}"]
spread(inj, [(x, 1) for x in prep], 0, 20)
spread(inj, [(x, 1) for x in capture(act_setup, 11, WS_GF, True)[:-5]], 70, 80)
def corr(seg):
    d = vr(F_ACC[seg], 16)
    a(f"v_mfma_f32_32x32x16_bf16 {d}, {vr(AB[seg],4)}, {vr(BO,4)}, {'0' if seg else d}")
def blk0():
    if W2L:
        a("s_barrier")
    a.c("the other accumulators start from -mean x colsum + std x bias")
    corr(2)
    corr(1)
    a("s_nop 7")
    gelu_block(0)
def blk1():
    a("s_nop 7")
    a("s_nop 1")
    gelu_block(1)
    if SKIP5:
        a(f"s_cmp_ge_u32 s{S_STAGE}, s{S_NT}")
        a("s_cbranch_scc1 L_p4_idle")
def g_reread(seg):
    a("s_mov_b64 exec, 0xffff")
    a(f"buffer_load_dword v251, v3, {sr(R_WS,4)}, s{S_D0+seg} offen sc1")
    a("s_mov_b64 exec, -1")
def pub(seg):
    def f():
        vc.wait("st")
        g_reread(seg)
        a("s_barrier")
    return f
gemm_compute(vc, F_ACC, F_WF, set(), {0}, inj, {24: lambda: corr(0), 32: blk0, UP0: pub(0), 64: blk1, UP1: pub(1)},
             (0, 1, 2, 3, 6, 7, 10), 'p4', 1024, W0)
stamp("ffn1 done")
if SKIP5:
    a("s_nop 7")
    a("s_nop 3")
    gelu_block(2)
    a("s_branch L_p4_skip")
    a.label("L_p4_idle")
    for x in capture(act_setup, 11, WS_GF, True)[:-5]:
        a(x)
    a(f"s_mov_b32 s{S_D2}, s{S_D1}")
    a("s_barrier")
    a("s_waitcnt vmcnt(0) lgkmcnt(0)")
    g_reread(1)
    a("s_barrier")
else:
    a(f"s_cmp_ge_u32 s{S_STAGE}, s{S_NT}")
    a(f"s_cselect_b32 s{S_D2}, s{S_D1}, s{S_D2}")
    a("s_cbranch_scc1 L_p4_skip")
    a("s_nop 7")
    a("s_nop 0")
    gelu_block(2)
a.label("L_p4_skip")
stamp("g stored")
vl = new_vm()
def g_issue(*L):
    for n in L:
        if n == 10:
            a.c("the last chunk has three tiles: wave 3 repeats wave 2's")
            a(f"s_cmp_eq_u32 s{S_W}, 3")
            a(f"s_cselect_b32 s{T7}, 2048, 0")
            a(f"s_sub_u32 s{T4}, s{T4}, s{T7}")
        act_issue(vl, n, G_SLOTS[n], 11, True)
g_issue(2, 3)
only(0, spoll_issue, F_G1)
Q1, QI = opt("q1", 1), opt("qi", 5)
def p5_after(q):
    if q in (0, 2, 4, 7, 10) and opt("fst", 0):
        stamp(f"p5 q{q}")
    if q == Q1 - 1:
        only(0, spoll_check, F_G1)
    if q == 2:
        a.c("the wait for chunk 2 covered the last stores of every wave")
        flag_store(0, F_G2)
        if RR2 == 1:
            g_reread(2)
            vl.issue("rr")
    if q == Q1:
        g_issue(*range(4, Q1 + 4))
    elif Q1 < q <= 4:
        g_issue(q + 3)
    if q == 2 and RR2 == 2:
        g_reread(2)
        vl.issue("rr")
    if q == QI:
        only(0, spoll_issue, F_G2)
    if q == QP - 1:
        only(0, spoll_check, F_G2)
    if q == QP:
        g_issue(8, 9, 10)
tile_loader(vl, 43, p5_after)
for x in out_pre:
    a(x)

a.label("L_p5_done")
tile_gather(16)
for h in range(2):
    a(f"s_waitcnt lgkmcnt({2-2*h})")
    for i in range(2*h, 2*h+2):
        a(f"v_pk_add_f32 {vr(16+2*i,2)}, {vr(16+2*i,2)}, {vr(24+2*i,2)}")
        a(f"v_pk_fma_f32 {vr(OE+2*i,2)}, {vr(16+2*i,2)}, v[10:11], {vr(OE+2*i,2)}")
    for i in range(2*h, 2*h+2):
        a(f"v_cvt_pk_bf16_f32 v{40+i}, v{OE+2*i}, v{OE+2*i+1}")
a(f"buffer_store_dwordx4 v[40:43], v{V_ROWOFF}, {sr(R_OUT,4)}, s{S_TILE} offen {opt('of', 'sc0_sc1').replace('_', ' ')}")
if STAMPS:
    a("s_waitcnt vmcnt(0)")
stamp("end")
stamp_flush()
a.label("L_end")
a("s_endpgm")
a.label("L_code_end")

a.c("======== attention with the row's true maximum: q-block A over all 2048 keys")
a.label("L_attn_fb")
FM = SB
a("s_waitcnt vmcnt(0)")
a(f"v_mov_b32 v{FM}, 0xff800000")
a(f"s_mov_b32 s{S_XOFF}, 0")
a(f"s_mov_b32 s{S_LOOP}, 64")
a.label("L_fb1")
a(f"buffer_load_dwordx4 {vr(Kf(0),4)}, v{A_AK}, {sr(R_WS,4)}, s{S_XOFF} offen sc1")
a("s_waitcnt vmcnt(0)")
a(f"v_mfma_f32_32x32x16_bf16 {vr(SA,16)}, {vr(Kf(0),4)}, {vr(QA,4)}, 0")
a(f"s_add_u32 s{S_XOFF}, s{S_XOFF}, 2048")
a("s_nop 7")
a("s_nop 3")
for i in range(8):
    a(f"v_max3_f32 v{FM}, v{FM}, v{SA+2*i}, v{SA+2*i+1}")
a(f"s_sub_u32 s{S_LOOP}, s{S_LOOP}, 1")
a(f"s_cmp_lg_u32 s{S_LOOP}, 0")
a("s_cbranch_scc1 L_fb1")
a(f"v_mov_b32 v{FM+1}, v{FM}")
a("s_nop 1")
a(f"v_permlane32_swap_b32 v{FM}, v{FM+1}")
a("s_nop 1")
a(f"v_max_f32 v{FM}, v{FM}, v{FM+1}")
for i in range(16):
    a(f"v_mov_b32 v{OA+i}, 0")
a(f"s_mov_b32 s{S_XOFF}, 0")
a(f"s_mov_b32 s{S_LOOP}, 64")
a.label("L_fb2")
kv_load(Cnt(a, "vmcnt", 63), 0, 4)
a("s_waitcnt vmcnt(0)")
a(f"v_mfma_f32_32x32x16_bf16 {vr(SA,16)}, {vr(Kf(0),4)}, {vr(QA,4)}, 0")
a(f"s_add_u32 s{S_XOFF}, s{S_XOFF}, 2048")
a("s_nop 7")
a("s_nop 3")
for i in range(16):
    a(f"v_sub_f32 v{SA+i}, v{SA+i}, v{FM}")
for i in range(16):
    a(f"v_exp_f32 v{SA+i}, v{SA+i}")
a("s_nop 1")
smf(OA, Vf(0, 0), SA)
smf(OA, Vf(0, 1), SA+8)
a(f"s_sub_u32 s{S_LOOP}, s{S_LOOP}, 1")
a(f"s_cmp_lg_u32 s{S_LOOP}, 0")
a("s_nop 7")
a("s_cbranch_scc1 L_fb2")
a("s_nop 7")
a("s_nop 3")
a("s_branch L_attn_fin")

a.raw('.section .rodata,"a"')
a.raw(".p2align 6")
a.raw(f".amdhsa_kernel {NAME}_kernel")
a.raw("  .amdhsa_next_free_vgpr 256")
a.raw("  .amdhsa_next_free_sgpr 102")
a.raw("  .amdhsa_accum_offset 256")
a.raw("  .amdhsa_group_segment_fixed_size 0")
a.raw("  .amdhsa_kernarg_size 88")
a.raw("  .amdhsa_user_sgpr_count 2")
a.raw("  .amdhsa_user_sgpr_kernarg_segment_ptr 1")
a.raw("  .amdhsa_system_sgpr_workgroup_id_x 1")
a.raw(".end_amdhsa_kernel")

out = [x for x in args if not x.startswith("--")]
open(out[0] if out else "cdna_kernels/" + NAME + ".s", "w").write(a.text())
```

```python
import sys, math
from lib import *

NAME = "sequential_preLN__softmax_full_mha__dense_activation_gelu__prompt"
args = sys.argv[1:]
def opt(n, d):
    for x in args:
        if x.startswith("--" + n + "="):
            return type(d)(x.split("=")[1])
    return d
STAMPS = "--stamps" in args
FORCE_FB = "--force-fallback" in args
LH = 2
NA = opt("na", 52)
IT1 = opt("it1", 4)
IT2 = opt("it2", 1)
TB1 = opt("tb1", 6)
TB2 = opt("tb2", 1)
T0B = opt("t0b", 1)
TEND = opt("tend", 1)
NBLK = opt("nblk", 2)
NPA = opt("npa", 2)
UKV = opt("ukv", 93)
NO = opt("no", 3)
NH = opt("nh", 2)
UP0 = opt("up0", 61)
UP1 = opt("up1", 92)
QP = opt("qp", 7)
KVL = opt("kvl", 1)
KVP = opt("kvp", 0)
SLP = opt("slp", 0)
HPK = opt("hpk", 0)
OPK = opt("opk", 0)
DO = opt("do", 0)
DH = opt("dh", 0)
NW2 = opt("nw2", 2)
BK = opt("bk", 0)
LATE = opt("late", 0)
SPF = opt("spf", 0)
SPF2 = opt("spf2", -1)
L2PF = opt("l2pf", 2)
NPB = opt("npb", 0)
XSW = opt("xsw", 0)
KVJ = opt("kvj", 0)
QPF = opt("qpf", -1)
NB0 = opt("nb0", 3)
EARLY = opt("early", 0)
MW = opt("mw", -1)
WM = opt("wm", 0)
BAT = opt("bat", 0)
LPOS = opt("lpos", 12)
KPOS = opt("kpos", -1)
PRA = 2
FLIP = opt("flip", 6)
FEND = opt("fend", 1)
STM = opt("stm", 0)
ORD = opt("ord", 1)
W2L = opt("w2l", 0)
WS1 = [int(c) for c in opt("ws1", "40202")]
WC = [sum(WS1[:k]) for k in range(6)]
LF = opt("lf", 1)
LOC = opt("loc", 1)
WPF = opt("wpf", 0)
RR2 = opt("rr2", 2)
OSP = opt("osp", 1)
NEAR = opt("near", 1)
GST = opt("gst", 0)
TSPLIT = opt("tsplit", 1)
PRE = opt("pre", 1)
SKIP5 = opt("skip5", 1)
SEL = opt("sel", "").replace("_", " ")
PROBE = opt("probe", "").replace("_", " ")

S_WG, S_W = 2, 3
S_PC = 4
R_X, R_WQKV, R_WO, R_W1, R_W2, R_WS, R_OUT, R_B1, R_B2 = 8, 12, 16, 20, 24, 28, 32, 36, 40
KA = 44
S_HG, S_TB, S_TB2, S_J, S_N = 66, 67, 68, 69, 70
S_F0 = 71
T0, T1, T2, T3, T4, T5, T6, T7 = 72, 73, 74, 75, 76, 77, 78, 79
S_LOOP, S_XOFF, S_HEAD = 80, 81, 82
S_TILE = 83
S_MASKV = 84
S_D0, S_D1, S_D2, S_D3 = 86, 87, 88, 89
S_TS = 90
S_NT = 92
S_SPIN = 93
S_SAVE = 94
S_D4, S_D5 = 96, 97
S_STAGE = 101
S_SHR = 100
S_FOWN, S_FPOLL = 98, 99
S_ZG, S_ZO = 60, 61
S_OWN, S_OWN2 = 62, 63

WS_NONCE = 0
WS_PL = 0x1000
WS_FKV = 0x4000
WS_FC = 0x8000
WS_STAMP = 0x10000
WS_CS = 0x60000
WS_KV = 0x100000
WS_OF = 0x600000
WS_H = WS_OF + 0x20000
WS_GF = WS_OF + 0x40000
WS_GRP = WS_OF + 0xA0000
WS_SIZE = WS_OF + 0x2000000
F_PROBE = 768
F_O, F_H, F_G0, F_G1, F_G2 = 0, 128, 256, 384, 512

L_XN = 0
L_RING = 65536
L_Q = 32768
L_OX = 0
LDS_BYTES = 163840

V_LANE, V_ROWOFF, V_XNW = 1, 2, 3
V_DA, V_DB = 12, 13
V_B1 = 232
V_B2 = 236
V_REDW, V_REDR, V_L16 = 240, 244, 246
V_HRES = 252

a = Asm()
stamp_idx = [0]
def stamp(name):
    i = stamp_idx[0]
    stamp_idx[0] += 1
    if PROBE and name == "start":
        a("s_memrealtime s[6:7]")
    if PROBE and name == "setup":
        a("s_mov_b32 s1, 0")
    if PROBE == name:
        a(f"s_memrealtime {sr(S_TS,2)}")
        a("s_waitcnt lgkmcnt(0)")
        a(f"s_sub_u32 s1, s{S_TS}, s6")
    if PROBE and name == "end":
        a("s_mul_i32 s1, s1, 10")
        a("s_add_u32 s1, s1, 10000")
        a(f"s_cmp_lg_u32 s{S_WG}, 100")
        a("s_cbranch_scc1 L_nopin")
        a.label("L_pin")
        a(f"s_memrealtime {sr(S_TS,2)}")
        a("s_waitcnt lgkmcnt(0)")
        a(f"s_sub_u32 s{S_TS}, s{S_TS}, s6")
        a(f"s_cmp_lt_u32 s{S_TS}, s1")
        a("s_cbranch_scc1 L_pin")
        a.label("L_nopin")
    if not STAMPS:
        return
    if SEL and name not in ("start", "end") and not any(k in name for k in SEL.split(",")):
        return
    a.c(f"stamp {i} {name}")
    a(f"s_memtime {sr(S_TS,2)}")
    a(f"s_waitcnt lgkmcnt(0)")
    a(f"v_writelane_b32 v250, s{S_TS}, {i}")
    a(f"s_memrealtime {sr(S_TS,2)}")
    a(f"s_waitcnt lgkmcnt(0)")
    a(f"v_writelane_b32 v250, s{S_TS}, {i+32}")

def stamp_flush():
    if not STAMPS:
        return
    l = a.uniq("L_st")
    a(f"s_and_b32 s{T7}, s{S_W}, 3")
    a(f"s_cmp_lg_u32 s{T7}, {opt('sw', 0)}")
    a(f"s_cbranch_scc1 {l}")
    a(f"s_lshl_b32 s{T7}, s{S_WG}, 9")
    a(f"s_and_b32 s{T6}, s{S_W}, 4")
    a(f"s_lshl_b32 s{T6}, s{T6}, 6")
    a(f"s_add_u32 s{T7}, s{T7}, s{T6}")
    a(f"s_add_u32 s{T7}, s{T7}, {WS_STAMP}")
    a(f"v_lshlrev_b32 v251, 2, v{V_LANE}")
    a(f"buffer_store_dword v250, v251, {sr(R_WS,4)}, s{T7} offen")
    a.label(l)

def srd(r, ptr, size):
    a(f"s_mov_b32 s{r}, s{ptr}")
    a(f"s_mov_b32 s{r+1}, s{ptr+1}")
    a(f"s_mov_b32 s{r+2}, {size}")
    a(f"s_mov_b32 s{r+3}, 0x00020000")

def flag_addr(base, line_own, word_own, line_poll, sh=8):
    a(f"s_lshl_b32 s{S_FOWN}, s{line_own}, {sh}")
    a(f"s_lshl_b32 s{T7}, s{word_own}, 2")
    a(f"s_add_u32 s{S_FOWN}, s{S_FOWN}, s{T7}")
    a(f"s_add_u32 s{S_FOWN}, s{S_FOWN}, {base}")
    a(f"s_lshl_b32 s{S_FPOLL}, s{line_poll}, {sh}")
    a(f"s_add_u32 s{S_FPOLL}, s{S_FPOLL}, {base}")

def grp_flags(tb_own, z_own, word):
    a(f"s_add_u32 s{S_FPOLL}, s{S_ZG}, {WS_GRP}")
    a(f"s_lshl_b32 s{T7}, s{word}, 2")
    a(f"s_add_u32 s{S_FOWN}, s{z_own}, s{T7}")
    a(f"s_add_u32 s{S_FOWN}, s{S_FOWN}, {WS_GRP}")

def half_issue():
    a(f"s_lshl_b32 s{S_ZG}, s{S_TB2}, 6")
    a(f"s_add_u32 s{S_ZG}, s{S_ZG}, {WS_PL}")
    a(f"s_lshl_b32 s{S_ZO}, s{S_TB}, 6")
    a(f"s_add_u32 s{S_ZO}, s{S_ZO}, {WS_PL}")
    a(f"s_mov_b32 s{S_SPIN}, 0")
    a.c("cached first try: an old copy only fails the tag test")
    a(f"s_load_dwordx2 {sr(KA+12,2)}, {sr(KA+20,2)}, s{S_ZG}")
    a(f"s_load_dwordx2 {sr(KA+14,2)}, {sr(KA+20,2)}, s{S_ZO}")

def half_check():
    l, l_ok = a.uniq("L_hp"), a.uniq("L_hok")
    a.label(l)
    a("s_waitcnt lgkmcnt(0)")
    for k in range(4):
        a(f"s_cmp_eq_u32 s{KA+12+k}, s{S_N}")
        a(f"s_cselect_b32 s{KA+12+k}, 8192, 0")
    a(f"s_or_b32 s{KA+12}, s{KA+12}, s{KA+13}")
    a(f"s_or_b32 s{KA+14}, s{KA+14}, s{KA+15}")
    a(f"s_and_b32 s{KA+12}, s{KA+12}, s{KA+14}")
    a(f"s_cbranch_scc1 {l_ok}")
    a(f"s_add_u32 s{S_SPIN}, s{S_SPIN}, 1")
    a(f"s_cmp_gt_u32 s{S_SPIN}, 200000")
    a(f"s_cbranch_scc1 {l_ok}")
    a(f"s_load_dwordx2 {sr(KA+12,2)}, {sr(KA+20,2)}, s{S_ZG} glc")
    a(f"s_load_dwordx2 {sr(KA+14,2)}, {sr(KA+20,2)}, s{S_ZO} glc")
    a(f"s_branch {l}")
    a.label(l_ok)
    a(f"s_lshl_b32 s{S_ZG}, s{S_TB2}, 20")
    a(f"s_add_u32 s{S_ZG}, s{S_ZG}, s{KA+13}")
    a(f"s_lshl_b32 s{S_ZO}, s{S_TB}, 20")
    a(f"s_add_u32 s{S_ZO}, s{S_ZO}, s{KA+15}")
    a(f"s_add_u32 s{S_HEAD}, s{S_HEAD}, s{S_ZO}")

def flag_store(poller, off=0, peek=False):
    l = a.uniq("L_nf")
    a(f"s_cmp_lg_u32 s{S_W}, {poller}")
    a(f"s_cbranch_scc1 {l}")
    a(f"s_mov_b64 exec, 1")
    a(f"buffer_store_dword v248, v249, {sr(R_WS,4)}, s{S_FOWN} offen offset:{off} sc1")
    if peek:
        a(f"s_mov_b64 exec, 0xff")
        a(f"buffer_load_dword v247, v249, {sr(R_WS,4)}, s{S_FPOLL} offen offset:{off} sc1")
    a(f"s_mov_b64 exec, -1")
    a.label(l)

def flag_poll(poller, nflags, off=0, va=249):
    l_skip, l_poll, l_done = a.uniq("L_skip"), a.uniq("L_poll"), a.uniq("L_done")
    if poller is None:
        a(f"v_cmp_eq_u32 vcc, v247, v248")
        a("s_nop 0")
        a(f"s_and_b32 s{T7}, vcc_lo, {(1 << nflags) - 1:#x}")
        a(f"s_cmp_eq_u32 s{T7}, {(1 << nflags) - 1:#x}")
    else:
        a(f"s_cmp_lg_u32 s{S_W}, {poller}")
    a(f"s_cbranch_scc1 {l_skip}")
    a(f"s_mov_b32 exec_hi, 0")
    a(f"s_mov_b32 exec_lo, {(1 << nflags) - 1:#x}")
    a(f"s_mov_b32 s{S_SPIN}, 0")
    a.label(l_poll)
    a(f"buffer_load_dword v247, v{va}, {sr(R_WS,4)}, s{S_FPOLL} offen offset:{off} sc1")
    a(f"s_add_u32 s{S_SPIN}, s{S_SPIN}, 1")
    a("s_waitcnt vmcnt(0)")
    a(f"v_cmp_eq_u32 vcc, v247, v248")
    a(f"s_cmp_gt_u32 s{S_SPIN}, 200000")
    a(f"s_cbranch_scc1 {l_done}")
    a(f"s_cmp_eq_u64 vcc, exec")
    if BK:
        a(f"s_cbranch_scc1 {l_done}")
        a(f"s_sleep {BK}")
        a(f"s_branch {l_poll}")
    else:
        a(f"s_cbranch_scc0 {l_poll}")
    a.label(l_done)
    a("s_mov_b64 exec, -1")
    a.label(l_skip)

def peek_check(n, ok):
    a(f"s_waitcnt vmcnt({n})")
    a(f"v_cmp_eq_u32 vcc, v247, v248")
    a("s_nop 0")
    a(f"s_and_b32 s{T7}, vcc_lo, 0xff")
    a(f"s_cmp_eq_u32 s{T7}, 0xff")
    a(f"s_cbranch_scc1 {ok}")

def spoll_issue(off):
    a(f"s_add_u32 s{KA+2}, s{S_FPOLL}, {off}")
    a(f"s_load_dwordx8 {sr(KA+4,8)}, {sr(KA+20,2)}, s{KA+2} glc")
    a(f"s_mov_b32 s{KA}, s{S_N}")
    a(f"s_mov_b32 s{KA+1}, s{S_N}")
    a(f"s_mov_b32 s{KA+3}, 0")

def spoll_check(off):
    l, l_ok = a.uniq("L_sp"), a.uniq("L_spok")
    a.label(l)
    a("s_waitcnt lgkmcnt(0)")
    for k in range(4):
        a(f"s_xor_b64 {sr(KA+4+2*k,2)}, {sr(KA+4+2*k,2)}, {sr(KA,2)}")
    for k in range(1, 4):
        a(f"s_or_b64 {sr(KA+4,2)}, {sr(KA+4,2)}, {sr(KA+4+2*k,2)}")
    a(f"s_cbranch_scc0 {l_ok}")
    if BK:
        a(f"s_sleep {BK}")
    a(f"s_load_dwordx8 {sr(KA+4,8)}, {sr(KA+20,2)}, s{KA+2} glc")
    a(f"s_add_u32 s{KA+3}, s{KA+3}, 1")
    a(f"s_cmp_lt_u32 s{KA+3}, 16")
    a(f"s_cbranch_scc1 {l}")
    a("s_waitcnt lgkmcnt(0)")
    a(f"v_not_b32 v247, v248")
    flag_poll(None, 8, off)
    a.label(l_ok)

LN_X, LN_D, LN_T = 16, 48, 56

def ln_loads(vm, rsrc, soff, flags=""):
    for i in range(8):
        so, imm = (soff[i >> 1], 128*(i & 1)) if isinstance(soff, list) else (soff, 128*i)
        a(f"buffer_load_dwordx4 {vr(LN_X+4*i,4)}, v{V_ROWOFF}, {sr(rsrc,4)}, s{so} offen offset:{imm} {flags}")
        vm.issue(("x", i))

def ln_consts():
    t = LN_T
    a(f"v_mov_b32 v{t+4}, 0x3f803f80")
    a(f"v_mov_b32 v{t+5}, 0x00003f80")
    a(f"v_mov_b32 v{t+6}, 0x3f800000")
    a(f"v_mov_b32 v{t}, 0")
    a(f"v_mov_b32 v{t+1}, 0")

def ln_stats(vm, scale):
    t = LN_T
    for i in range(8):
        vm.wait(("x", i))
        if i == SPF2 and SPF < 3:
            w_touch(QKV_SEG[SPF:])
        if i in (7,) and scale >= 1.0:
            stamp(f"x{i} in {scale}")
        a.raw(".p2align 3")
        for j in range(4):
            a(f"v_dot2_f32_bf16 v{t}, v{LN_X+4*i+j}, v{t+4}, v{t}")
            a(f"v_dot2_f32_bf16 v{t+1}, v{LN_X+4*i+j}, v{LN_X+4*i+j}, v{t+1}")

def sum8_pair(t):
    a("s_nop 1")
    for ctl in ("quad_perm:[1,0,3,2]", "quad_perm:[2,3,0,1]", "row_half_mirror"):
        a("s_nop 0")
        a(f"v_add_f32_dpp v{t}, v{t}, v{t} {ctl} row_mask:0xf bank_mask:0xf")
        a(f"v_add_f32_dpp v{t+1}, v{t+1}, v{t+1} {ctl} row_mask:0xf bank_mask:0xf")

def ln_norm(scale, vm=None):
    t = LN_T
    sum8_pair(t)
    a(f"v_mul_f32 v{t}, {f32(-1.0/512)}, v{t}")
    a(f"v_mul_f32 v{t+2}, v{t}, v{t}")
    a(f"v_mul_f32 v{t+1}, {f32(1.0/512)}, v{t+1}")
    a(f"v_sub_f32 v{t+1}, v{t+1}, v{t+2}")
    a(f"v_max_f32 v{t+1}, 0, v{t+1}")
    a(f"v_add_f32 v{t+1}, {f32(1e-5)}, v{t+1}")
    a(f"v_rsq_f32 v{t+2}, v{t+1}")
    a("s_nop 0")
    if scale != 1.0:
        a(f"v_mul_f32 v{t+2}, {f32(scale)}, v{t+2}")
    a(f"v_mov_b32 v{t+3}, v{t+2}")
    for i in range(8):
        if vm:
            vm.wait(("x", i))
        a.raw(".p2align 3")
        for j in range(4):
            a(f"v_dot2_f32_bf16 v{LN_D+2*j}, v{LN_X+4*i+j}, v{t+5}, v{t}")
            a(f"v_dot2_f32_bf16 v{LN_D+2*j+1}, v{LN_X+4*i+j}, v{t+6}, v{t}")
        for j in range(4):
            a(f"v_pk_mul_f32 {vr(LN_D+2*j,2)}, {vr(LN_D+2*j,2)}, {vr(t+2,2)}")
        for j in range(4):
            a(f"v_cvt_pk_bf16_f32 v{LN_X+4*i+j}, v{LN_D+2*j}, v{LN_D+2*j+1}")
        a(f"ds_write_b128 v{V_XNW}, {vr(LN_X+4*i,4)} offset:{L_XN + 4096*i}")

def dma_addr(dst, row_bytes, col_s):
    a(f"v_lshrrev_b32 v10, 3, v{V_LANE}")
    a(f"v_and_b32 v11, 7, v{V_LANE}")
    a(f"v_lshlrev_b32 v{dst}, 1, v10")
    a(f"v_and_b32 v{dst}, 4, v{dst}")
    a(f"v_xor_b32 v11, v11, v{dst}")
    a(f"v_mul_u32_u24 v10, {row_bytes}, v10")
    a(f"v_lshl_add_u32 v10, v11, 4, v10")
    a(f"v_add_u32 v{dst}, s{col_s}, v10")

def dma(vm, tag, rsrc, vaddr, sg, goff, sl, loff, flags=""):
    a(f"s_add_u32 m0, s{sl}, {loff}")
    a(f"s_add_u32 s{T7}, s{sg}, {goff}")
    a(f"buffer_load_dwordx4 v{vaddr}, {sr(rsrc,4)}, s{T7} offen {flags} lds")
    vm.issue(tag)

def tr_lane_addr(dst, hp_s, perm):
    a(f"v_bfe_u32 v10, v{V_LANE}, 2, 2")
    a(f"v_lshrrev_b32 v11, 1, v10")
    a(f"v_xor_b32 v11, s{hp_s}, v11")
    a(f"v_lshlrev_b32 v11, 6, v11")
    a(f"v_lshl_add_u32 v11, v10, 7, v11")
    a(f"v_bfe_u32 v10, v{V_LANE}, 4, 1")
    a(f"v_lshl_add_u32 v11, v10, 5, v11")
    if perm:
        a(f"v_and_b32 v10, 1, v{V_LANE}")
        a(f"v_lshl_add_u32 v11, v10, 4, v11")
        a(f"v_bfe_u32 v10, v{V_LANE}, 1, 1")
        a(f"v_lshl_add_u32 v11, v10, 3, v11")
    else:
        a(f"v_and_b32 v10, 3, v{V_LANE}")
        a(f"v_lshl_add_u32 v11, v10, 3, v11")
    a(f"v_lshrrev_b32 v10, 5, v{V_LANE}")
    a(f"v_lshl_add_u32 v{dst}, v10, 10, v11")

def tr_read(dst, vaddr, off):
    a(f"ds_read_b64_tr_b16 {vr(dst,2)}, v{vaddr} offset:{off}")
    a(f"ds_read_b64_tr_b16 {vr(dst+2,2)}, v{vaddr} offset:{off+512}")

G_X = 16
G_XA, G_WA = 4, 8

FAKE = opt("fake", "")
def mm(kind, acc, A, B, t, zero):
    if kind in FAKE:
        for k in range(2):
            d = vr(acc + 4*((2*t + k) % 4), 4)
            a(f"v_mfma_f32_16x16x32_bf16 {d}, {A}, {B}, {'0' if zero and t < 2 else d}")
    else:
        d = vr(acc, 16)
        a(f"v_mfma_f32_32x32x16_bf16 {d}, {A}, {B}, {'0' if zero and t == 0 else d}")

def capture(f, *x):
    keep, a.L = a.L, []
    f(*x)
    out, a.L = [l.strip() for l in a.L if not l.strip().startswith(";")], keep
    return out

def w_addr():
    a(f"s_bfe_u32 s{T0}, s{S_W}, 0x10001")
    tr_lane_addr(G_WA, T0, True)
    a(f"v_add_u32 v{G_WA}, {L_RING}, v{G_WA}")
    a(f"v_add_u32 v{G_WA+1}, 49152, v{G_WA}")

def x_addr(raw):
    a(f"s_and_b32 s{T0}, s{S_W}, 1")
    a(f"s_lshl_b32 s{T0}, s{T0}, 15")
    if raw:
        a(f"v_bfe_u32 v10, v{V_LANE}, 3, 2")
        a(f"v_lshlrev_b32 v10, 13, v10")
        a(f"v_and_b32 v11, 7, v{V_LANE}")
        a(f"v_lshl_add_u32 v10, v11, 7, v10")
        a(f"v_add_u32 v10, s{T0}, v10")
        a(f"v_bfe_u32 v11, v{V_LANE}, 1, 3")
        a(f"v_lshrrev_b32 v{G_XA}, 5, v{V_LANE}")
        a(f"v_xor_b32 v11, v11, v{G_XA}")
        for b in range(4):
            a(f"v_xor_b32 v{G_XA+b}, {2*b}, v11")
            a(f"v_lshl_add_u32 v{G_XA+b}, v{G_XA+b}, 4, v10")
    else:
        for b in range(4):
            a(f"v_lshrrev_b32 v10, 5, v{V_LANE}")
            a(f"v_add_u32 v10, {2*b}, v10")
            a(f"v_and_b32 v11, 31, v{V_LANE}")
            a(f"v_xor_b32 v11, v11, v10")
            a(f"v_lshlrev_b32 v11, 4, v11")
            a(f"v_lshl_add_u32 v11, v10, 9, v11")
            a(f"v_add_u32 v{G_XA+b}, s{T0}, v11")

def w_read(dst, u):
    off = ((u >> 3) % 6)*16384 + (u & 7)*2048
    if off >= 49152:
        tr_read(dst, G_WA + 1, off - 49152)
    else:
        tr_read(dst, G_WA, off)

def gemm_compute(vm, acc, wf, swapped, zero_c, inject, before, bars, nm, xstride, w0=None, joint=False):
    lg = Cnt(a, "lgkmcnt", 15)
    nxt = [0]
    def unit(u):
        return (u & 1, u >> 1) if (joint and u < 64) else (u >> 5, u & 31)
    def rd(u):
        if u % 8 == 0 and (u >> 3) in bars:
            vm.wait(("w", u >> 3), ("x", u >> 3), extra="" if u else "lgkmcnt(0)")
            if u == 0 and nm == "p1":
                pass
            a("s_barrier")
        seg, t = unit(u)
        if seg == 0:
            a(f"ds_read_b128 {vr(G_X+4*t,4)}, v{G_XA+(t&3)} offset:{L_XN + (t>>2)*xstride}")
            lg.issue(u)
        if u >= 32 or not w0:
            w_read(wf[u % 6], u)
            lg.issue(u, 2)
    def fill(upto):
        while nxt[0] <= min(upto, 95):
            rd(nxt[0]); nxt[0] += 1
    fill(5 if joint else 3)
    for u in range(96):
        seg, t = unit(u)
        if u % 32 == 0 and GST:
            stamp(f"{nm} pass{u >> 5}")
        if u in before:
            before[u]()
        if u < 32 and not joint:
            lg.wait(u)
        elif u % 2 == 0:
            lg.wait(u + 1)
        x, d = vr(G_X+4*t, 4), vr(acc[seg], 16)
        w = vr(w0(t) if (w0 and u < 32) else wf[u % 6], 4)
        c = "0" if (seg in zero_c and t == 0) else d
        if seg in swapped:
            mm(nm[1], acc[seg], x, w, t, seg in zero_c)
        else:
            mm(nm[1], acc[seg], w, x, t, seg in zero_c)
        fill(u + (6 if joint else 4 if u < 28 else 5 if u < 29 else 6))
        for ins in inject.get(u, []):
            if isinstance(ins, tuple):
                a(ins[0]); vm.issue(ins[1])
            else:
                a(ins)

def spread(inject, items, u0, u1):
    tot = sum(c for _, c in items)
    acc = 0
    for ins, c in items:
        u = u0 + min(u1 - u0 - 1, int(acc * (u1 - u0) / tot))
        inject.setdefault(u, []).append(ins)
        acc += c

S_RG = [S_D0, S_D1, S_D2, S_D3]
def ring_setup(row_bytes, rot, rows=32):
    a(f"s_and_b32 s{S_D5}, s{S_W}, 3")
    a(f"s_mul_i32 s{T0}, s{S_D5}, {rows*row_bytes}")
    a(f"s_lshl_b32 s{S_D5}, s{S_D5}, 12")
    for c in range(4):
        if rot:
            a(f"s_add_u32 s{T7}, s{rot}, {c}")
            a(f"s_and_b32 s{T7}, s{T7}, 3")
            a(f"s_mul_i32 s{T7}, s{T7}, {128*row_bytes}")
            a(f"s_add_u32 s{S_RG[c]}, s{T0}, s{T7}")
        else:
            a(f"s_add_u32 s{S_RG[c]}, s{T0}, {c*128*row_bytes}")

def ring_issue(vm, rsrc, row_bytes, seg_off, n):
    if rsrc == R_W1 and "%x" % n in opt("skipw", ""):
        return
    for p in range(4):
        dma(vm, ("w", n), rsrc, V_DB, S_RG[n & 3], seg_off[n >> 2] + p*8*row_bytes, S_D5, L_RING + (n % 6)*16384 + p*1024)

def qkv_issue(vm, n):
    if not KVJ:
        return ring_issue(vm, R_WQKV, 3072, QKV_SEG, n)
    if n == 8:
        a(f"s_mul_i32 s{T7}, s{S_D5}, 12")
        for c in range(4):
            a(f"s_add_u32 s{S_RG[c]}, s{S_RG[c]}, s{T7}")
    if n >= 8:
        return ring_issue(vm, R_WQKV, 3072, QKV_SEG, n)
    for p in range(4):
        dma(vm, ("w", n), R_WQKV, V_DB, S_RG[n >> 1], QKV_SEG[p >> 1] + ((n & 1)*64 + (p & 1)*8)*3072, S_D5, L_RING + (n % 6)*16384 + p*1024)

def swap23(dst, mask, tmp):
    a(f"v_and_b32 v{dst}, {mask & ~12:#x}, v{V_LANE}")
    a(f"v_bfe_u32 v{tmp}, v{V_LANE}, 2, 1")
    a(f"v_lshl_add_u32 v{dst}, v{tmp}, 3, v{dst}")
    a(f"v_bfe_u32 v{tmp}, v{V_LANE}, 3, 1")
    a(f"v_lshl_add_u32 v{dst}, v{tmp}, 2, v{dst}")

def only(w, f, *x):
    l = a.uniq("L_w")
    a(f"s_cmp_lg_u32 s{S_W}, {w}")
    a(f"s_cbranch_scc1 {l}")
    f(*x)
    a.label(l)

def is_a(label):
    a(f"s_cmp_lt_u32 s{S_W}, 4")
    a(f"s_cbranch_scc1 {label}")

def act_setup(nblk, base, pairs):
    a(f"s_and_b32 s{T0}, s{S_W}, 3")
    a(f"s_lshl_b32 s{T3}, s{T0}, 10")
    a(f"s_lshl_b32 s{T0}, s{T0}, {11 if pairs else 10}")
    a(f"s_add_u32 s{T0}, s{T0}, s{S_ZG}")
    a(f"s_add_u32 s{T4}, s{T0}, {base}")
    a(f"s_and_b32 s{T0}, s{S_W}, 2")
    a(f"s_lshl_b32 s{T0}, s{T0}, 12")
    a(f"v_add_u32 v4, s{T0}, v{V_L16}")
    a(f"v_add_u32 v5, 65536, v4")
    a(f"v_add_u32 v6, 131072, v4")

def act_issue(vm, q, slot, nblk, pairs):
    for kh in range(2):
        for tb32 in range(2):
            g = (tb32*nblk + q)*16384 + kh*1024 if pairs else (tb32*nblk + 2*kh + (q >> 1))*16384 + (q & 1)*4096
            dma(vm, ("a", q), R_WS, V_L16, T0 if (ORD and not pairs and q & 1) else T4, g, T3, slot*16384 + kh*8192 + tb32*4096, "sc1")

def tile_compute(vm, nsteps, slots, wreg, acc, af, inject={}, skip=()):
    lg = Cnt(a, "lgkmcnt", 15)
    last = 4*((nsteps - 1)//4)
    seq = [(t, b) for t in range(last) for b in range(2)]
    if TSPLIT:
        seq += [(t, b) for b in range(2) for t in range(last, nsteps)]
    else:
        seq += [(t, b) for t in range(last, nsteps) for b in range(2)]
    n = len(seq)
    def rd(u):
        if u >= n: return
        t, tb32 = seq[u]
        if u % 8 == 0 and (t >> 2) not in skip:
            vm.wait(("a", t >> 2), *[("a", k) for k in skip if k == (t >> 2) + 1])
            a("s_barrier")
        off = slots[t >> 2]*16384 + tb32*4096 + (t & 3)*1024
        a(f"ds_read_b128 {vr(af+4*(u&3),4)}, v{4 + off//65536} offset:{off % 65536}")
        lg.issue(u)
    def wr(tb32):
        for i in range(4):
            a(f"ds_write_b128 v{V_REDW+i}, {vr(acc+16*tb32+4*i,4)} offset:{tb32*8192}")
    for u in range(4):
        rd(u)
    for u in range(n):
        t, tb32 = seq[u]
        lg.wait(u)
        d = vr(acc + 16*tb32, 16)
        mm("t", acc + 16*tb32, vr(wreg(t),4), vr(af+4*(u&3),4), t, True)
        rd(u + 4)
        for x in inject.get(u, []):
            a(x)
    if TSPLIT:
        k = 2*(nsteps - last)
        a(f"s_nop {11 - k}")
        wr(0)
        if k > 4:
            a(f"s_nop {k - 5}")
        wr(1)
    else:
        a("s_nop 7")
        a("s_nop 2")
        wr(0)
        wr(1)
    a("s_waitcnt lgkmcnt(0)")

def tile_loader(vm, nsteps, after, skip=()):
    for q in range((nsteps + 3)//4):
        if q not in skip:
            vm.wait(("a", q))
            a("s_barrier")
        after(q)

def reduce_addr():
    a(f"s_and_b32 s{T0}, s{S_W}, 2")
    a(f"s_lshl_b32 s{T0}, s{T0}, 13")
    a(f"s_and_b32 s{T1}, s{S_W}, 1")
    a(f"s_lshl_b32 s{T1}, s{T1}, 2")
    a(f"v_and_b32 v10, 31, v{V_LANE}")
    a(f"v_lshlrev_b32 v10, 8, v10")
    a(f"v_lshrrev_b32 v11, 5, v{V_LANE}")
    a(f"v_xor_b32 v11, v11, v{V_LANE}")
    a(f"v_and_b32 v11, 1, v11")
    a(f"v_lshl_add_u32 v10, v11, 7, v10")
    a(f"v_add_u32 v10, s{T0}, v10")
    a(f"v_and_b32 v11, 7, v{V_LANE}")
    a(f"v_xor_b32 v11, s{T1}, v11")
    for i in range(4):
        a(f"v_xor_b32 v{V_REDW+i}, {i}, v11")
        a(f"v_lshl_add_u32 v{V_REDW+i}, v{V_REDW+i}, 4, v10")
    a(f"v_lshrrev_b32 v10, 3, v0")
    a(f"v_xor_b32 v11, v10, v0")
    a(f"v_and_b32 v11, 7, v11")
    a(f"v_lshlrev_b32 v11, 4, v11")
    a(f"v_lshl_add_u32 v11, v10, 8, v11")
    a(f"v_and_b32 v10, 1, v10")
    a(f"v_lshl_add_u32 v{V_REDR}, v10, 7, v11")
    a(f"v_xor_b32 v{V_REDR+1}, 128, v{V_REDR}")

def tile_gather(dst):
    a("s_barrier")
    a(f"ds_read_b128 {vr(dst,4)}, v{V_REDR}")
    a(f"ds_read_b128 {vr(dst+8,4)}, v{V_REDR} offset:16384")
    a(f"ds_read_b128 {vr(dst+4,4)}, v{V_REDR+1}")
    a(f"ds_read_b128 {vr(dst+12,4)}, v{V_REDR+1} offset:16384")

def unpack8(dst, src):
    L = []
    for i in range(4):
        L.append(f"v_lshlrev_b32 v{dst+2*i}, 16, v{src+i}")
        L.append(f"v_and_b32 v{dst+2*i+1}, 0xffff0000, v{src+i}")
    return L

hdr = open("cdna_kernels/" + NAME + ".s.ref").read().split("\n")
for line in hdr:
    if line.startswith("; Override"):
        break
    a.raw(line)
a.raw(f"; @launch grid=(256,1,1) block=(512,1,1) lds={LDS_BYTES}")
a.raw('.amdgcn_target "amdgcn-amd-amdhsa--gfx950"')
a.raw(".text")
a.raw(f".globl {NAME}_kernel")
a.raw(".p2align 8")
a.raw(f".type {NAME}_kernel,@function")
a.label(f"{NAME}_kernel")

vm = Cnt(a, "vmcnt", 63)
def new_vm(): return Cnt(a, "vmcnt", 63)
a(f"s_cmp_ge_u32 s{S_WG}, 256")
a("s_cbranch_scc1 L_end")
if STAMPS:
    a("v_mov_b32 v250, 0")
stamp("start")
a(f"s_load_dwordx16 {sr(KA,16)}, s[0:1], 0")
a(f"s_load_dwordx4 {sr(KA+16,4)}, s[0:1], 64")
a(f"s_load_dwordx2 {sr(KA+20,2)}, s[0:1], 80")
a(f"s_getpc_b64 {sr(S_PC,2)}")
a.label("L_pc")
a.c("pull this kernel's code into L2, two lines per wave")
a("v_lshrrev_b32 v4, 6, v0")
a(f"s_and_b32 s{T0}, s{S_WG}, 0xf8")
a(f"v_readfirstlane_b32 s{S_W}, v4")
a(f"v_and_b32 v{V_LANE}, 63, v0")
a(f"v_lshl_add_u32 v5, v{V_LANE}, 8, v4")
a(f"v_add_u32 v5, s{T0}, v5")
a(f"v_lshlrev_b32 v5, 7, v5")
a(f"v_min_u32 v5, L_code_end-L_pc-4, v5")
a("s_mov_b64 exec, 3")
a(f"global_load_dword v251, v5, {sr(S_PC,2)}")
vm.issue("pf")
a("s_mov_b64 exec, -1")
a.c("roles: attention (hg, tb), MLP (tb2, j)")
a(f"s_and_b32 s{T0}, s{S_WG}, 7")
a(f"s_lshr_b32 s{T1}, s{S_WG}, 3")
a(f"s_lshr_b32 s{T2}, s{T0}, {3 - LH}")
a(f"s_lshl_b32 s{T2}, s{T2}, {5 - LH}")
a(f"s_lshr_b32 s{S_SHR}, s{T1}, {LH}")
a(f"s_add_u32 s{S_TB}, s{T2}, s{S_SHR}")
a(f"v_lshrrev_b32 v4, 3, v0")
if XSW:
    a(f"s_and_b32 s{T2}, s{T1}, 1")
    a(f"s_lshl_b32 s{S_STAGE}, s{T2}, 15")
    a(f"s_lshl_b32 s{T2}, s{T2}, 5")
    a(f"v_xor_b32 v4, s{T2}, v4")
a(f"v_and_b32 v5, 7, v0")
a(f"v_lshlrev_b32 v{V_ROWOFF}, 10, v4")
a(f"v_lshl_add_u32 v{V_ROWOFF}, v5, 4, v{V_ROWOFF}")
a(f"s_lshl_b32 s{T6}, s{S_TB}, 16")
for c in range(4):
    a(f"s_add_u32 s{T7}, s{S_SHR}, {c}")
    a(f"s_and_b32 s{T7}, s{T7}, 3")
    a(f"s_lshl_b32 s{T7}, s{T7}, 8")
    a(f"s_add_u32 s{S_RG[c]}, s{T6}, s{T7}")
a(f"s_mov_b32 s{R_X+2}, {2048*512*2}")
a(f"s_mov_b32 s{R_X+3}, 0x00020000")
QKV_SEG = [1024, 2048, 0]
a(f"s_lshl_b32 s{T4}, s{S_WG}, 1")
a(f"s_lshr_b32 s{T5}, s{S_W}, 2")
a(f"s_add_u32 s{T4}, s{T4}, s{T5}")
a(f"s_mul_i32 s{T4}, s{T4}, 3072")
a(f"s_and_b32 s{T5}, s{S_W}, 3")
a(f"s_lshl_b32 s{T5}, s{T5}, 8")
a(f"s_add_u32 s{T4}, s{T4}, s{T5}")
a("s_waitcnt lgkmcnt(0)")
a(f"s_mov_b64 {sr(R_X,2)}, {sr(KA,2)}")
a(f"s_add_u32 s{S_PC}, s{KA+2}, s{T4}")
a(f"s_addc_u32 s{S_PC+1}, s{KA+3}, 0")
def w_touch(segs):
    a.c("first touch of Wqkv (scalar path), a different quarter row by every wave")
    for o in segs:
        for i in range(4):
            a(f"s_load_dword s{S_SPIN}, {sr(S_PC,2)}, {o + 64*i}")
w_touch(QKV_SEG[:SPF])
if WPF:
    a(f"v_lshrrev_b32 v6, 1, v{V_LANE}")
    a(f"v_add_u32 v6, 1, v6")
    a(f"v_mul_u32_u24 v7, 11, v6")
    a(f"v_lshrrev_b32 v7, 5, v7")
    a(f"v_mul_u32_u24 v7, 3, v7")
    a(f"v_sub_u32 v6, v6, v7")
    a(f"v_lshlrev_b32 v6, 10, v6")
    a(f"v_and_b32 v7, 1, v{V_LANE}")
    a(f"v_lshl_add_u32 v6, v7, 7, v6")
    a(f"s_mov_b64 exec, {(1 << (2*WPF)) - 1}")
    a(f"global_load_dword v251, v6, {sr(S_PC,2)}")
    vm.issue("pf")
    a("s_mov_b64 exec, -1")
if EARLY:
    a(f"s_cmp_ge_u32 s{S_W}, 4")
    a("s_cbranch_scc1 L_x_later")
ln_loads(vm, R_X, S_RG)
if EARLY:
    a.label("L_x_later")
if XSW:
    a(f"v_xor_b32 v{V_ROWOFF}, s{S_STAGE}, v{V_ROWOFF}")
a(f"s_load_dword s{S_N}, {sr(KA+20,2)}, {WS_NONCE}")
srd(R_WQKV, KA+2, 512*1536*2)
a(f"s_and_b32 s{T2}, s{T0}, {(8 >> LH) - 1}")
a(f"s_and_b32 s{T3}, s{T1}, {(1 << LH) - 1}")
a(f"s_lshl_b32 s{T3}, s{T3}, {3 - LH}")
a(f"s_add_u32 s{S_HG}, s{T2}, s{T3}")
a(f"s_lshl_b32 s{T2}, s{T0}, 2")
a(f"s_and_b32 s{T3}, s{T1}, 3")
a(f"s_add_u32 s{S_TB2}, s{T2}, s{T3}")
a(f"s_lshr_b32 s{S_J}, s{T1}, 2")
a(f"v_and_b32 v6, 31, v4")
a(f"v_xor_b32 v6, v6, v5")
a(f"v_lshlrev_b32 v6, 4, v6")
a(f"v_lshl_add_u32 v6, v5, 9, v6")
a(f"v_lshrrev_b32 v4, 5, v4")
a(f"v_lshl_add_u32 v{V_XNW}, v4, 15, v6")
ln_consts()
W1_SEG = [0, 128, 256]

QA, QB, SA, SB, OA, OB = 16, 20, 24, 40, 56, 72
A_KV = 88
A_IDX, A_AV, A_AK = 8, 14, 15
A_W1, A_WO = 3, 12
A_ONE, A_QA = 214, 215
P_W = 160
def Kf(t, ns=4): return A_KV + 12*(t % ns)
def Vf(t, s, ns=4): return A_KV + 12*(t % ns) + 4 + 4*s
def F_W(t): return 140 + 4*t if t < 24 else 64 + 4*(t - 24)

def qkv_ring_setup():
    a(f"s_lshl_b32 s{T4}, s{S_HG}, 7")
    dma_addr(V_DB, 3072, T4)
    ring_setup(3072, S_SHR, 16 if KVJ else 32)

def common_setup():
    srd(R_WS, KA+20, WS_SIZE)
    srd(R_WO, KA+4, 512*512*2)
    srd(R_W1, KA+8, 512*1376*2)
    srd(R_B1, KA+10, 1376*2)
    srd(R_W2, KA+12, 1376*512*2)
    srd(R_B2, KA+14, 512*2)
    srd(R_OUT, KA+16, 2048*512*2)
    a(f"s_min_u32 s{T2}, s{S_J}, 3")
    a(f"s_mul_i32 s{S_F0}, s{S_J}, 5")
    a(f"s_add_u32 s{S_F0}, s{S_F0}, s{T2}")
    a(f"s_cmp_lt_u32 s{S_J}, 3")
    a(f"s_cselect_b32 s{S_NT}, 6, 5")
    a(f"s_lshl_b32 s{T4}, s{S_J}, 7")
    a(f"s_lshl_b32 s{T5}, s{S_TB2}, 16")
    a(f"s_add_u32 s{S_TILE}, s{T5}, s{T4}")
    a(f"v_lshlrev_b32 v{V_L16}, 4, v{V_LANE}")
    a(f"v_lshlrev_b32 v249, 2, v{V_LANE}")
    reduce_addr()
    a(f"s_and_b32 s{T0}, s{S_W}, 3")
    a(f"s_lshl_b32 s{T2}, s{S_HG}, 2")
    a(f"s_add_u32 s{T2}, s{T2}, s{T0}")
    a(f"s_lshl_b32 s{T2}, s{T2}, 17")
    a(f"s_add_u32 s{T2}, s{T2}, {WS_KV}")
    a(f"v_and_b32 v10, 15, v{V_LANE}")
    a(f"v_lshrrev_b32 v11, 5, v{V_LANE}")
    a(f"v_lshl_add_u32 v10, v11, 4, v10")
    a(f"v_lshl_add_u32 v{A_AV}, v10, 4, s{T2}")
    a(f"v_add_u32 v{A_AK}, s{T2}, v{V_L16}")
    a.c("waves 0-3 start on this workgroup's own two key tiles; the sweep over the others skips them")
    a(f"s_lshr_b32 s{T1}, s{S_W}, 2")
    a(f"s_mul_i32 s{S_XOFF}, s{T1}, {(NA - 2)*2048}")
    a(f"s_lshl_b32 s{S_OWN}, s{S_TB}, 12")
    a(f"s_add_u32 s{S_OWN2}, s{S_OWN}, 4096")
    if LOC:
        a(f"s_and_b32 s{S_OWN2}, s{S_OWN2}, 0x1ffff")
        a(f"s_and_b32 s{T2}, s{S_OWN}, 0x7fff")
        a(f"s_cmp_ge_u32 s{S_XOFF}, s{T2}")
        a(f"s_cselect_b32 s{T3}, 4096, 0")
        a(f"s_add_u32 s{S_XOFF}, s{S_XOFF}, s{T3}")
        a(f"s_and_b32 s{T2}, s{S_OWN}, 0x18000")
        a(f"s_add_u32 s{S_XOFF}, s{S_XOFF}, s{T2}")
        a(f"s_and_b32 s{S_XOFF}, s{S_XOFF}, 0x1ffff")
    else:
        a(f"s_cmp_ge_u32 s{S_XOFF}, s{S_OWN}")
        a(f"s_cselect_b32 s{T3}, 4096, 0")
        a(f"s_add_u32 s{S_XOFF}, s{S_XOFF}, s{T3}")
    a(f"s_mov_b32 s{S_MASKV}, 0xffff")
    a(f"s_mov_b32 s{S_MASKV+1}, 0xffff")
    a.c("rows 16 and 20 of the V operand are ones (row sums for both lane halves), the other spare rows zero")
    a(f"v_and_b32 v10, 0x1b, v{V_LANE}")
    a(f"v_cmp_eq_u32 vcc, 16, v10")
    a(f"v_mov_b32 v10, 0x3f803f80")
    a(f"v_mov_b32 v11, 0")
    a(f"v_cndmask_b32 v{A_ONE}, v11, v10, vcc")
    a(f"s_lshl_b32 s{T2}, s{S_W}, 10")
    a(f"v_add_u32 v{A_QA}, s{T2}, v{V_L16}")
    a(f"s_lshl_b32 s{T2}, s{T1}, 3")
    a(f"s_add_u32 s{T2}, s{T2}, s{S_HG}")
    a(f"s_lshl_b32 s{T2}, s{T2}, 2")
    a(f"s_add_u32 s{T2}, s{T2}, s{T0}")
    a(f"s_lshl_b32 s{T2}, s{T2}, 10")
    a(f"s_and_b32 s{T3}, s{T2}, 0xffffe000")
    a(f"s_add_u32 s{T2}, s{T2}, s{T3}")
    a(f"s_add_u32 s{S_HEAD}, s{T2}, {WS_OF}")

A_KF = 216
def kvflag_setup():
    if KVL:
        a(f"s_and_b32 s{S_SPIN}, s{S_TB}, 7")
        a(f"s_lshl_b32 s{S_FOWN}, s{S_TB}, 2")
        a(f"s_and_b32 s{S_FOWN}, s{S_FOWN}, 0x60")
        a(f"s_add_u32 s{S_SPIN}, s{S_SPIN}, s{S_FOWN}")
        flag_addr(WS_FKV, S_HG, S_SPIN, S_HG, 9)
        a(f"v_and_b32 v10, 7, v{V_LANE}")
        a(f"v_lshrrev_b32 v11, 3, v{V_LANE}")
        a(f"v_lshlrev_b32 v11, 7, v11")
        a(f"v_lshl_add_u32 v{A_KF}, v10, 2, v11")
    else:
        flag_addr(WS_FKV, S_HG, S_TB, S_HG, 9)
        a(f"v_mov_b32 v{A_KF}, v249")

def tag_setup():
    a.c("hand-off tag of this launch: next value of a full-period sequence after the one found in the workspace")
    a(f"s_mul_i32 s{S_N}, s{S_N}, 0x0019660d")
    a(f"s_add_u32 s{S_N}, s{S_N}, 0x3c6ef35f")
    a(f"v_mov_b32 v248, s{S_N}")

def misc_loads(v, with_b1):
    a.c("small operands needed much later: residual x tile, biases")
    a(f"buffer_load_dwordx4 {vr(V_HRES,4)}, v{V_ROWOFF}, {sr(R_X,4)}, s{S_TILE} offen")
    a(f"v_and_b32 v10, 0x70, v{V_L16}")
    a(f"s_lshl_b32 s{T7}, s{S_J}, 7")
    a(f"buffer_load_dwordx4 {vr(V_B2,4)}, v10, {sr(R_B2,4)}, s{T7} offen")
    v.issue("misc", 2)
    if with_b1:
        swap23(10, 31, 11)
        a(f"v_lshlrev_b32 v10, 1, v10")
        a(f"s_lshr_b32 s{T7}, s{S_W}, 1")
        a(f"s_add_u32 s{T7}, s{T7}, s{S_F0}")
        a(f"s_lshl_b32 s{T7}, s{T7}, 6")
        for seg in range(3):
            a(f"buffer_load_ushort v{V_B1+seg}, v10, {sr(R_B1,4)}, s{T7} offen offset:{seg*128}")
        v.issue("misc", 3)

def attn_zero(ns):
    L = [(SB+8+i, f"v_mov_b32 v{SB+8+i}, 0") for i in range(8)]
    L += [(o+i, f"v_mov_b32 v{o+i}, 0") for o in (OA, OB) for i in range(16)]
    L += [(Vf(t,0,ns)+i, f"v_mov_b32 v{Vf(t,0,ns)+i}, v{A_ONE}") for t in range(ns) for i in range(8)]
    return L

def q_reads():
    a(f"v_xor_b32 v10, 4096, v{A_QA}")
    a(f"ds_read_b128 {vr(QA,4)}, v{A_QA} offset:{L_Q}")
    a(f"ds_read_b128 {vr(QB,4)}, v10 offset:{L_Q}")

def kv_load(v, t, ns, part=None):
    imm = 2048*(t & 1)
    so = S_OWN if t < 0 else S_XOFF
    if part != "v":
        a(f"buffer_load_dwordx4 {vr(Kf(t,ns),4)}, v{A_AK}, {sr(R_WS,4)}, s{so} offen offset:{imm} sc1")
    if part == "k":
        return
    a(f"s_mov_b64 exec, {sr(S_MASKV,2)}")
    a(f"buffer_load_dwordx4 {vr(Vf(t,0,ns),4)}, v{A_AV}, {sr(R_WS,4)}, s{so} offen offset:{imm+1024} sc1")
    a(f"buffer_load_dwordx4 {vr(Vf(t,1,ns),4)}, v{A_AV}, {sr(R_WS,4)}, s{so} offen offset:{imm+1536} sc1")
    a("s_mov_b64 exec, -1")
    if t & 1 and t >= 0:
        a(f"s_add_u32 s{S_XOFF}, s{S_XOFF}, 4096")
        if LOC:
            a(f"s_and_b32 s{S_XOFF}, s{S_XOFF}, 0x1ffff")
        if ns == 6 or not LOC:
            a(f"s_cmp_eq_u32 s{S_XOFF}, s{S_OWN}")
            a(f"s_cselect_b32 s{S_XOFF}, s{S_OWN2}, s{S_XOFF}")
    v.issue(("kv", t), 3)
def kv_load2(v, t, ns):
    for k in range(2):
        a(f"buffer_load_dwordx4 {vr(Kf(t+k,ns),4)}, v{A_AK}, {sr(R_WS,4)}, s{S_XOFF} offen offset:{2048*k} sc1")
    a(f"s_mov_b64 exec, {sr(S_MASKV,2)}")
    for k in range(2):
        for h in range(2):
            a(f"buffer_load_dwordx4 {vr(Vf(t+k,h,ns),4)}, v{A_AV}, {sr(R_WS,4)}, s{S_XOFF} offen offset:{2048*k+1024+512*h} sc1")
    a("s_mov_b64 exec, -1")
    a(f"s_add_u32 s{S_XOFF}, s{S_XOFF}, 4096")
    a(f"s_and_b32 s{S_XOFF}, s{S_XOFF}, 0x1ffff")
    a(f"s_cmp_eq_u32 s{S_XOFF}, s{S_OWN}")
    a(f"s_cselect_b32 s{S_XOFF}, s{S_OWN2}, s{S_XOFF}")
    v.issue(("kv", t + 1), 5)
    v.issue(("kv", t), 1)
def smf(o, v, s):
    a(f"v_smfmac_f32_32x32x32_bf16 {vr(o,16)}, {vr(v,4)}, {vr(s,8)}, v{A_IDX}")
def attn_tile(v, t, ns, last=None, side=(), tail=None, load=True):
    side = list(side)
    order = {1: [(0, 13)], 2: [(0, 13), (1, 13)], 4: [(0, 4), (0, 13), (1, 4), (1, 13)]}[NBLK]
    at = {}
    for k, f in enumerate(side):
        at.setdefault(order[k*NBLK//len(side)], []).append(f)
    for ph in range(2):
        S, So, O, Oo, Qo = (SA, SB, OA, OB, QB) if ph == 0 else (SB, SA, OB, OA, QA)
        for i in range(16):
            for f in at.get((ph, i), []):
                f()
            if i == 2:
                smf(Oo, Vf(t - 1 + ph, 1, ns), So + 8)
            if i == 5 and not (ph == 1 and t == last):
                if ph == 1:
                    v.wait(("kv", t + 1))
                a(f"v_mfma_f32_32x32x16_bf16 {vr(So,16)}, {vr(Kf(t+ph,ns),4)}, {vr(Qo,4)}, 0")
            if i == 10:
                smf(O, Vf(t, 0, ns), S)
            if ph == 0 and i == KPOS and ns == 6 and load and (last is None or t + ns - 1 <= last):
                kv_load(v, t + ns - 1, ns, "k")
            if ph == 0 and i == LPOS and load and (last is None or t + ns - 1 <= last):
                if BAT and ns == 6 and t >= 0:
                    if t % 2 == 0:
                        kv_load2(v, t + 4, ns)
                        if BAT == 1:
                            v.wait(("kv", t + 2))
                else:
                    kv_load(v, t + ns - 1, ns, "v" if KPOS >= 0 and ns == 6 else None)
                    if WM and t >= 0 and ns == 6:
                        v.wait(("kv", t + 1))
            if ph == 1 and i == 12 and tail:
                tail()
            a(f"v_exp_f32 v{S+i}, v{S+i}")
def attn_first(v, t, ns, fill=None):
    v.wait(("kv", t), extra="lgkmcnt(0)")
    a(f"v_mfma_f32_32x32x16_bf16 {vr(SA,16)}, {vr(Kf(t,ns),4)}, {vr(QA,4)}, 0")
    if fill:
        fill()
    a("s_nop 7")
    a("s_nop 3")

a.c("======== phase 1: LN1 + QKV projection")
stamp("setup") if PROBE else None
va, vb = vm.copy(), vm.copy()
is_a("L_p1_a")
def w_prefetch(v, segs):
    if not segs:
        return
    a.c("4 rows per wave of the XCD's Wqkv columns into L2")
    a(f"s_lshr_b32 s{T5}, s{S_WG}, 3")
    a(f"s_lshl_b32 s{T5}, s{T5}, 2")
    a(f"s_and_b32 s{T7}, s{S_W}, 3")
    a(f"s_add_u32 s{T5}, s{T5}, s{T7}")
    a(f"s_mul_i32 s{T5}, s{T5}, {4*3072}")
    a(f"s_and_b32 s{T7}, s{S_HG}, {(8 >> LH) - 1}")
    a(f"s_lshl_b32 s{T7}, s{T7}, 7")
    a(f"s_add_u32 s{T5}, s{T5}, s{T7}")
    a(f"v_lshrrev_b32 v10, {LH}, v{V_LANE}")
    a(f"v_mul_u32_u24 v10, 3072, v10")
    a(f"v_and_b32 v11, {(1 << LH) - 1}, v{V_LANE}")
    a(f"v_lshl_add_u32 v10, v11, {10 - LH}, v10")
    a(f"s_mov_b64 exec, {(1 << (4 << LH)) - 1:#x}")
    for o in segs:
        a(f"buffer_load_dword v251, v10, {sr(R_WQKV,4)}, s{T5} offen offset:{o}")
        v.issue("pf")
    a("s_mov_b64 exec, -1")
L2A = opt('l2a', 0)
if EARLY:
    common_setup()
    a("v_mov_b32 v208, 0")
    a("v_mov_b32 v209, 0")
    if EARLY > 1:
        for r, x in attn_zero(4):
            if r >= 64:
                a(x)
    ln_loads(new_vm(), R_X, S_RG)
w_prefetch(vb, QKV_SEG[L2A:L2PF])
if opt("diag", 0):
    stamp("pf issued")
    a(f"s_waitcnt vmcnt({L2PF})")
    stamp("pf xin")
    for k in range(L2PF):
        a(f"s_waitcnt vmcnt({L2PF - 1 - k})")
        stamp(f"pf done{k}")
qkv_ring_setup()
for n in range(NPB):
    qkv_issue(vb, n)
ln_stats(vb, 2.0)
a("s_branch L_p1_norm")

a.label("L_p1_a")
w_prefetch(va, QKV_SEG[:L2A])
common_setup()
a.c("first touch (scalar path) of the flag lines and the biases")
a(f"s_lshl_b32 s{T2}, s{S_TB2}, 20")
a(f"s_lshl_b32 s{T3}, s{S_J}, 7")
a(f"s_add_u32 s{T2}, s{T2}, s{T3}")
a(f"s_and_b32 s{T3}, s{S_W}, 1")
a(f"s_lshl_b32 s{T3}, s{T3}, 13")
a(f"s_add_u32 s{T2}, s{T2}, s{T3}")
a(f"s_add_u32 s{T2}, s{T2}, {WS_GRP}")
a(f"s_load_dword s{S_SPIN}, {sr(KA+20,2)}, s{T2}")
a(f"s_lshl_b32 s{T3}, s{S_W}, 7")
a(f"s_lshl_b32 s{T2}, s{S_HG}, 9")
a(f"s_add_u32 s{T2}, s{T2}, s{T3}")
a(f"s_add_u32 s{T2}, s{T2}, {WS_FKV}")
if opt("kt", 1):
    a(f"s_and_b32 s{T3}, s{S_TB}, 1")
    a(f"s_lshl_b32 s{T3}, s{T3}, 6")
    a(f"s_add_u32 s{T2}, s{T2}, s{T3}")
a(f"s_load_dword s{S_SPIN}, {sr(KA+20,2)}, s{T2}")
a(f"s_lshl_b32 s{T2}, s{S_WG}, 2")
a(f"s_add_u32 s{T2}, s{T2}, {WS_FC}")
a(f"s_load_dword s{S_SPIN}, {sr(KA+20,2)}, s{T2}")
a(f"s_lshl_b32 s{T2}, s{S_W}, 1")
a(f"s_add_u32 s{T2}, s{T2}, s{S_F0}")
a(f"s_min_u32 s{T2}, s{T2}, 41")
a(f"s_lshl_b32 s{T2}, s{T2}, 6")
a(f"s_add_u32 s{T3}, s{T2}, 64")
a(f"s_load_dword s{S_SPIN}, {sr(KA+10,2)}, s{T2}")
a(f"s_load_dword s{S_SPIN}, {sr(KA+10,2)}, s{T3}")
a(f"s_and_b32 s{T2}, s{S_W}, 1")
a(f"s_lshl_b32 s{T2}, s{T2}, 6")
a(f"s_add_u32 s{T2}, s{T2}, s{T4}")
a(f"s_load_dword s{S_SPIN}, {sr(KA+14,2)}, s{T2}")
if opt("tlb", 0):
    a.c("... and of the pages used later")
    a(f"s_lshr_b32 s{T2}, s{S_WG}, 3")
    a(f"s_lshl_b32 s{T2}, s{T2}, 2")
    a(f"s_add_u32 s{T2}, s{T2}, s{S_W}")
    a(f"s_lshl_b32 s{T3}, s{T2}, 12")
    a(f"s_load_dword s{S_SPIN}, {sr(KA+4,2)}, s{T3}")
    a(f"s_mul_i32 s{T3}, s{T2}, 11008")
    a(f"s_load_dword s{S_SPIN}, {sr(KA+8,2)}, s{T3}")
    a(f"s_load_dword s{S_SPIN}, {sr(KA+12,2)}, s{T3}")
    if opt("tlb", 0) > 1:
        a(f"s_lshl_b32 s{T3}, s{T2}, 17")
        a(f"s_load_dword s{S_SPIN}, {sr(KA+20,2)}, s{T3}")
        a(f"s_lshl_b32 s{T3}, s{T2}, 14")
        a(f"s_load_dword s{S_SPIN}, {sr(KA+16,2)}, s{T3}")
w_addr()
x_addr(False)
qkv_ring_setup()
a(f"s_and_b32 s{T0}, s{S_W}, 1")
a(f"s_lshr_b32 s{T1}, s{S_W}, 1")
tr_lane_addr(A_WO, T0, False)
a(f"s_lshl_b32 s{T7}, s{T1}, 15")
a(f"v_add_u32 v{A_WO}, s{T7}, v{A_WO}")
E_K, E_V, E_Q, E_C = 208, 209, 210, 212
swap23(10, 63, 11)
a(f"v_lshlrev_b32 v{E_K}, 4, v10")
a(f"v_and_b32 v10, 15, v{V_LANE}")
a("v_lshlrev_b32 v10, 4, v10")
a(f"v_lshrrev_b32 v11, 5, v{V_LANE}")
a("v_lshl_add_u32 v10, v11, 8, v10")
a(f"v_bfe_u32 v11, v{V_LANE}, 4, 1")
a(f"v_lshl_add_u32 v{E_V}, v11, 17, v10")
a(f"s_lshl_b32 s{T2}, s{T0}, 12")
a(f"s_lshl_b32 s{T3}, s{T1}, 11")
a(f"s_add_u32 s{T2}, s{T2}, s{T3}")
a(f"v_add_u32 v{E_Q}, s{T2}, v{V_L16}")
a(f"v_mov_b32 v{E_C}, {f32(0.25*math.log2(math.e))}")
a(f"v_mov_b32 v{E_C+1}, v{E_C}")
a(f"s_lshl_b32 s{T2}, s{S_HG}, 1")
a(f"s_add_u32 s{T2}, s{T2}, s{T1}")
a(f"s_lshl_b32 s{T2}, s{T2}, 18")
a(f"s_lshl_b32 s{T3}, s{S_TB}, 1")
a(f"s_add_u32 s{T3}, s{T3}, s{T0}")
a(f"s_lshl_b32 s{T3}, s{T3}, 11")
a(f"s_add_u32 s{T2}, s{T2}, s{T3}")
a(f"s_add_u32 s{T2}, s{T2}, {WS_KV}")
a(f"s_add_u32 s{T3}, s{T2}, 0x20000")
ln_stats(va, 1.0)
a.label("L_p1_norm")
ln_norm(1.0)
pass
is_a("L_p1_compute")

W2_HOME = [(0, 65536, 49152), (24, 131072, 16384), (32, 20480, 22528)]
if W2L:
    W2_HOME = [(0, 65536, 49152), (24, 20480, 6144), (27, 0, 32768)]
W2_END = 27 if W2L else 43
S_H = [T4, T5, T6]
def w2_home(t):
    k = 0 if t < 24 else 1 if t < W2_HOME[2][0] else 2
    return k, (t - W2_HOME[k][0])*2048
def staging_setup():
    a(f"s_lshl_b32 s{T4}, s{S_J}, 7")
    dma_addr(V_DA, 1024, T4)
    a(f"s_lshl_b32 s{T4}, s{S_F0}, 6")
    dma_addr(V_DB, 2752, T4)
    a(f"v_lshrrev_b32 v10, 2, v{V_LANE}")
    a(f"v_mul_u32_u24 v10, 2752, v10")
    a(f"v_and_b32 v11, 3, v{V_LANE}")
    a(f"v_lshlrev_b32 v11, 7, v11")
    a(f"v_min_u32 v11, {252 if WS1[0] == 4 else 380}, v11")
    a(f"v_add3_u32 v{A_W1}, v10, v11, s{T4}")
    a(f"s_and_b32 s{T0}, s{S_W}, 3")
    a(f"s_lshl_b32 s{S_D0}, s{T0}, 13")
    a(f"s_lshl_b32 s{S_D1}, s{T0}, 10")
    a(f"s_mul_i32 s{S_D2}, s{T0}, {8*2752}")
    a(f"s_and_b32 s{T4}, s{S_TB2}, 3")
    a(f"s_lshl_b32 s{T4}, s{T4}, 2")
    a(f"s_add_u32 s{T4}, s{T4}, s{T0}")
    a(f"s_mul_i32 s{S_D4}, s{T4}, {32*2752}")
    a(f"s_and_b32 s{T2}, s{S_W}, 1")
    a(f"s_bfe_u32 s{T3}, s{S_W}, 0x10001")
    tr_lane_addr(7, T2, False)
    for k, (t0, base, stride) in enumerate(W2_HOME):
        a(f"s_mul_i32 s{S_H[k]}, s{T3}, {stride}")
        a(f"s_add_u32 s{S_H[k]}, s{S_H[k]}, {base}")
        a(f"v_add_u32 v{4+k}, s{S_H[k]}, v7")
        a(f"s_lshl_b32 s{T7}, s{T2}, 10")
        a(f"s_add_u32 s{S_H[k]}, s{S_H[k]}, s{T7}")
    a(f"v_mov_b32 v{A_IDX}, 0xdddddddd")
def mall_touch():
    a.c("first touch of the later weights, different lines by every wave")
    a(f"s_lshl_b32 s{T2}, s{S_WG}, 2")
    a(f"s_add_u32 s{T2}, s{T2}, s{S_W}")
    a(f"s_sub_u32 s{T2}, s{T2}, 4")
    a(f"s_lshl_b32 s{T3}, s{T2}, 9")
    a(f"s_mul_i32 s{T2}, s{T2}, {11*128}")
    a(f"v_lshlrev_b32 v10, 7, v{V_LANE}")
    for r, so, m in ((R_WO, T3, 15), (R_W2, T2, 0x7ff), (R_W1, T2, 0x7ff)):
        a(f"s_mov_b64 exec, {m:#x}")
        a(f"buffer_load_dword v251, v10, {sr(r,4)}, s{so} offen")
        vb.issue("pf")
    a("s_mov_b64 exec, -1")
def s_touch(k):
    def f():
        if k == 0:
            a(f"s_lshl_b32 s{T7}, s{S_WG}, 2")
            a(f"s_add_u32 s{T7}, s{T7}, s{S_W}")
            a(f"s_sub_u32 s{T7}, s{T7}, 4")
            a(f"s_lshl_b32 s{S_SPIN}, s{T7}, 9")
            a(f"s_add_u32 s{KA+4}, s{KA+4}, s{S_SPIN}")
            a(f"s_addc_u32 s{KA+5}, s{KA+5}, 0")
            a(f"s_mul_i32 s{T7}, s{T7}, {11*128}")
            a(f"s_min_u32 s{T7}, s{T7}, {512*1376*2 - 11*128}")
            for p in (KA+8, KA+12):
                a(f"s_add_u32 s{p}, s{p}, s{T7}")
                a(f"s_addc_u32 s{p+1}, s{p+1}, 0")
        L = [(KA+4, i) for i in range(8)] + [(KA+12, i) for i in range(22)] + [(KA+8, i) for i in range(22)]
        for p, i in L[13*k:13*k + 13]:
            a(f"s_load_dword s{KA+6}, {sr(p,2)}, {64*i}")
    return f
cs = capture(common_setup)
late = {3: cs[:40], 4: cs[40:80], 5: cs[80:], 6: [x for _, x in attn_zero(4)][:36], 7: [x for _, x in attn_zero(4)][36:],
        8: capture(staging_setup)[:38], 9: capture(staging_setup)[38:], 10: capture(tag_setup) + capture(kvflag_setup)}
if EARLY:
    zz = [x for r, x in attn_zero(4) if r < 64 or EARLY == 1]
    late.update({3: zz[:15], 4: zz[15:30], 5: zz[30:45], 6: zz[45:60], 7: zz[60:]})
later = []
if LATE:
    for k in ((8, 9) if LATE == 1 else (6, 7, 8, 9)):
        later += late.pop(k)
for k in (40, 80):
    assert not cs[k].startswith("s_cselect") and "vcc" not in cs[k]
nxw = NPA
for n in range(12):
    vb.wait(("w", n), extra="lgkmcnt(0)" if n == 0 else "")
    if opt("bst", -1) == n:
        stamp(f"bw{n}")
    a("s_barrier")
    if opt("bst", -1) == n:
        stamp(f"bb{n}")
    while nxw <= min(11, n + NB0 + 1, n + 4 if n >= 2 else 5):
        qkv_issue(vb, nxw)
        nxw += 1
    if n == QPF:
        w_prefetch(vb, QKV_SEG[2:])
    for x in late.get(n, []):
        a(x)
    if n == MW:
        mall_touch()
    if STM and n == STM:
        s_touch(0)()
    if STM and n == 11 and opt("stm2", 1):
        s_touch(1)()
misc_loads(vb, False)
a("s_barrier")
flag_store(4)
def lead():
    l = a.uniq("L_nl")
    a(f"s_cmp_lg_u32 s{S_J}, 0")
    a(f"s_cbranch_scc1 {l}")
    a.c("group leader: which half answers faster?")
    a(f"s_lshl_b32 s{T2}, s{S_TB2}, 20")
    a(f"s_add_u32 s{T2}, s{T2}, {WS_GRP + F_PROBE}")
    a(f"s_add_u32 s{T3}, s{T2}, 8192")
    NP = opt("np", 1)
    for k in range(2*NP):
        a(f"s_memtime {sr(KA+2*k,2)}")
        a("s_waitcnt lgkmcnt(0)")
        a(f"s_load_dword s{KA+14}, {sr(KA+20,2)}, s{(T2, T3)[k & 1]} glc")
        a("s_waitcnt lgkmcnt(0)")
    a(f"s_memtime {sr(KA+4*NP,2)}")
    a("s_waitcnt lgkmcnt(0)")
    for k in range(2*NP):
        a(f"s_sub_u32 s{KA+2*k}, s{KA+2*k+2}, s{KA+2*k}")
    for k in range(2, 2*NP):
        a(f"s_min_u32 s{KA+2*(k&1)}, s{KA+2*(k&1)}, s{KA+2*k}")
    a(f"s_mov_b32 s{T2}, s{KA}")
    a(f"s_mov_b32 s{T3}, s{KA+2}")
    a(f"s_cmp_lt_u32 s{T3}, s{T2}")
    a(f"s_cselect_b32 s{T2}, " + {1: "4, 0", 2: "0, 4", 0: "0, 0"}[NEAR])
    a(f"s_lshl_b32 s{T7}, s{S_TB2}, 6")
    a(f"s_add_u32 s{T7}, s{T7}, s{T2}")
    a(f"s_add_u32 s{T7}, s{T7}, {WS_PL}")
    a("s_mov_b64 exec, 1")
    a(f"buffer_store_dword v248, v249, {sr(R_WS,4)}, s{T7} offen sc1")
    a("s_mov_b64 exec, -1")
    a.label(l)
L_GO = L_Q + 8192
if LF:
    a("v_mov_b32 v9, 0")
    a(f"ds_write_b32 v9, v9 offset:{L_GO}")
    a("s_waitcnt lgkmcnt(0)")
a("s_barrier")
q_reads()
for x in later:
    a(x)
if not KVP:
    if SLP:
        a(f"s_sleep {SLP}")
    if LF:
        a(f"s_lshr_b32 s{T7}, s{S_TB}, 3")
        a(f"s_lshl_b32 s{T7}, s{T7}, 7")
        a(f"v_add_u32 v10, s{T7}, v249")
        flag_poll(4, 8, 0, 10)
    else:
        flag_poll(4, 32, 0, A_KF)
    pass
a("s_waitcnt lgkmcnt(0)")
a("s_barrier")
if LF:
    a.c("the remaining flags: wave 4 polls, waves 5-7 watch an LDS word")
    flag_poll(4, 32, 0, A_KF)
    def go():
        a("v_mov_b32 v10, 1")
        a(f"ds_write_b32 v9, v10 offset:{L_GO}")
    only(4, go)
    only(5, lead)
    a(f"s_mov_b32 s{S_SPIN}, 0")
    a.label("L_go")
    a(f"ds_read_b32 v10, v9 offset:{L_GO}")
    a(f"s_add_u32 s{S_SPIN}, s{S_SPIN}, 1")
    a(f"s_lshr_b32 s{T2}, s{S_SPIN}, 22")
    a("s_waitcnt lgkmcnt(0)")
    a(f"v_readfirstlane_b32 s{T7}, v10")
    a("s_nop 0")
    a(f"s_or_b32 s{T7}, s{T7}, s{T2}")
    a("s_cbranch_scc0 L_go")
    pass
a.c("======== phase 2, waves 4-7: fewer key tiles, and the weights of the later phases go on chip")
NB = 64 - NA
a("s_setprio 1")
for t in range(3):
    kv_load(vb, t, 4)
attn_first(vb, 0, 4)
if STM:
    s_touch(1 + opt("stm2", 1))()
elif MW == -1:
    mall_touch()
F0 = [5*j + min(j, 3) for j in range(8)]
TL = [F0[j] + 2*p + i for p in range(2) for j in range(8) for i in range(2)] + [F0[j] + i for j in range(8) for i in range(4, 6 if j < 3 else 5)]
assert sorted(TL) == list(range(43))
ND = opt("nd", 0)
def mk(*x):
    if ND == 1:
        return lambda: None
    if ND == 2:
        return lambda: a("\n".join(capture(dma, new_vm(), *x)[:2]))
    if ND == 3:
        return lambda: dma(vb, x[0], x[1], x[2], x[3], 0, x[5], x[6])
    return lambda: dma(vb, *x)
L_wo = [mk("r1", R_WO, V_DA, S_D0, k*32768, S_D1, k*4096) for k in range(16)]
L_w2 = [mk("r1" if t < 24 else "r2", R_W2, V_DA, S_D0, TL[t]*32768, S_H[w2_home(t)[0]], w2_home(t)[1]) for t in range(43)]
L_w1 = [mk("r2", R_W1, V_DB, S_D2, k*32*2752, S_D1, L_RING + k*4096) for k in range(16)]
def d_warm(k):
    def f():
        a(f"s_add_u32 s{T7}, s{S_D4}, {k*16*2752 + (128 if WS1[0] == 4 else 0)}")
        a(f"buffer_load_dword v251, v{A_W1}, {sr(R_W1,4)}, s{T7} offen")
        vb.issue("pf")
    return f
def d_rd(t):
    k, off = w2_home(t)
    return lambda: tr_read(F_W(t), 4 + k, off)
def d_c3():
    a.c("lines at 384 mod 1024 stream slowly past L2 into a single CU: every workgroup pulls a few of them")
    a(f"s_lshr_b32 s{T2}, s{S_WG}, 3")
    a(f"s_lshl_b32 s{T2}, s{T2}, 2")
    a(f"s_add_u32 s{T2}, s{T2}, s{T0}")
    a(f"s_lshl_b32 s{T3}, s{T2}, 12")
    a(f"s_mul_i32 s{T2}, s{T2}, {11*1024}")
    a(f"v_lshlrev_b32 v10, 10, v{V_LANE}")
    for r, so, m in ((R_WO, T3, 15), (R_W2, T2, 0x7ff)):
        a(f"s_mov_b64 exec, {m:#x}")
        a(f"buffer_load_dword v251, v10, {sr(r,4)}, s{so} offen offset:384")
        vb.issue("pf")
    a("s_mov_b64 exec, -1")
def d_code():
    a.c("the code of the later phases back into L2, two lines per wave")
    a(f"s_getpc_b64 {sr(S_PC,2)}")
    a.label("L_pc2")
    a(f"s_lshr_b32 s{T2}, s{S_WG}, 3")
    a(f"s_lshl_b32 s{T2}, s{T2}, 2")
    a(f"s_add_u32 s{T2}, s{T2}, s{T0}")
    a(f"s_lshl_b32 s{T2}, s{T2}, 7")
    a(f"s_add_u32 s{T2}, s{T2}, L_attn_end-L_pc2")
    a(f"v_lshl_add_u32 v10, v{V_LANE}, 14, s{T2}")
    a(f"v_min_u32 v10, L_code_end-L_pc2-4, v10")
    a("s_mov_b64 exec, 3")
    a(f"global_load_dword v251, v10, {sr(S_PC,2)}")
    vb.issue("pf")
    a("s_mov_b64 exec, -1")
def share(L, tiles):
    return {t: L[k*len(L)//len(tiles):(k+1)*len(L)//len(tiles)] for k, t in enumerate(tiles)}
plan = {0: [lambda: None]*3 + [d_c3]}
plan.update(share(L_wo + L_w2[:24], list(range(T0B, TB1 - 1))))
if ND != 4:
    plan.update(share([d_rd(t) for t in range(24)], list(range(TB1, TB1 + TB2))))
plan.update(share(L_w2[24:W2_END] + L_w1[:2*WS1[0]] + [d_warm(0)] + L_w1[2*WS1[0]:4*WS1[0]] + [d_warm(1)], list(range(TB1 + TB2, NB - TEND))))
if STM:
    for k in range(2 + opt("stm2", 1), 4):
        t = k - 1 - opt("stm2", 1)
        plan[t] = [s_touch(k)] + plan.get(t, [])
if opt("cpf", 1):
    plan[NB - opt("cpf", 1)] = [d_code] + plan.get(NB - opt("cpf", 1), [])
for t in range(NB):
    if t == 1 and LF:
        a("s_barrier")
    if t == TB1:
        vb.wait("r1")
        a("s_barrier")
        half_issue()
    if t == TB1 + TB2:
        a("s_waitcnt lgkmcnt(0)")
        a("s_barrier")
        half_check()
    attn_tile(vb, t, 4, NB - 1, plan.get(t, []))
vb.wait("r2")
a("s_setprio 0")
a("s_nop 0")
smf(OB, Vf(NB - 1, 1, 4), SB+8)
a("s_branch L_attn_end")

a.label("L_p1_compute")
for n in range(NPB, NPA):
    qkv_issue(va, n)
pass
w_prefetch(va, QKV_SEG[L2PF:opt("l2e", 2)])
def cvt_inplace(b):
    return [f"v_cvt_pk_bf16_f32 v{b+i}, v{b+2*i}, v{b+2*i+1}" for i in range(8)]
aK, aV, aQ = 144, 160, 176
inj = {2: capture(tag_setup)}
spread(inj, [(x, 1) for x in capture(kvflag_setup)], 4, 20)
items = [(x, 1) for x in cvt_inplace(aK)]
items += [((f"buffer_store_dwordx4 {vr(aK,4)}, v{E_K}, {sr(R_WS,4)}, s{T2} offen sc1", "st"), 2),
          ((f"buffer_store_dwordx4 {vr(aK+4,4)}, v{E_K}, {sr(R_WS,4)}, s{T3} offen sc1", "st"), 2)]
spread(inj, items, *((67, 70) if KVJ else (36, 42)))
items = [(x, 1) for x in cvt_inplace(aV)]
items += [((f"buffer_store_dwordx4 {vr(aV,4)}, v{E_V}, {sr(R_WS,4)}, s{T2} offen offset:1024 sc1", "st"), 2),
          ((f"buffer_store_dwordx4 {vr(aV+4,4)}, v{E_V}, {sr(R_WS,4)}, s{T2} offen offset:1536 sc1", "st"), 2)]
spread(inj, items, *((70, 73) if KVJ else (67, 71)))
a_zero = attn_zero(6)
spread(inj, [(x, 1) for r, x in a_zero if r >= 144], *((80, 92) if KVJ else (48, 60)))
for r, x in a_zero:
    if r < 144:
        inj.setdefault(64 + (r - G_X)//4, []).append(x)
def pub_kv():
    va.wait("st")
    a("s_barrier")
    stamp("kv drained")
gemm_compute(va, [aK, aV, aQ], [192, 196, 200, 204, 224, 228], {1}, {0, 1, 2}, inj, {UKV: pub_kv}, range(12), 'p1', 4096, None, KVJ)
kv_load(va, -2, 6)
kv_load(va, -1, 6)
a(f"v_mov_b32 v{A_IDX}, 0xdddddddd")
for i in range(8):
    a(f"v_pk_mul_f32 {vr(aQ+2*i,2)}, {vr(aQ+2*i,2)}, {vr(E_C,2)}")
for x in cvt_inplace(aQ):
    a(x)
a(f"ds_write_b128 v{E_Q}, {vr(aQ,4)} offset:{L_Q}")
a(f"ds_write_b128 v{E_Q}, {vr(aQ+4,4)} offset:{L_Q+1024}")
a("s_waitcnt lgkmcnt(0)")
a("s_barrier")
pass
q_reads()
misc_loads(va, True)
a.c("======== phase 2, waves 0-3: attention; wave = head, 64 queries")
a(f"s_setprio {PRA}")
a(f"s_mov_b32 s{S_D4}, 1")
a(f"s_mov_b32 s{S_LOOP}, {1 if LF else IT1}")
a(f"s_mov_b32 s{S_STAGE}, {0 if LF else 1}")
def kv_try():
    a("s_mov_b32 exec_hi, 0")
    a(f"buffer_load_dword v247, v{A_KF}, {sr(R_WS,4)}, s{S_FPOLL} offen sc1")
    a("s_mov_b32 exec_hi, -1")
def kv_check():
    a("s_waitcnt vmcnt(0)")
    flag_poll(None, 32, 0, A_KF)
attn_first(va, -2, 6, (lambda: only(0, kv_try)) if KVP else None)
attn_tile(va, -2, 6, load=False)
pass
if KVP:
    only(0, kv_check)
a("s_barrier")
stamp("kv ready")
for t in range(4):
    kv_load(va, t, 6)
attn_tile(va, -1, 6, load=not BAT)
if BAT:
    va.wait(('kv', 1))
    va.q = [('kv', 3)]*5 + [('kv', 2)]
a("s_branch L_attn")
a.label("L_attn_s0")
a("s_barrier")
a(f"s_setprio {PRA}")
a(f"s_mov_b32 s{S_LOOP}, {IT1 - 1}")
a("s_branch L_attn")
a.label("L_attn_s1")
a("s_barrier")
a(f"s_setprio {PRA}")
if ORD:
    a(f"s_and_b32 s{T7}, s{S_WG}, 1")
    a(f"s_lshl_b32 s{T7}, s{T7}, 13")
    a(f"v_add_u32 v10, s{T7}, v{A_WO}")
    a(f"s_sub_u32 s{T7}, 8192, s{T7}")
    a(f"v_add_u32 v11, s{T7}, v{A_WO}")
for t in range(16 if ND != 4 else 0):
    if ORD:
        tr_read(P_W + 4*t, 10 + ((t >> 2) & 1), (t & ~4)*2048)
    else:
        tr_read(P_W + 4*t, A_WO, t*2048)
half_issue()
a(f"s_mov_b32 s{S_LOOP}, {IT2}")
a("s_branch L_attn")
a.label("L_attn_s2")
half_check()
a("s_barrier")
a(f"s_setprio {PRA}")
if FEND <= (NA - 2) % 6:
    a(f"s_mov_b32 s{S_D4}, 0")
a(f"s_mov_b32 s{S_LOOP}, {(NA - 2)//6 - IT1 - IT2}")
a.raw(".p2align 4")
a.label("L_attn")
def loop_tail():
    a(f"s_sub_u32 s{S_LOOP}, s{S_LOOP}, 1")
    a(f"s_cmp_lg_u32 s{S_LOOP}, 0")
for t in range(6):
    if t == FLIP:
        a(f"s_cmp_lg_u32 s{S_LOOP}, s{S_D4}")
        a("s_cbranch_scc1 L_keep")
        a("s_setprio 0")
        a.label("L_keep")
    attn_tile(va, t, 6, None, [], loop_tail if t == 5 else None)
a("s_cbranch_scc1 L_attn")
a(f"s_add_u32 s{S_STAGE}, s{S_STAGE}, 1")
for k in range(3):
    a(f"s_cmp_eq_u32 s{S_STAGE}, {k + 1}")
    a(f"s_cbranch_scc1 L_attn_s{k}")
NT_ = (NA - 2) % 6
for t in range(6, 6 + NT_):
    if 6 + NT_ - t == FEND:
        a("s_setprio 0")
    attn_tile(va, t, 6, 5 + NT_)
if NT_:
    a("s_nop 1")
smf(OB, Vf(5 + NT_, 1, 6), SB+8)
a("s_setprio 0")

a.label("L_attn_end")
stamp("attn loop done")
a.c("combine the two key ranges: keep A, send B")
a(f"s_lshl_b32 s{T2}, s{S_W}, 11")
a(f"v_add_u32 v10, s{T2}, v{V_L16}")
a(f"s_lshl_b32 s{T2}, s{S_W}, 8")
a(f"v_add_u32 v11, s{T2}, v249")
a(f"v_xor_b32 v{SB+3}, 8192, v10")
a(f"v_xor_b32 v{SB+2}, 1024, v11")
a(f"v_mov_b32 v{SB}, {f32(2.0**-64)}")
a(f"v_mov_b32 v{SB+1}, {f32(2.0**64)}")
a("s_nop 2")
a(f"ds_write_b32 v11, v{OB+8} offset:{L_OX+16384}")
a(f"ds_write_b128 v10, {vr(OB,4)} offset:{L_OX}")
a(f"ds_write_b128 v10, {vr(OB+4,4)} offset:{L_OX+1024}")
a("s_waitcnt lgkmcnt(0)")
a("s_barrier")
a(f"ds_read_b32 v{SA+8}, v{SB+2} offset:{L_OX+16384}")
a(f"ds_read_b128 {vr(SA,4)}, v{SB+3} offset:{L_OX}")
a(f"ds_read_b128 {vr(SA+4,4)}, v{SB+3} offset:{L_OX+1024}")
a("s_waitcnt lgkmcnt(2)")
a(f"v_add_f32 v{OA+8}, v{OA+8}, v{SA+8}")
a.c("the loop subtracted no row maximum: a row sum outside [2^-64, 2^64] (or NaN) sends the wave to the true-max path")
a(f"v_cmp_ge_f32 vcc, v{OA+8}, v{SB}")
a(f"v_cmp_le_f32 {sr(S_SAVE,2)}, v{OA+8}, v{SB+1}")
a("s_waitcnt lgkmcnt(0)")
for i in range(4):
    a(f"v_pk_add_f32 {vr(OA+2*i,2)}, {vr(OA+2*i,2)}, {vr(SA+2*i,2)}")
a(f"s_and_b64 vcc, vcc, {sr(S_SAVE,2)}")
a(f"s_cmp_eq_u64 vcc, -1")
if FORCE_FB:
    a("s_branch L_attn_fb")
else:
    a("s_cbranch_scc0 L_attn_fb")
a.label("L_attn_fin")
a(f"v_rcp_f32 v10, v{OA+8}")
a("s_nop 0")
a("v_mov_b32 v11, v10")
for i in range(4):
    a(f"v_pk_mul_f32 {vr(OA+2*i,2)}, {vr(OA+2*i,2)}, v[10:11]")
for i in range(4):
    a(f"v_cvt_pk_bf16_f32 v{SA+i}, v{OA+2*i}, v{OA+2*i+1}")
a(f"buffer_store_dwordx4 {vr(SA,4)}, v{V_L16}, {sr(R_WS,4)}, s{S_HEAD} offen sc1")

a.c("======== phase 3: h = x + O Wo ; tile 64 tokens x 64 columns, computed by waves 0-3")
T_ACC, T_AF = 16, 48
def o_reread():
    if ORD:
        a("s_mov_b32 exec_lo, 0x01010101")
        a("s_mov_b32 exec_hi, 0x01010101")
        a(f"buffer_load_dword v251, v{V_L16}, {sr(R_WS,4)}, s{S_HEAD} offen sc1")
        a("s_mov_b64 exec, -1")
def W0(t): return 64 + 4*t
is_a("L_p3_a")
vb = new_vm()
for t in range(24, W2_END):
    d_rd(t)()
if W2L:
    a(f"s_mov_b32 s{S_OWN}, s{S_D0}")
    a(f"s_mov_b32 s{S_OWN2}, s{S_H[2]}")
    a(f"v_mov_b32 v8, v6")
ring_setup(2752, None)
assert WC[2] <= 4 and WC[3] <= 6 and WC[5] >= 6
for n in range(WC[1], WC[2]):
    ring_issue(vb, R_W1, 2752, W1_SEG, n)
a(f"s_waitcnt vmcnt({4*WS1[1]}) lgkmcnt(0)")
o_reread()
a("s_barrier")
for n in range(WC[2], WC[3]):
    ring_issue(vb, R_W1, 2752, W1_SEG, n)
act_setup(4, WS_OF, False)
if ORD:
    a(f"s_and_b32 s{T7}, s{S_WG}, 1")
    a(f"s_lshl_b32 s{T7}, s{T7}, 12")
    a(f"s_sub_u32 s{T0}, s{T4}, s{T7}")
    a(f"s_add_u32 s{T4}, s{T4}, s{T7}")
grp_flags(S_TB2, S_ZG, S_J)
stamp("owin B")
a("s_barrier")
for q in range(NO):
    act_issue(vb, q, q, 4, False)
def h_pre(B):
    L = unpack8(B, V_HRES) + ["v_mov_b32 v10, 0x3f803f80", "v_and_b32 v7, 0x1f8, v0",
         f"s_lshl_b32 s{T2}, s{S_W}, 6", f"s_add_u32 s{T2}, s{T2}, s{S_J}", f"s_lshl_b32 s{T2}, s{T2}, 7",
         f"s_add_u32 s{T2}, s{T2}, s{S_ZG}", f"s_add_u32 s{T2}, s{T2}, {WS_H}",
         f"s_add_u32 s{T5}, s{S_ZG}, {WS_GRP + 4096}",
         f"s_lshl_b32 s{T6}, s{S_J}, 9", f"s_add_u32 s{T6}, s{T6}, s{T5}"]
    return L
def h_epilogue(B):
    tile_gather(16)
    for h in range(2):
        a(f"s_waitcnt lgkmcnt({2-2*h})")
        for i in range(2*h, 2*h+2):
            a(f"v_pk_add_f32 {vr(B+2*i,2)}, {vr(B+2*i,2)}, {vr(16+2*i,2)}")
            a(f"v_pk_add_f32 {vr(B+2*i,2)}, {vr(B+2*i,2)}, {vr(24+2*i,2)}")
        for i in range(2*h, 2*h+2):
            a(f"v_cvt_pk_bf16_f32 v{V_HRES+i}, v{B+2*i}, v{B+2*i+1}")
tile_loader(vb, 16, lambda q: act_issue(vb, q + NO, q + NO, 4, False) if q + NO < 4 else None)
for x in h_pre(32):
    a(x)
h_epilogue(32)
a("s_branch L_p3_done")
a.label("L_p3_a")
CJ, CA = 28, 16
a.c("wave 1 of workgroups 0-175 sums 64 rows of a 64-column strip of W1 (LayerNorm's mean term)")
a(f"s_cmp_lt_u32 s{S_WG}, 176")
a(f"s_cselect_b32 s{S_STAGE}, s{S_W}, 0")
a(f"s_cmp_lg_u32 s{S_STAGE}, 1")
a("s_cbranch_scc1 L_cs_noload")
a(f"v_lshrrev_b32 v10, 3, v{V_LANE}")
a(f"v_mul_u32_u24 v10, 2752, v10")
a(f"v_and_b32 v11, 7, v{V_LANE}")
a(f"v_lshl_add_u32 v10, v11, 4, v10")
a(f"s_and_b32 s{T0}, s{S_WG}, 7")
a(f"s_mul_i32 s{T0}, s{T0}, {64*2752}")
a(f"s_lshr_b32 s{T1}, s{S_WG}, 3")
a(f"s_lshl_b32 s{T1}, s{T1}, 7")
a(f"s_add_u32 s{T0}, s{T0}, s{T1}")
for i in range(8):
    a(f"buffer_load_dwordx4 {vr(CJ+4*i,4)}, v10, {sr(R_W1,4)}, s{T0} offen")
    a(f"s_add_u32 s{T0}, s{T0}, {8*2752}")
a.label("L_cs_noload")
grp_flags(S_TB, S_ZO, S_HG)
w_addr()
act_setup(4, WS_OF, False)
a(f"s_cmp_eq_u32 s{S_STAGE}, 1")
a("s_waitcnt vmcnt(8)")
a("s_cbranch_scc1 L_cs_loaded")
a("s_waitcnt vmcnt(0)")
a.label("L_cs_loaded")
o_reread()
a("s_barrier")
flag_store(0, 0, OPK)
stamp("O drained")
R0 = min(24, 8*WC[1])
R1 = min(32, 8*WC[3])
RB = min(R0, opt("rb", 24))
for t in range(RB):
    w_read(W0(t), t)
a(f"s_cmp_lg_u32 s{S_STAGE}, 1")
a("s_cbranch_scc1 L_cs_nojob")
a(f"v_mov_b32 v10, 0x00003f80")
a(f"v_mov_b32 v11, 0x3f800000")
for i in range(8):
    a(f"s_waitcnt vmcnt({7-i+ORD})")
    for j in range(4):
        for h in range(2):
            a(f"v_dot2_f32_bf16 v{CA+2*j+h}, v{CJ+4*i+j}, v{10+h}, {f'v{CA+2*j+h}' if i else '0'}")
a(f"s_and_b32 s{T0}, s{S_WG}, 7")
a(f"s_mul_i32 s{T0}, s{T0}, {1408*4}")
a(f"s_lshr_b32 s{T1}, s{S_WG}, 3")
a(f"s_lshl_b32 s{T1}, s{T1}, 8")
for k in range(4):
    a(f"v_permlane32_swap_b32 v{CA+k}, v{CA+4+k}")
a(f"s_add_u32 s{T0}, s{T0}, s{T1}")
a(f"s_add_u32 s{T0}, s{T0}, {WS_CS}")
for k in range(4):
    a(f"v_add_f32 v{CA+k}, v{CA+k}, v{CA+4+k}")
a("s_nop 1")
for k in range(2):
    a(f"v_permlane16_swap_b32 v{CA+k}, v{CA+2+k}")
a("s_nop 1")
for k in range(2):
    a(f"v_add_f32 v{CA+k}, v{CA+k}, v{CA+2+k}")
a(f"v_and_b32 v10, 7, v{V_LANE}")
a(f"v_lshrrev_b32 v11, 4, v{V_LANE}")
for k in range(2):
    a(f"v_add_f32_dpp v{CA+k}, v{CA+k}, v{CA+k} row_ror:8 row_mask:0xf bank_mask:0xf")
a(f"v_lshlrev_b32 v11, 3, v11")
a(f"v_lshl_add_u32 v10, v10, 5, v11")
a(f"s_mov_b32 exec_lo, 0x00ff00ff")
a(f"s_mov_b32 exec_hi, 0x00ff00ff")
a(f"buffer_store_dwordx2 {vr(CA,2)}, v10, {sr(R_WS,4)}, s{T0} offen sc1")
a("s_mov_b64 exec, -1")
a.label("L_cs_nojob")
stamp("owin A")
if OSP:
    a(f"s_cmp_lg_u32 s{S_W}, 0")
    a("s_cbranch_scc1 L_o_seen")
    if OPK:
        peek_check(0, "L_o_seen")
    if DO:
        a(f"s_sleep {DO}")
    spoll_issue(0)
    spoll_check(0)
    a.label("L_o_seen")
else:
    flag_poll(0, 8)
a("s_waitcnt lgkmcnt(0)")
a("s_barrier")
stamp("O ready")
for t in range(RB, R0):
    w_read(W0(t), t)
a(f"s_cmp_lg_u32 s{S_STAGE}, 1")
a("s_cbranch_scc1 L_cs_noflag")
a(f"s_lshl_b32 s{T0}, s{S_WG}, 2")
a(f"s_add_u32 s{T0}, s{T0}, {WS_FC}")
a("s_waitcnt vmcnt(0)")
a("s_mov_b64 exec, 1")
a(f"buffer_store_dword v248, v249, {sr(R_WS,4)}, s{T0} offen sc1")
a("s_mov_b64 exec, -1")
a.label("L_cs_noflag")
a.c("every workgroup has read the old tag by now: leave this launch's tag for the next launch to step past")
a(f"s_or_b32 s{T0}, s{S_WG}, s{S_W}")
a("s_cbranch_scc1 L_notag")
a("s_mov_b64 exec, 1")
a(f"buffer_store_dword v248, v249, {sr(R_WS,4)}, 0 offen offset:{WS_NONCE} sc1")
a("s_mov_b64 exec, -1")
a.label("L_notag")
for x in h_pre(224):
    a(x)
tile_compute(new_vm(), 16, [0, 1, 2, 3], lambda t: P_W + 4*t, T_ACC, T_AF)
h_epilogue(224)
a.label("L_p3_done")
a(f"buffer_store_dwordx4 {vr(V_HRES,4)}, v{V_ROWOFF}, {sr(R_WS,4)}, s{T2} offen sc1")
a.c("partial row statistics of this 64-column slice")
for i in range(4):
    a(f"v_dot2_f32_bf16 v16, v{V_HRES+i}, v10, {'v16' if i else '0'}")
    a(f"v_dot2_f32_bf16 v17, v{V_HRES+i}, v{V_HRES+i}, {'v17' if i else '0'}")
sum8_pair(16)
a(f"s_mov_b32 exec_lo, 0x01010101")
a(f"s_mov_b32 exec_hi, 0x01010101")
a(f"buffer_store_dwordx2 v[16:17], v7, {sr(R_WS,4)}, s{T6} offen sc1")
a("s_mov_b64 exec, -1")
a("v_mov_b32 v41, v7")
stamp("h stored")
HRR = opt("hrr", 1)
def h_reread():
    if not HRR:
        return
    a.c("pull the stored lines back into this XCD's L2 while the flags travel")
    a(f"s_mov_b32 exec_lo, 0x01010101")
    a(f"s_mov_b32 exec_hi, 0x01010101")
    a(f"buffer_load_dword v251, v{V_ROWOFF}, {sr(R_WS,4)}, s{T2} offen sc1")
    a("s_mov_b64 exec, 1")
    a(f"buffer_load_dword v251, v41, {sr(R_WS,4)}, s{T6} offen sc1")
    a("s_mov_b64 exec, -1")

a.c("======== phase 4: g = gelu(LN(h) W1 + b1) with LN folded into the product, scaled by GS so that the tanh argument is u*(u*u+k)")
c1 = -2.0*math.sqrt(2.0/math.pi)*math.log2(math.e)
c3 = c1*0.044715
GS = -((-c3) ** (1.0/3))
GK = c1/GS
G_SLOTS = [0, 1, 2, 3, 4, 5, 6, 7, 8, 9, 2]
is_a("L_p4_a")
vb = new_vm()
a.c("source offsets of the raw h image: wave 4+b loads row groups b and b+4")
a(f"v_lshrrev_b32 v10, 4, v0")
a(f"v_xor_b32 v10, v10, v0")
a(f"v_and_b32 v10, 7, v10")
a(f"v_and_b32 v{V_XNW}, 0x7c00, v{V_ROWOFF}")
a(f"v_lshl_add_u32 v{V_XNW}, v10, 4, v{V_XNW}")
a(f"s_and_b32 s{T3}, s{S_W}, 3")
a(f"s_lshl_b32 s{T3}, s{T3}, 13")
a(f"s_add_u32 s{T4}, s{T3}, {WS_H}")
a(f"s_add_u32 s{T4}, s{T4}, s{S_ZG}")
assert WC[4] <= 6 + R0//8 and WC[5] <= 6 + R1//8
for n in range(WC[3], WC[4]):
    ring_issue(vb, R_W1, 2752, W1_SEG, n)
a(f"s_waitcnt vmcnt({4*WS1[3]})")
h_reread()
vb.issue("rr", 2*HRR)
a("s_barrier")
flag_store(4, F_H, HPK)
HPI = opt("hpi", 8)
L = []
for n in range(WC[4], WC[5]):
    L += capture(ring_issue, vb, R_W1, 2752, W1_SEG, n)
for x in L[:3*HPI]:
    a(x)
def h_try():
    if opt("hpw", 0):
        a(f"s_waitcnt vmcnt({min(HPI, len(L)//3)})")
    spoll_issue(F_H)
only(4, h_try)
for x in L[3*HPI:]:
    a(x)
a(f"s_cmp_lg_u32 s{S_W}, 4")
a("s_cbranch_scc1 L_h_seen")
spoll_check(F_H)
a.label("L_h_seen")
stamp("hseen B")
vb.wait(("w", 3))
a("s_barrier")
def h_issue(n):
    for i in (2*n, 2*n + 1):
        for r in range(2):
            dma(vb, ("x", n), R_WS, V_XNW, T4, r*65536 + i*128, T3, r*32768 + i*1024, "sc1")
for n in range(NH):
    h_issue(n)
for n in range(4):
    vb.wait(("x", n))
    a("s_barrier")
    if n + NH < 4:
        h_issue(n + NH)
    for k in {2: range(WC[5], WC[5] + 1), 3: range(WC[5] + 1, 10)}.get(n, []):
        ring_issue(vb, R_W1, 2752, W1_SEG, k)
act_setup(11, WS_GF, True)
TH = opt("th", 4)
GRP = [int(c, 16) for c in opt("grp", "8008")]
assert sum(GRP) == 16
w2n = [27]
def w2_late(k):
    for t in range(w2n[0], w2n[0] + k if W2L else 0):
        if len(vb.q) > TH:
            a(f"s_waitcnt vmcnt({TH})")
            vb.q = vb.q[len(vb.q) - TH:]
        dma(vb, "w2", R_W2, V_DA, S_OWN, TL[t]*32768, S_OWN2, w2_home(t)[1])
    w2n[0] += k
if W2L:
    a("s_barrier")
w2_late(GRP[0])
for n in (10, 11):
    vb.wait(("w", n - 4), *([("w", 9)] if n == 11 else []))
    a("s_barrier")
    ring_issue(vb, R_W1, 2752, W1_SEG, n)
    w2_late(GRP[n - 9])
vb.wait(("w", 9))
a("s_barrier")
flag_store(4, F_G0)
w2_late(GRP[3])
a("s_waitcnt vmcnt(0)")
vb.clear()
only(4, spoll_issue, F_G0)
a("s_barrier")
if W2L:
    for t in range(27, 43):
        tr_read(F_W(t), 8, w2_home(t)[1])
    a("s_waitcnt lgkmcnt(0)")
only(4, spoll_check, F_G0)
stamp("g0 ready")
a("s_barrier")
flag_store(4, F_G1)
a.c("======== phase 5: out = h + g W2 + b2, computed by waves 4-7")
if opt("pb", 0):
    a("s_setprio 1")
for q in range(2):
    act_issue(vb, q, G_SLOTS[q], 11, True)
OE = 140
out_pre = unpack8(OE, V_HRES) + unpack8(OE + 8, V_B2) + [f"v_add_f32 v{OE+i}, v{OE+i}, v{OE+8+i}" for i in range(8)]
out_pre += [f"v_mov_b32 v10, {f32(1.0/GS)}", "v_mov_b32 v11, v10"]
inj = {}
spread(inj, [(x, 1) for x in out_pre], 12, 40)
FQ = opt('fq', 2)
if FQ == 2:
    vb.wait(('a', 0))
    act_issue(vb, 2, G_SLOTS[2], 11, True)
tile_compute(vb, 43, G_SLOTS, F_W, T_ACC, T_AF, inj, (1,) if FQ else ())
stamp("ffn2 done B")
a("s_branch L_p5_done")

a.label("L_p4_a")
F_ACC = [192, 208, 168]
F_WF = [144, 148, 152, 156, 160, 164]
GT = 224
CB = [224, 228, 224]
CS = 16
for t in range(R0, R1):
    w_read(W0(t), t)
a.c("column sums of W1 for this wave's three tiles")
a(f"s_lshr_b32 s{T0}, s{S_F0}, 1")
a(f"s_min_u32 s{T0}, s{T0}, 18")
a(f"s_lshl_b32 s{T0}, s{T0}, 5")
a(f"s_add_u32 s{S_FPOLL}, s{T0}, {WS_FC}")
a("s_mov_b32 exec_hi, 0")
a(f"buffer_load_dword v247, v249, {sr(R_WS,4)}, s{S_FPOLL} offen sc1")
a("s_mov_b32 exec_hi, -1")
x_addr(True)
swap23(10, 31, 11)
a(f"v_lshrrev_b32 v11, 5, v{V_LANE}")
a(f"v_mul_u32_u24 v11, {4*1408*4}, v11")
a(f"v_lshl_add_u32 v10, v10, 2, v11")
a(f"s_lshr_b32 s{T0}, s{S_W}, 1")
a(f"s_add_u32 s{T0}, s{T0}, s{S_F0}")
a(f"s_lshl_b32 s{T0}, s{T0}, 7")
a(f"s_add_u32 s{T0}, s{T0}, {WS_CS}")
a("s_waitcnt vmcnt(1) lgkmcnt(0)")
h_reread()
a("s_barrier")
stamp("h drained")
a(f"s_waitcnt vmcnt({2*HRR})")
flag_poll(None, 32)
HS = 208
CP = 192
for k in range(4):
    for seg in range(3):
        a(f"buffer_load_dword v{CP+4*seg+k}, v10, {sr(R_WS,4)}, s{T0} offen offset:{seg*256} sc1")
    a(f"s_add_u32 s{T0}, s{T0}, {1408*4}")
grp_flags(S_TB2, S_ZG, S_J)
a(f"s_and_b32 s{T0}, s{S_W}, 1")
a(f"s_lshl_b32 s{T7}, s{T0}, 8")
a(f"s_add_u32 s{T5}, s{T5}, s{T7}")
a(f"s_mul_i32 s{T0}, s{T0}, {11*16384}")
a(f"s_add_u32 s{T0}, s{T0}, s{S_ZG}")
a(f"s_add_u32 s{T0}, s{T0}, {WS_GF}")
a(f"s_lshr_b32 s{T1}, s{S_W}, 1")
a(f"s_add_u32 s{S_STAGE}, s{T1}, 4")
a(f"s_lshl_b32 s{T7}, s{S_J}, 2")
a(f"s_sub_u32 s{T2}, s{S_F0}, s{T7}")
a(f"s_add_u32 s{T2}, s{T2}, s{T1}")
a(f"s_and_b32 s{T7}, s{T2}, 0xfc")
a(f"s_add_u32 s{T2}, s{T2}, s{T7}")
a(f"s_lshl_b32 s{T2}, s{T2}, 11")
a(f"s_add_u32 s{T2}, s{T2}, s{T0}")
a(f"s_add_u32 s{S_D2}, s{T2}, {8*16384}")
a(f"s_lshl_b32 s{T2}, s{S_J}, 1")
a(f"s_add_u32 s{T2}, s{T2}, s{T1}")
a(f"s_and_b32 s{T7}, s{T2}, 0xfc")
a(f"s_add_u32 s{T2}, s{T2}, s{T7}")
a(f"s_lshl_b32 s{T2}, s{T2}, 11")
a(f"s_add_u32 s{S_D0}, s{T2}, s{T0}")
a(f"s_add_u32 s{S_D1}, s{S_D0}, {4*16384}")
a(f"v_and_b32 v10, 31, v{V_LANE}")
a(f"v_lshlrev_b32 v10, 3, v10")
a(f"v_lshrrev_b32 v11, 5, v{V_LANE}")
a(f"v_lshl_add_u32 v235, v11, 11, v10")
a(f"v_lshlrev_b32 v3, 7, v{V_LANE}")
RS = 12
a(f"v_mov_b32 v10, {f32(GK)}")
a(f"v_mov_b32 v11, v10")
a(f"v_mov_b32 v14, 1.0")
a(f"v_mov_b32 v15, 1.0")
stamp("hwin A")
a("s_barrier")
stamp("h ready")
for t in range(R1, 32):
    w_read(W0(t), t)
vc = new_vm()
for k in range(4):
    a(f"buffer_load_dwordx2 {vr(HS+2*k,2)}, v235, {sr(R_WS,4)}, s{T5} offen offset:{k*512} sc1")
vc.issue(("x", 0), 4)
a("s_waitcnt vmcnt(4)")
for seg in range(3):
    c = CP + 4*seg
    a(f"v_add_f32 v{c}, v{c}, v{c+1}")
    a(f"v_add_f32 v{c+2}, v{c+2}, v{c+3}")
for seg in range(3):
    c = CP + 4*seg
    a(f"v_add_f32 v{c}, v{c}, v{c+2}")
for seg in range(3):
    c = CP + 4*seg
    a(f"v_mov_b32 v{c+1}, v{c}")
a("s_nop 1")
for seg in range(3):
    c = CP + 4*seg
    a(f"v_permlane32_swap_b32 v{c}, v{c+1}")
a("s_nop 1")
AB = [224, 228, 216]
for seg in range(3):
    c, d = CP + 4*seg, AB[seg]
    a(f"v_add_f32 v{c}, v{c}, v{c+1}")
    a(f"v_and_b32 v{c+1}, 0xffff0000, v{c}")
    a(f"v_sub_f32 v{c}, v{c}, v{c+1}")
    a(f"v_cvt_pk_bf16_f32 v{d}, v{c+1}, v{c+1}")
    a(f"v_cvt_pk_bf16_f32 v{d+1}, v{c}, v{c}")
    a(f"v_lshl_or_b32 v{d+2}, v{V_B1+seg}, 16, v{V_B1+seg}")
    a(f"v_mov_b32 v{d+3}, 0")
BO = 232
a(f"v_mov_b32 v{BO+3}, 0")
def gt(i): return 224 + i if i < 8 else 176 + i
def gelu_block(seg):
    u = F_ACC[seg]
    a.raw(".p2align 3")
    def two(op, f, D=gt):
        for i in range(0, 16, 2):
            a(f"v_pk_{op}_f32 {vr(D(i),2)}, " + f(vr(u+i, 2), vr(gt(i), 2)))
    two("mul", lambda U, T: f"{U}, {vr(RS,2)}", lambda i: u + i)
    two("fma", lambda U, T: f"{U}, {U}, v[10:11]")
    two("mul", lambda U, T: f"{T}, {U}")
    for i in range(16):
        a(f"v_exp_f32 v{gt(i)}, v{gt(i)}")
    two("add", lambda U, T: f"{T}, v[14:15]")
    for h in range(2):
        for i in range(8*h, 8*h + 8):
            a(f"v_rcp_f32 v{gt(i)}, v{gt(i)}")
        for i in range(8*h, 8*h + 8, 2):
            a(f"v_pk_mul_f32 {vr(gt(i),2)}, {vr(gt(i),2)}, {vr(u+i,2)}")
        for i in range(4):
            a(f"v_cvt_pk_bf16_f32 v{u+8*h+i}, v{gt(8*h+2*i)}, v{gt(8*h+2*i+1)}")
        a(f"buffer_store_dwordx4 {vr(u+8*h,4)}, v{V_L16}, {sr(R_WS,4)}, s{S_D0+seg} offen offset:{h*1024} sc1")
        vc.issue("st")
inj = {}
prep = [f"v_add_f32 v{HS}, v{HS}, v{HS+2}", f"v_add_f32 v{HS+1}, v{HS+1}, v{HS+3}",
        f"v_add_f32 v{HS+4}, v{HS+4}, v{HS+6}", f"v_add_f32 v{HS+5}, v{HS+5}, v{HS+7}",
        f"v_add_f32 v{HS}, v{HS}, v{HS+4}", f"v_add_f32 v{HS+1}, v{HS+1}, v{HS+5}",
        f"v_mov_b32 v{HS+2}, v{HS}", f"v_mov_b32 v{HS+3}, v{HS+1}",
        f"s_nop 1\nv_permlane32_swap_b32 v{HS}, v{HS+2}", f"v_permlane32_swap_b32 v{HS+1}, v{HS+3}\ns_nop 1",
        f"v_add_f32 v{HS}, v{HS}, v{HS+2}", f"v_add_f32 v{HS+1}, v{HS+1}, v{HS+3}",
        f"v_mul_f32 v{HS}, {f32(-1.0/512)}, v{HS}", f"v_mul_f32 v{HS+1}, {f32(1.0/512)}, v{HS+1}",
        f"v_fma_f32 v{HS+1}, -v{HS}, v{HS}, v{HS+1}", f"v_max_f32 v{HS+1}, 0, v{HS+1}",
        f"v_add_f32 v{HS+1}, {f32(1e-5)}, v{HS+1}", f"v_rsq_f32 v{HS+2}, v{HS+1}",
        f"v_and_b32 v{HS+3}, 0xffff0000, v{HS}", f"v_sub_f32 v{HS}, v{HS}, v{HS+3}",
        f"v_mul_f32 v{HS+1}, v{HS+1}, v{HS+2}", f"v_mul_f32 v{RS}, {f32(GS)}, v{HS+2}",
        f"v_cvt_pk_bf16_f32 v{BO}, v{HS+3}, v{HS}", f"v_and_b32 v{HS+3}, 0xffff0000, v{HS+1}",
        f"v_sub_f32 v{HS+1}, v{HS+1}, v{HS+3}", f"v_mov_b32 v{RS+1}, v{RS}",
        f"v_cvt_pk_bf16_f32 v{BO+2}, v{HS+3}, v{HS+1}",
        f"s_mov_b32 exec_lo, 0\nv_mov_b32 v{BO}, 0\nv_mov_b32 v{BO+2}, 0\ns_mov_b32 exec_lo, -1", f"v_mov_b32 v{BO+1}, v{BO}"]
spread(inj, [(x, 1) for x in prep], 0, 20)
spread(inj, [(x, 1) for x in capture(act_setup, 11, WS_GF, True)[:-5]], 70, 80)
def corr(seg):
    d = vr(F_ACC[seg], 16)
    a(f"v_mfma_f32_32x32x16_bf16 {d}, {vr(AB[seg],4)}, {vr(BO,4)}, {'0' if seg else d}")
def blk0():
    if W2L:
        a("s_barrier")
    a.c("the other accumulators start from -mean x colsum + std x bias")
    corr(2)
    corr(1)
    a("s_nop 7")
    gelu_block(0)
def blk1():
    a("s_nop 7")
    a("s_nop 1")
    gelu_block(1)
    if SKIP5:
        a(f"s_cmp_ge_u32 s{S_STAGE}, s{S_NT}")
        a("s_cbranch_scc1 L_p4_idle")
def g_reread(seg):
    if seg < 2 and not opt("grr", 1):
        return
    a("s_mov_b64 exec, 0xffff")
    a(f"buffer_load_dword v251, v3, {sr(R_WS,4)}, s{S_D0+seg} offen sc1")
    a("s_mov_b64 exec, -1")
def pub(seg):
    def f():
        vc.wait("st")
        g_reread(seg)
        a("s_barrier")
    return f
gemm_compute(vc, F_ACC, F_WF, set(), {0}, inj, {24: lambda: corr(0), 32: blk0, UP0: pub(0), 64: blk1, UP1: pub(1)},
             (0, 1, 2, 3, 6, 7, 10), 'p4', 1024, W0)
stamp("ffn1 done")
if SKIP5:
    a("s_nop 7")
    a("s_nop 3")
    gelu_block(2)
    a("s_branch L_p4_skip")
    a.label("L_p4_idle")
    for x in capture(act_setup, 11, WS_GF, True)[:-5]:
        a(x)
    a(f"s_mov_b32 s{S_D2}, s{S_D1}")
    a("s_barrier")
    a("s_waitcnt vmcnt(0) lgkmcnt(0)")
    g_reread(1)
    a("s_barrier")
else:
    a(f"s_cmp_ge_u32 s{S_STAGE}, s{S_NT}")
    a(f"s_cselect_b32 s{S_D2}, s{S_D1}, s{S_D2}")
    a("s_cbranch_scc1 L_p4_skip")
    a("s_nop 7")
    a("s_nop 0")
    gelu_block(2)
a.label("L_p4_skip")
stamp("g stored")
vl = new_vm()
def g_issue(*L):
    for n in L:
        if n == 10:
            a.c("the last chunk has three tiles: wave 3 repeats wave 2's")
            a(f"s_cmp_eq_u32 s{S_W}, 3")
            a(f"s_cselect_b32 s{T7}, 2048, 0")
            a(f"s_sub_u32 s{T4}, s{T4}, s{T7}")
        act_issue(vl, n, G_SLOTS[n], 11, True)
if not FQ:
    g_issue(2, 3)
if FQ == 2:
    vl.issue(("a", 2))
only(0, spoll_issue, F_G1)
Q1, QI = opt("q1", 2 if FQ else 1), opt("qi", 5)
def p5_after(q):
    if q == 0 and FQ:
        g_issue(*range(1 + FQ, 4))
    if q in (0, 2, 4, 7, 10) and opt("fst", 0):
        stamp(f"p5 q{q}")
    if q == Q1 - 1:
        only(0, spoll_check, F_G1)
    if q == 2:
        a.c("the wait for chunk 2 covered the last stores of every wave")
        flag_store(0, F_G2)
        if RR2 == 1:
            g_reread(2)
            vl.issue("rr")
    if q == Q1:
        g_issue(*range(4, Q1 + 4))
    elif Q1 < q <= 4:
        g_issue(q + 3)
    if q == 2 and RR2 == 2:
        g_reread(2)
        vl.issue("rr")
    if q == QI:
        only(0, spoll_issue, F_G2)
    if q == QP - 1:
        only(0, spoll_check, F_G2)
    if q == QP:
        g_issue(8, 9, 10)
tile_loader(vl, 43, p5_after, (1,) if FQ else ())
for x in out_pre:
    a(x)

a.label("L_p5_done")
tile_gather(16)
for h in range(2):
    a(f"s_waitcnt lgkmcnt({2-2*h})")
    for i in range(2*h, 2*h+2):
        a(f"v_pk_add_f32 {vr(16+2*i,2)}, {vr(16+2*i,2)}, {vr(24+2*i,2)}")
        a(f"v_pk_fma_f32 {vr(OE+2*i,2)}, {vr(16+2*i,2)}, v[10:11], {vr(OE+2*i,2)}")
    for i in range(2*h, 2*h+2):
        a(f"v_cvt_pk_bf16_f32 v{40+i}, v{OE+2*i}, v{OE+2*i+1}")
a(f"buffer_store_dwordx4 v[40:43], v{V_ROWOFF}, {sr(R_OUT,4)}, s{S_TILE} offen {opt('of', 'sc0_sc1').replace('_', ' ')}")
if STAMPS:
    a("s_waitcnt vmcnt(0)")
stamp("end")
stamp_flush()
a.label("L_end")
a("s_endpgm")
a.label("L_code_end")

a.c("======== attention with the row's true maximum: q-block A over all 2048 keys")
a.label("L_attn_fb")
FM = SB
a("s_waitcnt vmcnt(0)")
a(f"v_mov_b32 v{FM}, 0xff800000")
a(f"s_mov_b32 s{S_XOFF}, 0")
a(f"s_mov_b32 s{S_LOOP}, 64")
a.label("L_fb1")
a(f"buffer_load_dwordx4 {vr(Kf(0),4)}, v{A_AK}, {sr(R_WS,4)}, s{S_XOFF} offen sc1")
a("s_waitcnt vmcnt(0)")
a(f"v_mfma_f32_32x32x16_bf16 {vr(SA,16)}, {vr(Kf(0),4)}, {vr(QA,4)}, 0")
a(f"s_add_u32 s{S_XOFF}, s{S_XOFF}, 2048")
a("s_nop 7")
a("s_nop 3")
for i in range(8):
    a(f"v_max3_f32 v{FM}, v{FM}, v{SA+2*i}, v{SA+2*i+1}")
a(f"s_sub_u32 s{S_LOOP}, s{S_LOOP}, 1")
a(f"s_cmp_lg_u32 s{S_LOOP}, 0")
a("s_cbranch_scc1 L_fb1")
a(f"v_mov_b32 v{FM+1}, v{FM}")
a("s_nop 1")
a(f"v_permlane32_swap_b32 v{FM}, v{FM+1}")
a("s_nop 1")
a(f"v_max_f32 v{FM}, v{FM}, v{FM+1}")
for i in range(16):
    a(f"v_mov_b32 v{OA+i}, 0")
a(f"s_mov_b32 s{S_XOFF}, 0")
a(f"s_mov_b32 s{S_LOOP}, 64")
a.label("L_fb2")
kv_load(Cnt(a, "vmcnt", 63), 0, 4)
a("s_waitcnt vmcnt(0)")
a(f"v_mfma_f32_32x32x16_bf16 {vr(SA,16)}, {vr(Kf(0),4)}, {vr(QA,4)}, 0")
a(f"s_add_u32 s{S_XOFF}, s{S_XOFF}, 2048")
a("s_nop 7")
a("s_nop 3")
for i in range(16):
    a(f"v_sub_f32 v{SA+i}, v{SA+i}, v{FM}")
for i in range(16):
    a(f"v_exp_f32 v{SA+i}, v{SA+i}")
a("s_nop 1")
smf(OA, Vf(0, 0), SA)
smf(OA, Vf(0, 1), SA+8)
a(f"s_sub_u32 s{S_LOOP}, s{S_LOOP}, 1")
a(f"s_cmp_lg_u32 s{S_LOOP}, 0")
a("s_nop 7")
a("s_cbranch_scc1 L_fb2")
a("s_nop 7")
a("s_nop 3")
a("s_branch L_attn_fin")

a.raw('.section .rodata,"a"')
a.raw(".p2align 6")
a.raw(f".amdhsa_kernel {NAME}_kernel")
a.raw("  .amdhsa_next_free_vgpr 256")
a.raw("  .amdhsa_next_free_sgpr 102")
a.raw("  .amdhsa_accum_offset 256")
a.raw("  .amdhsa_group_segment_fixed_size 0")
a.raw("  .amdhsa_kernarg_size 88")
a.raw("  .amdhsa_user_sgpr_count 2")
a.raw("  .amdhsa_user_sgpr_kernarg_segment_ptr 1")
a.raw("  .amdhsa_system_sgpr_workgroup_id_x 1")
a.raw(".end_amdhsa_kernel")

out = [x for x in args if not x.startswith("--")]
open(out[0] if out else "cdna_kernels/" + NAME + ".s", "w").write(a.text())
```

```python
import sys, math
from lib import *

NAME = "sequential_preLN__softmax_full_mha__dense_activation_gelu__prompt"
args = sys.argv[1:]
def opt(n, d):
    for x in args:
        if x.startswith("--" + n + "="):
            return type(d)(x.split("=")[1])
    return d
STAMPS = "--stamps" in args
FORCE_FB = "--force-fallback" in args
LH = 2
NA = opt("na", 52)
IT1 = opt("it1", 4)
IT2 = opt("it2", 1)
TB1 = opt("tb1", 6)
TB2 = opt("tb2", 1)
T0B = opt("t0b", 1)
TEND = opt("tend", 1)
NBLK = opt("nblk", 2)
NPA = opt("npa", 2)
UKV = opt("ukv", 93)
NO = opt("no", 3)
NH = opt("nh", 2)
UP0 = opt("up0", 61)
UP1 = opt("up1", 92)
QP = opt("qp", 7)
KVL = opt("kvl", 1)
KVP = opt("kvp", 0)
SLP = opt("slp", 0)
HPK = opt("hpk", 0)
OPK = opt("opk", 0)
DO = opt("do", 0)
DH = opt("dh", 0)
NW2 = opt("nw2", 2)
BK = opt("bk", 0)
LATE = opt("late", 0)
SPF = opt("spf", 0)
SPF2 = opt("spf2", -1)
L2PF = opt("l2pf", 2)
NPB = opt("npb", 0)
XSW = opt("xsw", 0)
KVJ = opt("kvj", 0)
QPF = opt("qpf", -1)
NB0 = opt("nb0", 3)
EARLY = opt("early", 0)
MW = opt("mw", -1)
WM = opt("wm", 0)
BAT = opt("bat", 0)
LPOS = opt("lpos", 12)
KPOS = opt("kpos", -1)
PRA = 2
FLIP = opt("flip", 6)
FEND = opt("fend", 1)
STM = opt("stm", 0)
ORD = opt("ord", 1)
W2L = opt("w2l", 0)
WS1 = [int(c) for c in opt("ws1", "40202")]
WC = [sum(WS1[:k]) for k in range(6)]
LF = opt("lf", 1)
LOC = opt("loc", 1)
WPF = opt("wpf", 0)
RR2 = opt("rr2", 2)
OSP = opt("osp", 1)
NEAR = opt("near", 1)
BP0, BP1 = opt("bp0", 13), opt("bp1", 13)
GST = opt("gst", 0)
TSPLIT = opt("tsplit", 1)
PRE = opt("pre", 1)
SKIP5 = opt("skip5", 1)
SEL = opt("sel", "").replace("_", " ")
PROBE = opt("probe", "").replace("_", " ")

S_WG, S_W = 2, 3
S_PC = 4
R_X, R_WQKV, R_WO, R_W1, R_W2, R_WS, R_OUT, R_B1, R_B2 = 8, 12, 16, 20, 24, 28, 32, 36, 40
KA = 44
S_HG, S_TB, S_TB2, S_J, S_N = 66, 67, 68, 69, 70
S_F0 = 71
T0, T1, T2, T3, T4, T5, T6, T7 = 72, 73, 74, 75, 76, 77, 78, 79
S_LOOP, S_XOFF, S_HEAD = 80, 81, 82
S_TILE = 83
S_MASKV = 84
S_D0, S_D1, S_D2, S_D3 = 86, 87, 88, 89
S_TS = 90
S_NT = 92
S_SPIN = 93
S_SAVE = 94
S_D4, S_D5 = 96, 97
S_STAGE = 101
S_SHR = 100
S_FOWN, S_FPOLL = 98, 99
S_ZG, S_ZO = 60, 61
S_OWN, S_OWN2 = 62, 63

WS_NONCE = 0
WS_PL = 0x1000
WS_FKV = 0x4000
WS_FC = 0x8000
WS_STAMP = 0x10000
WS_CS = 0x60000
WS_KV = 0x100000
WS_OF = 0x600000
WS_H = WS_OF + 0x20000
WS_GF = WS_OF + 0x40000
WS_GRP = WS_OF + 0xA0000
WS_SIZE = WS_OF + 0x2000000
F_PROBE = 768
F_O, F_H, F_G0, F_G1, F_G2 = 0, 128, 256, 384, 512

L_XN = 0
L_RING = 65536
L_Q = 32768
L_OX = 0
LDS_BYTES = 163840

V_LANE, V_ROWOFF, V_XNW = 1, 2, 3
V_DA, V_DB = 12, 13
V_B1 = 232
V_B2 = 236
V_REDW, V_REDR, V_L16 = 240, 244, 246
V_HRES = 252

a = Asm()
stamp_idx = [0]
def stamp(name):
    i = stamp_idx[0]
    stamp_idx[0] += 1
    if PROBE and name == "start":
        a("s_memrealtime s[6:7]")
    if PROBE and name == "setup":
        a("s_mov_b32 s1, 0")
    if PROBE == name:
        a(f"s_memrealtime {sr(S_TS,2)}")
        a("s_waitcnt lgkmcnt(0)")
        a(f"s_sub_u32 s1, s{S_TS}, s6")
    if PROBE and name == "end":
        a("s_mul_i32 s1, s1, 10")
        a("s_add_u32 s1, s1, 10000")
        a(f"s_cmp_lg_u32 s{S_WG}, 100")
        a("s_cbranch_scc1 L_nopin")
        a.label("L_pin")
        a(f"s_memrealtime {sr(S_TS,2)}")
        a("s_waitcnt lgkmcnt(0)")
        a(f"s_sub_u32 s{S_TS}, s{S_TS}, s6")
        a(f"s_cmp_lt_u32 s{S_TS}, s1")
        a("s_cbranch_scc1 L_pin")
        a.label("L_nopin")
    if not STAMPS:
        return
    if SEL and name not in ("start", "end") and not any(k in name for k in SEL.split(",")):
        return
    a.c(f"stamp {i} {name}")
    a(f"s_memtime {sr(S_TS,2)}")
    a(f"s_waitcnt lgkmcnt(0)")
    a(f"v_writelane_b32 v250, s{S_TS}, {i}")
    a(f"s_memrealtime {sr(S_TS,2)}")
    a(f"s_waitcnt lgkmcnt(0)")
    a(f"v_writelane_b32 v250, s{S_TS}, {i+32}")

def stamp_flush():
    if not STAMPS:
        return
    l = a.uniq("L_st")
    a(f"s_and_b32 s{T7}, s{S_W}, 3")
    a(f"s_cmp_lg_u32 s{T7}, {opt('sw', 0)}")
    a(f"s_cbranch_scc1 {l}")
    a(f"s_lshl_b32 s{T7}, s{S_WG}, 9")
    a(f"s_and_b32 s{T6}, s{S_W}, 4")
    a(f"s_lshl_b32 s{T6}, s{T6}, 6")
    a(f"s_add_u32 s{T7}, s{T7}, s{T6}")
    a(f"s_add_u32 s{T7}, s{T7}, {WS_STAMP}")
    a(f"v_lshlrev_b32 v251, 2, v{V_LANE}")
    a(f"buffer_store_dword v250, v251, {sr(R_WS,4)}, s{T7} offen")
    a.label(l)

def srd(r, ptr, size):
    a(f"s_mov_b32 s{r}, s{ptr}")
    a(f"s_mov_b32 s{r+1}, s{ptr+1}")
    a(f"s_mov_b32 s{r+2}, {size}")
    a(f"s_mov_b32 s{r+3}, 0x00020000")

def flag_addr(base, line_own, word_own, line_poll, sh=8):
    a(f"s_lshl_b32 s{S_FOWN}, s{line_own}, {sh}")
    a(f"s_lshl_b32 s{T7}, s{word_own}, 2")
    a(f"s_add_u32 s{S_FOWN}, s{S_FOWN}, s{T7}")
    a(f"s_add_u32 s{S_FOWN}, s{S_FOWN}, {base}")
    a(f"s_lshl_b32 s{S_FPOLL}, s{line_poll}, {sh}")
    a(f"s_add_u32 s{S_FPOLL}, s{S_FPOLL}, {base}")

def grp_flags(tb_own, z_own, word):
    a(f"s_add_u32 s{S_FPOLL}, s{S_ZG}, {WS_GRP}")
    a(f"s_lshl_b32 s{T7}, s{word}, 2")
    a(f"s_add_u32 s{S_FOWN}, s{z_own}, s{T7}")
    a(f"s_add_u32 s{S_FOWN}, s{S_FOWN}, {WS_GRP}")

def half_issue():
    a(f"s_lshl_b32 s{S_ZG}, s{S_TB2}, 6")
    a(f"s_add_u32 s{S_ZG}, s{S_ZG}, {WS_PL}")
    a(f"s_lshl_b32 s{S_ZO}, s{S_TB}, 6")
    a(f"s_add_u32 s{S_ZO}, s{S_ZO}, {WS_PL}")
    a(f"s_mov_b32 s{S_SPIN}, 0")
    a.c("cached first try: an old copy only fails the tag test")
    a(f"s_load_dwordx2 {sr(KA+12,2)}, {sr(KA+20,2)}, s{S_ZG}")
    a(f"s_load_dwordx2 {sr(KA+14,2)}, {sr(KA+20,2)}, s{S_ZO}")

def half_check():
    l, l_ok = a.uniq("L_hp"), a.uniq("L_hok")
    a.label(l)
    a("s_waitcnt lgkmcnt(0)")
    for k in range(4):
        a(f"s_cmp_eq_u32 s{KA+12+k}, s{S_N}")
        a(f"s_cselect_b32 s{KA+12+k}, 8192, 0")
    a(f"s_or_b32 s{KA+12}, s{KA+12}, s{KA+13}")
    a(f"s_or_b32 s{KA+14}, s{KA+14}, s{KA+15}")
    a(f"s_and_b32 s{KA+12}, s{KA+12}, s{KA+14}")
    a(f"s_cbranch_scc1 {l_ok}")
    a(f"s_add_u32 s{S_SPIN}, s{S_SPIN}, 1")
    a(f"s_cmp_gt_u32 s{S_SPIN}, 200000")
    a(f"s_cbranch_scc1 {l_ok}")
    a(f"s_load_dwordx2 {sr(KA+12,2)}, {sr(KA+20,2)}, s{S_ZG} glc")
    a(f"s_load_dwordx2 {sr(KA+14,2)}, {sr(KA+20,2)}, s{S_ZO} glc")
    a(f"s_branch {l}")
    a.label(l_ok)
    a(f"s_lshl_b32 s{S_ZG}, s{S_TB2}, 20")
    a(f"s_add_u32 s{S_ZG}, s{S_ZG}, s{KA+13}")
    a(f"s_lshl_b32 s{S_ZO}, s{S_TB}, 20")
    a(f"s_add_u32 s{S_ZO}, s{S_ZO}, s{KA+15}")
    a(f"s_add_u32 s{S_HEAD}, s{S_HEAD}, s{S_ZO}")

def flag_store(poller, off=0, peek=False):
    l = a.uniq("L_nf")
    a(f"s_cmp_lg_u32 s{S_W}, {poller}")
    a(f"s_cbranch_scc1 {l}")
    a(f"s_mov_b64 exec, 1")
    a(f"buffer_store_dword v248, v249, {sr(R_WS,4)}, s{S_FOWN} offen offset:{off} sc1")
    if peek:
        a(f"s_mov_b64 exec, 0xff")
        a(f"buffer_load_dword v247, v249, {sr(R_WS,4)}, s{S_FPOLL} offen offset:{off} sc1")
    a(f"s_mov_b64 exec, -1")
    a.label(l)

def flag_poll(poller, nflags, off=0, va=249):
    l_skip, l_poll, l_done = a.uniq("L_skip"), a.uniq("L_poll"), a.uniq("L_done")
    if poller is None:
        a(f"v_cmp_eq_u32 vcc, v247, v248")
        a("s_nop 0")
        a(f"s_and_b32 s{T7}, vcc_lo, {(1 << nflags) - 1:#x}")
        a(f"s_cmp_eq_u32 s{T7}, {(1 << nflags) - 1:#x}")
    else:
        a(f"s_cmp_lg_u32 s{S_W}, {poller}")
    a(f"s_cbranch_scc1 {l_skip}")
    a(f"s_mov_b32 exec_hi, 0")
    a(f"s_mov_b32 exec_lo, {(1 << nflags) - 1:#x}")
    a(f"s_mov_b32 s{S_SPIN}, 0")
    a.label(l_poll)
    a(f"buffer_load_dword v247, v{va}, {sr(R_WS,4)}, s{S_FPOLL} offen offset:{off} sc1")
    a(f"s_add_u32 s{S_SPIN}, s{S_SPIN}, 1")
    a("s_waitcnt vmcnt(0)")
    a(f"v_cmp_eq_u32 vcc, v247, v248")
    a(f"s_cmp_gt_u32 s{S_SPIN}, 200000")
    a(f"s_cbranch_scc1 {l_done}")
    a(f"s_cmp_eq_u64 vcc, exec")
    if BK:
        a(f"s_cbranch_scc1 {l_done}")
        a(f"s_sleep {BK}")
        a(f"s_branch {l_poll}")
    else:
        a(f"s_cbranch_scc0 {l_poll}")
    a.label(l_done)
    a("s_mov_b64 exec, -1")
    a.label(l_skip)

def peek_check(n, ok):
    a(f"s_waitcnt vmcnt({n})")
    a(f"v_cmp_eq_u32 vcc, v247, v248")
    a("s_nop 0")
    a(f"s_and_b32 s{T7}, vcc_lo, 0xff")
    a(f"s_cmp_eq_u32 s{T7}, 0xff")
    a(f"s_cbranch_scc1 {ok}")

def spoll_issue(off):
    a(f"s_add_u32 s{KA+2}, s{S_FPOLL}, {off}")
    a(f"s_load_dwordx8 {sr(KA+4,8)}, {sr(KA+20,2)}, s{KA+2} glc")
    a(f"s_mov_b32 s{KA}, s{S_N}")
    a(f"s_mov_b32 s{KA+1}, s{S_N}")
    a(f"s_mov_b32 s{KA+3}, 0")

def spoll_check(off):
    l, l_ok = a.uniq("L_sp"), a.uniq("L_spok")
    a.label(l)
    a("s_waitcnt lgkmcnt(0)")
    for k in range(4):
        a(f"s_xor_b64 {sr(KA+4+2*k,2)}, {sr(KA+4+2*k,2)}, {sr(KA,2)}")
    for k in range(1, 4):
        a(f"s_or_b64 {sr(KA+4,2)}, {sr(KA+4,2)}, {sr(KA+4+2*k,2)}")
    a(f"s_cbranch_scc0 {l_ok}")
    if BK:
        a(f"s_sleep {BK}")
    a(f"s_load_dwordx8 {sr(KA+4,8)}, {sr(KA+20,2)}, s{KA+2} glc")
    a(f"s_add_u32 s{KA+3}, s{KA+3}, 1")
    a(f"s_cmp_lt_u32 s{KA+3}, 16")
    a(f"s_cbranch_scc1 {l}")
    a("s_waitcnt lgkmcnt(0)")
    a(f"v_not_b32 v247, v248")
    flag_poll(None, 8, off)
    a.label(l_ok)

LN_X, LN_D, LN_T = 16, 48, 56

def ln_loads(vm, rsrc, soff, flags=""):
    for i in range(8):
        so, imm = (soff[i >> 1], 128*(i & 1)) if isinstance(soff, list) else (soff, 128*i)
        a(f"buffer_load_dwordx4 {vr(LN_X+4*i,4)}, v{V_ROWOFF}, {sr(rsrc,4)}, s{so} offen offset:{imm} {flags}")
        vm.issue(("x", i))

def ln_consts():
    t = LN_T
    a(f"v_mov_b32 v{t+4}, 0x3f803f80")
    a(f"v_mov_b32 v{t+5}, 0x00003f80")
    a(f"v_mov_b32 v{t+6}, 0x3f800000")
    a(f"v_mov_b32 v{t}, 0")
    a(f"v_mov_b32 v{t+1}, 0")

def ln_stats(vm, scale):
    t = LN_T
    for i in range(8):
        vm.wait(("x", i))
        if i == SPF2 and SPF < 3:
            w_touch(QKV_SEG[SPF:])
        if i in (7,) and scale >= 1.0:
            stamp(f"x{i} in {scale}")
        a.raw(".p2align 3")
        for j in range(4):
            a(f"v_dot2_f32_bf16 v{t}, v{LN_X+4*i+j}, v{t+4}, v{t}")
            a(f"v_dot2_f32_bf16 v{t+1}, v{LN_X+4*i+j}, v{LN_X+4*i+j}, v{t+1}")

def sum8_pair(t):
    a("s_nop 1")
    for ctl in ("quad_perm:[1,0,3,2]", "quad_perm:[2,3,0,1]", "row_half_mirror"):
        a("s_nop 0")
        a(f"v_add_f32_dpp v{t}, v{t}, v{t} {ctl} row_mask:0xf bank_mask:0xf")
        a(f"v_add_f32_dpp v{t+1}, v{t+1}, v{t+1} {ctl} row_mask:0xf bank_mask:0xf")

def ln_norm(scale, vm=None):
    t = LN_T
    sum8_pair(t)
    a(f"v_mul_f32 v{t}, {f32(-1.0/512)}, v{t}")
    a(f"v_mul_f32 v{t+2}, v{t}, v{t}")
    a(f"v_mul_f32 v{t+1}, {f32(1.0/512)}, v{t+1}")
    a(f"v_sub_f32 v{t+1}, v{t+1}, v{t+2}")
    a(f"v_max_f32 v{t+1}, 0, v{t+1}")
    a(f"v_add_f32 v{t+1}, {f32(1e-5)}, v{t+1}")
    a(f"v_rsq_f32 v{t+2}, v{t+1}")
    a("s_nop 0")
    if scale != 1.0:
        a(f"v_mul_f32 v{t+2}, {f32(scale)}, v{t+2}")
    a(f"v_mov_b32 v{t+3}, v{t+2}")
    for i in range(8):
        if vm:
            vm.wait(("x", i))
        a.raw(".p2align 3")
        for j in range(4):
            a(f"v_dot2_f32_bf16 v{LN_D+2*j}, v{LN_X+4*i+j}, v{t+5}, v{t}")
            a(f"v_dot2_f32_bf16 v{LN_D+2*j+1}, v{LN_X+4*i+j}, v{t+6}, v{t}")
        for j in range(4):
            a(f"v_pk_mul_f32 {vr(LN_D+2*j,2)}, {vr(LN_D+2*j,2)}, {vr(t+2,2)}")
        for j in range(4):
            a(f"v_cvt_pk_bf16_f32 v{LN_X+4*i+j}, v{LN_D+2*j}, v{LN_D+2*j+1}")
        a(f"ds_write_b128 v{V_XNW}, {vr(LN_X+4*i,4)} offset:{L_XN + 4096*i}")

def dma_addr(dst, row_bytes, col_s):
    a(f"v_lshrrev_b32 v10, 3, v{V_LANE}")
    a(f"v_and_b32 v11, 7, v{V_LANE}")
    a(f"v_lshlrev_b32 v{dst}, 1, v10")
    a(f"v_and_b32 v{dst}, 4, v{dst}")
    a(f"v_xor_b32 v11, v11, v{dst}")
    a(f"v_mul_u32_u24 v10, {row_bytes}, v10")
    a(f"v_lshl_add_u32 v10, v11, 4, v10")
    a(f"v_add_u32 v{dst}, s{col_s}, v10")

def dma(vm, tag, rsrc, vaddr, sg, goff, sl, loff, flags=""):
    a(f"s_add_u32 m0, s{sl}, {loff}")
    a(f"s_add_u32 s{T7}, s{sg}, {goff}")
    a(f"buffer_load_dwordx4 v{vaddr}, {sr(rsrc,4)}, s{T7} offen {flags} lds")
    vm.issue(tag)

def tr_lane_addr(dst, hp_s, perm):
    a(f"v_bfe_u32 v10, v{V_LANE}, 2, 2")
    a(f"v_lshrrev_b32 v11, 1, v10")
    a(f"v_xor_b32 v11, s{hp_s}, v11")
    a(f"v_lshlrev_b32 v11, 6, v11")
    a(f"v_lshl_add_u32 v11, v10, 7, v11")
    a(f"v_bfe_u32 v10, v{V_LANE}, 4, 1")
    a(f"v_lshl_add_u32 v11, v10, 5, v11")
    if perm:
        a(f"v_and_b32 v10, 1, v{V_LANE}")
        a(f"v_lshl_add_u32 v11, v10, 4, v11")
        a(f"v_bfe_u32 v10, v{V_LANE}, 1, 1")
        a(f"v_lshl_add_u32 v11, v10, 3, v11")
    else:
        a(f"v_and_b32 v10, 3, v{V_LANE}")
        a(f"v_lshl_add_u32 v11, v10, 3, v11")
    a(f"v_lshrrev_b32 v10, 5, v{V_LANE}")
    a(f"v_lshl_add_u32 v{dst}, v10, 10, v11")

def tr_read(dst, vaddr, off):
    a(f"ds_read_b64_tr_b16 {vr(dst,2)}, v{vaddr} offset:{off}")
    a(f"ds_read_b64_tr_b16 {vr(dst+2,2)}, v{vaddr} offset:{off+512}")

G_X = 16
G_XA, G_WA = 4, 8

FAKE = opt("fake", "")
def mm(kind, acc, A, B, t, zero):
    if kind in FAKE:
        for k in range(2):
            d = vr(acc + 4*((2*t + k) % 4), 4)
            a(f"v_mfma_f32_16x16x32_bf16 {d}, {A}, {B}, {'0' if zero and t < 2 else d}")
    else:
        d = vr(acc, 16)
        a(f"v_mfma_f32_32x32x16_bf16 {d}, {A}, {B}, {'0' if zero and t == 0 else d}")

def capture(f, *x):
    keep, a.L = a.L, []
    f(*x)
    out, a.L = [l.strip() for l in a.L if not l.strip().startswith(";")], keep
    return out

def w_addr():
    a(f"s_bfe_u32 s{T0}, s{S_W}, 0x10001")
    tr_lane_addr(G_WA, T0, True)
    a(f"v_add_u32 v{G_WA}, {L_RING}, v{G_WA}")
    a(f"v_add_u32 v{G_WA+1}, 49152, v{G_WA}")

def x_addr(raw):
    a(f"s_and_b32 s{T0}, s{S_W}, 1")
    a(f"s_lshl_b32 s{T0}, s{T0}, 15")
    if raw:
        a(f"v_bfe_u32 v10, v{V_LANE}, 3, 2")
        a(f"v_lshlrev_b32 v10, 13, v10")
        a(f"v_and_b32 v11, 7, v{V_LANE}")
        a(f"v_lshl_add_u32 v10, v11, 7, v10")
        a(f"v_add_u32 v10, s{T0}, v10")
        a(f"v_bfe_u32 v11, v{V_LANE}, 1, 3")
        a(f"v_lshrrev_b32 v{G_XA}, 5, v{V_LANE}")
        a(f"v_xor_b32 v11, v11, v{G_XA}")
        for b in range(4):
            a(f"v_xor_b32 v{G_XA+b}, {2*b}, v11")
            a(f"v_lshl_add_u32 v{G_XA+b}, v{G_XA+b}, 4, v10")
    else:
        for b in range(4):
            a(f"v_lshrrev_b32 v10, 5, v{V_LANE}")
            a(f"v_add_u32 v10, {2*b}, v10")
            a(f"v_and_b32 v11, 31, v{V_LANE}")
            a(f"v_xor_b32 v11, v11, v10")
            a(f"v_lshlrev_b32 v11, 4, v11")
            a(f"v_lshl_add_u32 v11, v10, 9, v11")
            a(f"v_add_u32 v{G_XA+b}, s{T0}, v11")

def w_read(dst, u):
    off = ((u >> 3) % 6)*16384 + (u & 7)*2048
    if off >= 49152:
        tr_read(dst, G_WA + 1, off - 49152)
    else:
        tr_read(dst, G_WA, off)

def gemm_compute(vm, acc, wf, swapped, zero_c, inject, before, bars, nm, xstride, w0=None, joint=False):
    lg = Cnt(a, "lgkmcnt", 15)
    nxt = [0]
    def unit(u):
        return (u & 1, u >> 1) if (joint and u < 64) else (u >> 5, u & 31)
    def rd(u):
        if u % 8 == 0 and (u >> 3) in bars:
            vm.wait(("w", u >> 3), ("x", u >> 3), extra="" if u else "lgkmcnt(0)")
            if u == 0 and nm == "p1":
                pass
            a("s_barrier")
        seg, t = unit(u)
        if seg == 0:
            a(f"ds_read_b128 {vr(G_X+4*t,4)}, v{G_XA+(t&3)} offset:{L_XN + (t>>2)*xstride}")
            lg.issue(u)
        if u >= 32 or not w0:
            w_read(wf[u % 6], u)
            lg.issue(u, 2)
    def fill(upto):
        while nxt[0] <= min(upto, 95):
            rd(nxt[0]); nxt[0] += 1
    fill(5 if joint else 3)
    for u in range(96):
        seg, t = unit(u)
        if u % 32 == 0 and GST:
            stamp(f"{nm} pass{u >> 5}")
        if u in before:
            before[u]()
        if u < 32 and not joint:
            lg.wait(u)
        elif u % 2 == 0:
            lg.wait(u + 1)
        x, d = vr(G_X+4*t, 4), vr(acc[seg], 16)
        w = vr(w0(t) if (w0 and u < 32) else wf[u % 6], 4)
        c = "0" if (seg in zero_c and t == 0) else d
        if seg in swapped:
            mm(nm[1], acc[seg], x, w, t, seg in zero_c)
        else:
            mm(nm[1], acc[seg], w, x, t, seg in zero_c)
        fill(u + (6 if joint else 4 if u < 28 else 5 if u < 29 else 6))
        for ins in inject.get(u, []):
            if isinstance(ins, tuple):
                a(ins[0]); vm.issue(ins[1])
            else:
                a(ins)

def spread(inject, items, u0, u1):
    tot = sum(c for _, c in items)
    acc = 0
    for ins, c in items:
        u = u0 + min(u1 - u0 - 1, int(acc * (u1 - u0) / tot))
        inject.setdefault(u, []).append(ins)
        acc += c

S_RG = [S_D0, S_D1, S_D2, S_D3]
def ring_setup(row_bytes, rot, rows=32):
    a(f"s_and_b32 s{S_D5}, s{S_W}, 3")
    a(f"s_mul_i32 s{T0}, s{S_D5}, {rows*row_bytes}")
    a(f"s_lshl_b32 s{S_D5}, s{S_D5}, 12")
    for c in range(4):
        if rot:
            a(f"s_add_u32 s{T7}, s{rot}, {c}")
            a(f"s_and_b32 s{T7}, s{T7}, 3")
            a(f"s_mul_i32 s{T7}, s{T7}, {128*row_bytes}")
            a(f"s_add_u32 s{S_RG[c]}, s{T0}, s{T7}")
        else:
            a(f"s_add_u32 s{S_RG[c]}, s{T0}, {c*128*row_bytes}")

def ring_issue(vm, rsrc, row_bytes, seg_off, n):
    if rsrc == R_W1 and "%x" % n in opt("skipw", ""):
        return
    for p in range(4):
        dma(vm, ("w", n), rsrc, V_DB, S_RG[n & 3], seg_off[n >> 2] + p*8*row_bytes, S_D5, L_RING + (n % 6)*16384 + p*1024)

def qkv_issue(vm, n):
    if not KVJ:
        return ring_issue(vm, R_WQKV, 3072, QKV_SEG, n)
    if n == 8:
        a(f"s_mul_i32 s{T7}, s{S_D5}, 12")
        for c in range(4):
            a(f"s_add_u32 s{S_RG[c]}, s{S_RG[c]}, s{T7}")
    if n >= 8:
        return ring_issue(vm, R_WQKV, 3072, QKV_SEG, n)
    for p in range(4):
        dma(vm, ("w", n), R_WQKV, V_DB, S_RG[n >> 1], QKV_SEG[p >> 1] + ((n & 1)*64 + (p & 1)*8)*3072, S_D5, L_RING + (n % 6)*16384 + p*1024)

def swap23(dst, mask, tmp):
    a(f"v_and_b32 v{dst}, {mask & ~12:#x}, v{V_LANE}")
    a(f"v_bfe_u32 v{tmp}, v{V_LANE}, 2, 1")
    a(f"v_lshl_add_u32 v{dst}, v{tmp}, 3, v{dst}")
    a(f"v_bfe_u32 v{tmp}, v{V_LANE}, 3, 1")
    a(f"v_lshl_add_u32 v{dst}, v{tmp}, 2, v{dst}")

def only(w, f, *x):
    l = a.uniq("L_w")
    a(f"s_cmp_lg_u32 s{S_W}, {w}")
    a(f"s_cbranch_scc1 {l}")
    f(*x)
    a.label(l)

def is_a(label):
    a(f"s_cmp_lt_u32 s{S_W}, 4")
    a(f"s_cbranch_scc1 {label}")

def act_setup(nblk, base, pairs):
    a(f"s_and_b32 s{T0}, s{S_W}, 3")
    a(f"s_lshl_b32 s{T3}, s{T0}, 10")
    a(f"s_lshl_b32 s{T0}, s{T0}, {11 if pairs else 10}")
    a(f"s_add_u32 s{T0}, s{T0}, s{S_ZG}")
    a(f"s_add_u32 s{T4}, s{T0}, {base}")
    a(f"s_and_b32 s{T0}, s{S_W}, 2")
    a(f"s_lshl_b32 s{T0}, s{T0}, 12")
    a(f"v_add_u32 v4, s{T0}, v{V_L16}")
    a(f"v_add_u32 v5, 65536, v4")
    a(f"v_add_u32 v6, 131072, v4")

def act_issue(vm, q, slot, nblk, pairs):
    for kh in range(2):
        for tb32 in range(2):
            g = (tb32*nblk + q)*16384 + kh*1024 if pairs else (tb32*nblk + 2*kh + (q >> 1))*16384 + (q & 1)*4096
            dma(vm, ("a", q), R_WS, V_L16, T0 if (ORD and not pairs and q & 1) else T4, g, T3, slot*16384 + kh*8192 + tb32*4096, "sc1")

def tile_compute(vm, nsteps, slots, wreg, acc, af, inject={}, skip=()):
    lg = Cnt(a, "lgkmcnt", 15)
    last = 4*((nsteps - 1)//4)
    seq = [(t, b) for t in range(last) for b in range(2)]
    if TSPLIT:
        seq += [(t, b) for b in range(2) for t in range(last, nsteps)]
    else:
        seq += [(t, b) for t in range(last, nsteps) for b in range(2)]
    n = len(seq)
    def rd(u):
        if u >= n: return
        t, tb32 = seq[u]
        if u % 8 == 0 and (t >> 2) not in skip:
            vm.wait(("a", t >> 2), *[("a", k) for k in skip if k == (t >> 2) + 1])
            a("s_barrier")
        off = slots[t >> 2]*16384 + tb32*4096 + (t & 3)*1024
        a(f"ds_read_b128 {vr(af+4*(u&3),4)}, v{4 + off//65536} offset:{off % 65536}")
        lg.issue(u)
    def wr(tb32):
        for i in range(4):
            a(f"ds_write_b128 v{V_REDW+i}, {vr(acc+16*tb32+4*i,4)} offset:{tb32*8192}")
    for u in range(4):
        rd(u)
    for u in range(n):
        t, tb32 = seq[u]
        lg.wait(u)
        d = vr(acc + 16*tb32, 16)
        mm("t", acc + 16*tb32, vr(wreg(t),4), vr(af+4*(u&3),4), t, True)
        rd(u + 4)
        for x in inject.get(u, []):
            a(x)
    if TSPLIT:
        k = 2*(nsteps - last)
        a(f"s_nop {11 - k}")
        wr(0)
        if k > 4:
            a(f"s_nop {k - 5}")
        wr(1)
    else:
        a("s_nop 7")
        a("s_nop 2")
        wr(0)
        wr(1)
    a("s_waitcnt lgkmcnt(0)")

def tile_loader(vm, nsteps, after, skip=()):
    for q in range((nsteps + 3)//4):
        if q not in skip:
            vm.wait(("a", q))
            a("s_barrier")
        after(q)

def reduce_addr():
    a(f"s_and_b32 s{T0}, s{S_W}, 2")
    a(f"s_lshl_b32 s{T0}, s{T0}, 13")
    a(f"s_and_b32 s{T1}, s{S_W}, 1")
    a(f"s_lshl_b32 s{T1}, s{T1}, 2")
    a(f"v_and_b32 v10, 31, v{V_LANE}")
    a(f"v_lshlrev_b32 v10, 8, v10")
    a(f"v_lshrrev_b32 v11, 5, v{V_LANE}")
    a(f"v_xor_b32 v11, v11, v{V_LANE}")
    a(f"v_and_b32 v11, 1, v11")
    a(f"v_lshl_add_u32 v10, v11, 7, v10")
    a(f"v_add_u32 v10, s{T0}, v10")
    a(f"v_and_b32 v11, 7, v{V_LANE}")
    a(f"v_xor_b32 v11, s{T1}, v11")
    for i in range(4):
        a(f"v_xor_b32 v{V_REDW+i}, {i}, v11")
        a(f"v_lshl_add_u32 v{V_REDW+i}, v{V_REDW+i}, 4, v10")
    a(f"v_lshrrev_b32 v10, 3, v0")
    a(f"v_xor_b32 v11, v10, v0")
    a(f"v_and_b32 v11, 7, v11")
    a(f"v_lshlrev_b32 v11, 4, v11")
    a(f"v_lshl_add_u32 v11, v10, 8, v11")
    a(f"v_and_b32 v10, 1, v10")
    a(f"v_lshl_add_u32 v{V_REDR}, v10, 7, v11")
    a(f"v_xor_b32 v{V_REDR+1}, 128, v{V_REDR}")

def tile_gather(dst):
    a("s_barrier")
    a(f"ds_read_b128 {vr(dst,4)}, v{V_REDR}")
    a(f"ds_read_b128 {vr(dst+8,4)}, v{V_REDR} offset:16384")
    a(f"ds_read_b128 {vr(dst+4,4)}, v{V_REDR+1}")
    a(f"ds_read_b128 {vr(dst+12,4)}, v{V_REDR+1} offset:16384")

def unpack8(dst, src):
    L = []
    for i in range(4):
        L.append(f"v_lshlrev_b32 v{dst+2*i}, 16, v{src+i}")
        L.append(f"v_and_b32 v{dst+2*i+1}, 0xffff0000, v{src+i}")
    return L

hdr = open("cdna_kernels/" + NAME + ".s.ref").read().split("\n")
for line in hdr:
    if line.startswith("; Override"):
        break
    a.raw(line)
a.raw(f"; @launch grid=(256,1,1) block=(512,1,1) lds={LDS_BYTES}")
a.raw("""; One persistent launch, 256 workgroups x 8 waves, one workgroup per CU.
; loads after the flag.  Nothing assumes a placement: ids and the timed choice of a memory half only affect speed.""")
a.raw('.amdgcn_target "amdgcn-amd-amdhsa--gfx950"')
a.raw(".text")
a.raw(f".globl {NAME}_kernel")
a.raw(".p2align 8")
a.raw(f".type {NAME}_kernel,@function")
a.label(f"{NAME}_kernel")

vm = Cnt(a, "vmcnt", 63)
def new_vm(): return Cnt(a, "vmcnt", 63)
a(f"s_cmp_ge_u32 s{S_WG}, 256")
a("s_cbranch_scc1 L_end")
if STAMPS:
    a("v_mov_b32 v250, 0")
stamp("start")
a(f"s_load_dwordx16 {sr(KA,16)}, s[0:1], 0")
a(f"s_load_dwordx4 {sr(KA+16,4)}, s[0:1], 64")
a(f"s_load_dwordx2 {sr(KA+20,2)}, s[0:1], 80")
a(f"s_getpc_b64 {sr(S_PC,2)}")
a.label("L_pc")
a.c("pull this kernel's code into L2, two lines per wave")
a("v_lshrrev_b32 v4, 6, v0")
a(f"s_and_b32 s{T0}, s{S_WG}, 0xf8")
a(f"v_readfirstlane_b32 s{S_W}, v4")
a(f"v_and_b32 v{V_LANE}, 63, v0")
a(f"v_lshl_add_u32 v5, v{V_LANE}, 8, v4")
a(f"v_add_u32 v5, s{T0}, v5")
a(f"v_lshlrev_b32 v5, 7, v5")
a(f"v_min_u32 v5, L_code_end-L_pc-4, v5")
a("s_mov_b64 exec, 3")
a(f"global_load_dword v251, v5, {sr(S_PC,2)}")
vm.issue("pf")
a("s_mov_b64 exec, -1")
a.c("roles: attention (hg, tb), MLP (tb2, j)")
a(f"s_and_b32 s{T0}, s{S_WG}, 7")
a(f"s_lshr_b32 s{T1}, s{S_WG}, 3")
a(f"s_lshr_b32 s{T2}, s{T0}, {3 - LH}")
a(f"s_lshl_b32 s{T2}, s{T2}, {5 - LH}")
a(f"s_lshr_b32 s{S_SHR}, s{T1}, {LH}")
a(f"s_add_u32 s{S_TB}, s{T2}, s{S_SHR}")
a(f"v_lshrrev_b32 v4, 3, v0")
if XSW:
    a(f"s_and_b32 s{T2}, s{T1}, 1")
    a(f"s_lshl_b32 s{S_STAGE}, s{T2}, 15")
    a(f"s_lshl_b32 s{T2}, s{T2}, 5")
    a(f"v_xor_b32 v4, s{T2}, v4")
a(f"v_and_b32 v5, 7, v0")
a(f"v_lshlrev_b32 v{V_ROWOFF}, 10, v4")
a(f"v_lshl_add_u32 v{V_ROWOFF}, v5, 4, v{V_ROWOFF}")
a(f"s_lshl_b32 s{T6}, s{S_TB}, 16")
for c in range(4):
    a(f"s_add_u32 s{T7}, s{S_SHR}, {c}")
    a(f"s_and_b32 s{T7}, s{T7}, 3")
    a(f"s_lshl_b32 s{T7}, s{T7}, 8")
    a(f"s_add_u32 s{S_RG[c]}, s{T6}, s{T7}")
a(f"s_mov_b32 s{R_X+2}, {2048*512*2}")
a(f"s_mov_b32 s{R_X+3}, 0x00020000")
QKV_SEG = [1024, 2048, 0]
a(f"s_lshl_b32 s{T4}, s{S_WG}, 1")
a(f"s_lshr_b32 s{T5}, s{S_W}, 2")
a(f"s_add_u32 s{T4}, s{T4}, s{T5}")
a(f"s_mul_i32 s{T4}, s{T4}, 3072")
a(f"s_and_b32 s{T5}, s{S_W}, 3")
a(f"s_lshl_b32 s{T5}, s{T5}, 8")
a(f"s_add_u32 s{T4}, s{T4}, s{T5}")
a("s_waitcnt lgkmcnt(0)")
a(f"s_mov_b64 {sr(R_X,2)}, {sr(KA,2)}")
a(f"s_add_u32 s{S_PC}, s{KA+2}, s{T4}")
a(f"s_addc_u32 s{S_PC+1}, s{KA+3}, 0")
def w_touch(segs):
    a.c("first touch of Wqkv (scalar path), a different quarter row by every wave")
    for o in segs:
        for i in range(4):
            a(f"s_load_dword s{S_SPIN}, {sr(S_PC,2)}, {o + 64*i}")
w_touch(QKV_SEG[:SPF])
if WPF:
    a(f"v_lshrrev_b32 v6, 1, v{V_LANE}")
    a(f"v_add_u32 v6, 1, v6")
    a(f"v_mul_u32_u24 v7, 11, v6")
    a(f"v_lshrrev_b32 v7, 5, v7")
    a(f"v_mul_u32_u24 v7, 3, v7")
    a(f"v_sub_u32 v6, v6, v7")
    a(f"v_lshlrev_b32 v6, 10, v6")
    a(f"v_and_b32 v7, 1, v{V_LANE}")
    a(f"v_lshl_add_u32 v6, v7, 7, v6")
    a(f"s_mov_b64 exec, {(1 << (2*WPF)) - 1}")
    a(f"global_load_dword v251, v6, {sr(S_PC,2)}")
    vm.issue("pf")
    a("s_mov_b64 exec, -1")
if EARLY:
    a(f"s_cmp_ge_u32 s{S_W}, 4")
    a("s_cbranch_scc1 L_x_later")
ln_loads(vm, R_X, S_RG)
if EARLY:
    a.label("L_x_later")
if XSW:
    a(f"v_xor_b32 v{V_ROWOFF}, s{S_STAGE}, v{V_ROWOFF}")
a(f"s_load_dword s{S_N}, {sr(KA+20,2)}, {WS_NONCE}")
srd(R_WQKV, KA+2, 512*1536*2)
a(f"s_and_b32 s{T2}, s{T0}, {(8 >> LH) - 1}")
a(f"s_and_b32 s{T3}, s{T1}, {(1 << LH) - 1}")
a(f"s_lshl_b32 s{T3}, s{T3}, {3 - LH}")
a(f"s_add_u32 s{S_HG}, s{T2}, s{T3}")
a(f"s_lshl_b32 s{T2}, s{T0}, 2")
a(f"s_and_b32 s{T3}, s{T1}, 3")
a(f"s_add_u32 s{S_TB2}, s{T2}, s{T3}")
a(f"s_lshr_b32 s{S_J}, s{T1}, 2")
a(f"v_and_b32 v6, 31, v4")
a(f"v_xor_b32 v6, v6, v5")
a(f"v_lshlrev_b32 v6, 4, v6")
a(f"v_lshl_add_u32 v6, v5, 9, v6")
a(f"v_lshrrev_b32 v4, 5, v4")
a(f"v_lshl_add_u32 v{V_XNW}, v4, 15, v6")
ln_consts()
W1_SEG = [0, 128, 256]

QA, QB, SA, SB, OA, OB = 16, 20, 24, 40, 56, 72
A_KV = 88
A_IDX, A_AV, A_AK = 8, 14, 15
A_W1, A_WO = 3, 12
A_ONE, A_QA = 214, 215
P_W = 160
def Kf(t, ns=4): return A_KV + 12*(t % ns)
def Vf(t, s, ns=4): return A_KV + 12*(t % ns) + 4 + 4*s
def F_W(t): return 140 + 4*t if t < 24 else 64 + 4*(t - 24)

def qkv_ring_setup():
    a(f"s_lshl_b32 s{T4}, s{S_HG}, 7")
    dma_addr(V_DB, 3072, T4)
    ring_setup(3072, S_SHR, 16 if KVJ else 32)

def common_setup():
    srd(R_WS, KA+20, WS_SIZE)
    srd(R_WO, KA+4, 512*512*2)
    srd(R_W1, KA+8, 512*1376*2)
    srd(R_B1, KA+10, 1376*2)
    srd(R_W2, KA+12, 1376*512*2)
    srd(R_B2, KA+14, 512*2)
    srd(R_OUT, KA+16, 2048*512*2)
    a(f"s_min_u32 s{T2}, s{S_J}, 3")
    a(f"s_mul_i32 s{S_F0}, s{S_J}, 5")
    a(f"s_add_u32 s{S_F0}, s{S_F0}, s{T2}")
    a(f"s_cmp_lt_u32 s{S_J}, 3")
    a(f"s_cselect_b32 s{S_NT}, 6, 5")
    a(f"s_lshl_b32 s{T4}, s{S_J}, 7")
    a(f"s_lshl_b32 s{T5}, s{S_TB2}, 16")
    a(f"s_add_u32 s{S_TILE}, s{T5}, s{T4}")
    a(f"v_lshlrev_b32 v{V_L16}, 4, v{V_LANE}")
    a(f"v_lshlrev_b32 v249, 2, v{V_LANE}")
    reduce_addr()
    a(f"s_and_b32 s{T0}, s{S_W}, 3")
    a(f"s_lshl_b32 s{T2}, s{S_HG}, 2")
    a(f"s_add_u32 s{T2}, s{T2}, s{T0}")
    a(f"s_lshl_b32 s{T2}, s{T2}, 17")
    a(f"s_add_u32 s{T2}, s{T2}, {WS_KV}")
    a(f"v_and_b32 v10, 15, v{V_LANE}")
    a(f"v_lshrrev_b32 v11, 5, v{V_LANE}")
    a(f"v_lshl_add_u32 v10, v11, 4, v10")
    a(f"v_lshl_add_u32 v{A_AV}, v10, 4, s{T2}")
    a(f"v_add_u32 v{A_AK}, s{T2}, v{V_L16}")
    a.c("waves 0-3 start on this workgroup's own two key tiles; the sweep over the others skips them")
    a(f"s_lshr_b32 s{T1}, s{S_W}, 2")
    a(f"s_mul_i32 s{S_XOFF}, s{T1}, {(NA - 2)*2048}")
    a(f"s_lshl_b32 s{S_OWN}, s{S_TB}, 12")
    a(f"s_add_u32 s{S_OWN2}, s{S_OWN}, 4096")
    if LOC:
        a(f"s_and_b32 s{S_OWN2}, s{S_OWN2}, 0x1ffff")
        a(f"s_and_b32 s{T2}, s{S_OWN}, 0x7fff")
        a(f"s_cmp_ge_u32 s{S_XOFF}, s{T2}")
        a(f"s_cselect_b32 s{T3}, 4096, 0")
        a(f"s_add_u32 s{S_XOFF}, s{S_XOFF}, s{T3}")
        a(f"s_and_b32 s{T2}, s{S_OWN}, 0x18000")
        a(f"s_add_u32 s{S_XOFF}, s{S_XOFF}, s{T2}")
        a(f"s_and_b32 s{S_XOFF}, s{S_XOFF}, 0x1ffff")
    else:
        a(f"s_cmp_ge_u32 s{S_XOFF}, s{S_OWN}")
        a(f"s_cselect_b32 s{T3}, 4096, 0")
        a(f"s_add_u32 s{S_XOFF}, s{S_XOFF}, s{T3}")
    a(f"s_mov_b32 s{S_MASKV}, 0xffff")
    a(f"s_mov_b32 s{S_MASKV+1}, 0xffff")
    a.c("rows 16 and 20 of the V operand are ones (row sums for both lane halves), the other spare rows zero")
    a(f"v_and_b32 v10, 0x1b, v{V_LANE}")
    a(f"v_cmp_eq_u32 vcc, 16, v10")
    a(f"v_mov_b32 v10, 0x3f803f80")
    a(f"v_mov_b32 v11, 0")
    a(f"v_cndmask_b32 v{A_ONE}, v11, v10, vcc")
    a(f"s_lshl_b32 s{T2}, s{S_W}, 10")
    a(f"v_add_u32 v{A_QA}, s{T2}, v{V_L16}")
    a(f"s_lshl_b32 s{T2}, s{T1}, 3")
    a(f"s_add_u32 s{T2}, s{T2}, s{S_HG}")
    a(f"s_lshl_b32 s{T2}, s{T2}, 2")
    a(f"s_add_u32 s{T2}, s{T2}, s{T0}")
    a(f"s_lshl_b32 s{T2}, s{T2}, 10")
    a(f"s_and_b32 s{T3}, s{T2}, 0xffffe000")
    a(f"s_add_u32 s{T2}, s{T2}, s{T3}")
    a(f"s_add_u32 s{S_HEAD}, s{T2}, {WS_OF}")

A_KF = 216
def kvflag_setup():
    if KVL:
        a(f"s_and_b32 s{S_SPIN}, s{S_TB}, 7")
        a(f"s_lshl_b32 s{S_FOWN}, s{S_TB}, 2")
        a(f"s_and_b32 s{S_FOWN}, s{S_FOWN}, 0x60")
        a(f"s_add_u32 s{S_SPIN}, s{S_SPIN}, s{S_FOWN}")
        flag_addr(WS_FKV, S_HG, S_SPIN, S_HG, 9)
        a(f"v_and_b32 v10, 7, v{V_LANE}")
        a(f"v_lshrrev_b32 v11, 3, v{V_LANE}")
        a(f"v_lshlrev_b32 v11, 7, v11")
        a(f"v_lshl_add_u32 v{A_KF}, v10, 2, v11")
    else:
        flag_addr(WS_FKV, S_HG, S_TB, S_HG, 9)
        a(f"v_mov_b32 v{A_KF}, v249")

def tag_setup():
    a.c("hand-off tag of this launch: next value of a full-period sequence after the one found in the workspace")
    a(f"s_mul_i32 s{S_N}, s{S_N}, 0x0019660d")
    a(f"s_add_u32 s{S_N}, s{S_N}, 0x3c6ef35f")
    a(f"v_mov_b32 v248, s{S_N}")

def misc_loads(v, with_b1):
    a.c("small operands needed much later: residual x tile, biases")
    a(f"buffer_load_dwordx4 {vr(V_HRES,4)}, v{V_ROWOFF}, {sr(R_X,4)}, s{S_TILE} offen")
    a(f"v_and_b32 v10, 0x70, v{V_L16}")
    a(f"s_lshl_b32 s{T7}, s{S_J}, 7")
    a(f"buffer_load_dwordx4 {vr(V_B2,4)}, v10, {sr(R_B2,4)}, s{T7} offen")
    v.issue("misc", 2)
    if with_b1:
        swap23(10, 31, 11)
        a(f"v_lshlrev_b32 v10, 1, v10")
        a(f"s_lshr_b32 s{T7}, s{S_W}, 1")
        a(f"s_add_u32 s{T7}, s{T7}, s{S_F0}")
        a(f"s_lshl_b32 s{T7}, s{T7}, 6")
        for seg in range(3):
            a(f"buffer_load_ushort v{V_B1+seg}, v10, {sr(R_B1,4)}, s{T7} offen offset:{seg*128}")
        v.issue("misc", 3)

def attn_zero(ns):
    L = [(SB+8+i, f"v_mov_b32 v{SB+8+i}, 0") for i in range(8)]
    L += [(o+i, f"v_mov_b32 v{o+i}, 0") for o in (OA, OB) for i in range(16)]
    L += [(Vf(t,0,ns)+i, f"v_mov_b32 v{Vf(t,0,ns)+i}, v{A_ONE}") for t in range(ns) for i in range(8)]
    return L

def q_reads():
    a(f"v_xor_b32 v10, 4096, v{A_QA}")
    a(f"ds_read_b128 {vr(QB,4)}, v{A_QA} offset:{L_Q}")
    a(f"ds_read_b128 {vr(QA,4)}, v10 offset:{L_Q}")

def kv_load(v, t, ns, part=None):
    imm = 2048*(t & 1)
    so = S_OWN if t < 0 else S_XOFF
    if part != "v":
        a(f"buffer_load_dwordx4 {vr(Kf(t,ns),4)}, v{A_AK}, {sr(R_WS,4)}, s{so} offen offset:{imm} sc1")
    if part == "k":
        return
    a(f"s_mov_b64 exec, {sr(S_MASKV,2)}")
    a(f"buffer_load_dwordx4 {vr(Vf(t,0,ns),4)}, v{A_AV}, {sr(R_WS,4)}, s{so} offen offset:{imm+1024} sc1")
    a(f"buffer_load_dwordx4 {vr(Vf(t,1,ns),4)}, v{A_AV}, {sr(R_WS,4)}, s{so} offen offset:{imm+1536} sc1")
    a("s_mov_b64 exec, -1")
    if t & 1 and t >= 0:
        a(f"s_add_u32 s{S_XOFF}, s{S_XOFF}, 4096")
        if LOC:
            a(f"s_and_b32 s{S_XOFF}, s{S_XOFF}, 0x1ffff")
        if ns == 6 or not LOC:
            a(f"s_cmp_eq_u32 s{S_XOFF}, s{S_OWN}")
            a(f"s_cselect_b32 s{S_XOFF}, s{S_OWN2}, s{S_XOFF}")
    v.issue(("kv", t), 3)
def kv_load2(v, t, ns):
    for k in range(2):
        a(f"buffer_load_dwordx4 {vr(Kf(t+k,ns),4)}, v{A_AK}, {sr(R_WS,4)}, s{S_XOFF} offen offset:{2048*k} sc1")
    a(f"s_mov_b64 exec, {sr(S_MASKV,2)}")
    for k in range(2):
        for h in range(2):
            a(f"buffer_load_dwordx4 {vr(Vf(t+k,h,ns),4)}, v{A_AV}, {sr(R_WS,4)}, s{S_XOFF} offen offset:{2048*k+1024+512*h} sc1")
    a("s_mov_b64 exec, -1")
    a(f"s_add_u32 s{S_XOFF}, s{S_XOFF}, 4096")
    a(f"s_and_b32 s{S_XOFF}, s{S_XOFF}, 0x1ffff")
    a(f"s_cmp_eq_u32 s{S_XOFF}, s{S_OWN}")
    a(f"s_cselect_b32 s{S_XOFF}, s{S_OWN2}, s{S_XOFF}")
    v.issue(("kv", t + 1), 5)
    v.issue(("kv", t), 1)
def smf(o, v, s):
    a(f"v_smfmac_f32_32x32x32_bf16 {vr(o,16)}, {vr(v,4)}, {vr(s,8)}, v{A_IDX}")
def attn_tile(v, t, ns, last=None, side=(), tail=None, load=True, order=None):
    side = list(side)
    order = order or {1: [(0, 13)], 2: [(0, BP0), (1, BP1)], 4: [(0, 4), (0, 13), (1, 4), (1, 13)]}[NBLK]
    at = {}
    for k, f in enumerate(side):
        at.setdefault(order[k*len(order)//len(side)], []).append(f)
    for ph in range(2):
        S, So, O, Oo, Qo = (SA, SB, OA, OB, QB) if ph == 0 else (SB, SA, OB, OA, QA)
        for i in range(16):
            for f in at.get((ph, i), []):
                f()
            if i == 2:
                smf(Oo, Vf(t - 1 + ph, 1, ns), So + 8)
            if i == 5 and not (ph == 1 and t == last):
                if ph == 1:
                    v.wait(("kv", t + 1))
                a(f"v_mfma_f32_32x32x16_bf16 {vr(So,16)}, {vr(Kf(t+ph,ns),4)}, {vr(Qo,4)}, 0")
            if i == 10:
                smf(O, Vf(t, 0, ns), S)
            if ph == 0 and i == KPOS and ns == 6 and load and (last is None or t + ns - 1 <= last):
                kv_load(v, t + ns - 1, ns, "k")
            if ph == 0 and i == LPOS and load and (last is None or t + ns - 1 <= last):
                if BAT and ns == 6 and t >= 0:
                    if t % 2 == 0:
                        kv_load2(v, t + 4, ns)
                        if BAT == 1:
                            v.wait(("kv", t + 2))
                else:
                    kv_load(v, t + ns - 1, ns, "v" if KPOS >= 0 and ns == 6 else None)
                    if WM and t >= 0 and ns == 6:
                        v.wait(("kv", t + 1))
            if ph == 1 and i == 12 and tail:
                tail()
            a(f"v_exp_f32 v{S+i}, v{S+i}")
def send_a():
    a.c("block A is complete: hand it to the wave that has the other keys")
    a(f"s_lshl_b32 s{T2}, s{S_W}, 11")
    a(f"v_add_u32 v10, s{T2}, v{V_L16}")
    a(f"s_lshl_b32 s{T2}, s{S_W}, 8")
    a(f"v_add_u32 v11, s{T2}, v249")
    a(f"ds_write_b32 v11, v{OA+8} offset:{L_OX+16384}")
    a(f"ds_write_b128 v10, {vr(OA,4)} offset:{L_OX}")
    a(f"ds_write_b128 v10, {vr(OA+4,4)} offset:{L_OX+1024}")
def attn_first(v, t, ns, fill=None):
    v.wait(("kv", t), extra="lgkmcnt(0)")
    a(f"v_mfma_f32_32x32x16_bf16 {vr(SA,16)}, {vr(Kf(t,ns),4)}, {vr(QA,4)}, 0")
    if fill:
        fill()
    a("s_nop 7")
    a("s_nop 3")

a.c("======== phase 1: LN1 + QKV projection")
stamp("setup") if PROBE else None
va, vb = vm.copy(), vm.copy()
is_a("L_p1_a")
def w_prefetch(v, segs):
    if not segs:
        return
    a.c("4 rows per wave of the XCD's Wqkv columns into L2")
    a(f"s_lshr_b32 s{T5}, s{S_WG}, 3")
    a(f"s_lshl_b32 s{T5}, s{T5}, 2")
    a(f"s_and_b32 s{T7}, s{S_W}, 3")
    a(f"s_add_u32 s{T5}, s{T5}, s{T7}")
    a(f"s_mul_i32 s{T5}, s{T5}, {4*3072}")
    a(f"s_and_b32 s{T7}, s{S_HG}, {(8 >> LH) - 1}")
    a(f"s_lshl_b32 s{T7}, s{T7}, 7")
    a(f"s_add_u32 s{T5}, s{T5}, s{T7}")
    a(f"v_lshrrev_b32 v10, {LH}, v{V_LANE}")
    a(f"v_mul_u32_u24 v10, 3072, v10")
    a(f"v_and_b32 v11, {(1 << LH) - 1}, v{V_LANE}")
    a(f"v_lshl_add_u32 v10, v11, {10 - LH}, v10")
    a(f"s_mov_b64 exec, {(1 << (4 << LH)) - 1:#x}")
    for o in segs:
        a(f"buffer_load_dword v251, v10, {sr(R_WQKV,4)}, s{T5} offen offset:{o}")
        v.issue("pf")
    a("s_mov_b64 exec, -1")
L2A = opt('l2a', 0)
if EARLY:
    common_setup()
    a("v_mov_b32 v208, 0")
    a("v_mov_b32 v209, 0")
    if EARLY > 1:
        for r, x in attn_zero(4):
            if r >= 64:
                a(x)
    ln_loads(new_vm(), R_X, S_RG)
w_prefetch(vb, QKV_SEG[L2A:L2PF])
if opt("diag", 0):
    stamp("pf issued")
    a(f"s_waitcnt vmcnt({L2PF})")
    stamp("pf xin")
    for k in range(L2PF):
        a(f"s_waitcnt vmcnt({L2PF - 1 - k})")
        stamp(f"pf done{k}")
qkv_ring_setup()
for n in range(NPB):
    qkv_issue(vb, n)
ln_stats(vb, 2.0)
a("s_branch L_p1_norm")

a.label("L_p1_a")
w_prefetch(va, QKV_SEG[:L2A])
common_setup()
a.c("first touch (scalar path) of the flag lines and the biases")
a(f"s_lshl_b32 s{T2}, s{S_TB2}, 20")
a(f"s_lshl_b32 s{T3}, s{S_J}, 7")
a(f"s_add_u32 s{T2}, s{T2}, s{T3}")
a(f"s_and_b32 s{T3}, s{S_W}, 1")
a(f"s_lshl_b32 s{T3}, s{T3}, 13")
a(f"s_add_u32 s{T2}, s{T2}, s{T3}")
a(f"s_add_u32 s{T2}, s{T2}, {WS_GRP}")
a(f"s_load_dword s{S_SPIN}, {sr(KA+20,2)}, s{T2}")
a(f"s_lshl_b32 s{T3}, s{S_W}, 7")
a(f"s_lshl_b32 s{T2}, s{S_HG}, 9")
a(f"s_add_u32 s{T2}, s{T2}, s{T3}")
a(f"s_add_u32 s{T2}, s{T2}, {WS_FKV}")
if opt("kt", 1):
    a(f"s_and_b32 s{T3}, s{S_TB}, 1")
    a(f"s_lshl_b32 s{T3}, s{T3}, 6")
    a(f"s_add_u32 s{T2}, s{T2}, s{T3}")
a(f"s_load_dword s{S_SPIN}, {sr(KA+20,2)}, s{T2}")
a(f"s_lshl_b32 s{T2}, s{S_WG}, 2")
a(f"s_add_u32 s{T2}, s{T2}, {WS_FC}")
a(f"s_load_dword s{S_SPIN}, {sr(KA+20,2)}, s{T2}")
a(f"s_lshl_b32 s{T2}, s{S_W}, 1")
a(f"s_add_u32 s{T2}, s{T2}, s{S_F0}")
a(f"s_min_u32 s{T2}, s{T2}, 41")
a(f"s_lshl_b32 s{T2}, s{T2}, 6")
a(f"s_add_u32 s{T3}, s{T2}, 64")
a(f"s_load_dword s{S_SPIN}, {sr(KA+10,2)}, s{T2}")
a(f"s_load_dword s{S_SPIN}, {sr(KA+10,2)}, s{T3}")
a(f"s_and_b32 s{T2}, s{S_W}, 1")
a(f"s_lshl_b32 s{T2}, s{T2}, 6")
a(f"s_add_u32 s{T2}, s{T2}, s{T4}")
a(f"s_load_dword s{S_SPIN}, {sr(KA+14,2)}, s{T2}")
if opt("tlb", 0):
    a.c("... and of the pages used later")
    a(f"s_lshr_b32 s{T2}, s{S_WG}, 3")
    a(f"s_lshl_b32 s{T2}, s{T2}, 2")
    a(f"s_add_u32 s{T2}, s{T2}, s{S_W}")
    a(f"s_lshl_b32 s{T3}, s{T2}, 12")
    a(f"s_load_dword s{S_SPIN}, {sr(KA+4,2)}, s{T3}")
    a(f"s_mul_i32 s{T3}, s{T2}, 11008")
    a(f"s_load_dword s{S_SPIN}, {sr(KA+8,2)}, s{T3}")
    a(f"s_load_dword s{S_SPIN}, {sr(KA+12,2)}, s{T3}")
    if opt("tlb", 0) > 1:
        a(f"s_lshl_b32 s{T3}, s{T2}, 17")
        a(f"s_load_dword s{S_SPIN}, {sr(KA+20,2)}, s{T3}")
        a(f"s_lshl_b32 s{T3}, s{T2}, 14")
        a(f"s_load_dword s{S_SPIN}, {sr(KA+16,2)}, s{T3}")
w_addr()
x_addr(False)
qkv_ring_setup()
a(f"s_and_b32 s{T0}, s{S_W}, 1")
a(f"s_lshr_b32 s{T1}, s{S_W}, 1")
tr_lane_addr(A_WO, T0, False)
a(f"s_lshl_b32 s{T7}, s{T1}, 15")
a(f"v_add_u32 v{A_WO}, s{T7}, v{A_WO}")
E_K, E_V, E_Q, E_C = 208, 209, 210, 212
swap23(10, 63, 11)
a(f"v_lshlrev_b32 v{E_K}, 4, v10")
a(f"v_and_b32 v10, 15, v{V_LANE}")
a("v_lshlrev_b32 v10, 4, v10")
a(f"v_lshrrev_b32 v11, 5, v{V_LANE}")
a("v_lshl_add_u32 v10, v11, 8, v10")
a(f"v_bfe_u32 v11, v{V_LANE}, 4, 1")
a(f"v_lshl_add_u32 v{E_V}, v11, 17, v10")
a(f"s_lshl_b32 s{T2}, s{T0}, 12")
a(f"s_lshl_b32 s{T3}, s{T1}, 11")
a(f"s_add_u32 s{T2}, s{T2}, s{T3}")
a(f"v_add_u32 v{E_Q}, s{T2}, v{V_L16}")
a(f"v_mov_b32 v{E_C}, {f32(0.25*math.log2(math.e))}")
a(f"v_mov_b32 v{E_C+1}, v{E_C}")
a(f"s_lshl_b32 s{T2}, s{S_HG}, 1")
a(f"s_add_u32 s{T2}, s{T2}, s{T1}")
a(f"s_lshl_b32 s{T2}, s{T2}, 18")
a(f"s_lshl_b32 s{T3}, s{S_TB}, 1")
a(f"s_add_u32 s{T3}, s{T3}, s{T0}")
a(f"s_lshl_b32 s{T3}, s{T3}, 11")
a(f"s_add_u32 s{T2}, s{T2}, s{T3}")
a(f"s_add_u32 s{T2}, s{T2}, {WS_KV}")
a(f"s_add_u32 s{T3}, s{T2}, 0x20000")
ln_stats(va, 1.0)
a.label("L_p1_norm")
ln_norm(1.0)
pass
is_a("L_p1_compute")

W2_HOME = [(0, 65536, 49152), (24, 131072, 16384), (32, 20480, 22528)]
if W2L:
    W2_HOME = [(0, 65536, 49152), (24, 20480, 6144), (27, 0, 32768)]
W2_END = 27 if W2L else 43
S_H = [T4, T5, T6]
def w2_home(t):
    k = 0 if t < 24 else 1 if t < W2_HOME[2][0] else 2
    return k, (t - W2_HOME[k][0])*2048
def staging_setup():
    a(f"s_lshl_b32 s{T4}, s{S_J}, 7")
    dma_addr(V_DA, 1024, T4)
    a(f"s_lshl_b32 s{T4}, s{S_F0}, 6")
    dma_addr(V_DB, 2752, T4)
    a(f"v_lshrrev_b32 v10, 2, v{V_LANE}")
    a(f"v_mul_u32_u24 v10, 2752, v10")
    a(f"v_and_b32 v11, 3, v{V_LANE}")
    a(f"v_lshlrev_b32 v11, 7, v11")
    a(f"v_min_u32 v11, {252 if WS1[0] == 4 else 380}, v11")
    a(f"v_add3_u32 v{A_W1}, v10, v11, s{T4}")
    a(f"s_and_b32 s{T0}, s{S_W}, 3")
    a(f"s_lshl_b32 s{S_D0}, s{T0}, 13")
    a(f"s_lshl_b32 s{S_D1}, s{T0}, 10")
    a(f"s_mul_i32 s{S_D2}, s{T0}, {8*2752}")
    a(f"s_and_b32 s{T4}, s{S_TB2}, 3")
    a(f"s_lshl_b32 s{T4}, s{T4}, 2")
    a(f"s_add_u32 s{T4}, s{T4}, s{T0}")
    a(f"s_mul_i32 s{S_D4}, s{T4}, {32*2752}")
    a(f"s_and_b32 s{T2}, s{S_W}, 1")
    a(f"s_bfe_u32 s{T3}, s{S_W}, 0x10001")
    tr_lane_addr(7, T2, False)
    for k, (t0, base, stride) in enumerate(W2_HOME):
        a(f"s_mul_i32 s{S_H[k]}, s{T3}, {stride}")
        a(f"s_add_u32 s{S_H[k]}, s{S_H[k]}, {base}")
        a(f"v_add_u32 v{4+k}, s{S_H[k]}, v7")
        a(f"s_lshl_b32 s{T7}, s{T2}, 10")
        a(f"s_add_u32 s{S_H[k]}, s{S_H[k]}, s{T7}")
    a(f"v_mov_b32 v{A_IDX}, 0xdddddddd")
def mall_touch():
    a.c("first touch of the later weights, different lines by every wave")
    a(f"s_lshl_b32 s{T2}, s{S_WG}, 2")
    a(f"s_add_u32 s{T2}, s{T2}, s{S_W}")
    a(f"s_sub_u32 s{T2}, s{T2}, 4")
    a(f"s_lshl_b32 s{T3}, s{T2}, 9")
    a(f"s_mul_i32 s{T2}, s{T2}, {11*128}")
    a(f"v_lshlrev_b32 v10, 7, v{V_LANE}")
    for r, so, m in ((R_WO, T3, 15), (R_W2, T2, 0x7ff), (R_W1, T2, 0x7ff)):
        a(f"s_mov_b64 exec, {m:#x}")
        a(f"buffer_load_dword v251, v10, {sr(r,4)}, s{so} offen")
        vb.issue("pf")
    a("s_mov_b64 exec, -1")
def s_touch(k):
    def f():
        if k == 0:
            a(f"s_lshl_b32 s{T7}, s{S_WG}, 2")
            a(f"s_add_u32 s{T7}, s{T7}, s{S_W}")
            a(f"s_sub_u32 s{T7}, s{T7}, 4")
            a(f"s_lshl_b32 s{S_SPIN}, s{T7}, 9")
            a(f"s_add_u32 s{KA+4}, s{KA+4}, s{S_SPIN}")
            a(f"s_addc_u32 s{KA+5}, s{KA+5}, 0")
            a(f"s_mul_i32 s{T7}, s{T7}, {11*128}")
            a(f"s_min_u32 s{T7}, s{T7}, {512*1376*2 - 11*128}")
            for p in (KA+8, KA+12):
                a(f"s_add_u32 s{p}, s{p}, s{T7}")
                a(f"s_addc_u32 s{p+1}, s{p+1}, 0")
        L = [(KA+4, i) for i in range(8)] + [(KA+12, i) for i in range(22)] + [(KA+8, i) for i in range(22)]
        for p, i in L[13*k:13*k + 13]:
            a(f"s_load_dword s{KA+6}, {sr(p,2)}, {64*i}")
    return f
cs = capture(common_setup)
late = {3: cs[:40], 4: cs[40:80], 5: cs[80:], 6: [x for _, x in attn_zero(4)][:36], 7: [x for _, x in attn_zero(4)][36:],
        8: capture(staging_setup)[:38], 9: capture(staging_setup)[38:], 10: capture(tag_setup) + capture(kvflag_setup)}
if EARLY:
    zz = [x for r, x in attn_zero(4) if r < 64 or EARLY == 1]
    late.update({3: zz[:15], 4: zz[15:30], 5: zz[30:45], 6: zz[45:60], 7: zz[60:]})
later = []
if LATE:
    for k in ((8, 9) if LATE == 1 else (6, 7, 8, 9)):
        later += late.pop(k)
for k in (40, 80):
    assert not cs[k].startswith("s_cselect") and "vcc" not in cs[k]
nxw = NPA
if opt("sq", -1) == -2:
    a("s_waitcnt lgkmcnt(0)")
    for o in (0, -3072):
        for i in range(4):
            a(f"s_load_dword s{KA+6}, {sr(S_PC,2)}, {o + 64*i}")
for n in range(12):
    vb.wait(("w", n), extra="lgkmcnt(0)" if n == 0 and opt("sq", -1) != -2 else "")
    if opt("bst", -1) == n:
        stamp(f"bw{n}")
    a("s_barrier")
    if opt("bst", -1) == n:
        stamp(f"bb{n}")
    while nxw <= min(11, n + NB0 + 1, n + 4 if n >= 2 else 5):
        qkv_issue(vb, nxw)
        nxw += 1
    if n == opt("sq", -1):
        a.c("first touch of the Q columns (scalar path)")
        for o in (0, -3072):
            for i in range(4):
                a(f"s_load_dword s{KA+6}, {sr(S_PC,2)}, {o + 64*i}")
    if n == QPF:
        w_prefetch(vb, QKV_SEG[2:])
    for x in late.get(n, []):
        a(x)
    if n == MW:
        mall_touch()
    if STM and n == STM:
        s_touch(0)()
    if STM and n == 11 and opt("stm2", 1):
        s_touch(1)()
misc_loads(vb, False)
a("s_barrier")
flag_store(4)
def lead():
    l = a.uniq("L_nl")
    a(f"s_cmp_lg_u32 s{S_J}, 0")
    a(f"s_cbranch_scc1 {l}")
    a.c("group leader: which half answers faster?")
    a(f"s_lshl_b32 s{T2}, s{S_TB2}, 20")
    a(f"s_add_u32 s{T2}, s{T2}, {WS_GRP + F_PROBE}")
    a(f"s_add_u32 s{T3}, s{T2}, 8192")
    NP = opt("np", 1)
    for k in range(2*NP):
        a(f"s_memtime {sr(KA+2*k,2)}")
        a("s_waitcnt lgkmcnt(0)")
        a(f"s_load_dword s{KA+14}, {sr(KA+20,2)}, s{(T2, T3)[k & 1]} glc")
        a("s_waitcnt lgkmcnt(0)")
    a(f"s_memtime {sr(KA+4*NP,2)}")
    a("s_waitcnt lgkmcnt(0)")
    for k in range(2*NP):
        a(f"s_sub_u32 s{KA+2*k}, s{KA+2*k+2}, s{KA+2*k}")
    for k in range(2, 2*NP):
        a(f"s_min_u32 s{KA+2*(k&1)}, s{KA+2*(k&1)}, s{KA+2*k}")
    a(f"s_mov_b32 s{T2}, s{KA}")
    a(f"s_mov_b32 s{T3}, s{KA+2}")
    a(f"s_cmp_lt_u32 s{T3}, s{T2}")
    a(f"s_cselect_b32 s{T2}, " + {1: "4, 0", 2: "0, 4", 0: "0, 0"}[NEAR])
    a(f"s_lshl_b32 s{T7}, s{S_TB2}, 6")
    a(f"s_add_u32 s{T7}, s{T7}, s{T2}")
    a(f"s_add_u32 s{T7}, s{T7}, {WS_PL}")
    a("s_mov_b64 exec, 1")
    a(f"buffer_store_dword v248, v249, {sr(R_WS,4)}, s{T7} offen sc1")
    a("s_mov_b64 exec, -1")
    a.label(l)
L_GO = L_Q + 8192
if LF:
    a("v_mov_b32 v9, 0")
    a(f"ds_write_b32 v9, v9 offset:{L_GO}")
    a("s_waitcnt lgkmcnt(0)")
a("s_barrier")
q_reads()
for x in later:
    a(x)
if not KVP:
    if SLP:
        a(f"s_sleep {SLP}")
    if LF:
        a(f"s_lshr_b32 s{T7}, s{S_TB}, 3")
        a(f"s_lshl_b32 s{T7}, s{T7}, 7")
        a(f"v_add_u32 v10, s{T7}, v249")
        flag_poll(4, 8, 0, 10)
    else:
        flag_poll(4, 32, 0, A_KF)
    pass
a("s_waitcnt lgkmcnt(0)")
a("s_barrier")
if LF:
    a.c("the remaining flags: wave 4 polls, waves 5-7 watch an LDS word")
    flag_poll(4, 32, 0, A_KF)
    def go():
        a("v_mov_b32 v10, 1")
        a(f"ds_write_b32 v9, v10 offset:{L_GO}")
    only(4, go)
    only(5, lead)
    a(f"s_mov_b32 s{S_SPIN}, 0")
    a.label("L_go")
    a(f"ds_read_b32 v10, v9 offset:{L_GO}")
    a(f"s_add_u32 s{S_SPIN}, s{S_SPIN}, 1")
    a(f"s_lshr_b32 s{T2}, s{S_SPIN}, 22")
    a("s_waitcnt lgkmcnt(0)")
    a(f"v_readfirstlane_b32 s{T7}, v10")
    a("s_nop 0")
    a(f"s_or_b32 s{T7}, s{T7}, s{T2}")
    a("s_cbranch_scc0 L_go")
    pass
a.c("======== phase 2, waves 4-7: fewer key tiles, and the weights of the later phases go on chip")
NB = 64 - NA
a("s_setprio 1")
for t in range(3):
    kv_load(vb, t, 4)
attn_first(vb, 0, 4)
if STM:
    s_touch(1 + opt("stm2", 1))()
elif MW == -1:
    mall_touch()
F0 = [5*j + min(j, 3) for j in range(8)]
TL = [F0[j] + 2*p + i for p in range(2) for j in range(8) for i in range(2)] + [F0[j] + i for j in range(8) for i in range(4, 6 if j < 3 else 5)]
assert sorted(TL) == list(range(43))
ND = opt("nd", 0)
def mk(*x):
    if ND == 1:
        return lambda: None
    if ND == 2:
        return lambda: a("\n".join(capture(dma, new_vm(), *x)[:2]))
    if ND == 3:
        return lambda: dma(vb, x[0], x[1], x[2], x[3], 0, x[5], x[6])
    return lambda: dma(vb, *x)
L_wo = [mk("r1", R_WO, V_DA, S_D0, k*32768, S_D1, k*4096) for k in range(16)]
L_w2 = [mk("r1" if t < 24 else "r2", R_W2, V_DA, S_D0, TL[t]*32768, S_H[w2_home(t)[0]], w2_home(t)[1]) for t in range(43)]
L_w1 = [mk("r2", R_W1, V_DB, S_D2, k*32*2752, S_D1, L_RING + k*4096) for k in range(16)]
def d_warm(k):
    def f():
        a(f"s_add_u32 s{T7}, s{S_D4}, {k*16*2752 + (128 if WS1[0] == 4 else 0)}")
        a(f"buffer_load_dword v251, v{A_W1}, {sr(R_W1,4)}, s{T7} offen")
        vb.issue("pf")
    return f
def d_rd(t):
    k, off = w2_home(t)
    return lambda: tr_read(F_W(t), 4 + k, off)
def d_c3():
    a.c("lines at 384 mod 1024 stream slowly past L2 into a single CU: every workgroup pulls a few of them")
    a(f"s_lshr_b32 s{T2}, s{S_WG}, 3")
    a(f"s_lshl_b32 s{T2}, s{T2}, 2")
    a(f"s_add_u32 s{T2}, s{T2}, s{T0}")
    a(f"s_lshl_b32 s{T3}, s{T2}, 12")
    a(f"s_mul_i32 s{T2}, s{T2}, {11*1024}")
    a(f"v_lshlrev_b32 v10, 10, v{V_LANE}")
    for r, so, m in ((R_WO, T3, 15), (R_W2, T2, 0x7ff)):
        a(f"s_mov_b64 exec, {m:#x}")
        a(f"buffer_load_dword v251, v10, {sr(r,4)}, s{so} offen offset:384")
        vb.issue("pf")
    a("s_mov_b64 exec, -1")
def d_code():
    a.c("the code of the later phases back into L2, two lines per wave")
    a(f"s_getpc_b64 {sr(S_PC,2)}")
    a.label("L_pc2")
    a(f"s_lshr_b32 s{T2}, s{S_WG}, 3")
    a(f"s_lshl_b32 s{T2}, s{T2}, 2")
    a(f"s_add_u32 s{T2}, s{T2}, s{T0}")
    a(f"s_lshl_b32 s{T2}, s{T2}, 7")
    a(f"s_add_u32 s{T2}, s{T2}, L_attn_end-L_pc2")
    a(f"v_lshl_add_u32 v10, v{V_LANE}, 14, s{T2}")
    a(f"v_min_u32 v10, L_code_end-L_pc2-4, v10")
    a("s_mov_b64 exec, 3")
    a(f"global_load_dword v251, v10, {sr(S_PC,2)}")
    vb.issue("pf")
    a("s_mov_b64 exec, -1")
def share(L, tiles):
    return {t: L[k*len(L)//len(tiles):(k+1)*len(L)//len(tiles)] for k, t in enumerate(tiles)}
plan = {0: [lambda: None]*3 + [d_c3]}
plan.update(share(L_wo + L_w2[:24], list(range(T0B, TB1 - 1))))
if ND != 4:
    plan.update(share([d_rd(t) for t in range(24)], list(range(TB1, TB1 + TB2))))
plan.update(share(L_w2[24:W2_END] + L_w1[:2*WS1[0]] + [d_warm(0)] + L_w1[2*WS1[0]:4*WS1[0]] + [d_warm(1)], list(range(TB1 + TB2, NB - TEND))))
if STM:
    for k in range(2 + opt("stm2", 1), 4):
        t = k - 1 - opt("stm2", 1)
        plan[t] = [s_touch(k)] + plan.get(t, [])
if opt("cpf", 1):
    plan[NB - opt("cpf", 1)] = [d_code] + plan.get(NB - opt("cpf", 1), [])
for t in range(NB):
    if t == 1 and LF:
        a("s_barrier")
    if t == TB1:
        vb.wait("r1")
        a("s_barrier")
        half_issue()
    if t == TB1 + TB2:
        a("s_waitcnt lgkmcnt(0)")
        a("s_barrier")
        half_check()
    attn_tile(vb, t, 4, NB - 1, plan.get(t, []), send_a if t == NB - 1 else None, order={0: None, 1: [(1, 15)], 2: [(1, 7), (1, 15)]}[opt('rdl', 0)] if t == TB1 else None)
vb.wait("r2")
a("s_setprio 0")
a("s_nop 0")
smf(OB, Vf(NB - 1, 1, 4), SB+8)
a("s_branch L_attn_end")

a.label("L_p1_compute")
for n in range(NPB, NPA):
    qkv_issue(va, n)
pass
w_prefetch(va, QKV_SEG[L2PF:opt("l2e", 2)])
def cvt_inplace(b):
    return [f"v_cvt_pk_bf16_f32 v{b+i}, v{b+2*i}, v{b+2*i+1}" for i in range(8)]
aK, aV, aQ = 144, 160, 176
inj = {2: capture(tag_setup)}
spread(inj, [(x, 1) for x in capture(kvflag_setup)], 4, 20)
items = [(x, 1) for x in cvt_inplace(aK)]
items += [((f"buffer_store_dwordx4 {vr(aK,4)}, v{E_K}, {sr(R_WS,4)}, s{T2} offen sc1", "st"), 2),
          ((f"buffer_store_dwordx4 {vr(aK+4,4)}, v{E_K}, {sr(R_WS,4)}, s{T3} offen sc1", "st"), 2)]
spread(inj, items, *((67, 70) if KVJ else (36, 42)))
items = [(x, 1) for x in cvt_inplace(aV)]
items += [((f"buffer_store_dwordx4 {vr(aV,4)}, v{E_V}, {sr(R_WS,4)}, s{T2} offen offset:1024 sc1", "st"), 2),
          ((f"buffer_store_dwordx4 {vr(aV+4,4)}, v{E_V}, {sr(R_WS,4)}, s{T2} offen offset:1536 sc1", "st"), 2)]
spread(inj, items, *((70, 73) if KVJ else (67, 71)))
a_zero = attn_zero(6)
spread(inj, [(x, 1) for r, x in a_zero if r >= 144], *((80, 92) if KVJ else (48, 60)))
for r, x in a_zero:
    if r < 144:
        inj.setdefault(64 + (r - G_X)//4, []).append(x)
def pub_kv():
    va.wait("st")
    a("s_barrier")
    stamp("kv drained")
gemm_compute(va, [aK, aV, aQ], [192, 196, 200, 204, 224, 228], {1}, {0, 1, 2}, inj, {UKV: pub_kv}, range(12), 'p1', 4096, None, KVJ)
kv_load(va, -2, 6)
kv_load(va, -1, 6)
a(f"v_mov_b32 v{A_IDX}, 0xdddddddd")
for i in range(8):
    a(f"v_pk_mul_f32 {vr(aQ+2*i,2)}, {vr(aQ+2*i,2)}, {vr(E_C,2)}")
for x in cvt_inplace(aQ):
    a(x)
a(f"ds_write_b128 v{E_Q}, {vr(aQ,4)} offset:{L_Q}")
a(f"ds_write_b128 v{E_Q}, {vr(aQ+4,4)} offset:{L_Q+1024}")
a("s_waitcnt lgkmcnt(0)")
a("s_barrier")
pass
q_reads()
misc_loads(va, True)
a.c("======== phase 2, waves 0-3: attention; wave = head, 64 queries")
a(f"s_setprio {PRA}")
a(f"s_mov_b32 s{S_D4}, 1")
a(f"s_mov_b32 s{S_LOOP}, {1 if LF else IT1}")
a(f"s_mov_b32 s{S_STAGE}, {0 if LF else 1}")
def kv_try():
    a("s_mov_b32 exec_hi, 0")
    a(f"buffer_load_dword v247, v{A_KF}, {sr(R_WS,4)}, s{S_FPOLL} offen sc1")
    a("s_mov_b32 exec_hi, -1")
def kv_check():
    a("s_waitcnt vmcnt(0)")
    flag_poll(None, 32, 0, A_KF)
attn_first(va, -2, 6, (lambda: only(0, kv_try)) if KVP else None)
attn_tile(va, -2, 6, load=False)
pass
if KVP:
    only(0, kv_check)
a("s_barrier")
stamp("kv ready")
for t in range(4):
    kv_load(va, t, 6)
attn_tile(va, -1, 6, load=not BAT)
if BAT:
    va.wait(('kv', 1))
    va.q = [('kv', 3)]*5 + [('kv', 2)]
a("s_branch L_attn")
a.label("L_attn_s0")
a("s_barrier")
a(f"s_setprio {PRA}")
a(f"s_mov_b32 s{S_LOOP}, {IT1 - 1}")
a("s_branch L_attn")
a.label("L_attn_s1")
a("s_barrier")
a(f"s_setprio {PRA}")
if ORD:
    a(f"s_and_b32 s{T7}, s{S_WG}, 1")
    a(f"s_lshl_b32 s{T7}, s{T7}, 13")
    a(f"v_add_u32 v10, s{T7}, v{A_WO}")
    a(f"s_sub_u32 s{T7}, 8192, s{T7}")
    a(f"v_add_u32 v11, s{T7}, v{A_WO}")
for t in range(16 if ND != 4 else 0):
    if ORD:
        tr_read(P_W + 4*t, 10 + ((t >> 2) & 1), (t & ~4)*2048)
    else:
        tr_read(P_W + 4*t, A_WO, t*2048)
half_issue()
a(f"s_mov_b32 s{S_LOOP}, {IT2}")
a("s_branch L_attn")
a.label("L_attn_s2")
half_check()
a("s_barrier")
a(f"s_setprio {PRA}")
if FEND <= (NA - 2) % 6:
    a(f"s_mov_b32 s{S_D4}, 0")
a(f"s_mov_b32 s{S_LOOP}, {(NA - 2)//6 - IT1 - IT2}")
a.raw(".p2align 4")
a.label("L_attn")
def loop_tail():
    a(f"s_sub_u32 s{S_LOOP}, s{S_LOOP}, 1")
    a(f"s_cmp_lg_u32 s{S_LOOP}, 0")
for t in range(6):
    if t == FLIP:
        a(f"s_cmp_lg_u32 s{S_LOOP}, s{S_D4}")
        a("s_cbranch_scc1 L_keep")
        a("s_setprio 0")
        a.label("L_keep")
    attn_tile(va, t, 6, None, [], loop_tail if t == 5 else None)
a("s_cbranch_scc1 L_attn")
a(f"s_add_u32 s{S_STAGE}, s{S_STAGE}, 1")
for k in range(3):
    a(f"s_cmp_eq_u32 s{S_STAGE}, {k + 1}")
    a(f"s_cbranch_scc1 L_attn_s{k}")
NT_ = (NA - 2) % 6
for t in range(6, 6 + NT_):
    if 6 + NT_ - t == FEND:
        a("s_setprio 0")
    attn_tile(va, t, 6, 5 + NT_, [], send_a if t == 5 + NT_ else None)
assert NT_
if NT_:
    a("s_nop 1")
smf(OB, Vf(5 + NT_, 1, 6), SB+8)
a("s_setprio 0")

a.label("L_attn_end")
stamp("attn loop done")
a.c("combine the two key ranges of block B")
a("v_xor_b32 v10, 8192, v10")
a("v_xor_b32 v11, 1024, v11")
a("s_waitcnt lgkmcnt(0)")
a("s_barrier")
a(f"ds_read_b32 v{SA+8}, v11 offset:{L_OX+16384}")
a(f"ds_read_b128 {vr(SA,4)}, v10 offset:{L_OX}")
a(f"ds_read_b128 {vr(SA+4,4)}, v10 offset:{L_OX+1024}")
a(f"v_mov_b32 v{SB}, {f32(2.0**-64)}")
a(f"v_mov_b32 v{SB+1}, {f32(2.0**64)}")
for r in (4, 5, 7):
    a(f"v_mov_b32 v{SB+r}, 0")
a("s_waitcnt lgkmcnt(2)")
a(f"v_add_f32 v{OB+8}, v{OB+8}, v{SA+8}")
a.c("The loop subtracted no row maximum.  That is exact unless something left the fp32 range: a row sum outside")
a.c("[2^-64, 2^64], or any Inf/NaN in the sums, sends the wave to the path that subtracts the true maximum.")
a(f"v_mov_b32 v{SB+6}, v{OB+8}")
a("s_waitcnt lgkmcnt(0)")
for i in range(4):
    a(f"v_pk_add_f32 {vr(OB+2*i,2)}, {vr(OB+2*i,2)}, {vr(SA+2*i,2)}")
for i in range(4):
    a(f"v_pk_fma_f32 {vr(SB+6,2)}, {vr(OB+2*i,2)}, {vr(SB+4,2)}, {vr(SB+6,2)}")
a(f"v_add_f32 v{SB+6}, v{SB+6}, v{SB+7}")
a(f"v_cmp_ge_f32 vcc, v{SB+6}, v{SB}")
a(f"v_cmp_le_f32 {sr(S_SAVE,2)}, v{SB+6}, v{SB+1}")
a(f"v_rcp_f32 v10, v{OB+8}")
a(f"s_and_b64 vcc, vcc, {sr(S_SAVE,2)}")
a(f"s_cmp_eq_u64 vcc, -1")
if FORCE_FB:
    a("s_branch L_attn_fb")
else:
    a("s_cbranch_scc0 L_attn_fb")
a.label("L_attn_fin")
a("v_mov_b32 v11, v10")
for i in range(4):
    a(f"v_pk_mul_f32 {vr(OB+2*i,2)}, {vr(OB+2*i,2)}, v[10:11]")
for i in range(4):
    a(f"v_cvt_pk_bf16_f32 v{SA+i}, v{OB+2*i}, v{OB+2*i+1}")
a(f"buffer_store_dwordx4 {vr(SA,4)}, v{V_L16}, {sr(R_WS,4)}, s{S_HEAD} offen sc1")

a.c("======== phase 3: h = x + O Wo ; tile 64 tokens x 64 columns, computed by waves 0-3")
T_ACC, T_AF = 16, 48
def o_reread():
    if ORD:
        a("s_mov_b32 exec_lo, 0x01010101")
        a("s_mov_b32 exec_hi, 0x01010101")
        a(f"buffer_load_dword v251, v{V_L16}, {sr(R_WS,4)}, s{S_HEAD} offen sc1")
        a("s_mov_b64 exec, -1")
def W0(t): return 64 + 4*t
is_a("L_p3_a")
vb = new_vm()
for t in range(24, W2_END):
    d_rd(t)()
if W2L:
    a(f"s_mov_b32 s{S_OWN}, s{S_D0}")
    a(f"s_mov_b32 s{S_OWN2}, s{S_H[2]}")
    a(f"v_mov_b32 v8, v6")
ring_setup(2752, None)
assert WC[2] <= 4 and WC[3] <= 6 and WC[5] >= 6
for n in range(WC[1], WC[2]):
    ring_issue(vb, R_W1, 2752, W1_SEG, n)
a(f"s_waitcnt vmcnt({4*WS1[1]}) lgkmcnt(0)")
o_reread()
a("s_barrier")
for n in range(WC[2], WC[3]):
    ring_issue(vb, R_W1, 2752, W1_SEG, n)
act_setup(4, WS_OF, False)
if ORD:
    a(f"s_and_b32 s{T7}, s{S_WG}, 1")
    a(f"s_lshl_b32 s{T7}, s{T7}, 12")
    a(f"s_sub_u32 s{T0}, s{T4}, s{T7}")
    a(f"s_add_u32 s{T4}, s{T4}, s{T7}")
grp_flags(S_TB2, S_ZG, S_J)
stamp("owin B")
a("s_barrier")
for q in range(NO):
    act_issue(vb, q, q, 4, False)
def h_pre(B):
    L = unpack8(B, V_HRES) + ["v_mov_b32 v10, 0x3f803f80", "v_and_b32 v7, 0x1f8, v0",
         f"s_lshl_b32 s{T2}, s{S_W}, 6", f"s_add_u32 s{T2}, s{T2}, s{S_J}", f"s_lshl_b32 s{T2}, s{T2}, 7",
         f"s_add_u32 s{T2}, s{T2}, s{S_ZG}", f"s_add_u32 s{T2}, s{T2}, {WS_H}",
         f"s_add_u32 s{T5}, s{S_ZG}, {WS_GRP + 4096}",
         f"s_lshl_b32 s{T6}, s{S_J}, 9", f"s_add_u32 s{T6}, s{T6}, s{T5}"]
    return L
def h_epilogue(B):
    tile_gather(16)
    for h in range(2):
        a(f"s_waitcnt lgkmcnt({2-2*h})")
        for i in range(2*h, 2*h+2):
            a(f"v_pk_add_f32 {vr(B+2*i,2)}, {vr(B+2*i,2)}, {vr(16+2*i,2)}")
            a(f"v_pk_add_f32 {vr(B+2*i,2)}, {vr(B+2*i,2)}, {vr(24+2*i,2)}")
        for i in range(2*h, 2*h+2):
            a(f"v_cvt_pk_bf16_f32 v{V_HRES+i}, v{B+2*i}, v{B+2*i+1}")
tile_loader(vb, 16, lambda q: act_issue(vb, q + NO, q + NO, 4, False) if q + NO < 4 else None)
for x in h_pre(32):
    a(x)
h_epilogue(32)
a("s_branch L_p3_done")
a.label("L_p3_a")
CJ, CA = 28, 16
a.c("wave 1 of workgroups 0-175 sums 64 rows of a 64-column strip of W1 (LayerNorm's mean term)")
a(f"s_cmp_lt_u32 s{S_WG}, 176")
a(f"s_cselect_b32 s{S_STAGE}, s{S_W}, 0")
a(f"s_cmp_lg_u32 s{S_STAGE}, 1")
a("s_cbranch_scc1 L_cs_noload")
a(f"v_lshrrev_b32 v10, 3, v{V_LANE}")
a(f"v_mul_u32_u24 v10, 2752, v10")
a(f"v_and_b32 v11, 7, v{V_LANE}")
a(f"v_lshl_add_u32 v10, v11, 4, v10")
a(f"s_and_b32 s{T0}, s{S_WG}, 7")
a(f"s_mul_i32 s{T0}, s{T0}, {64*2752}")
a(f"s_lshr_b32 s{T1}, s{S_WG}, 3")
a(f"s_lshl_b32 s{T1}, s{T1}, 7")
a(f"s_add_u32 s{T0}, s{T0}, s{T1}")
for i in range(8):
    a(f"buffer_load_dwordx4 {vr(CJ+4*i,4)}, v10, {sr(R_W1,4)}, s{T0} offen")
    a(f"s_add_u32 s{T0}, s{T0}, {8*2752}")
a.label("L_cs_noload")
grp_flags(S_TB, S_ZO, S_HG)
w_addr()
act_setup(4, WS_OF, False)
a(f"s_cmp_eq_u32 s{S_STAGE}, 1")
a("s_waitcnt vmcnt(8)")
a("s_cbranch_scc1 L_cs_loaded")
a("s_waitcnt vmcnt(0)")
a.label("L_cs_loaded")
o_reread()
a("s_barrier")
flag_store(0, 0, OPK)
stamp("O drained")
R0 = min(24, 8*WC[1])
R1 = min(32, 8*WC[3])
RB = min(R0, opt("rb", 24))
for t in range(RB):
    w_read(W0(t), t)
a(f"s_cmp_lg_u32 s{S_STAGE}, 1")
a("s_cbranch_scc1 L_cs_nojob")
a(f"v_mov_b32 v10, 0x00003f80")
a(f"v_mov_b32 v11, 0x3f800000")
for i in range(8):
    a(f"s_waitcnt vmcnt({7-i+ORD})")
    for j in range(4):
        for h in range(2):
            a(f"v_dot2_f32_bf16 v{CA+2*j+h}, v{CJ+4*i+j}, v{10+h}, {f'v{CA+2*j+h}' if i else '0'}")
a(f"s_and_b32 s{T0}, s{S_WG}, 7")
a(f"s_mul_i32 s{T0}, s{T0}, {1408*4}")
a(f"s_lshr_b32 s{T1}, s{S_WG}, 3")
a(f"s_lshl_b32 s{T1}, s{T1}, 8")
for k in range(4):
    a(f"v_permlane32_swap_b32 v{CA+k}, v{CA+4+k}")
a(f"s_add_u32 s{T0}, s{T0}, s{T1}")
a(f"s_add_u32 s{T0}, s{T0}, {WS_CS}")
for k in range(4):
    a(f"v_add_f32 v{CA+k}, v{CA+k}, v{CA+4+k}")
a("s_nop 1")
for k in range(2):
    a(f"v_permlane16_swap_b32 v{CA+k}, v{CA+2+k}")
a("s_nop 1")
for k in range(2):
    a(f"v_add_f32 v{CA+k}, v{CA+k}, v{CA+2+k}")
a(f"v_and_b32 v10, 7, v{V_LANE}")
a(f"v_lshrrev_b32 v11, 4, v{V_LANE}")
for k in range(2):
    a(f"v_add_f32_dpp v{CA+k}, v{CA+k}, v{CA+k} row_ror:8 row_mask:0xf bank_mask:0xf")
a(f"v_lshlrev_b32 v11, 3, v11")
a(f"v_lshl_add_u32 v10, v10, 5, v11")
a(f"s_mov_b32 exec_lo, 0x00ff00ff")
a(f"s_mov_b32 exec_hi, 0x00ff00ff")
a(f"buffer_store_dwordx2 {vr(CA,2)}, v10, {sr(R_WS,4)}, s{T0} offen sc1")
a("s_mov_b64 exec, -1")
a.label("L_cs_nojob")
stamp("owin A")
if OSP:
    a(f"s_cmp_lg_u32 s{S_W}, 0")
    a("s_cbranch_scc1 L_o_seen")
    if OPK:
        peek_check(0, "L_o_seen")
    if DO:
        a(f"s_sleep {DO}")
    spoll_issue(0)
    spoll_check(0)
    a.label("L_o_seen")
else:
    flag_poll(0, 8)
a("s_waitcnt lgkmcnt(0)")
a("s_barrier")
stamp("O ready")
for t in range(RB, R0):
    w_read(W0(t), t)
a(f"s_cmp_lg_u32 s{S_STAGE}, 1")
a("s_cbranch_scc1 L_cs_noflag")
a(f"s_lshl_b32 s{T0}, s{S_WG}, 2")
a(f"s_add_u32 s{T0}, s{T0}, {WS_FC}")
a("s_waitcnt vmcnt(0)")
a("s_mov_b64 exec, 1")
a(f"buffer_store_dword v248, v249, {sr(R_WS,4)}, s{T0} offen sc1")
a("s_mov_b64 exec, -1")
a.label("L_cs_noflag")
a.c("every workgroup has read the old tag by now: leave this launch's tag for the next launch to step past")
a(f"s_or_b32 s{T0}, s{S_WG}, s{S_W}")
a("s_cbranch_scc1 L_notag")
a("s_mov_b64 exec, 1")
a(f"buffer_store_dword v248, v249, {sr(R_WS,4)}, 0 offen offset:{WS_NONCE} sc1")
a("s_mov_b64 exec, -1")
a.label("L_notag")
for x in h_pre(224):
    a(x)
tile_compute(new_vm(), 16, [0, 1, 2, 3], lambda t: P_W + 4*t, T_ACC, T_AF)
h_epilogue(224)
a.label("L_p3_done")
a(f"buffer_store_dwordx4 {vr(V_HRES,4)}, v{V_ROWOFF}, {sr(R_WS,4)}, s{T2} offen sc1")
a.c("partial row statistics of this 64-column slice")
for i in range(4):
    a(f"v_dot2_f32_bf16 v16, v{V_HRES+i}, v10, {'v16' if i else '0'}")
    a(f"v_dot2_f32_bf16 v17, v{V_HRES+i}, v{V_HRES+i}, {'v17' if i else '0'}")
sum8_pair(16)
a(f"s_mov_b32 exec_lo, 0x01010101")
a(f"s_mov_b32 exec_hi, 0x01010101")
a(f"buffer_store_dwordx2 v[16:17], v7, {sr(R_WS,4)}, s{T6} offen sc1")
a("s_mov_b64 exec, -1")
a("v_mov_b32 v41, v7")
stamp("h stored")
HRR = opt("hrr", 1)
def h_reread():
    if not HRR:
        return
    a.c("pull the stored lines back into this XCD's L2 while the flags travel")
    a(f"s_mov_b32 exec_lo, 0x01010101")
    a(f"s_mov_b32 exec_hi, 0x01010101")
    a(f"buffer_load_dword v251, v{V_ROWOFF}, {sr(R_WS,4)}, s{T2} offen sc1")
    a("s_mov_b64 exec, 1")
    a(f"buffer_load_dword v251, v41, {sr(R_WS,4)}, s{T6} offen sc1")
    a("s_mov_b64 exec, -1")

a.c("======== phase 4: g = gelu(LN(h) W1 + b1) with LN folded into the product, scaled by GS so that the tanh argument is u*(u*u+k)")
c1 = -2.0*math.sqrt(2.0/math.pi)*math.log2(math.e)
c3 = c1*0.044715
GS = -((-c3) ** (1.0/3))
GK = c1/GS
G_SLOTS = [0, 1, 2, 3, 4, 5, 6, 7, 8, 9, 2]
is_a("L_p4_a")
vb = new_vm()
a.c("source offsets of the raw h image: wave 4+b loads row groups b and b+4")
a(f"v_lshrrev_b32 v10, 4, v0")
a(f"v_xor_b32 v10, v10, v0")
a(f"v_and_b32 v10, 7, v10")
a(f"v_and_b32 v{V_XNW}, 0x7c00, v{V_ROWOFF}")
a(f"v_lshl_add_u32 v{V_XNW}, v10, 4, v{V_XNW}")
a(f"s_and_b32 s{T3}, s{S_W}, 3")
a(f"s_lshl_b32 s{T3}, s{T3}, 13")
a(f"s_add_u32 s{T4}, s{T3}, {WS_H}")
a(f"s_add_u32 s{T4}, s{T4}, s{S_ZG}")
assert WC[4] <= 6 + R0//8 and WC[5] <= 6 + R1//8
for n in range(WC[3], WC[4]):
    ring_issue(vb, R_W1, 2752, W1_SEG, n)
a(f"s_waitcnt vmcnt({4*WS1[3]})")
h_reread()
vb.issue("rr", 2*HRR)
a("s_barrier")
flag_store(4, F_H, HPK)
HPI = opt("hpi", 8)
L = []
for n in range(WC[4], WC[5]):
    L += capture(ring_issue, vb, R_W1, 2752, W1_SEG, n)
for x in L[:3*HPI]:
    a(x)
def h_try():
    if opt("hpw", 0):
        a(f"s_waitcnt vmcnt({min(HPI, len(L)//3)})")
    spoll_issue(F_H)
only(4, h_try)
for x in L[3*HPI:]:
    a(x)
a(f"s_cmp_lg_u32 s{S_W}, 4")
a("s_cbranch_scc1 L_h_seen")
spoll_check(F_H)
a.label("L_h_seen")
stamp("hseen B")
vb.wait(("w", 3))
a("s_barrier")
def h_issue(n):
    for i in (2*n, 2*n + 1):
        for r in range(2):
            dma(vb, ("x", n), R_WS, V_XNW, T4, r*65536 + i*128, T3, r*32768 + i*1024, "sc1")
for n in range(NH):
    h_issue(n)
for n in range(4):
    vb.wait(("x", n))
    a("s_barrier")
    if n + NH < 4:
        h_issue(n + NH)
    for k in {2: range(WC[5], WC[5] + 1), 3: range(WC[5] + 1, 10)}.get(n, []):
        ring_issue(vb, R_W1, 2752, W1_SEG, k)
act_setup(11, WS_GF, True)
TH = opt("th", 4)
GRP = [int(c, 16) for c in opt("grp", "8008")]
assert sum(GRP) == 16
w2n = [27]
def w2_late(k):
    for t in range(w2n[0], w2n[0] + k if W2L else 0):
        if len(vb.q) > TH:
            a(f"s_waitcnt vmcnt({TH})")
            vb.q = vb.q[len(vb.q) - TH:]
        dma(vb, "w2", R_W2, V_DA, S_OWN, TL[t]*32768, S_OWN2, w2_home(t)[1])
    w2n[0] += k
if W2L:
    a("s_barrier")
w2_late(GRP[0])
for n in (10, 11):
    vb.wait(("w", n - 4), *([("w", 9)] if n == 11 else []))
    a("s_barrier")
    ring_issue(vb, R_W1, 2752, W1_SEG, n)
    w2_late(GRP[n - 9])
vb.wait(("w", 9))
a("s_barrier")
flag_store(4, F_G0)
w2_late(GRP[3])
a("s_waitcnt vmcnt(0)")
vb.clear()
only(4, spoll_issue, F_G0)
a("s_barrier")
if W2L:
    for t in range(27, 43):
        tr_read(F_W(t), 8, w2_home(t)[1])
    a("s_waitcnt lgkmcnt(0)")
only(4, spoll_check, F_G0)
stamp("g0 ready")
a("s_barrier")
flag_store(4, F_G1)
a.c("======== phase 5: out = h + g W2 + b2, computed by waves 4-7")
if opt("pb", 0):
    a("s_setprio 1")
for q in range(2):
    act_issue(vb, q, G_SLOTS[q], 11, True)
OE = 140
out_pre = unpack8(OE, V_HRES) + unpack8(OE + 8, V_B2) + [f"v_add_f32 v{OE+i}, v{OE+i}, v{OE+8+i}" for i in range(8)]
out_pre += [f"v_mov_b32 v10, {f32(1.0/GS)}", "v_mov_b32 v11, v10"]
inj = {}
spread(inj, [(x, 1) for x in out_pre], 12, 40)
FQ = opt('fq', 2)
if FQ == 2:
    vb.wait(('a', 0))
    act_issue(vb, 2, G_SLOTS[2], 11, True)
tile_compute(vb, 43, G_SLOTS, F_W, T_ACC, T_AF, inj, (1,) if FQ else ())
stamp("ffn2 done B")
a("s_branch L_p5_done")

a.label("L_p4_a")
F_ACC = [192, 208, 168]
F_WF = [144, 148, 152, 156, 160, 164]
GT = 224
CB = [224, 228, 224]
CS = 16
for t in range(R0, R1):
    w_read(W0(t), t)
a.c("column sums of W1 for this wave's three tiles")
a(f"s_lshr_b32 s{T0}, s{S_F0}, 1")
a(f"s_min_u32 s{T0}, s{T0}, 18")
a(f"s_lshl_b32 s{T0}, s{T0}, 5")
a(f"s_add_u32 s{S_FPOLL}, s{T0}, {WS_FC}")
a("s_mov_b32 exec_hi, 0")
a(f"buffer_load_dword v247, v249, {sr(R_WS,4)}, s{S_FPOLL} offen sc1")
a("s_mov_b32 exec_hi, -1")
x_addr(True)
swap23(10, 31, 11)
a(f"v_lshrrev_b32 v11, 5, v{V_LANE}")
a(f"v_mul_u32_u24 v11, {4*1408*4}, v11")
a(f"v_lshl_add_u32 v10, v10, 2, v11")
a(f"s_lshr_b32 s{T0}, s{S_W}, 1")
a(f"s_add_u32 s{T0}, s{T0}, s{S_F0}")
a(f"s_lshl_b32 s{T0}, s{T0}, 7")
a(f"s_add_u32 s{T0}, s{T0}, {WS_CS}")
a("s_waitcnt vmcnt(1) lgkmcnt(0)")
h_reread()
a("s_barrier")
stamp("h drained")
a(f"s_waitcnt vmcnt({2*HRR})")
flag_poll(None, 32)
HS = 208
CP = 192
for k in range(4):
    for seg in range(3):
        a(f"buffer_load_dword v{CP+4*seg+k}, v10, {sr(R_WS,4)}, s{T0} offen offset:{seg*256} sc1")
    a(f"s_add_u32 s{T0}, s{T0}, {1408*4}")
grp_flags(S_TB2, S_ZG, S_J)
a(f"s_and_b32 s{T0}, s{S_W}, 1")
a(f"s_lshl_b32 s{T7}, s{T0}, 8")
a(f"s_add_u32 s{T5}, s{T5}, s{T7}")
a(f"s_mul_i32 s{T0}, s{T0}, {11*16384}")
a(f"s_add_u32 s{T0}, s{T0}, s{S_ZG}")
a(f"s_add_u32 s{T0}, s{T0}, {WS_GF}")
a(f"s_lshr_b32 s{T1}, s{S_W}, 1")
a(f"s_add_u32 s{S_STAGE}, s{T1}, 4")
a(f"s_lshl_b32 s{T7}, s{S_J}, 2")
a(f"s_sub_u32 s{T2}, s{S_F0}, s{T7}")
a(f"s_add_u32 s{T2}, s{T2}, s{T1}")
a(f"s_and_b32 s{T7}, s{T2}, 0xfc")
a(f"s_add_u32 s{T2}, s{T2}, s{T7}")
a(f"s_lshl_b32 s{T2}, s{T2}, 11")
a(f"s_add_u32 s{T2}, s{T2}, s{T0}")
a(f"s_add_u32 s{S_D2}, s{T2}, {8*16384}")
a(f"s_lshl_b32 s{T2}, s{S_J}, 1")
a(f"s_add_u32 s{T2}, s{T2}, s{T1}")
a(f"s_and_b32 s{T7}, s{T2}, 0xfc")
a(f"s_add_u32 s{T2}, s{T2}, s{T7}")
a(f"s_lshl_b32 s{T2}, s{T2}, 11")
a(f"s_add_u32 s{S_D0}, s{T2}, s{T0}")
a(f"s_add_u32 s{S_D1}, s{S_D0}, {4*16384}")
a(f"v_and_b32 v10, 31, v{V_LANE}")
a(f"v_lshlrev_b32 v10, 3, v10")
a(f"v_lshrrev_b32 v11, 5, v{V_LANE}")
a(f"v_lshl_add_u32 v235, v11, 11, v10")
a(f"v_lshlrev_b32 v3, 7, v{V_LANE}")
RS = 12
a(f"v_mov_b32 v10, {f32(GK)}")
a(f"v_mov_b32 v11, v10")
a(f"v_mov_b32 v14, 1.0")
a(f"v_mov_b32 v15, 1.0")
stamp("hwin A")
a("s_barrier")
stamp("h ready")
for t in range(R1, 32):
    w_read(W0(t), t)
vc = new_vm()
for k in range(4):
    a(f"buffer_load_dwordx2 {vr(HS+2*k,2)}, v235, {sr(R_WS,4)}, s{T5} offen offset:{k*512} sc1")
vc.issue(("x", 0), 4)
a("s_waitcnt vmcnt(4)")
for seg in range(3):
    c = CP + 4*seg
    a(f"v_add_f32 v{c}, v{c}, v{c+1}")
    a(f"v_add_f32 v{c+2}, v{c+2}, v{c+3}")
for seg in range(3):
    c = CP + 4*seg
    a(f"v_add_f32 v{c}, v{c}, v{c+2}")
for seg in range(3):
    c = CP + 4*seg
    a(f"v_mov_b32 v{c+1}, v{c}")
a("s_nop 1")
for seg in range(3):
    c = CP + 4*seg
    a(f"v_permlane32_swap_b32 v{c}, v{c+1}")
a("s_nop 1")
AB = [224, 228, 216]
for seg in range(3):
    c, d = CP + 4*seg, AB[seg]
    a(f"v_add_f32 v{c}, v{c}, v{c+1}")
    a(f"v_and_b32 v{c+1}, 0xffff0000, v{c}")
    a(f"v_sub_f32 v{c}, v{c}, v{c+1}")
    a(f"v_cvt_pk_bf16_f32 v{d}, v{c+1}, v{c+1}")
    a(f"v_cvt_pk_bf16_f32 v{d+1}, v{c}, v{c}")
    a(f"v_lshl_or_b32 v{d+2}, v{V_B1+seg}, 16, v{V_B1+seg}")
    a(f"v_mov_b32 v{d+3}, 0")
BO = 232
a(f"v_mov_b32 v{BO+3}, 0")
def gt(i): return 224 + i if i < 8 else 176 + i
def gelu_block(seg):
    u = F_ACC[seg]
    a.raw(".p2align 3")
    def two(op, f, D=gt):
        for i in range(0, 16, 2):
            a(f"v_pk_{op}_f32 {vr(D(i),2)}, " + f(vr(u+i, 2), vr(gt(i), 2)))
    two("mul", lambda U, T: f"{U}, {vr(RS,2)}", lambda i: u + i)
    two("fma", lambda U, T: f"{U}, {U}, v[10:11]")
    two("mul", lambda U, T: f"{T}, {U}")
    for i in range(16):
        a(f"v_exp_f32 v{gt(i)}, v{gt(i)}")
    two("add", lambda U, T: f"{T}, v[14:15]")
    for h in range(2):
        for i in range(8*h, 8*h + 8):
            a(f"v_rcp_f32 v{gt(i)}, v{gt(i)}")
        for i in range(8*h, 8*h + 8, 2):
            a(f"v_pk_mul_f32 {vr(gt(i),2)}, {vr(gt(i),2)}, {vr(u+i,2)}")
        for i in range(4):
            a(f"v_cvt_pk_bf16_f32 v{u+8*h+i}, v{gt(8*h+2*i)}, v{gt(8*h+2*i+1)}")
        a(f"buffer_store_dwordx4 {vr(u+8*h,4)}, v{V_L16}, {sr(R_WS,4)}, s{S_D0+seg} offen offset:{h*1024} sc1")
        vc.issue("st")
inj = {}
prep = [f"v_add_f32 v{HS}, v{HS}, v{HS+2}", f"v_add_f32 v{HS+1}, v{HS+1}, v{HS+3}",
        f"v_add_f32 v{HS+4}, v{HS+4}, v{HS+6}", f"v_add_f32 v{HS+5}, v{HS+5}, v{HS+7}",
        f"v_add_f32 v{HS}, v{HS}, v{HS+4}", f"v_add_f32 v{HS+1}, v{HS+1}, v{HS+5}",
        f"v_mov_b32 v{HS+2}, v{HS}", f"v_mov_b32 v{HS+3}, v{HS+1}",
        f"s_nop 1\nv_permlane32_swap_b32 v{HS}, v{HS+2}", f"v_permlane32_swap_b32 v{HS+1}, v{HS+3}\ns_nop 1",
        f"v_add_f32 v{HS}, v{HS}, v{HS+2}", f"v_add_f32 v{HS+1}, v{HS+1}, v{HS+3}",
        f"v_mul_f32 v{HS}, {f32(-1.0/512)}, v{HS}", f"v_mul_f32 v{HS+1}, {f32(1.0/512)}, v{HS+1}",
        f"v_fma_f32 v{HS+1}, -v{HS}, v{HS}, v{HS+1}", f"v_max_f32 v{HS+1}, 0, v{HS+1}",
        f"v_add_f32 v{HS+1}, {f32(1e-5)}, v{HS+1}", f"v_rsq_f32 v{HS+2}, v{HS+1}",
        f"v_and_b32 v{HS+3}, 0xffff0000, v{HS}", f"v_sub_f32 v{HS}, v{HS}, v{HS+3}",
        f"v_mul_f32 v{HS+1}, v{HS+1}, v{HS+2}", f"v_mul_f32 v{RS}, {f32(GS)}, v{HS+2}",
        f"v_cvt_pk_bf16_f32 v{BO}, v{HS+3}, v{HS}", f"v_and_b32 v{HS+3}, 0xffff0000, v{HS+1}",
        f"v_sub_f32 v{HS+1}, v{HS+1}, v{HS+3}", f"v_mov_b32 v{RS+1}, v{RS}",
        f"v_cvt_pk_bf16_f32 v{BO+2}, v{HS+3}, v{HS+1}",
        f"s_mov_b32 exec_lo, 0\nv_mov_b32 v{BO}, 0\nv_mov_b32 v{BO+2}, 0\ns_mov_b32 exec_lo, -1", f"v_mov_b32 v{BO+1}, v{BO}"]
spread(inj, [(x, 1) for x in prep], 0, 20)
spread(inj, [(x, 1) for x in capture(act_setup, 11, WS_GF, True)[:-5]], 70, 80)
def corr(seg):
    d = vr(F_ACC[seg], 16)
    a(f"v_mfma_f32_32x32x16_bf16 {d}, {vr(AB[seg],4)}, {vr(BO,4)}, {'0' if seg else d}")
def blk0():
    if W2L:
        a("s_barrier")
    a.c("the other accumulators start from -mean x colsum + std x bias")
    corr(2)
    corr(1)
    a("s_nop 7")
    gelu_block(0)
def blk1():
    a("s_nop 7")
    a("s_nop 1")
    gelu_block(1)
    if SKIP5:
        a(f"s_cmp_ge_u32 s{S_STAGE}, s{S_NT}")
        a("s_cbranch_scc1 L_p4_idle")
def g_reread(seg):
    if seg < 2 and not opt("grr", 1):
        return
    a("s_mov_b64 exec, 0xffff")
    a(f"buffer_load_dword v251, v3, {sr(R_WS,4)}, s{S_D0+seg} offen sc1")
    a("s_mov_b64 exec, -1")
def pub(seg):
    def f():
        vc.wait("st")
        g_reread(seg)
        a("s_barrier")
    return f
gemm_compute(vc, F_ACC, F_WF, set(), {0}, inj, {24: lambda: corr(0), 32: blk0, UP0: pub(0), 64: blk1, UP1: pub(1)},
             (0, 1, 2, 3, 6, 7, 10), 'p4', 1024, W0)
stamp("ffn1 done")
if SKIP5:
    a("s_nop 7")
    a("s_nop 3")
    gelu_block(2)
    a("s_branch L_p4_skip")
    a.label("L_p4_idle")
    for x in capture(act_setup, 11, WS_GF, True)[:-5]:
        a(x)
    a(f"s_mov_b32 s{S_D2}, s{S_D1}")
    a("s_barrier")
    a("s_waitcnt vmcnt(0) lgkmcnt(0)")
    g_reread(1)
    a("s_barrier")
else:
    a(f"s_cmp_ge_u32 s{S_STAGE}, s{S_NT}")
    a(f"s_cselect_b32 s{S_D2}, s{S_D1}, s{S_D2}")
    a("s_cbranch_scc1 L_p4_skip")
    a("s_nop 7")
    a("s_nop 0")
    gelu_block(2)
a.label("L_p4_skip")
stamp("g stored")
vl = new_vm()
def g_issue(*L):
    for n in L:
        if n == 10:
            a.c("the last chunk has three tiles: wave 3 repeats wave 2's")
            a(f"s_cmp_eq_u32 s{S_W}, 3")
            a(f"s_cselect_b32 s{T7}, 2048, 0")
            a(f"s_sub_u32 s{T4}, s{T4}, s{T7}")
        act_issue(vl, n, G_SLOTS[n], 11, True)
if not FQ:
    g_issue(2, 3)
if FQ == 2:
    vl.issue(("a", 2))
only(0, spoll_issue, F_G1)
Q1, QI = opt("q1", 2 if FQ else 1), opt("qi", 5)
def p5_after(q):
    if q == 0 and FQ:
        g_issue(*range(1 + FQ, 4))
    if q in (0, 2, 4, 7, 10) and opt("fst", 0):
        stamp(f"p5 q{q}")
    if q == Q1 - 1:
        only(0, spoll_check, F_G1)
    if q == 2:
        a.c("the wait for chunk 2 covered the last stores of every wave")
        flag_store(0, F_G2)
        if RR2 == 1:
            g_reread(2)
            vl.issue("rr")
    if q == Q1:
        g_issue(*range(4, Q1 + 4))
    elif Q1 < q <= 4:
        g_issue(q + 3)
    if q == 2 and RR2 == 2:
        g_reread(2)
        vl.issue("rr")
    if q == QI:
        only(0, spoll_issue, F_G2)
    if q == QP - 1:
        only(0, spoll_check, F_G2)
    if q == QP:
        g_issue(8, 9, 10)
tile_loader(vl, 43, p5_after, (1,) if FQ else ())
for x in out_pre:
    a(x)

a.label("L_p5_done")
tile_gather(16)
for h in range(2):
    a(f"s_waitcnt lgkmcnt({2-2*h})")
    for i in range(2*h, 2*h+2):
        a(f"v_pk_add_f32 {vr(16+2*i,2)}, {vr(16+2*i,2)}, {vr(24+2*i,2)}")
        a(f"v_pk_fma_f32 {vr(OE+2*i,2)}, {vr(16+2*i,2)}, v[10:11], {vr(OE+2*i,2)}")
    for i in range(2*h, 2*h+2):
        a(f"v_cvt_pk_bf16_f32 v{40+i}, v{OE+2*i}, v{OE+2*i+1}")
a(f"buffer_store_dwordx4 v[40:43], v{V_ROWOFF}, {sr(R_OUT,4)}, s{S_TILE} offen {opt('of', 'sc0_sc1').replace('_', ' ')}")
if STAMPS:
    a("s_waitcnt vmcnt(0)")
stamp("end")
stamp_flush()
a.label("L_end")
a("s_endpgm")
a.label("L_code_end")

a.c("======== attention with the row's true maximum: query block B over all 2048 keys")
a.label("L_attn_fb")
FM = SB
a("s_waitcnt vmcnt(0)")
a(f"v_mov_b32 v{FM}, 0xff800000")
a(f"s_mov_b32 s{S_XOFF}, 0")
a(f"s_mov_b32 s{S_LOOP}, 64")
a.label("L_fb1")
a(f"buffer_load_dwordx4 {vr(Kf(0),4)}, v{A_AK}, {sr(R_WS,4)}, s{S_XOFF} offen sc1")
a("s_waitcnt vmcnt(0)")
a(f"v_mfma_f32_32x32x16_bf16 {vr(SA,16)}, {vr(Kf(0),4)}, {vr(QB,4)}, 0")
a(f"s_add_u32 s{S_XOFF}, s{S_XOFF}, 2048")
a("s_nop 7")
a("s_nop 3")
for i in range(8):
    a(f"v_max3_f32 v{FM}, v{FM}, v{SA+2*i}, v{SA+2*i+1}")
a(f"s_sub_u32 s{S_LOOP}, s{S_LOOP}, 1")
a(f"s_cmp_lg_u32 s{S_LOOP}, 0")
a("s_cbranch_scc1 L_fb1")
a(f"v_mov_b32 v{FM+1}, v{FM}")
a("s_nop 1")
a(f"v_permlane32_swap_b32 v{FM}, v{FM+1}")
a("s_nop 1")
a(f"v_max_f32 v{FM}, v{FM}, v{FM+1}")
for i in range(16):
    a(f"v_mov_b32 v{OB+i}, 0")
a(f"s_mov_b32 s{S_XOFF}, 0")
a(f"s_mov_b32 s{S_LOOP}, 64")
a.label("L_fb2")
kv_load(Cnt(a, "vmcnt", 63), 0, 4)
a("s_waitcnt vmcnt(0)")
a(f"v_mfma_f32_32x32x16_bf16 {vr(SA,16)}, {vr(Kf(0),4)}, {vr(QB,4)}, 0")
a(f"s_add_u32 s{S_XOFF}, s{S_XOFF}, 2048")
a("s_nop 7")
a("s_nop 3")
for i in range(16):
    a(f"v_sub_f32 v{SA+i}, v{SA+i}, v{FM}")
for i in range(16):
    a(f"v_exp_f32 v{SA+i}, v{SA+i}")
a("s_nop 1")
smf(OB, Vf(0, 0), SA)
smf(OB, Vf(0, 1), SA+8)
a(f"s_sub_u32 s{S_LOOP}, s{S_LOOP}, 1")
a(f"s_cmp_lg_u32 s{S_LOOP}, 0")
a("s_nop 7")
a("s_cbranch_scc1 L_fb2")
a("s_nop 7")
a("s_nop 3")
a(f"v_rcp_f32 v10, v{OB+8}")
a("s_branch L_attn_fin")

a.raw('.section .rodata,"a"')
a.raw(".p2align 6")
a.raw(f".amdhsa_kernel {NAME}_kernel")
a.raw("  .amdhsa_next_free_vgpr 256")
a.raw("  .amdhsa_next_free_sgpr 102")
a.raw("  .amdhsa_accum_offset 256")
a.raw("  .amdhsa_group_segment_fixed_size 0")
a.raw("  .amdhsa_kernarg_size 88")
a.raw("  .amdhsa_user_sgpr_count 2")
a.raw("  .amdhsa_user_sgpr_kernarg_segment_ptr 1")
a.raw("  .amdhsa_system_sgpr_workgroup_id_x 1")
a.raw(".end_amdhsa_kernel")

out = [x for x in args if not x.startswith("--")]
open(out[0] if out else "cdna_kernels/" + NAME + ".s", "w").write(a.text())
```

```python
import sys, math
from lib import *

NAME = "sequential_preLN__softmax_full_mha__dense_activation_gelu__prompt"
args = sys.argv[1:]
def opt(n, d):
    for x in args:
        if x.startswith("--" + n + "="):
            return type(d)(x.split("=")[1])
    return d
STAMPS = "--stamps" in args
FORCE_FB = "--force-fallback" in args
LH = 2
NA = opt("na", 52)
IT1 = opt("it1", 4)
IT2 = opt("it2", 1)
TB1 = opt("tb1", 6)
TB2 = opt("tb2", 1)
T0B = opt("t0b", 1)
TEND = opt("tend", 1)
NBLK = opt("nblk", 2)
NPA = opt("npa", 2)
UKV = opt("ukv", 93)
NO = opt("no", 3)
NH = opt("nh", 2)
UP0 = opt("up0", 61)
UP1 = opt("up1", 92)
QP = opt("qp", 7)
KVL = opt("kvl", 1)
KVP = opt("kvp", 0)
SLP = opt("slp", 0)
HPK = opt("hpk", 0)
OPK = opt("opk", 0)
DO = opt("do", 0)
DH = opt("dh", 0)
NW2 = opt("nw2", 2)
BK = opt("bk", 0)
LATE = opt("late", 0)
SPF = opt("spf", 0)
SPF2 = opt("spf2", -1)
L2PF = opt("l2pf", 2)
NPB = opt("npb", 0)
XSW = opt("xsw", 0)
KVJ = opt("kvj", 0)
QPF = opt("qpf", -1)
NB0 = opt("nb0", 3)
EARLY = opt("early", 0)
MW = opt("mw", -1)
WM = opt("wm", 0)
BAT = opt("bat", 0)
LPOS = opt("lpos", 12)
KPOS = opt("kpos", -1)
PRA = 2
FLIP = opt("flip", 6)
FEND = opt("fend", 1)
STM = opt("stm", 0)
ORD = opt("ord", 1)
W2L = opt("w2l", 0)
WS1 = [int(c) for c in opt("ws1", "40202")]
WC = [sum(WS1[:k]) for k in range(6)]
LF = opt("lf", 1)
LOC = opt("loc", 1)
WPF = opt("wpf", 0)
RR2 = opt("rr2", 2)
OSP = opt("osp", 1)
NEAR = opt("near", 1)
PEEL = opt("peel", 0)
BP0, BP1 = opt("bp0", 13), opt("bp1", 13)
GST = opt("gst", 0)
TSPLIT = opt("tsplit", 1)
PRE = opt("pre", 1)
SKIP5 = opt("skip5", 1)
SEL = opt("sel", "").replace("_", " ")
PROBE = opt("probe", "").replace("_", " ")

S_WG, S_W = 2, 3
S_PC = 4
R_X, R_WQKV, R_WO, R_W1, R_W2, R_WS, R_OUT, R_B1, R_B2 = 8, 12, 16, 20, 24, 28, 32, 36, 40
KA = 44
S_HG, S_TB, S_TB2, S_J, S_N = 66, 67, 68, 69, 70
S_F0 = 71
T0, T1, T2, T3, T4, T5, T6, T7 = 72, 73, 74, 75, 76, 77, 78, 79
S_LOOP, S_XOFF, S_HEAD = 80, 81, 82
S_TILE = 83
S_MASKV = 84
S_D0, S_D1, S_D2, S_D3 = 86, 87, 88, 89
S_TS = 90
S_NT = 92
S_SPIN = 93
S_SAVE = 94
S_D4, S_D5 = 96, 97
S_STAGE = 101
S_SHR = 100
S_FOWN, S_FPOLL = 98, 99
S_ZG, S_ZO = 60, 61
S_OWN, S_OWN2 = 62, 63

WS_NONCE = 0
WS_PL = 0x1000
WS_FKV = 0x4000
WS_FC = 0x8000
WS_STAMP = 0x10000
WS_CS = 0x60000
WS_KV = 0x100000
WS_OF = 0x600000
WS_H = WS_OF + 0x20000
WS_GF = WS_OF + 0x40000
WS_GRP = WS_OF + 0xA0000
WS_SIZE = WS_OF + 0x2000000
F_PROBE = 768
F_O, F_H, F_G0, F_G1, F_G2 = 0, 128, 256, 384, 512

L_XN = 0
L_RING = 65536
L_Q = 32768
L_OX = 0
LDS_BYTES = 163840

V_LANE, V_ROWOFF, V_XNW = 1, 2, 3
V_DA, V_DB = 12, 13
V_B1 = 232
V_B2 = 236
V_REDW, V_REDR, V_L16 = 240, 244, 246
V_HRES = 252

a = Asm()
stamp_idx = [0]
def stamp(name):
    i = stamp_idx[0]
    stamp_idx[0] += 1
    if PROBE and name == "start":
        a("s_memrealtime s[6:7]")
    if PROBE and name == "setup":
        a("s_mov_b32 s1, 0")
    if PROBE == name:
        a(f"s_memrealtime {sr(S_TS,2)}")
        a("s_waitcnt lgkmcnt(0)")
        a(f"s_sub_u32 s1, s{S_TS}, s6")
    if PROBE and name == "end":
        a("s_mul_i32 s1, s1, 10")
        a("s_add_u32 s1, s1, 10000")
        a(f"s_cmp_lg_u32 s{S_WG}, 100")
        a("s_cbranch_scc1 L_nopin")
        a.label("L_pin")
        a(f"s_memrealtime {sr(S_TS,2)}")
        a("s_waitcnt lgkmcnt(0)")
        a(f"s_sub_u32 s{S_TS}, s{S_TS}, s6")
        a(f"s_cmp_lt_u32 s{S_TS}, s1")
        a("s_cbranch_scc1 L_pin")
        a.label("L_nopin")
    if not STAMPS:
        return
    if SEL and name not in ("start", "end") and not any(k in name for k in SEL.split(",")):
        return
    a.c(f"stamp {i} {name}")
    a(f"s_memtime {sr(S_TS,2)}")
    a(f"s_waitcnt lgkmcnt(0)")
    a(f"v_writelane_b32 v250, s{S_TS}, {i}")
    a(f"s_memrealtime {sr(S_TS,2)}")
    a(f"s_waitcnt lgkmcnt(0)")
    a(f"v_writelane_b32 v250, s{S_TS}, {i+32}")

def stamp_flush():
    if not STAMPS:
        return
    l = a.uniq("L_st")
    a(f"s_and_b32 s{T7}, s{S_W}, 3")
    a(f"s_cmp_lg_u32 s{T7}, {opt('sw', 0)}")
    a(f"s_cbranch_scc1 {l}")
    a(f"s_lshl_b32 s{T7}, s{S_WG}, 9")
    a(f"s_and_b32 s{T6}, s{S_W}, 4")
    a(f"s_lshl_b32 s{T6}, s{T6}, 6")
    a(f"s_add_u32 s{T7}, s{T7}, s{T6}")
    a(f"s_add_u32 s{T7}, s{T7}, {WS_STAMP}")
    a(f"v_lshlrev_b32 v251, 2, v{V_LANE}")
    a(f"buffer_store_dword v250, v251, {sr(R_WS,4)}, s{T7} offen")
    a.label(l)

def srd(r, ptr, size):
    a(f"s_mov_b32 s{r}, s{ptr}")
    a(f"s_mov_b32 s{r+1}, s{ptr+1}")
    a(f"s_mov_b32 s{r+2}, {size}")
    a(f"s_mov_b32 s{r+3}, 0x00020000")

def flag_addr(base, line_own, word_own, line_poll, sh=8):
    a(f"s_lshl_b32 s{S_FOWN}, s{line_own}, {sh}")
    a(f"s_lshl_b32 s{T7}, s{word_own}, 2")
    a(f"s_add_u32 s{S_FOWN}, s{S_FOWN}, s{T7}")
    a(f"s_add_u32 s{S_FOWN}, s{S_FOWN}, {base}")
    a(f"s_lshl_b32 s{S_FPOLL}, s{line_poll}, {sh}")
    a(f"s_add_u32 s{S_FPOLL}, s{S_FPOLL}, {base}")

def grp_flags(tb_own, z_own, word):
    a(f"s_add_u32 s{S_FPOLL}, s{S_ZG}, {WS_GRP}")
    a(f"s_lshl_b32 s{T7}, s{word}, 2")
    a(f"s_add_u32 s{S_FOWN}, s{z_own}, s{T7}")
    a(f"s_add_u32 s{S_FOWN}, s{S_FOWN}, {WS_GRP}")

def half_issue():
    a(f"s_lshl_b32 s{S_ZG}, s{S_TB2}, 6")
    a(f"s_add_u32 s{S_ZG}, s{S_ZG}, {WS_PL}")
    a(f"s_lshl_b32 s{S_ZO}, s{S_TB}, 6")
    a(f"s_add_u32 s{S_ZO}, s{S_ZO}, {WS_PL}")
    a(f"s_mov_b32 s{S_SPIN}, 0")
    a.c("cached first try: an old copy only fails the tag test")
    a(f"s_load_dwordx2 {sr(KA+12,2)}, {sr(KA+20,2)}, s{S_ZG}")
    a(f"s_load_dwordx2 {sr(KA+14,2)}, {sr(KA+20,2)}, s{S_ZO}")

def half_check():
    l, l_ok = a.uniq("L_hp"), a.uniq("L_hok")
    a.label(l)
    a("s_waitcnt lgkmcnt(0)")
    for k in range(4):
        a(f"s_cmp_eq_u32 s{KA+12+k}, s{S_N}")
        a(f"s_cselect_b32 s{KA+12+k}, 8192, 0")
    a(f"s_or_b32 s{KA+12}, s{KA+12}, s{KA+13}")
    a(f"s_or_b32 s{KA+14}, s{KA+14}, s{KA+15}")
    a(f"s_and_b32 s{KA+12}, s{KA+12}, s{KA+14}")
    a(f"s_cbranch_scc1 {l_ok}")
    a(f"s_add_u32 s{S_SPIN}, s{S_SPIN}, 1")
    a(f"s_cmp_gt_u32 s{S_SPIN}, 200000")
    a(f"s_cbranch_scc1 {l_ok}")
    a(f"s_load_dwordx2 {sr(KA+12,2)}, {sr(KA+20,2)}, s{S_ZG} glc")
    a(f"s_load_dwordx2 {sr(KA+14,2)}, {sr(KA+20,2)}, s{S_ZO} glc")
    a(f"s_branch {l}")
    a.label(l_ok)
    a(f"s_lshl_b32 s{S_ZG}, s{S_TB2}, 20")
    a(f"s_add_u32 s{S_ZG}, s{S_ZG}, s{KA+13}")
    a(f"s_lshl_b32 s{S_ZO}, s{S_TB}, 20")
    a(f"s_add_u32 s{S_ZO}, s{S_ZO}, s{KA+15}")
    a(f"s_add_u32 s{S_HEAD}, s{S_HEAD}, s{S_ZO}")

def flag_store(poller, off=0, peek=False):
    l = a.uniq("L_nf")
    a(f"s_cmp_lg_u32 s{S_W}, {poller}")
    a(f"s_cbranch_scc1 {l}")
    a(f"s_mov_b64 exec, 1")
    a(f"buffer_store_dword v248, v249, {sr(R_WS,4)}, s{S_FOWN} offen offset:{off} sc1")
    if peek:
        a(f"s_mov_b64 exec, 0xff")
        a(f"buffer_load_dword v247, v249, {sr(R_WS,4)}, s{S_FPOLL} offen offset:{off} sc1")
    a(f"s_mov_b64 exec, -1")
    a.label(l)

def flag_poll(poller, nflags, off=0, va=249):
    l_skip, l_poll, l_done = a.uniq("L_skip"), a.uniq("L_poll"), a.uniq("L_done")
    if poller is None:
        a(f"v_cmp_eq_u32 vcc, v247, v248")
        a("s_nop 0")
        a(f"s_and_b32 s{T7}, vcc_lo, {(1 << nflags) - 1:#x}")
        a(f"s_cmp_eq_u32 s{T7}, {(1 << nflags) - 1:#x}")
    else:
        a(f"s_cmp_lg_u32 s{S_W}, {poller}")
    a(f"s_cbranch_scc1 {l_skip}")
    a(f"s_mov_b32 exec_hi, 0")
    a(f"s_mov_b32 exec_lo, {(1 << nflags) - 1:#x}")
    a(f"s_mov_b32 s{S_SPIN}, 0")
    a.label(l_poll)
    a(f"buffer_load_dword v247, v{va}, {sr(R_WS,4)}, s{S_FPOLL} offen offset:{off} sc1")
    a(f"s_add_u32 s{S_SPIN}, s{S_SPIN}, 1")
    a("s_waitcnt vmcnt(0)")
    a(f"v_cmp_eq_u32 vcc, v247, v248")
    a(f"s_cmp_gt_u32 s{S_SPIN}, 200000")
    a(f"s_cbranch_scc1 {l_done}")
    a(f"s_cmp_eq_u64 vcc, exec")
    if BK:
        a(f"s_cbranch_scc1 {l_done}")
        a(f"s_sleep {BK}")
        a(f"s_branch {l_poll}")
    else:
        a(f"s_cbranch_scc0 {l_poll}")
    a.label(l_done)
    a("s_mov_b64 exec, -1")
    a.label(l_skip)

def peek_check(n, ok):
    a(f"s_waitcnt vmcnt({n})")
    a(f"v_cmp_eq_u32 vcc, v247, v248")
    a("s_nop 0")
    a(f"s_and_b32 s{T7}, vcc_lo, 0xff")
    a(f"s_cmp_eq_u32 s{T7}, 0xff")
    a(f"s_cbranch_scc1 {ok}")

def spoll_issue(off):
    a(f"s_add_u32 s{KA+2}, s{S_FPOLL}, {off}")
    a(f"s_load_dwordx8 {sr(KA+4,8)}, {sr(KA+20,2)}, s{KA+2} glc")
    a(f"s_mov_b32 s{KA}, s{S_N}")
    a(f"s_mov_b32 s{KA+1}, s{S_N}")
    a(f"s_mov_b32 s{KA+3}, 0")

def spoll_check(off):
    l, l_ok = a.uniq("L_sp"), a.uniq("L_spok")
    a.label(l)
    a("s_waitcnt lgkmcnt(0)")
    for k in range(4):
        a(f"s_xor_b64 {sr(KA+4+2*k,2)}, {sr(KA+4+2*k,2)}, {sr(KA,2)}")
    for k in range(1, 4):
        a(f"s_or_b64 {sr(KA+4,2)}, {sr(KA+4,2)}, {sr(KA+4+2*k,2)}")
    a(f"s_cbranch_scc0 {l_ok}")
    if BK:
        a(f"s_sleep {BK}")
    a(f"s_load_dwordx8 {sr(KA+4,8)}, {sr(KA+20,2)}, s{KA+2} glc")
    a(f"s_add_u32 s{KA+3}, s{KA+3}, 1")
    a(f"s_cmp_lt_u32 s{KA+3}, 16")
    a(f"s_cbranch_scc1 {l}")
    a("s_waitcnt lgkmcnt(0)")
    a(f"v_not_b32 v247, v248")
    flag_poll(None, 8, off)
    a.label(l_ok)

LN_X, LN_D, LN_T = 16, 48, 56

def ln_loads(vm, rsrc, soff, flags=""):
    for i in range(8):
        so, imm = (soff[i >> 1], 128*(i & 1)) if isinstance(soff, list) else (soff, 128*i)
        a(f"buffer_load_dwordx4 {vr(LN_X+4*i,4)}, v{V_ROWOFF}, {sr(rsrc,4)}, s{so} offen offset:{imm} {flags}")
        vm.issue(("x", i))

def ln_consts():
    t = LN_T
    a(f"v_mov_b32 v{t+4}, 0x3f803f80")
    a(f"v_mov_b32 v{t+5}, 0x00003f80")
    a(f"v_mov_b32 v{t+6}, 0x3f800000")
    a(f"v_mov_b32 v{t}, 0")
    a(f"v_mov_b32 v{t+1}, 0")

def ln_stats(vm, scale):
    t = LN_T
    for i in range(8):
        vm.wait(("x", i))
        if i == SPF2 and SPF < 3:
            w_touch(QKV_SEG[SPF:])
        if i in (7,) and scale >= 1.0:
            stamp(f"x{i} in {scale}")
        a.raw(".p2align 3")
        for j in range(4):
            a(f"v_dot2_f32_bf16 v{t}, v{LN_X+4*i+j}, v{t+4}, v{t}")
            a(f"v_dot2_f32_bf16 v{t+1}, v{LN_X+4*i+j}, v{LN_X+4*i+j}, v{t+1}")

def sum8_pair(t):
    a("s_nop 1")
    for ctl in ("quad_perm:[1,0,3,2]", "quad_perm:[2,3,0,1]", "row_half_mirror"):
        a("s_nop 0")
        a(f"v_add_f32_dpp v{t}, v{t}, v{t} {ctl} row_mask:0xf bank_mask:0xf")
        a(f"v_add_f32_dpp v{t+1}, v{t+1}, v{t+1} {ctl} row_mask:0xf bank_mask:0xf")

def ln_norm(scale, vm=None):
    t = LN_T
    sum8_pair(t)
    a(f"v_mul_f32 v{t}, {f32(-1.0/512)}, v{t}")
    a(f"v_mul_f32 v{t+2}, v{t}, v{t}")
    a(f"v_mul_f32 v{t+1}, {f32(1.0/512)}, v{t+1}")
    a(f"v_sub_f32 v{t+1}, v{t+1}, v{t+2}")
    a(f"v_max_f32 v{t+1}, 0, v{t+1}")
    a(f"v_add_f32 v{t+1}, {f32(1e-5)}, v{t+1}")
    a(f"v_rsq_f32 v{t+2}, v{t+1}")
    a("s_nop 0")
    if scale != 1.0:
        a(f"v_mul_f32 v{t+2}, {f32(scale)}, v{t+2}")
    a(f"v_mov_b32 v{t+3}, v{t+2}")
    for i in range(8):
        if vm:
            vm.wait(("x", i))
        a.raw(".p2align 3")
        for j in range(4):
            a(f"v_dot2_f32_bf16 v{LN_D+2*j}, v{LN_X+4*i+j}, v{t+5}, v{t}")
            a(f"v_dot2_f32_bf16 v{LN_D+2*j+1}, v{LN_X+4*i+j}, v{t+6}, v{t}")
        for j in range(4):
            a(f"v_pk_mul_f32 {vr(LN_D+2*j,2)}, {vr(LN_D+2*j,2)}, {vr(t+2,2)}")
        for j in range(4):
            a(f"v_cvt_pk_bf16_f32 v{LN_X+4*i+j}, v{LN_D+2*j}, v{LN_D+2*j+1}")
        a(f"ds_write_b128 v{V_XNW}, {vr(LN_X+4*i,4)} offset:{L_XN + 4096*i}")

def dma_addr(dst, row_bytes, col_s):
    a(f"v_lshrrev_b32 v10, 3, v{V_LANE}")
    a(f"v_and_b32 v11, 7, v{V_LANE}")
    a(f"v_lshlrev_b32 v{dst}, 1, v10")
    a(f"v_and_b32 v{dst}, 4, v{dst}")
    a(f"v_xor_b32 v11, v11, v{dst}")
    a(f"v_mul_u32_u24 v10, {row_bytes}, v10")
    a(f"v_lshl_add_u32 v10, v11, 4, v10")
    a(f"v_add_u32 v{dst}, s{col_s}, v10")

def dma(vm, tag, rsrc, vaddr, sg, goff, sl, loff, flags=""):
    a(f"s_add_u32 m0, s{sl}, {loff}")
    a(f"s_add_u32 s{T7}, s{sg}, {goff}")
    a(f"buffer_load_dwordx4 v{vaddr}, {sr(rsrc,4)}, s{T7} offen {flags} lds")
    vm.issue(tag)

def tr_lane_addr(dst, hp_s, perm):
    a(f"v_bfe_u32 v10, v{V_LANE}, 2, 2")
    a(f"v_lshrrev_b32 v11, 1, v10")
    a(f"v_xor_b32 v11, s{hp_s}, v11")
    a(f"v_lshlrev_b32 v11, 6, v11")
    a(f"v_lshl_add_u32 v11, v10, 7, v11")
    a(f"v_bfe_u32 v10, v{V_LANE}, 4, 1")
    a(f"v_lshl_add_u32 v11, v10, 5, v11")
    if perm:
        a(f"v_and_b32 v10, 1, v{V_LANE}")
        a(f"v_lshl_add_u32 v11, v10, 4, v11")
        a(f"v_bfe_u32 v10, v{V_LANE}, 1, 1")
        a(f"v_lshl_add_u32 v11, v10, 3, v11")
    else:
        a(f"v_and_b32 v10, 3, v{V_LANE}")
        a(f"v_lshl_add_u32 v11, v10, 3, v11")
    a(f"v_lshrrev_b32 v10, 5, v{V_LANE}")
    a(f"v_lshl_add_u32 v{dst}, v10, 10, v11")

def tr_read(dst, vaddr, off):
    a(f"ds_read_b64_tr_b16 {vr(dst,2)}, v{vaddr} offset:{off}")
    a(f"ds_read_b64_tr_b16 {vr(dst+2,2)}, v{vaddr} offset:{off+512}")

G_X = 16
G_XA, G_WA = 4, 8

FAKE = opt("fake", "")
def mm(kind, acc, A, B, t, zero):
    if kind in FAKE:
        for k in range(2):
            d = vr(acc + 4*((2*t + k) % 4), 4)
            a(f"v_mfma_f32_16x16x32_bf16 {d}, {A}, {B}, {'0' if zero and t < 2 else d}")
    else:
        d = vr(acc, 16)
        a(f"v_mfma_f32_32x32x16_bf16 {d}, {A}, {B}, {'0' if zero and t == 0 else d}")

def capture(f, *x):
    keep, a.L = a.L, []
    f(*x)
    out, a.L = [l.strip() for l in a.L if not l.strip().startswith(";")], keep
    return out

def w_addr():
    a(f"s_bfe_u32 s{T0}, s{S_W}, 0x10001")
    tr_lane_addr(G_WA, T0, True)
    a(f"v_add_u32 v{G_WA}, {L_RING}, v{G_WA}")
    a(f"v_add_u32 v{G_WA+1}, 49152, v{G_WA}")

def x_addr(raw):
    a(f"s_and_b32 s{T0}, s{S_W}, 1")
    a(f"s_lshl_b32 s{T0}, s{T0}, 15")
    if raw:
        a(f"v_bfe_u32 v10, v{V_LANE}, 3, 2")
        a(f"v_lshlrev_b32 v10, 13, v10")
        a(f"v_and_b32 v11, 7, v{V_LANE}")
        a(f"v_lshl_add_u32 v10, v11, 7, v10")
        a(f"v_add_u32 v10, s{T0}, v10")
        a(f"v_bfe_u32 v11, v{V_LANE}, 1, 3")
        a(f"v_lshrrev_b32 v{G_XA}, 5, v{V_LANE}")
        a(f"v_xor_b32 v11, v11, v{G_XA}")
        for b in range(4):
            a(f"v_xor_b32 v{G_XA+b}, {2*b}, v11")
            a(f"v_lshl_add_u32 v{G_XA+b}, v{G_XA+b}, 4, v10")
    else:
        for b in range(4):
            a(f"v_lshrrev_b32 v10, 5, v{V_LANE}")
            a(f"v_add_u32 v10, {2*b}, v10")
            a(f"v_and_b32 v11, 31, v{V_LANE}")
            a(f"v_xor_b32 v11, v11, v10")
            a(f"v_lshlrev_b32 v11, 4, v11")
            a(f"v_lshl_add_u32 v11, v10, 9, v11")
            a(f"v_add_u32 v{G_XA+b}, s{T0}, v11")

def w_read(dst, u):
    off = ((u >> 3) % 6)*16384 + (u & 7)*2048
    if off >= 49152:
        tr_read(dst, G_WA + 1, off - 49152)
    else:
        tr_read(dst, G_WA, off)

def gemm_compute(vm, acc, wf, swapped, zero_c, inject, before, bars, nm, xstride, w0=None, joint=False):
    lg = Cnt(a, "lgkmcnt", 15)
    nxt = [0]
    def unit(u):
        return (u & 1, u >> 1) if (joint and u < 64) else (u >> 5, u & 31)
    def rd(u):
        if u % 8 == 0 and (u >> 3) in bars:
            vm.wait(("w", u >> 3), ("x", u >> 3), extra="" if u else "lgkmcnt(0)")
            if u == 0 and nm == "p1":
                pass
            a("s_barrier")
        seg, t = unit(u)
        if seg == 0:
            a(f"ds_read_b128 {vr(G_X+4*t,4)}, v{G_XA+(t&3)} offset:{L_XN + (t>>2)*xstride}")
            lg.issue(u)
        if u >= 32 or not w0:
            w_read(wf[u % 6], u)
            lg.issue(u, 2)
    def fill(upto):
        while nxt[0] <= min(upto, 95):
            rd(nxt[0]); nxt[0] += 1
    fill(5 if joint else 3)
    for u in range(96):
        seg, t = unit(u)
        if u % 32 == 0 and GST:
            stamp(f"{nm} pass{u >> 5}")
        if u in before:
            before[u]()
        if u < 32 and not joint:
            lg.wait(u)
        elif u % 2 == 0:
            lg.wait(u + 1)
        x, d = vr(G_X+4*t, 4), vr(acc[seg], 16)
        w = vr(w0(t) if (w0 and u < 32) else wf[u % 6], 4)
        c = "0" if (seg in zero_c and t == 0) else d
        if seg in swapped:
            mm(nm[1], acc[seg], x, w, t, seg in zero_c)
        else:
            mm(nm[1], acc[seg], w, x, t, seg in zero_c)
        fill(u + (6 if joint else 4 if u < 28 else 5 if u < 29 else 6))
        for ins in inject.get(u, []):
            if isinstance(ins, tuple):
                a(ins[0]); vm.issue(ins[1])
            else:
                a(ins)

def spread(inject, items, u0, u1):
    tot = sum(c for _, c in items)
    acc = 0
    for ins, c in items:
        u = u0 + min(u1 - u0 - 1, int(acc * (u1 - u0) / tot))
        inject.setdefault(u, []).append(ins)
        acc += c

S_RG = [S_D0, S_D1, S_D2, S_D3]
def ring_setup(row_bytes, rot, rows=32):
    a(f"s_and_b32 s{S_D5}, s{S_W}, 3")
    a(f"s_mul_i32 s{T0}, s{S_D5}, {rows*row_bytes}")
    a(f"s_lshl_b32 s{S_D5}, s{S_D5}, 12")
    for c in range(4):
        if rot:
            a(f"s_add_u32 s{T7}, s{rot}, {c}")
            a(f"s_and_b32 s{T7}, s{T7}, 3")
            a(f"s_mul_i32 s{T7}, s{T7}, {128*row_bytes}")
            a(f"s_add_u32 s{S_RG[c]}, s{T0}, s{T7}")
        else:
            a(f"s_add_u32 s{S_RG[c]}, s{T0}, {c*128*row_bytes}")

def ring_issue(vm, rsrc, row_bytes, seg_off, n):
    if rsrc == R_W1 and "%x" % n in opt("skipw", ""):
        return
    for p in range(4):
        dma(vm, ("w", n), rsrc, V_DB, S_RG[n & 3], seg_off[n >> 2] + p*8*row_bytes, S_D5, L_RING + (n % 6)*16384 + p*1024)

def qkv_issue(vm, n):
    if not KVJ:
        return ring_issue(vm, R_WQKV, 3072, QKV_SEG, n)
    if n == 8:
        a(f"s_mul_i32 s{T7}, s{S_D5}, 12")
        for c in range(4):
            a(f"s_add_u32 s{S_RG[c]}, s{S_RG[c]}, s{T7}")
    if n >= 8:
        return ring_issue(vm, R_WQKV, 3072, QKV_SEG, n)
    for p in range(4):
        dma(vm, ("w", n), R_WQKV, V_DB, S_RG[n >> 1], QKV_SEG[p >> 1] + ((n & 1)*64 + (p & 1)*8)*3072, S_D5, L_RING + (n % 6)*16384 + p*1024)

def swap23(dst, mask, tmp):
    a(f"v_and_b32 v{dst}, {mask & ~12:#x}, v{V_LANE}")
    a(f"v_bfe_u32 v{tmp}, v{V_LANE}, 2, 1")
    a(f"v_lshl_add_u32 v{dst}, v{tmp}, 3, v{dst}")
    a(f"v_bfe_u32 v{tmp}, v{V_LANE}, 3, 1")
    a(f"v_lshl_add_u32 v{dst}, v{tmp}, 2, v{dst}")

def only(w, f, *x):
    l = a.uniq("L_w")
    a(f"s_cmp_lg_u32 s{S_W}, {w}")
    a(f"s_cbranch_scc1 {l}")
    f(*x)
    a.label(l)

def is_a(label):
    a(f"s_cmp_lt_u32 s{S_W}, 4")
    a(f"s_cbranch_scc1 {label}")

def act_setup(nblk, base, pairs):
    a(f"s_and_b32 s{T0}, s{S_W}, 3")
    a(f"s_lshl_b32 s{T3}, s{T0}, 10")
    a(f"s_lshl_b32 s{T0}, s{T0}, {11 if pairs else 10}")
    a(f"s_add_u32 s{T0}, s{T0}, s{S_ZG}")
    a(f"s_add_u32 s{T4}, s{T0}, {base}")
    a(f"s_and_b32 s{T0}, s{S_W}, 2")
    a(f"s_lshl_b32 s{T0}, s{T0}, 12")
    a(f"v_add_u32 v4, s{T0}, v{V_L16}")
    a(f"v_add_u32 v5, 65536, v4")
    a(f"v_add_u32 v6, 131072, v4")

def act_issue(vm, q, slot, nblk, pairs):
    for kh in range(2):
        for tb32 in range(2):
            g = (tb32*nblk + q)*16384 + kh*1024 if pairs else (tb32*nblk + 2*kh + (q >> 1))*16384 + (q & 1)*4096
            dma(vm, ("a", q), R_WS, V_L16, T0 if (ORD and not pairs and q & 1) else T4, g, T3, slot*16384 + kh*8192 + tb32*4096, "sc1")

def tile_compute(vm, nsteps, slots, wreg, acc, af, inject={}, skip=()):
    lg = Cnt(a, "lgkmcnt", 15)
    last = 4*((nsteps - 1)//4)
    seq = [(t, b) for t in range(last) for b in range(2)]
    if TSPLIT:
        seq += [(t, b) for b in range(2) for t in range(last, nsteps)]
    else:
        seq += [(t, b) for t in range(last, nsteps) for b in range(2)]
    n = len(seq)
    def rd(u):
        if u >= n: return
        t, tb32 = seq[u]
        if u % 8 == 0 and (t >> 2) not in skip:
            vm.wait(("a", t >> 2), *[("a", k) for k in skip if k == (t >> 2) + 1])
            a("s_barrier")
        off = slots[t >> 2]*16384 + tb32*4096 + (t & 3)*1024
        a(f"ds_read_b128 {vr(af+4*(u&3),4)}, v{4 + off//65536} offset:{off % 65536}")
        lg.issue(u)
    def wr(tb32):
        for i in range(4):
            a(f"ds_write_b128 v{V_REDW+i}, {vr(acc+16*tb32+4*i,4)} offset:{tb32*8192}")
    for u in range(4):
        rd(u)
    for u in range(n):
        t, tb32 = seq[u]
        lg.wait(u)
        d = vr(acc + 16*tb32, 16)
        mm("t", acc + 16*tb32, vr(wreg(t),4), vr(af+4*(u&3),4), t, True)
        rd(u + 4)
        for x in inject.get(u, []):
            a(x)
    if TSPLIT:
        k = 2*(nsteps - last)
        a(f"s_nop {11 - k}")
        wr(0)
        if k > 4:
            a(f"s_nop {k - 5}")
        wr(1)
    else:
        a("s_nop 7")
        a("s_nop 2")
        wr(0)
        wr(1)
    a("s_waitcnt lgkmcnt(0)")

def tile_loader(vm, nsteps, after, skip=()):
    for q in range((nsteps + 3)//4):
        if q not in skip:
            vm.wait(("a", q))
            a("s_barrier")
        after(q)

def reduce_addr():
    a(f"s_and_b32 s{T0}, s{S_W}, 2")
    a(f"s_lshl_b32 s{T0}, s{T0}, 13")
    a(f"s_and_b32 s{T1}, s{S_W}, 1")
    a(f"s_lshl_b32 s{T1}, s{T1}, 2")
    a(f"v_and_b32 v10, 31, v{V_LANE}")
    a(f"v_lshlrev_b32 v10, 8, v10")
    a(f"v_lshrrev_b32 v11, 5, v{V_LANE}")
    a(f"v_xor_b32 v11, v11, v{V_LANE}")
    a(f"v_and_b32 v11, 1, v11")
    a(f"v_lshl_add_u32 v10, v11, 7, v10")
    a(f"v_add_u32 v10, s{T0}, v10")
    a(f"v_and_b32 v11, 7, v{V_LANE}")
    a(f"v_xor_b32 v11, s{T1}, v11")
    for i in range(4):
        a(f"v_xor_b32 v{V_REDW+i}, {i}, v11")
        a(f"v_lshl_add_u32 v{V_REDW+i}, v{V_REDW+i}, 4, v10")
    a(f"v_lshrrev_b32 v10, 3, v0")
    a(f"v_xor_b32 v11, v10, v0")
    a(f"v_and_b32 v11, 7, v11")
    a(f"v_lshlrev_b32 v11, 4, v11")
    a(f"v_lshl_add_u32 v11, v10, 8, v11")
    a(f"v_and_b32 v10, 1, v10")
    a(f"v_lshl_add_u32 v{V_REDR}, v10, 7, v11")
    a(f"v_xor_b32 v{V_REDR+1}, 128, v{V_REDR}")

def tile_gather(dst):
    a("s_barrier")
    a(f"ds_read_b128 {vr(dst,4)}, v{V_REDR}")
    a(f"ds_read_b128 {vr(dst+8,4)}, v{V_REDR} offset:16384")
    a(f"ds_read_b128 {vr(dst+4,4)}, v{V_REDR+1}")
    a(f"ds_read_b128 {vr(dst+12,4)}, v{V_REDR+1} offset:16384")

def unpack8(dst, src):
    L = []
    for i in range(4):
        L.append(f"v_lshlrev_b32 v{dst+2*i}, 16, v{src+i}")
        L.append(f"v_and_b32 v{dst+2*i+1}, 0xffff0000, v{src+i}")
    return L

hdr = open("cdna_kernels/" + NAME + ".s.ref").read().split("\n")
for line in hdr:
    if line.startswith("; Override"):
        break
    a.raw(line)
a.raw(f"; @launch grid=(256,1,1) block=(512,1,1) lds={LDS_BYTES}")
a.raw("""; One persistent launch, 256 workgroups x 8 waves, one workgroup per CU.
; loads after the flag.  Nothing assumes a placement: ids and the timed choice of a memory half only affect speed.""")
a.raw('.amdgcn_target "amdgcn-amd-amdhsa--gfx950"')
a.raw(".text")
a.raw(f".globl {NAME}_kernel")
a.raw(".p2align 8")
a.raw(f".type {NAME}_kernel,@function")
a.label(f"{NAME}_kernel")

vm = Cnt(a, "vmcnt", 63)
def new_vm(): return Cnt(a, "vmcnt", 63)
a(f"s_cmp_ge_u32 s{S_WG}, 256")
a("s_cbranch_scc1 L_end")
if STAMPS:
    a("v_mov_b32 v250, 0")
stamp("start")
a(f"s_load_dwordx16 {sr(KA,16)}, s[0:1], 0")
a(f"s_load_dwordx4 {sr(KA+16,4)}, s[0:1], 64")
a(f"s_load_dwordx2 {sr(KA+20,2)}, s[0:1], 80")
a(f"s_getpc_b64 {sr(S_PC,2)}")
a.label("L_pc")
a.c("pull this kernel's code into L2, two lines per wave")
a("v_lshrrev_b32 v4, 6, v0")
a(f"s_and_b32 s{T0}, s{S_WG}, 0xf8")
a(f"v_readfirstlane_b32 s{S_W}, v4")
a(f"v_and_b32 v{V_LANE}, 63, v0")
a(f"v_lshl_add_u32 v5, v{V_LANE}, 8, v4")
a(f"v_add_u32 v5, s{T0}, v5")
a(f"v_lshlrev_b32 v5, 7, v5")
a(f"v_min_u32 v5, L_code_end-L_pc-4, v5")
a("s_mov_b64 exec, 3")
a(f"global_load_dword v251, v5, {sr(S_PC,2)}")
vm.issue("pf")
a("s_mov_b64 exec, -1")
a.c("roles: attention (hg, tb), MLP (tb2, j)")
a(f"s_and_b32 s{T0}, s{S_WG}, 7")
a(f"s_lshr_b32 s{T1}, s{S_WG}, 3")
a(f"s_lshr_b32 s{T2}, s{T0}, {3 - LH}")
a(f"s_lshl_b32 s{T2}, s{T2}, {5 - LH}")
a(f"s_lshr_b32 s{S_SHR}, s{T1}, {LH}")
a(f"s_add_u32 s{S_TB}, s{T2}, s{S_SHR}")
a(f"v_lshrrev_b32 v4, 3, v0")
if XSW:
    a(f"s_and_b32 s{T2}, s{T1}, 1")
    a(f"s_lshl_b32 s{S_STAGE}, s{T2}, 15")
    a(f"s_lshl_b32 s{T2}, s{T2}, 5")
    a(f"v_xor_b32 v4, s{T2}, v4")
a(f"v_and_b32 v5, 7, v0")
a(f"v_lshlrev_b32 v{V_ROWOFF}, 10, v4")
a(f"v_lshl_add_u32 v{V_ROWOFF}, v5, 4, v{V_ROWOFF}")
a(f"s_lshl_b32 s{T6}, s{S_TB}, 16")
for c in range(4):
    a(f"s_add_u32 s{T7}, s{S_SHR}, {c}")
    a(f"s_and_b32 s{T7}, s{T7}, 3")
    a(f"s_lshl_b32 s{T7}, s{T7}, 8")
    a(f"s_add_u32 s{S_RG[c]}, s{T6}, s{T7}")
a(f"s_mov_b32 s{R_X+2}, {2048*512*2}")
a(f"s_mov_b32 s{R_X+3}, 0x00020000")
QKV_SEG = [1024, 2048, 0]
a(f"s_lshl_b32 s{T4}, s{S_WG}, 1")
a(f"s_lshr_b32 s{T5}, s{S_W}, 2")
a(f"s_add_u32 s{T4}, s{T4}, s{T5}")
a(f"s_mul_i32 s{T4}, s{T4}, 3072")
a(f"s_and_b32 s{T5}, s{S_W}, 3")
a(f"s_lshl_b32 s{T5}, s{T5}, 8")
a(f"s_add_u32 s{T4}, s{T4}, s{T5}")
a("s_waitcnt lgkmcnt(0)")
a(f"s_mov_b64 {sr(R_X,2)}, {sr(KA,2)}")
a(f"s_add_u32 s{S_PC}, s{KA+2}, s{T4}")
a(f"s_addc_u32 s{S_PC+1}, s{KA+3}, 0")
def w_touch(segs):
    a.c("first touch of Wqkv (scalar path), a different quarter row by every wave")
    for o in segs:
        for i in range(4):
            a(f"s_load_dword s{S_SPIN}, {sr(S_PC,2)}, {o + 64*i}")
w_touch(QKV_SEG[:SPF])
if WPF:
    a(f"v_lshrrev_b32 v6, 1, v{V_LANE}")
    a(f"v_add_u32 v6, 1, v6")
    a(f"v_mul_u32_u24 v7, 11, v6")
    a(f"v_lshrrev_b32 v7, 5, v7")
    a(f"v_mul_u32_u24 v7, 3, v7")
    a(f"v_sub_u32 v6, v6, v7")
    a(f"v_lshlrev_b32 v6, 10, v6")
    a(f"v_and_b32 v7, 1, v{V_LANE}")
    a(f"v_lshl_add_u32 v6, v7, 7, v6")
    a(f"s_mov_b64 exec, {(1 << (2*WPF)) - 1}")
    a(f"global_load_dword v251, v6, {sr(S_PC,2)}")
    vm.issue("pf")
    a("s_mov_b64 exec, -1")
if EARLY:
    a(f"s_cmp_ge_u32 s{S_W}, 4")
    a("s_cbranch_scc1 L_x_later")
ln_loads(vm, R_X, S_RG)
if EARLY:
    a.label("L_x_later")
if XSW:
    a(f"v_xor_b32 v{V_ROWOFF}, s{S_STAGE}, v{V_ROWOFF}")
a(f"s_load_dword s{S_N}, {sr(KA+20,2)}, {WS_NONCE}")
srd(R_WQKV, KA+2, 512*1536*2)
a(f"s_and_b32 s{T2}, s{T0}, {(8 >> LH) - 1}")
a(f"s_and_b32 s{T3}, s{T1}, {(1 << LH) - 1}")
a(f"s_lshl_b32 s{T3}, s{T3}, {3 - LH}")
a(f"s_add_u32 s{S_HG}, s{T2}, s{T3}")
a(f"s_lshl_b32 s{T2}, s{T0}, 2")
a(f"s_and_b32 s{T3}, s{T1}, 3")
a(f"s_add_u32 s{S_TB2}, s{T2}, s{T3}")
a(f"s_lshr_b32 s{S_J}, s{T1}, 2")
a(f"v_and_b32 v6, 31, v4")
a(f"v_xor_b32 v6, v6, v5")
a(f"v_lshlrev_b32 v6, 4, v6")
a(f"v_lshl_add_u32 v6, v5, 9, v6")
a(f"v_lshrrev_b32 v4, 5, v4")
a(f"v_lshl_add_u32 v{V_XNW}, v4, 15, v6")
ln_consts()
W1_SEG = [0, 128, 256]

QA, QB, SA, SB, OA, OB = 16, 20, 24, 40, 56, 72
A_KV = 88
A_IDX, A_AV, A_AK = 8, 14, 15
A_W1, A_WO = 3, 12
A_ONE, A_QA = 214, 215
P_W = 160
def Kf(t, ns=4): return A_KV + 12*(t % ns)
def Vf(t, s, ns=4): return A_KV + 12*(t % ns) + 4 + 4*s
def F_W(t): return 140 + 4*t if t < 24 else 64 + 4*(t - 24)

def qkv_ring_setup():
    a(f"s_lshl_b32 s{T4}, s{S_HG}, 7")
    dma_addr(V_DB, 3072, T4)
    ring_setup(3072, S_SHR, 16 if KVJ else 32)

def common_setup():
    srd(R_WS, KA+20, WS_SIZE)
    srd(R_WO, KA+4, 512*512*2)
    srd(R_W1, KA+8, 512*1376*2)
    srd(R_B1, KA+10, 1376*2)
    srd(R_W2, KA+12, 1376*512*2)
    srd(R_B2, KA+14, 512*2)
    srd(R_OUT, KA+16, 2048*512*2)
    a(f"s_min_u32 s{T2}, s{S_J}, 3")
    a(f"s_mul_i32 s{S_F0}, s{S_J}, 5")
    a(f"s_add_u32 s{S_F0}, s{S_F0}, s{T2}")
    a(f"s_cmp_lt_u32 s{S_J}, 3")
    a(f"s_cselect_b32 s{S_NT}, 6, 5")
    a(f"s_lshl_b32 s{T4}, s{S_J}, 7")
    a(f"s_lshl_b32 s{T5}, s{S_TB2}, 16")
    a(f"s_add_u32 s{S_TILE}, s{T5}, s{T4}")
    a(f"v_lshlrev_b32 v{V_L16}, 4, v{V_LANE}")
    a(f"v_lshlrev_b32 v249, 2, v{V_LANE}")
    reduce_addr()
    a(f"s_and_b32 s{T0}, s{S_W}, 3")
    a(f"s_lshl_b32 s{T2}, s{S_HG}, 2")
    a(f"s_add_u32 s{T2}, s{T2}, s{T0}")
    a(f"s_lshl_b32 s{T2}, s{T2}, 17")
    a(f"s_add_u32 s{T2}, s{T2}, {WS_KV}")
    a(f"v_and_b32 v10, 15, v{V_LANE}")
    a(f"v_lshrrev_b32 v11, 5, v{V_LANE}")
    a(f"v_lshl_add_u32 v10, v11, 4, v10")
    a(f"v_lshl_add_u32 v{A_AV}, v10, 4, s{T2}")
    a(f"v_add_u32 v{A_AK}, s{T2}, v{V_L16}")
    a.c("waves 0-3 start on this workgroup's own two key tiles; the sweep over the others skips them")
    a(f"s_lshr_b32 s{T1}, s{S_W}, 2")
    a(f"s_mul_i32 s{S_XOFF}, s{T1}, {(NA - 2)*2048}")
    a(f"s_lshl_b32 s{S_OWN}, s{S_TB}, 12")
    a(f"s_add_u32 s{S_OWN2}, s{S_OWN}, 4096")
    if LOC:
        a(f"s_and_b32 s{S_OWN2}, s{S_OWN2}, 0x1ffff")
        a(f"s_and_b32 s{T2}, s{S_OWN}, 0x7fff")
        a(f"s_cmp_ge_u32 s{S_XOFF}, s{T2}")
        a(f"s_cselect_b32 s{T3}, 4096, 0")
        a(f"s_add_u32 s{S_XOFF}, s{S_XOFF}, s{T3}")
        a(f"s_and_b32 s{T2}, s{S_OWN}, 0x18000")
        a(f"s_add_u32 s{S_XOFF}, s{S_XOFF}, s{T2}")
        a(f"s_and_b32 s{S_XOFF}, s{S_XOFF}, 0x1ffff")
    else:
        a(f"s_cmp_ge_u32 s{S_XOFF}, s{S_OWN}")
        a(f"s_cselect_b32 s{T3}, 4096, 0")
        a(f"s_add_u32 s{S_XOFF}, s{S_XOFF}, s{T3}")
    a(f"s_mov_b32 s{S_MASKV}, 0xffff")
    a(f"s_mov_b32 s{S_MASKV+1}, 0xffff")
    a.c("rows 16 and 20 of the V operand are ones (row sums for both lane halves), the other spare rows zero")
    a(f"v_and_b32 v10, 0x1b, v{V_LANE}")
    a(f"v_cmp_eq_u32 vcc, 16, v10")
    a(f"v_mov_b32 v10, 0x3f803f80")
    a(f"v_mov_b32 v11, 0")
    a(f"v_cndmask_b32 v{A_ONE}, v11, v10, vcc")
    a(f"s_lshl_b32 s{T2}, s{S_W}, 10")
    a(f"v_add_u32 v{A_QA}, s{T2}, v{V_L16}")
    a(f"s_lshl_b32 s{T2}, s{T1}, 3")
    a(f"s_add_u32 s{T2}, s{T2}, s{S_HG}")
    a(f"s_lshl_b32 s{T2}, s{T2}, 2")
    a(f"s_add_u32 s{T2}, s{T2}, s{T0}")
    a(f"s_lshl_b32 s{T2}, s{T2}, 10")
    a(f"s_and_b32 s{T3}, s{T2}, 0xffffe000")
    a(f"s_add_u32 s{T2}, s{T2}, s{T3}")
    a(f"s_add_u32 s{S_HEAD}, s{T2}, {WS_OF}")

A_KF = 216
def kvflag_setup():
    if KVL:
        a(f"s_and_b32 s{S_SPIN}, s{S_TB}, 7")
        a(f"s_lshl_b32 s{S_FOWN}, s{S_TB}, 2")
        a(f"s_and_b32 s{S_FOWN}, s{S_FOWN}, 0x60")
        a(f"s_add_u32 s{S_SPIN}, s{S_SPIN}, s{S_FOWN}")
        flag_addr(WS_FKV, S_HG, S_SPIN, S_HG, 9)
        a(f"v_and_b32 v10, 7, v{V_LANE}")
        a(f"v_lshrrev_b32 v11, 3, v{V_LANE}")
        a(f"v_lshlrev_b32 v11, 7, v11")
        a(f"v_lshl_add_u32 v{A_KF}, v10, 2, v11")
    else:
        flag_addr(WS_FKV, S_HG, S_TB, S_HG, 9)
        a(f"v_mov_b32 v{A_KF}, v249")

def tag_setup():
    a.c("hand-off tag of this launch: next value of a full-period sequence after the one found in the workspace")
    a(f"s_mul_i32 s{S_N}, s{S_N}, 0x0019660d")
    a(f"s_add_u32 s{S_N}, s{S_N}, 0x3c6ef35f")
    a(f"v_mov_b32 v248, s{S_N}")

def misc_loads(v, with_b1):
    a.c("small operands needed much later: residual x tile, biases")
    a(f"buffer_load_dwordx4 {vr(V_HRES,4)}, v{V_ROWOFF}, {sr(R_X,4)}, s{S_TILE} offen")
    a(f"v_and_b32 v10, 0x70, v{V_L16}")
    a(f"s_lshl_b32 s{T7}, s{S_J}, 7")
    a(f"buffer_load_dwordx4 {vr(V_B2,4)}, v10, {sr(R_B2,4)}, s{T7} offen")
    v.issue("misc", 2)
    if with_b1:
        swap23(10, 31, 11)
        a(f"v_lshlrev_b32 v10, 1, v10")
        a(f"s_lshr_b32 s{T7}, s{S_W}, 1")
        a(f"s_add_u32 s{T7}, s{T7}, s{S_F0}")
        a(f"s_lshl_b32 s{T7}, s{T7}, 6")
        for seg in range(3):
            a(f"buffer_load_ushort v{V_B1+seg}, v10, {sr(R_B1,4)}, s{T7} offen offset:{seg*128}")
        v.issue("misc", 3)

def attn_zero(ns):
    L = [(SB+8+i, f"v_mov_b32 v{SB+8+i}, 0") for i in range(8)]
    L += [(o+i, f"v_mov_b32 v{o+i}, 0") for o in (OA, OB) for i in range(16)]
    L += [(Vf(t,0,ns)+i, f"v_mov_b32 v{Vf(t,0,ns)+i}, v{A_ONE}") for t in range(ns) for i in range(8)]
    return L

def q_reads():
    a(f"v_xor_b32 v10, 4096, v{A_QA}")
    a(f"ds_read_b128 {vr(QB,4)}, v{A_QA} offset:{L_Q}")
    a(f"ds_read_b128 {vr(QA,4)}, v10 offset:{L_Q}")

def kv_load(v, t, ns, part=None):
    imm = 2048*(t & 1)
    so = S_OWN if t < 0 else S_XOFF
    if part != "v":
        a(f"buffer_load_dwordx4 {vr(Kf(t,ns),4)}, v{A_AK}, {sr(R_WS,4)}, s{so} offen offset:{imm} sc1")
    if part == "k":
        return
    a(f"s_mov_b64 exec, {sr(S_MASKV,2)}")
    a(f"buffer_load_dwordx4 {vr(Vf(t,0,ns),4)}, v{A_AV}, {sr(R_WS,4)}, s{so} offen offset:{imm+1024} sc1")
    a(f"buffer_load_dwordx4 {vr(Vf(t,1,ns),4)}, v{A_AV}, {sr(R_WS,4)}, s{so} offen offset:{imm+1536} sc1")
    a("s_mov_b64 exec, -1")
    if t & 1 and t >= 0:
        a(f"s_add_u32 s{S_XOFF}, s{S_XOFF}, 4096")
        if LOC:
            a(f"s_and_b32 s{S_XOFF}, s{S_XOFF}, 0x1ffff")
        if ns == 6 or not LOC:
            a(f"s_cmp_eq_u32 s{S_XOFF}, s{S_OWN}")
            a(f"s_cselect_b32 s{S_XOFF}, s{S_OWN2}, s{S_XOFF}")
    v.issue(("kv", t), 3)
def kv_load2(v, t, ns):
    for k in range(2):
        a(f"buffer_load_dwordx4 {vr(Kf(t+k,ns),4)}, v{A_AK}, {sr(R_WS,4)}, s{S_XOFF} offen offset:{2048*k} sc1")
    a(f"s_mov_b64 exec, {sr(S_MASKV,2)}")
    for k in range(2):
        for h in range(2):
            a(f"buffer_load_dwordx4 {vr(Vf(t+k,h,ns),4)}, v{A_AV}, {sr(R_WS,4)}, s{S_XOFF} offen offset:{2048*k+1024+512*h} sc1")
    a("s_mov_b64 exec, -1")
    a(f"s_add_u32 s{S_XOFF}, s{S_XOFF}, 4096")
    a(f"s_and_b32 s{S_XOFF}, s{S_XOFF}, 0x1ffff")
    a(f"s_cmp_eq_u32 s{S_XOFF}, s{S_OWN}")
    a(f"s_cselect_b32 s{S_XOFF}, s{S_OWN2}, s{S_XOFF}")
    v.issue(("kv", t + 1), 5)
    v.issue(("kv", t), 1)
def smf(o, v, s):
    a(f"v_smfmac_f32_32x32x32_bf16 {vr(o,16)}, {vr(v,4)}, {vr(s,8)}, v{A_IDX}")
def attn_tile(v, t, ns, last=None, side=(), tail=None, load=True, order=None, skew=0):
    side = list(side)
    order = order or {1: [(0, 13)], 2: [(0, BP0), (1, BP1)], 4: [(0, 4), (0, 13), (1, 4), (1, 13)]}[NBLK]
    at = {}
    for k, f in enumerate(side):
        at.setdefault(order[k*len(order)//len(side)], []).append(f)
    for ph in range(2):
        S, So, O, Oo, Qo = (SA, SB, OA, OB, QB) if ph == 0 else (SB, SA, OB, OA, QA)
        for i in range(16):
            if skew and ph == 0 and i % skew == 0 and i // skew < 4:
                if i == 0:
                    a("s_setprio 3")
                only(4 + i // skew, lambda: a("s_setprio 1"))
            for f in at.get((ph, i), []):
                f()
            if i == 2:
                smf(Oo, Vf(t - 1 + ph, 1, ns), So + 8)
            if i == 5 and not (ph == 1 and t == last):
                if ph == 1:
                    v.wait(("kv", t + 1))
                a(f"v_mfma_f32_32x32x16_bf16 {vr(So,16)}, {vr(Kf(t+ph,ns),4)}, {vr(Qo,4)}, 0")
            if i == 10:
                smf(O, Vf(t, 0, ns), S)
            if ph == 0 and i == KPOS and ns == 6 and load and (last is None or t + ns - 1 <= last):
                kv_load(v, t + ns - 1, ns, "k")
            if ph == 0 and i == LPOS and load and (last is None or t + ns - 1 <= last):
                if BAT and ns == 6 and t >= 0:
                    if t % 2 == 0:
                        kv_load2(v, t + 4, ns)
                        if BAT == 1:
                            v.wait(("kv", t + 2))
                else:
                    kv_load(v, t + ns - 1, ns, "v" if KPOS >= 0 and ns == 6 else None)
                    if WM and t >= 0 and ns == 6:
                        v.wait(("kv", t + 1))
            if ph == 1 and i == 12 and tail:
                tail()
            a(f"v_exp_f32 v{S+i}, v{S+i}")
def send_a():
    a.c("block A is complete: hand it to the wave that has the other keys")
    a(f"s_lshl_b32 s{T2}, s{S_W}, 11")
    a(f"v_add_u32 v10, s{T2}, v{V_L16}")
    a(f"s_lshl_b32 s{T2}, s{S_W}, 8")
    a(f"v_add_u32 v11, s{T2}, v249")
    a(f"ds_write_b32 v11, v{OA+8} offset:{L_OX+16384}")
    a(f"ds_write_b128 v10, {vr(OA,4)} offset:{L_OX}")
    a(f"ds_write_b128 v10, {vr(OA+4,4)} offset:{L_OX+1024}")
def attn_first(v, t, ns, fill=None):
    v.wait(("kv", t), extra="lgkmcnt(0)")
    a(f"v_mfma_f32_32x32x16_bf16 {vr(SA,16)}, {vr(Kf(t,ns),4)}, {vr(QA,4)}, 0")
    if fill:
        fill()
    a("s_nop 7")
    a("s_nop 3")

a.c("======== phase 1: LN1 + QKV projection")
stamp("setup") if PROBE else None
va, vb = vm.copy(), vm.copy()
is_a("L_p1_a")
def w_prefetch(v, segs):
    if not segs:
        return
    a.c("4 rows per wave of the XCD's Wqkv columns into L2")
    a(f"s_lshr_b32 s{T5}, s{S_WG}, 3")
    a(f"s_lshl_b32 s{T5}, s{T5}, 2")
    a(f"s_and_b32 s{T7}, s{S_W}, 3")
    a(f"s_add_u32 s{T5}, s{T5}, s{T7}")
    a(f"s_mul_i32 s{T5}, s{T5}, {4*3072}")
    a(f"s_and_b32 s{T7}, s{S_HG}, {(8 >> LH) - 1}")
    a(f"s_lshl_b32 s{T7}, s{T7}, 7")
    a(f"s_add_u32 s{T5}, s{T5}, s{T7}")
    a(f"v_lshrrev_b32 v10, {LH}, v{V_LANE}")
    a(f"v_mul_u32_u24 v10, 3072, v10")
    a(f"v_and_b32 v11, {(1 << LH) - 1}, v{V_LANE}")
    a(f"v_lshl_add_u32 v10, v11, {10 - LH}, v10")
    a(f"s_mov_b64 exec, {(1 << (4 << LH)) - 1:#x}")
    for o in segs:
        a(f"buffer_load_dword v251, v10, {sr(R_WQKV,4)}, s{T5} offen offset:{o}")
        v.issue("pf")
    a("s_mov_b64 exec, -1")
L2A = opt('l2a', 0)
if EARLY:
    common_setup()
    a("v_mov_b32 v208, 0")
    a("v_mov_b32 v209, 0")
    if EARLY > 1:
        for r, x in attn_zero(4):
            if r >= 64:
                a(x)
    ln_loads(new_vm(), R_X, S_RG)
w_prefetch(vb, QKV_SEG[L2A:L2PF])
if opt("diag", 0):
    stamp("pf issued")
    a(f"s_waitcnt vmcnt({L2PF})")
    stamp("pf xin")
    for k in range(L2PF):
        a(f"s_waitcnt vmcnt({L2PF - 1 - k})")
        stamp(f"pf done{k}")
qkv_ring_setup()
for n in range(NPB):
    qkv_issue(vb, n)
ln_stats(vb, 2.0)
a("s_branch L_p1_norm")

a.label("L_p1_a")
w_prefetch(va, QKV_SEG[:L2A])
common_setup()
a.c("first touch (scalar path) of the flag lines and the biases")
a(f"s_lshl_b32 s{T2}, s{S_TB2}, 20")
a(f"s_lshl_b32 s{T3}, s{S_J}, 7")
a(f"s_add_u32 s{T2}, s{T2}, s{T3}")
a(f"s_and_b32 s{T3}, s{S_W}, 1")
a(f"s_lshl_b32 s{T3}, s{T3}, 13")
a(f"s_add_u32 s{T2}, s{T2}, s{T3}")
a(f"s_add_u32 s{T2}, s{T2}, {WS_GRP}")
a(f"s_load_dword s{S_SPIN}, {sr(KA+20,2)}, s{T2}")
a(f"s_lshl_b32 s{T3}, s{S_W}, 7")
a(f"s_lshl_b32 s{T2}, s{S_HG}, 9")
a(f"s_add_u32 s{T2}, s{T2}, s{T3}")
a(f"s_add_u32 s{T2}, s{T2}, {WS_FKV}")
if opt("kt", 1):
    a(f"s_and_b32 s{T3}, s{S_TB}, 1")
    a(f"s_lshl_b32 s{T3}, s{T3}, 6")
    a(f"s_add_u32 s{T2}, s{T2}, s{T3}")
a(f"s_load_dword s{S_SPIN}, {sr(KA+20,2)}, s{T2}")
a(f"s_lshl_b32 s{T2}, s{S_WG}, 2")
a(f"s_add_u32 s{T2}, s{T2}, {WS_FC}")
a(f"s_load_dword s{S_SPIN}, {sr(KA+20,2)}, s{T2}")
a(f"s_lshl_b32 s{T2}, s{S_W}, 1")
a(f"s_add_u32 s{T2}, s{T2}, s{S_F0}")
a(f"s_min_u32 s{T2}, s{T2}, 41")
a(f"s_lshl_b32 s{T2}, s{T2}, 6")
a(f"s_add_u32 s{T3}, s{T2}, 64")
a(f"s_load_dword s{S_SPIN}, {sr(KA+10,2)}, s{T2}")
a(f"s_load_dword s{S_SPIN}, {sr(KA+10,2)}, s{T3}")
a(f"s_and_b32 s{T2}, s{S_W}, 1")
a(f"s_lshl_b32 s{T2}, s{T2}, 6")
a(f"s_add_u32 s{T2}, s{T2}, s{T4}")
a(f"s_load_dword s{S_SPIN}, {sr(KA+14,2)}, s{T2}")
if opt("tlb", 0):
    a.c("... and of the pages used later")
    a(f"s_lshr_b32 s{T2}, s{S_WG}, 3")
    a(f"s_lshl_b32 s{T2}, s{T2}, 2")
    a(f"s_add_u32 s{T2}, s{T2}, s{S_W}")
    a(f"s_lshl_b32 s{T3}, s{T2}, 12")
    a(f"s_load_dword s{S_SPIN}, {sr(KA+4,2)}, s{T3}")
    a(f"s_mul_i32 s{T3}, s{T2}, 11008")
    a(f"s_load_dword s{S_SPIN}, {sr(KA+8,2)}, s{T3}")
    a(f"s_load_dword s{S_SPIN}, {sr(KA+12,2)}, s{T3}")
    if opt("tlb", 0) > 1:
        a(f"s_lshl_b32 s{T3}, s{T2}, 17")
        a(f"s_load_dword s{S_SPIN}, {sr(KA+20,2)}, s{T3}")
        a(f"s_lshl_b32 s{T3}, s{T2}, 14")
        a(f"s_load_dword s{S_SPIN}, {sr(KA+16,2)}, s{T3}")
w_addr()
x_addr(False)
qkv_ring_setup()
a(f"s_and_b32 s{T0}, s{S_W}, 1")
a(f"s_lshr_b32 s{T1}, s{S_W}, 1")
tr_lane_addr(A_WO, T0, False)
a(f"s_lshl_b32 s{T7}, s{T1}, 15")
a(f"v_add_u32 v{A_WO}, s{T7}, v{A_WO}")
E_K, E_V, E_Q, E_C = 208, 209, 210, 212
swap23(10, 63, 11)
a(f"v_lshlrev_b32 v{E_K}, 4, v10")
a(f"v_and_b32 v10, 15, v{V_LANE}")
a("v_lshlrev_b32 v10, 4, v10")
a(f"v_lshrrev_b32 v11, 5, v{V_LANE}")
a("v_lshl_add_u32 v10, v11, 8, v10")
a(f"v_bfe_u32 v11, v{V_LANE}, 4, 1")
a(f"v_lshl_add_u32 v{E_V}, v11, 17, v10")
a(f"s_lshl_b32 s{T2}, s{T0}, 12")
a(f"s_lshl_b32 s{T3}, s{T1}, 11")
a(f"s_add_u32 s{T2}, s{T2}, s{T3}")
a(f"v_add_u32 v{E_Q}, s{T2}, v{V_L16}")
a(f"v_mov_b32 v{E_C}, {f32(0.25*math.log2(math.e))}")
a(f"v_mov_b32 v{E_C+1}, v{E_C}")
a(f"s_lshl_b32 s{T2}, s{S_HG}, 1")
a(f"s_add_u32 s{T2}, s{T2}, s{T1}")
a(f"s_lshl_b32 s{T2}, s{T2}, 18")
a(f"s_lshl_b32 s{T3}, s{S_TB}, 1")
a(f"s_add_u32 s{T3}, s{T3}, s{T0}")
a(f"s_lshl_b32 s{T3}, s{T3}, 11")
a(f"s_add_u32 s{T2}, s{T2}, s{T3}")
a(f"s_add_u32 s{T2}, s{T2}, {WS_KV}")
a(f"s_add_u32 s{T3}, s{T2}, 0x20000")
ln_stats(va, 1.0)
a.label("L_p1_norm")
ln_norm(1.0)
pass
is_a("L_p1_compute")

W2_HOME = [(0, 65536, 49152), (24, 131072, 16384), (32, 20480, 22528)]
if W2L:
    W2_HOME = [(0, 65536, 49152), (24, 20480, 6144), (27, 0, 32768)]
W2_END = 27 if W2L else 43
S_H = [T4, T5, T6]
def w2_home(t):
    k = 0 if t < 24 else 1 if t < W2_HOME[2][0] else 2
    return k, (t - W2_HOME[k][0])*2048
def staging_setup():
    a(f"s_lshl_b32 s{T4}, s{S_J}, 7")
    dma_addr(V_DA, 1024, T4)
    a(f"s_lshl_b32 s{T4}, s{S_F0}, 6")
    dma_addr(V_DB, 2752, T4)
    a(f"v_lshrrev_b32 v10, 2, v{V_LANE}")
    a(f"v_mul_u32_u24 v10, 2752, v10")
    a(f"v_and_b32 v11, 3, v{V_LANE}")
    a(f"v_lshlrev_b32 v11, 7, v11")
    a(f"v_min_u32 v11, {252 if WS1[0] == 4 else 380}, v11")
    a(f"v_add3_u32 v{A_W1}, v10, v11, s{T4}")
    a(f"s_and_b32 s{T0}, s{S_W}, 3")
    a(f"s_lshl_b32 s{S_D0}, s{T0}, 13")
    a(f"s_lshl_b32 s{S_D1}, s{T0}, 10")
    a(f"s_mul_i32 s{S_D2}, s{T0}, {8*2752}")
    a(f"s_and_b32 s{T4}, s{S_TB2}, 3")
    a(f"s_lshl_b32 s{T4}, s{T4}, 2")
    a(f"s_add_u32 s{T4}, s{T4}, s{T0}")
    a(f"s_mul_i32 s{S_D4}, s{T4}, {32*2752}")
    a(f"s_and_b32 s{T2}, s{S_W}, 1")
    a(f"s_bfe_u32 s{T3}, s{S_W}, 0x10001")
    tr_lane_addr(7, T2, False)
    for k, (t0, base, stride) in enumerate(W2_HOME):
        a(f"s_mul_i32 s{S_H[k]}, s{T3}, {stride}")
        a(f"s_add_u32 s{S_H[k]}, s{S_H[k]}, {base}")
        a(f"v_add_u32 v{4+k}, s{S_H[k]}, v7")
        a(f"s_lshl_b32 s{T7}, s{T2}, 10")
        a(f"s_add_u32 s{S_H[k]}, s{S_H[k]}, s{T7}")
    a(f"v_mov_b32 v{A_IDX}, 0xdddddddd")
def mall_touch():
    a.c("first touch of the later weights, different lines by every wave")
    a(f"s_lshl_b32 s{T2}, s{S_WG}, 2")
    a(f"s_add_u32 s{T2}, s{T2}, s{S_W}")
    a(f"s_sub_u32 s{T2}, s{T2}, 4")
    a(f"s_lshl_b32 s{T3}, s{T2}, 9")
    a(f"s_mul_i32 s{T2}, s{T2}, {11*128}")
    a(f"v_lshlrev_b32 v10, 7, v{V_LANE}")
    for r, so, m in ((R_WO, T3, 15), (R_W2, T2, 0x7ff), (R_W1, T2, 0x7ff)):
        a(f"s_mov_b64 exec, {m:#x}")
        a(f"buffer_load_dword v251, v10, {sr(r,4)}, s{so} offen")
        vb.issue("pf")
    a("s_mov_b64 exec, -1")
def s_touch(k):
    def f():
        if k == 0:
            a(f"s_lshl_b32 s{T7}, s{S_WG}, 2")
            a(f"s_add_u32 s{T7}, s{T7}, s{S_W}")
            a(f"s_sub_u32 s{T7}, s{T7}, 4")
            a(f"s_lshl_b32 s{S_SPIN}, s{T7}, 9")
            a(f"s_add_u32 s{KA+4}, s{KA+4}, s{S_SPIN}")
            a(f"s_addc_u32 s{KA+5}, s{KA+5}, 0")
            a(f"s_mul_i32 s{T7}, s{T7}, {11*128}")
            a(f"s_min_u32 s{T7}, s{T7}, {512*1376*2 - 11*128}")
            for p in (KA+8, KA+12):
                a(f"s_add_u32 s{p}, s{p}, s{T7}")
                a(f"s_addc_u32 s{p+1}, s{p+1}, 0")
        L = [(KA+4, i) for i in range(8)] + [(KA+12, i) for i in range(22)] + [(KA+8, i) for i in range(22)]
        for p, i in L[13*k:13*k + 13]:
            a(f"s_load_dword s{KA+6}, {sr(p,2)}, {64*i}")
    return f
cs = capture(common_setup)
late = {3: cs[:40], 4: cs[40:80], 5: cs[80:], 6: [x for _, x in attn_zero(4)][:36], 7: [x for _, x in attn_zero(4)][36:],
        8: capture(staging_setup)[:38], 9: capture(staging_setup)[38:], 10: capture(tag_setup) + capture(kvflag_setup)}
if EARLY:
    zz = [x for r, x in attn_zero(4) if r < 64 or EARLY == 1]
    late.update({3: zz[:15], 4: zz[15:30], 5: zz[30:45], 6: zz[45:60], 7: zz[60:]})
later = []
if LATE:
    for k in ((8, 9) if LATE == 1 else (6, 7, 8, 9)):
        later += late.pop(k)
for k in (40, 80):
    assert not cs[k].startswith("s_cselect") and "vcc" not in cs[k]
nxw = NPA
if opt("sq", -1) == -2:
    a("s_waitcnt lgkmcnt(0)")
    for o in (0, -3072):
        for i in range(4):
            a(f"s_load_dword s{KA+6}, {sr(S_PC,2)}, {o + 64*i}")
for n in range(12):
    vb.wait(("w", n), extra="lgkmcnt(0)" if n == 0 and opt("sq", -1) != -2 else "")
    if opt("bst", -1) == n:
        stamp(f"bw{n}")
    a("s_barrier")
    if opt("bst", -1) == n:
        stamp(f"bb{n}")
    while nxw <= min(11, n + NB0 + 1, n + 4 if n >= 2 else 5):
        qkv_issue(vb, nxw)
        nxw += 1
    if n == opt("sq", -1):
        a.c("first touch of the Q columns (scalar path)")
        for o in (0, -3072):
            for i in range(4):
                a(f"s_load_dword s{KA+6}, {sr(S_PC,2)}, {o + 64*i}")
    if n == QPF:
        w_prefetch(vb, QKV_SEG[2:])
    for x in late.get(n, []):
        a(x)
    if n == MW:
        mall_touch()
    if STM and n == STM:
        s_touch(0)()
    if STM and n == 11 and opt("stm2", 1):
        s_touch(1)()
misc_loads(vb, False)
a("s_barrier")
flag_store(4)
def lead():
    l = a.uniq("L_nl")
    a(f"s_cmp_lg_u32 s{S_J}, 0")
    a(f"s_cbranch_scc1 {l}")
    a.c("Group leader: which memory half is closer to this XCD?  One read of each, timed.  The answer only selects which")
    a.c("copy of the hand-off buffers this launch uses (same results either way); later launches ignore it (other tag).")
    a(f"s_lshl_b32 s{T2}, s{S_TB2}, 20")
    a(f"s_add_u32 s{T2}, s{T2}, {WS_GRP + F_PROBE}")
    a(f"s_add_u32 s{T3}, s{T2}, 8192")
    NP = opt("np", 1)
    for k in range(2*NP):
        a(f"s_memtime {sr(KA+2*k,2)}")
        a("s_waitcnt lgkmcnt(0)")
        a(f"s_load_dword s{KA+14}, {sr(KA+20,2)}, s{(T2, T3)[k & 1]} glc")
        a("s_waitcnt lgkmcnt(0)")
    a(f"s_memtime {sr(KA+4*NP,2)}")
    a("s_waitcnt lgkmcnt(0)")
    for k in range(2*NP):
        a(f"s_sub_u32 s{KA+2*k}, s{KA+2*k+2}, s{KA+2*k}")
    for k in range(2, 2*NP):
        a(f"s_min_u32 s{KA+2*(k&1)}, s{KA+2*(k&1)}, s{KA+2*k}")
    a(f"s_mov_b32 s{T2}, s{KA}")
    a(f"s_mov_b32 s{T3}, s{KA+2}")
    a(f"s_cmp_lt_u32 s{T3}, s{T2}")
    a(f"s_cselect_b32 s{T2}, " + {1: "4, 0", 2: "0, 4", 0: "0, 0"}[NEAR])
    a(f"s_lshl_b32 s{T7}, s{S_TB2}, 6")
    a(f"s_add_u32 s{T7}, s{T7}, s{T2}")
    a(f"s_add_u32 s{T7}, s{T7}, {WS_PL}")
    a("s_mov_b64 exec, 1")
    a(f"buffer_store_dword v248, v249, {sr(R_WS,4)}, s{T7} offen sc1")
    a("s_mov_b64 exec, -1")
    a.label(l)
L_GO = L_Q + 8192
if LF:
    a("v_mov_b32 v9, 0")
    a(f"ds_write_b32 v9, v9 offset:{L_GO}")
    a("s_waitcnt lgkmcnt(0)")
a("s_barrier")
q_reads()
for x in later:
    a(x)
if not KVP:
    if SLP:
        a(f"s_sleep {SLP}")
    if LF:
        a(f"s_lshr_b32 s{T7}, s{S_TB}, 3")
        a(f"s_lshl_b32 s{T7}, s{T7}, 7")
        a(f"v_add_u32 v10, s{T7}, v249")
        flag_poll(4, 8, 0, 10)
    else:
        flag_poll(4, 32, 0, A_KF)
    pass
a("s_waitcnt lgkmcnt(0)")
a("s_barrier")
if LF:
    a.c("the remaining flags: wave 4 polls, waves 5-7 watch an LDS word")
    flag_poll(4, 32, 0, A_KF)
    def go():
        a("v_mov_b32 v10, 1")
        a(f"ds_write_b32 v9, v10 offset:{L_GO}")
    only(4, go)
    only(5, lead)
    a(f"s_mov_b32 s{S_SPIN}, 0")
    a.label("L_go")
    a(f"ds_read_b32 v10, v9 offset:{L_GO}")
    a(f"s_add_u32 s{S_SPIN}, s{S_SPIN}, 1")
    a(f"s_lshr_b32 s{T2}, s{S_SPIN}, 22")
    a("s_waitcnt lgkmcnt(0)")
    a(f"v_readfirstlane_b32 s{T7}, v10")
    a("s_nop 0")
    a(f"s_or_b32 s{T7}, s{T7}, s{T2}")
    a("s_cbranch_scc0 L_go")
    pass
a.c("======== phase 2, waves 4-7: fewer key tiles, and the weights of the later phases go on chip")
NB = 64 - NA
a("s_setprio 1")
for t in range(3):
    kv_load(vb, t, 4)
attn_first(vb, 0, 4)
if STM:
    s_touch(1 + opt("stm2", 1))()
elif MW == -1:
    mall_touch()
F0 = [5*j + min(j, 3) for j in range(8)]
TL = [F0[j] + 2*p + i for p in range(2) for j in range(8) for i in range(2)] + [F0[j] + i for j in range(8) for i in range(4, 6 if j < 3 else 5)]
assert sorted(TL) == list(range(43))
ND = opt("nd", 0)
def mk(*x):
    if ND == 1:
        return lambda: None
    if ND == 2:
        return lambda: a("\n".join(capture(dma, new_vm(), *x)[:2]))
    if ND == 3:
        return lambda: dma(vb, x[0], x[1], x[2], x[3], 0, x[5], x[6])
    return lambda: dma(vb, *x)
L_wo = [mk("r1", R_WO, V_DA, S_D0, k*32768, S_D1, k*4096) for k in range(16)]
L_w2 = [mk("r1" if t < 24 else "r2", R_W2, V_DA, S_D0, TL[t]*32768, S_H[w2_home(t)[0]], w2_home(t)[1]) for t in range(43)]
L_w1 = [mk("r2", R_W1, V_DB, S_D2, k*32*2752, S_D1, L_RING + k*4096) for k in range(16)]
def d_warm(k):
    def f():
        a(f"s_add_u32 s{T7}, s{S_D4}, {k*16*2752 + (128 if WS1[0] == 4 else 0)}")
        a(f"buffer_load_dword v251, v{A_W1}, {sr(R_W1,4)}, s{T7} offen")
        vb.issue("pf")
    return f
def d_rd(t):
    k, off = w2_home(t)
    return lambda: tr_read(F_W(t), 4 + k, off)
def d_c3():
    a.c("lines at 384 mod 1024 stream slowly past L2 into a single CU: every workgroup pulls a few of them")
    a(f"s_lshr_b32 s{T2}, s{S_WG}, 3")
    a(f"s_lshl_b32 s{T2}, s{T2}, 2")
    a(f"s_add_u32 s{T2}, s{T2}, s{T0}")
    a(f"s_lshl_b32 s{T3}, s{T2}, 12")
    a(f"s_mul_i32 s{T2}, s{T2}, {11*1024}")
    a(f"v_lshlrev_b32 v10, 10, v{V_LANE}")
    for r, so, m in ((R_WO, T3, 15), (R_W2, T2, 0x7ff)):
        a(f"s_mov_b64 exec, {m:#x}")
        a(f"buffer_load_dword v251, v10, {sr(r,4)}, s{so} offen offset:384")
        vb.issue("pf")
    a("s_mov_b64 exec, -1")
def d_code():
    a.c("the code of the later phases back into L2, two lines per wave")
    a(f"s_getpc_b64 {sr(S_PC,2)}")
    a.label("L_pc2")
    a(f"s_lshr_b32 s{T2}, s{S_WG}, 3")
    a(f"s_lshl_b32 s{T2}, s{T2}, 2")
    a(f"s_add_u32 s{T2}, s{T2}, s{T0}")
    a(f"s_lshl_b32 s{T2}, s{T2}, 7")
    a(f"s_add_u32 s{T2}, s{T2}, L_attn_end-L_pc2")
    a(f"v_lshl_add_u32 v10, v{V_LANE}, 14, s{T2}")
    a(f"v_min_u32 v10, L_code_end-L_pc2-4, v10")
    a("s_mov_b64 exec, 3")
    a(f"global_load_dword v251, v10, {sr(S_PC,2)}")
    vb.issue("pf")
    a("s_mov_b64 exec, -1")
def share(L, tiles):
    return {t: L[k*len(L)//len(tiles):(k+1)*len(L)//len(tiles)] for k, t in enumerate(tiles)}
plan = {0: [lambda: None]*3 + [d_c3]}
plan.update(share(L_wo + L_w2[:24], list(range(T0B, TB1 - 1))))
if ND != 4:
    plan.update(share([d_rd(t) for t in range(24)], list(range(TB1, TB1 + TB2))))
plan.update(share(L_w2[24:W2_END] + L_w1[:2*WS1[0]] + [d_warm(0)] + L_w1[2*WS1[0]:4*WS1[0]] + [d_warm(1)], list(range(TB1 + TB2, NB - TEND))))
if STM:
    for k in range(2 + opt("stm2", 1), 4):
        t = k - 1 - opt("stm2", 1)
        plan[t] = [s_touch(k)] + plan.get(t, [])
if opt("cpf", 1):
    plan[NB - opt("cpf", 1)] = [d_code] + plan.get(NB - opt("cpf", 1), [])
for t in range(NB):
    if t == 1 and LF:
        a("s_barrier")
    if t == TB1:
        vb.wait("r1")
        a("s_barrier")
        half_issue()
    if t == TB1 + TB2:
        a("s_waitcnt lgkmcnt(0)")
        a("s_barrier")
        half_check()
    attn_tile(vb, t, 4, NB - 1, plan.get(t, []), send_a if t == NB - 1 else None, order={0: None, 1: [(1, 15)], 2: [(1, 7), (1, 15)]}[opt('rdl', 0)] if t == TB1 else None, skew=opt('skew', 0) if t in (1, TB1 + TB2) else 0)
vb.wait("r2")
a("s_setprio 0")
a("s_nop 0")
smf(OB, Vf(NB - 1, 1, 4), SB+8)
a("s_branch L_attn_end")

a.label("L_p1_compute")
for n in range(NPB, NPA):
    qkv_issue(va, n)
pass
w_prefetch(va, QKV_SEG[L2PF:opt("l2e", 2)])
def cvt_inplace(b):
    return [f"v_cvt_pk_bf16_f32 v{b+i}, v{b+2*i}, v{b+2*i+1}" for i in range(8)]
aK, aV, aQ = 144, 160, 176
inj = {2: capture(tag_setup)}
spread(inj, [(x, 1) for x in capture(kvflag_setup)], 4, 20)
items = [(x, 1) for x in cvt_inplace(aK)]
items += [((f"buffer_store_dwordx4 {vr(aK,4)}, v{E_K}, {sr(R_WS,4)}, s{T2} offen sc1", "st"), 2),
          ((f"buffer_store_dwordx4 {vr(aK+4,4)}, v{E_K}, {sr(R_WS,4)}, s{T3} offen sc1", "st"), 2)]
spread(inj, items, *((67, 70) if KVJ else (36, 42)))
items = [(x, 1) for x in cvt_inplace(aV)]
items += [((f"buffer_store_dwordx4 {vr(aV,4)}, v{E_V}, {sr(R_WS,4)}, s{T2} offen offset:1024 sc1", "st"), 2),
          ((f"buffer_store_dwordx4 {vr(aV+4,4)}, v{E_V}, {sr(R_WS,4)}, s{T2} offen offset:1536 sc1", "st"), 2)]
spread(inj, items, *((70, 73) if KVJ else (67, 71)))
a_zero = attn_zero(6)
spread(inj, [(x, 1) for r, x in a_zero if r >= 144], *((80, 92) if KVJ else (48, 60)))
for r, x in a_zero:
    if r < 144:
        inj.setdefault(64 + (r - G_X)//4, []).append(x)
def pub_kv():
    va.wait("st")
    a("s_barrier")
    stamp("kv drained")
gemm_compute(va, [aK, aV, aQ], [192, 196, 200, 204, 224, 228], {1}, {0, 1, 2}, inj, {UKV: pub_kv}, range(12), 'p1', 4096, None, KVJ)
kv_load(va, -2, 6)
kv_load(va, -1, 6)
a(f"v_mov_b32 v{A_IDX}, 0xdddddddd")
for i in range(8):
    a(f"v_pk_mul_f32 {vr(aQ+2*i,2)}, {vr(aQ+2*i,2)}, {vr(E_C,2)}")
for x in cvt_inplace(aQ):
    a(x)
a(f"ds_write_b128 v{E_Q}, {vr(aQ,4)} offset:{L_Q}")
a(f"ds_write_b128 v{E_Q}, {vr(aQ+4,4)} offset:{L_Q+1024}")
a("s_waitcnt lgkmcnt(0)")
a("s_barrier")
pass
q_reads()
misc_loads(va, True)
a.c("======== phase 2, waves 0-3: attention; wave = head, 64 queries")
a(f"s_setprio {PRA}")
a(f"s_mov_b32 s{S_D4}, 1")
a(f"s_mov_b32 s{S_LOOP}, {1 if LF else IT1}")
a(f"s_mov_b32 s{S_STAGE}, {0 if LF else 1}")
def kv_try():
    a("s_mov_b32 exec_hi, 0")
    a(f"buffer_load_dword v247, v{A_KF}, {sr(R_WS,4)}, s{S_FPOLL} offen sc1")
    a("s_mov_b32 exec_hi, -1")
def kv_check():
    a("s_waitcnt vmcnt(0)")
    flag_poll(None, 32, 0, A_KF)
attn_first(va, -2, 6, (lambda: only(0, kv_try)) if KVP else None)
attn_tile(va, -2, 6, load=False)
pass
if KVP:
    only(0, kv_check)
a("s_barrier")
stamp("kv ready")
for t in range(4):
    kv_load(va, t, 6)
attn_tile(va, -1, 6, load=not BAT)
if BAT:
    va.wait(('kv', 1))
    va.q = [('kv', 3)]*5 + [('kv', 2)]
a("s_branch L_attn")
a.label("L_attn_s0")
a("s_barrier")
a(f"s_setprio {PRA}")
a(f"s_mov_b32 s{S_LOOP}, {IT1 - 1}")
a("s_branch L_attn")
a.label("L_attn_s1")
a("s_barrier")
a(f"s_setprio {PRA}")
if ORD:
    a(f"s_and_b32 s{T7}, s{S_WG}, 1")
    a(f"s_lshl_b32 s{T7}, s{T7}, 13")
    a(f"v_add_u32 v10, s{T7}, v{A_WO}")
    a(f"s_sub_u32 s{T7}, 8192, s{T7}")
    a(f"v_add_u32 v11, s{T7}, v{A_WO}")
for t in range(16 if ND != 4 else 0):
    if ORD:
        tr_read(P_W + 4*t, 10 + ((t >> 2) & 1), (t & ~4)*2048)
    else:
        tr_read(P_W + 4*t, A_WO, t*2048)
half_issue()
a(f"s_mov_b32 s{S_LOOP}, {IT2}")
a("s_branch L_attn")
a.label("L_attn_s2")
half_check()
a("s_barrier")
a(f"s_setprio {PRA}")
if FEND <= (NA - 2) % 6 + 6*PEEL:
    a(f"s_mov_b32 s{S_D4}, 0")
a(f"s_mov_b32 s{S_LOOP}, {(NA - 2)//6 - IT1 - IT2 - PEEL}")
a.raw(".p2align 4")
a.label("L_attn")
def loop_tail():
    a(f"s_sub_u32 s{S_LOOP}, s{S_LOOP}, 1")
    a(f"s_cmp_lg_u32 s{S_LOOP}, 0")
for t in range(6):
    if t == FLIP:
        a(f"s_cmp_lg_u32 s{S_LOOP}, s{S_D4}")
        a("s_cbranch_scc1 L_keep")
        a("s_setprio 0")
        a.label("L_keep")
    attn_tile(va, t, 6, None, [], loop_tail if t == 5 else None)
a("s_cbranch_scc1 L_attn")
a(f"s_add_u32 s{S_STAGE}, s{S_STAGE}, 1")
for k in range(3):
    a(f"s_cmp_eq_u32 s{S_STAGE}, {k + 1}")
    a(f"s_cbranch_scc1 L_attn_s{k}")
NT_ = (NA - 2) % 6 + 6*PEEL
for t in range(6, 6 + NT_):
    if 6 + NT_ - t == FEND:
        a("s_setprio 0")
    attn_tile(va, t, 6, 5 + NT_, [], send_a if t == 5 + NT_ else None)
assert NT_
if NT_:
    a("s_nop 1")
smf(OB, Vf(5 + NT_, 1, 6), SB+8)
a("s_setprio 0")

a.label("L_attn_end")
stamp("attn loop done")
a.c("combine the two key ranges of block B")
a("v_xor_b32 v10, 8192, v10")
a("v_xor_b32 v11, 1024, v11")
a("s_waitcnt lgkmcnt(0)")
a("s_barrier")
a(f"ds_read_b32 v{SA+8}, v11 offset:{L_OX+16384}")
a(f"ds_read_b128 {vr(SA,4)}, v10 offset:{L_OX}")
a(f"ds_read_b128 {vr(SA+4,4)}, v10 offset:{L_OX+1024}")
a(f"v_mov_b32 v{SB}, {f32(2.0**-64)}")
a(f"v_mov_b32 v{SB+1}, {f32(2.0**64)}")
for r in (4, 5, 7):
    a(f"v_mov_b32 v{SB+r}, 0")
a("s_waitcnt lgkmcnt(2)")
a(f"v_add_f32 v{OB+8}, v{OB+8}, v{SA+8}")
a.c("The loop subtracted no row maximum.  That is exact unless something left the fp32 range: a row sum outside")
a.c("[2^-64, 2^64], or any Inf/NaN in the sums, sends the wave to the path that subtracts the true maximum.")
a(f"v_mov_b32 v{SB+6}, v{OB+8}")
a("s_waitcnt lgkmcnt(0)")
for i in range(4):
    a(f"v_pk_add_f32 {vr(OB+2*i,2)}, {vr(OB+2*i,2)}, {vr(SA+2*i,2)}")
for i in range(4):
    a(f"v_pk_fma_f32 {vr(SB+6,2)}, {vr(OB+2*i,2)}, {vr(SB+4,2)}, {vr(SB+6,2)}")
a(f"v_add_f32 v{SB+6}, v{SB+6}, v{SB+7}")
a(f"v_cmp_ge_f32 vcc, v{SB+6}, v{SB}")
a(f"v_cmp_le_f32 {sr(S_SAVE,2)}, v{SB+6}, v{SB+1}")
a(f"v_rcp_f32 v10, v{OB+8}")
a(f"s_and_b64 vcc, vcc, {sr(S_SAVE,2)}")
a(f"s_cmp_eq_u64 vcc, -1")
if FORCE_FB:
    a("s_branch L_attn_fb")
else:
    a("s_cbranch_scc0 L_attn_fb")
a.label("L_attn_fin")
a("v_mov_b32 v11, v10")
for i in range(4):
    a(f"v_pk_mul_f32 {vr(OB+2*i,2)}, {vr(OB+2*i,2)}, v[10:11]")
for i in range(4):
    a(f"v_cvt_pk_bf16_f32 v{SA+i}, v{OB+2*i}, v{OB+2*i+1}")
a(f"buffer_store_dwordx4 {vr(SA,4)}, v{V_L16}, {sr(R_WS,4)}, s{S_HEAD} offen sc1")

a.c("======== phase 3: h = x + O Wo ; tile 64 tokens x 64 columns, computed by waves 0-3")
T_ACC, T_AF = 16, 48
def o_reread():
    if ORD:
        a("s_mov_b32 exec_lo, 0x01010101")
        a("s_mov_b32 exec_hi, 0x01010101")
        a(f"buffer_load_dword v251, v{V_L16}, {sr(R_WS,4)}, s{S_HEAD} offen sc1")
        a("s_mov_b64 exec, -1")
def W0(t): return 64 + 4*t
is_a("L_p3_a")
vb = new_vm()
for t in range(24, W2_END):
    d_rd(t)()
if W2L:
    a(f"s_mov_b32 s{S_OWN}, s{S_D0}")
    a(f"s_mov_b32 s{S_OWN2}, s{S_H[2]}")
    a(f"v_mov_b32 v8, v6")
ring_setup(2752, None)
assert WC[2] <= 4 and WC[3] <= 6 and WC[5] >= 6
for n in range(WC[1], WC[2]):
    ring_issue(vb, R_W1, 2752, W1_SEG, n)
a(f"s_waitcnt vmcnt({4*WS1[1]}) lgkmcnt(0)")
o_reread()
a("s_barrier")
for n in range(WC[2], WC[3]):
    ring_issue(vb, R_W1, 2752, W1_SEG, n)
act_setup(4, WS_OF, False)
if ORD:
    a(f"s_and_b32 s{T7}, s{S_WG}, 1")
    a(f"s_lshl_b32 s{T7}, s{T7}, 12")
    a(f"s_sub_u32 s{T0}, s{T4}, s{T7}")
    a(f"s_add_u32 s{T4}, s{T4}, s{T7}")
grp_flags(S_TB2, S_ZG, S_J)
stamp("owin B")
a("s_barrier")
for q in range(NO):
    act_issue(vb, q, q, 4, False)
def h_pre(B):
    L = unpack8(B, V_HRES) + ["v_mov_b32 v10, 0x3f803f80", "v_and_b32 v7, 0x1f8, v0",
         f"s_lshl_b32 s{T2}, s{S_W}, 6", f"s_add_u32 s{T2}, s{T2}, s{S_J}", f"s_lshl_b32 s{T2}, s{T2}, 7",
         f"s_add_u32 s{T2}, s{T2}, s{S_ZG}", f"s_add_u32 s{T2}, s{T2}, {WS_H}",
         f"s_add_u32 s{T5}, s{S_ZG}, {WS_GRP + 4096}",
         f"s_lshl_b32 s{T6}, s{S_J}, 9", f"s_add_u32 s{T6}, s{T6}, s{T5}"]
    return L
def h_epilogue(B):
    tile_gather(16)
    for h in range(2):
        a(f"s_waitcnt lgkmcnt({2-2*h})")
        for i in range(2*h, 2*h+2):
            a(f"v_pk_add_f32 {vr(B+2*i,2)}, {vr(B+2*i,2)}, {vr(16+2*i,2)}")
            a(f"v_pk_add_f32 {vr(B+2*i,2)}, {vr(B+2*i,2)}, {vr(24+2*i,2)}")
        for i in range(2*h, 2*h+2):
            a(f"v_cvt_pk_bf16_f32 v{V_HRES+i}, v{B+2*i}, v{B+2*i+1}")
tile_loader(vb, 16, lambda q: act_issue(vb, q + NO, q + NO, 4, False) if q + NO < 4 else None)
for x in h_pre(32):
    a(x)
h_epilogue(32)
a("s_branch L_p3_done")
a.label("L_p3_a")
CJ, CA = 28, 16
a.c("wave 1 of workgroups 0-175 sums 64 rows of a 64-column strip of W1 (LayerNorm's mean term)")
a(f"s_cmp_lt_u32 s{S_WG}, 176")
a(f"s_cselect_b32 s{S_STAGE}, s{S_W}, 0")
a(f"s_cmp_lg_u32 s{S_STAGE}, 1")
a("s_cbranch_scc1 L_cs_noload")
a(f"v_lshrrev_b32 v10, 3, v{V_LANE}")
a(f"v_mul_u32_u24 v10, 2752, v10")
a(f"v_and_b32 v11, 7, v{V_LANE}")
a(f"v_lshl_add_u32 v10, v11, 4, v10")
a(f"s_and_b32 s{T0}, s{S_WG}, 7")
a(f"s_mul_i32 s{T0}, s{T0}, {64*2752}")
a(f"s_lshr_b32 s{T1}, s{S_WG}, 3")
a(f"s_lshl_b32 s{T1}, s{T1}, 7")
a(f"s_add_u32 s{T0}, s{T0}, s{T1}")
for i in range(8):
    a(f"buffer_load_dwordx4 {vr(CJ+4*i,4)}, v10, {sr(R_W1,4)}, s{T0} offen")
    a(f"s_add_u32 s{T0}, s{T0}, {8*2752}")
a.label("L_cs_noload")
grp_flags(S_TB, S_ZO, S_HG)
w_addr()
act_setup(4, WS_OF, False)
a(f"s_cmp_eq_u32 s{S_STAGE}, 1")
a("s_waitcnt vmcnt(8)")
a("s_cbranch_scc1 L_cs_loaded")
a("s_waitcnt vmcnt(0)")
a.label("L_cs_loaded")
o_reread()
a("s_barrier")
flag_store(0, 0, OPK)
stamp("O drained")
R0 = min(24, 8*WC[1])
R1 = min(32, 8*WC[3])
RB = min(R0, opt("rb", 24))
for t in range(RB):
    w_read(W0(t), t)
a(f"s_cmp_lg_u32 s{S_STAGE}, 1")
a("s_cbranch_scc1 L_cs_nojob")
a(f"v_mov_b32 v10, 0x00003f80")
a(f"v_mov_b32 v11, 0x3f800000")
for i in range(8):
    a(f"s_waitcnt vmcnt({7-i+ORD})")
    for j in range(4):
        for h in range(2):
            a(f"v_dot2_f32_bf16 v{CA+2*j+h}, v{CJ+4*i+j}, v{10+h}, {f'v{CA+2*j+h}' if i else '0'}")
a(f"s_and_b32 s{T0}, s{S_WG}, 7")
a(f"s_mul_i32 s{T0}, s{T0}, {1408*4}")
a(f"s_lshr_b32 s{T1}, s{S_WG}, 3")
a(f"s_lshl_b32 s{T1}, s{T1}, 8")
for k in range(4):
    a(f"v_permlane32_swap_b32 v{CA+k}, v{CA+4+k}")
a(f"s_add_u32 s{T0}, s{T0}, s{T1}")
a(f"s_add_u32 s{T0}, s{T0}, {WS_CS}")
for k in range(4):
    a(f"v_add_f32 v{CA+k}, v{CA+k}, v{CA+4+k}")
a("s_nop 1")
for k in range(2):
    a(f"v_permlane16_swap_b32 v{CA+k}, v{CA+2+k}")
a("s_nop 1")
for k in range(2):
    a(f"v_add_f32 v{CA+k}, v{CA+k}, v{CA+2+k}")
a(f"v_and_b32 v10, 7, v{V_LANE}")
a(f"v_lshrrev_b32 v11, 4, v{V_LANE}")
for k in range(2):
    a(f"v_add_f32_dpp v{CA+k}, v{CA+k}, v{CA+k} row_ror:8 row_mask:0xf bank_mask:0xf")
a(f"v_lshlrev_b32 v11, 3, v11")
a(f"v_lshl_add_u32 v10, v10, 5, v11")
a(f"s_mov_b32 exec_lo, 0x00ff00ff")
a(f"s_mov_b32 exec_hi, 0x00ff00ff")
a(f"buffer_store_dwordx2 {vr(CA,2)}, v10, {sr(R_WS,4)}, s{T0} offen sc1")
a("s_mov_b64 exec, -1")
a.label("L_cs_nojob")
stamp("owin A")
if OSP:
    a(f"s_cmp_lg_u32 s{S_W}, 0")
    a("s_cbranch_scc1 L_o_seen")
    if OPK:
        peek_check(0, "L_o_seen")
    if DO:
        a(f"s_sleep {DO}")
    spoll_issue(0)
    spoll_check(0)
    a.label("L_o_seen")
else:
    flag_poll(0, 8)
a("s_waitcnt lgkmcnt(0)")
a("s_barrier")
stamp("O ready")
for t in range(RB, R0):
    w_read(W0(t), t)
a(f"s_cmp_lg_u32 s{S_STAGE}, 1")
a("s_cbranch_scc1 L_cs_noflag")
a(f"s_lshl_b32 s{T0}, s{S_WG}, 2")
a(f"s_add_u32 s{T0}, s{T0}, {WS_FC}")
a("s_waitcnt vmcnt(0)")
a("s_mov_b64 exec, 1")
a(f"buffer_store_dword v248, v249, {sr(R_WS,4)}, s{T0} offen sc1")
a("s_mov_b64 exec, -1")
a.label("L_cs_noflag")
a.c("every workgroup has read the old tag by now: leave this launch's tag for the next launch to step past")
a(f"s_or_b32 s{T0}, s{S_WG}, s{S_W}")
a("s_cbranch_scc1 L_notag")
a("s_mov_b64 exec, 1")
a(f"buffer_store_dword v248, v249, {sr(R_WS,4)}, 0 offen offset:{WS_NONCE} sc1")
a("s_mov_b64 exec, -1")
a.label("L_notag")
for x in h_pre(224):
    a(x)
tile_compute(new_vm(), 16, [0, 1, 2, 3], lambda t: P_W + 4*t, T_ACC, T_AF)
h_epilogue(224)
a.label("L_p3_done")
a(f"buffer_store_dwordx4 {vr(V_HRES,4)}, v{V_ROWOFF}, {sr(R_WS,4)}, s{T2} offen sc1")
a.c("partial row statistics of this 64-column slice")
for i in range(4):
    a(f"v_dot2_f32_bf16 v16, v{V_HRES+i}, v10, {'v16' if i else '0'}")
    a(f"v_dot2_f32_bf16 v17, v{V_HRES+i}, v{V_HRES+i}, {'v17' if i else '0'}")
sum8_pair(16)
a(f"s_mov_b32 exec_lo, 0x01010101")
a(f"s_mov_b32 exec_hi, 0x01010101")
a(f"buffer_store_dwordx2 v[16:17], v7, {sr(R_WS,4)}, s{T6} offen sc1")
a("s_mov_b64 exec, -1")
a("v_mov_b32 v41, v7")
stamp("h stored")
HRR = opt("hrr", 1)
def h_reread():
    if not HRR:
        return
    a.c("pull the stored lines back into this XCD's L2 while the flags travel")
    a(f"s_mov_b32 exec_lo, 0x01010101")
    a(f"s_mov_b32 exec_hi, 0x01010101")
    a(f"buffer_load_dword v251, v{V_ROWOFF}, {sr(R_WS,4)}, s{T2} offen sc1")
    a("s_mov_b64 exec, 1")
    a(f"buffer_load_dword v251, v41, {sr(R_WS,4)}, s{T6} offen sc1")
    a("s_mov_b64 exec, -1")

a.c("======== phase 4: g = gelu(LN(h) W1 + b1) with LN folded into the product, scaled by GS so that the tanh argument is u*(u*u+k)")
c1 = -2.0*math.sqrt(2.0/math.pi)*math.log2(math.e)
c3 = c1*0.044715
GS = -((-c3) ** (1.0/3))
GK = c1/GS
G_SLOTS = [0, 1, 2, 3, 4, 5, 6, 7, 8, 9, 2]
is_a("L_p4_a")
vb = new_vm()
a.c("source offsets of the raw h image: wave 4+b loads row groups b and b+4")
a(f"v_lshrrev_b32 v10, 4, v0")
a(f"v_xor_b32 v10, v10, v0")
a(f"v_and_b32 v10, 7, v10")
a(f"v_and_b32 v{V_XNW}, 0x7c00, v{V_ROWOFF}")
a(f"v_lshl_add_u32 v{V_XNW}, v10, 4, v{V_XNW}")
a(f"s_and_b32 s{T3}, s{S_W}, 3")
a(f"s_lshl_b32 s{T3}, s{T3}, 13")
a(f"s_add_u32 s{T4}, s{T3}, {WS_H}")
a(f"s_add_u32 s{T4}, s{T4}, s{S_ZG}")
assert WC[4] <= 6 + R0//8 and WC[5] <= 6 + R1//8
for n in range(WC[3], WC[4]):
    ring_issue(vb, R_W1, 2752, W1_SEG, n)
a(f"s_waitcnt vmcnt({4*WS1[3]})")
h_reread()
vb.issue("rr", 2*HRR)
a("s_barrier")
flag_store(4, F_H, HPK)
HPI = opt("hpi", 8)
L = []
for n in range(WC[4], WC[5]):
    L += capture(ring_issue, vb, R_W1, 2752, W1_SEG, n)
for x in L[:3*HPI]:
    a(x)
def h_try():
    if opt("hpw", 0):
        a(f"s_waitcnt vmcnt({min(HPI, len(L)//3)})")
    spoll_issue(F_H)
only(4, h_try)
for x in L[3*HPI:]:
    a(x)
a(f"s_cmp_lg_u32 s{S_W}, 4")
a("s_cbranch_scc1 L_h_seen")
spoll_check(F_H)
a.label("L_h_seen")
stamp("hseen B")
vb.wait(("w", 3))
a("s_barrier")
def h_issue(n):
    for i in (2*n, 2*n + 1):
        for r in range(2):
            dma(vb, ("x", n), R_WS, V_XNW, T4, r*65536 + i*128, T3, r*32768 + i*1024, "sc1")
for n in range(NH):
    h_issue(n)
for n in range(4):
    vb.wait(("x", n))
    a("s_barrier")
    if n + NH < 4:
        h_issue(n + NH)
    for k in {2: range(WC[5], WC[5] + 1), 3: range(WC[5] + 1, 10)}.get(n, []):
        ring_issue(vb, R_W1, 2752, W1_SEG, k)
act_setup(11, WS_GF, True)
TH = opt("th", 4)
GRP = [int(c, 16) for c in opt("grp", "8008")]
assert sum(GRP) == 16
w2n = [27]
def w2_late(k):
    for t in range(w2n[0], w2n[0] + k if W2L else 0):
        if len(vb.q) > TH:
            a(f"s_waitcnt vmcnt({TH})")
            vb.q = vb.q[len(vb.q) - TH:]
        dma(vb, "w2", R_W2, V_DA, S_OWN, TL[t]*32768, S_OWN2, w2_home(t)[1])
    w2n[0] += k
if W2L:
    a("s_barrier")
w2_late(GRP[0])
for n in (10, 11):
    vb.wait(("w", n - 4), *([("w", 9)] if n == 11 else []))
    a("s_barrier")
    ring_issue(vb, R_W1, 2752, W1_SEG, n)
    w2_late(GRP[n - 9])
vb.wait(("w", 9))
a("s_barrier")
flag_store(4, F_G0)
w2_late(GRP[3])
a("s_waitcnt vmcnt(0)")
vb.clear()
only(4, spoll_issue, F_G0)
a("s_barrier")
if W2L:
    for t in range(27, 43):
        tr_read(F_W(t), 8, w2_home(t)[1])
    a("s_waitcnt lgkmcnt(0)")
only(4, spoll_check, F_G0)
stamp("g0 ready")
a("s_barrier")
flag_store(4, F_G1)
a.c("======== phase 5: out = h + g W2 + b2, computed by waves 4-7")
if opt("pb", 0):
    a("s_setprio 1")
for q in range(2):
    act_issue(vb, q, G_SLOTS[q], 11, True)
OE = 140
out_pre = unpack8(OE, V_HRES) + unpack8(OE + 8, V_B2) + [f"v_add_f32 v{OE+i}, v{OE+i}, v{OE+8+i}" for i in range(8)]
out_pre += [f"v_mov_b32 v10, {f32(1.0/GS)}", "v_mov_b32 v11, v10"]
inj = {}
spread(inj, [(x, 1) for x in out_pre], 12, 40)
FQ = opt('fq', 2)
if FQ == 2:
    vb.wait(('a', 0))
    act_issue(vb, 2, G_SLOTS[2], 11, True)
tile_compute(vb, 43, G_SLOTS, F_W, T_ACC, T_AF, inj, (1,) if FQ else ())
stamp("ffn2 done B")
a("s_branch L_p5_done")

a.label("L_p4_a")
F_ACC = [192, 208, 168]
F_WF = [144, 148, 152, 156, 160, 164]
GT = 224
CB = [224, 228, 224]
CS = 16
for t in range(R0, R1):
    w_read(W0(t), t)
a.c("column sums of W1 for this wave's three tiles")
a(f"s_lshr_b32 s{T0}, s{S_F0}, 1")
a(f"s_min_u32 s{T0}, s{T0}, 18")
a(f"s_lshl_b32 s{T0}, s{T0}, 5")
a(f"s_add_u32 s{S_FPOLL}, s{T0}, {WS_FC}")
a("s_mov_b32 exec_hi, 0")
a(f"buffer_load_dword v247, v249, {sr(R_WS,4)}, s{S_FPOLL} offen sc1")
a("s_mov_b32 exec_hi, -1")
x_addr(True)
swap23(10, 31, 11)
a(f"v_lshrrev_b32 v11, 5, v{V_LANE}")
a(f"v_mul_u32_u24 v11, {4*1408*4}, v11")
a(f"v_lshl_add_u32 v10, v10, 2, v11")
a(f"s_lshr_b32 s{T0}, s{S_W}, 1")
a(f"s_add_u32 s{T0}, s{T0}, s{S_F0}")
a(f"s_lshl_b32 s{T0}, s{T0}, 7")
a(f"s_add_u32 s{T0}, s{T0}, {WS_CS}")
a("s_waitcnt vmcnt(1) lgkmcnt(0)")
h_reread()
a("s_barrier")
stamp("h drained")
a(f"s_waitcnt vmcnt({2*HRR})")
flag_poll(None, 32)
HS = 208
CP = 192
for k in range(4):
    for seg in range(3):
        a(f"buffer_load_dword v{CP+4*seg+k}, v10, {sr(R_WS,4)}, s{T0} offen offset:{seg*256} sc1")
    a(f"s_add_u32 s{T0}, s{T0}, {1408*4}")
grp_flags(S_TB2, S_ZG, S_J)
a(f"s_and_b32 s{T0}, s{S_W}, 1")
a(f"s_lshl_b32 s{T7}, s{T0}, 8")
a(f"s_add_u32 s{T5}, s{T5}, s{T7}")
a(f"s_mul_i32 s{T0}, s{T0}, {11*16384}")
a(f"s_add_u32 s{T0}, s{T0}, s{S_ZG}")
a(f"s_add_u32 s{T0}, s{T0}, {WS_GF}")
a(f"s_lshr_b32 s{T1}, s{S_W}, 1")
a(f"s_add_u32 s{S_STAGE}, s{T1}, 4")
a(f"s_lshl_b32 s{T7}, s{S_J}, 2")
a(f"s_sub_u32 s{T2}, s{S_F0}, s{T7}")
a(f"s_add_u32 s{T2}, s{T2}, s{T1}")
a(f"s_and_b32 s{T7}, s{T2}, 0xfc")
a(f"s_add_u32 s{T2}, s{T2}, s{T7}")
a(f"s_lshl_b32 s{T2}, s{T2}, 11")
a(f"s_add_u32 s{T2}, s{T2}, s{T0}")
a(f"s_add_u32 s{S_D2}, s{T2}, {8*16384}")
a(f"s_lshl_b32 s{T2}, s{S_J}, 1")
a(f"s_add_u32 s{T2}, s{T2}, s{T1}")
a(f"s_and_b32 s{T7}, s{T2}, 0xfc")
a(f"s_add_u32 s{T2}, s{T2}, s{T7}")
a(f"s_lshl_b32 s{T2}, s{T2}, 11")
a(f"s_add_u32 s{S_D0}, s{T2}, s{T0}")
a(f"s_add_u32 s{S_D1}, s{S_D0}, {4*16384}")
a(f"v_and_b32 v10, 31, v{V_LANE}")
a(f"v_lshlrev_b32 v10, 3, v10")
a(f"v_lshrrev_b32 v11, 5, v{V_LANE}")
a(f"v_lshl_add_u32 v235, v11, 11, v10")
a(f"v_lshlrev_b32 v3, 7, v{V_LANE}")
RS = 12
a(f"v_mov_b32 v10, {f32(GK)}")
a(f"v_mov_b32 v11, v10")
a(f"v_mov_b32 v14, 1.0")
a(f"v_mov_b32 v15, 1.0")
stamp("hwin A")
a("s_barrier")
stamp("h ready")
for t in range(R1, 32):
    w_read(W0(t), t)
vc = new_vm()
for k in range(4):
    a(f"buffer_load_dwordx2 {vr(HS+2*k,2)}, v235, {sr(R_WS,4)}, s{T5} offen offset:{k*512} sc1")
vc.issue(("x", 0), 4)
a("s_waitcnt vmcnt(4)")
for seg in range(3):
    c = CP + 4*seg
    a(f"v_add_f32 v{c}, v{c}, v{c+1}")
    a(f"v_add_f32 v{c+2}, v{c+2}, v{c+3}")
for seg in range(3):
    c = CP + 4*seg
    a(f"v_add_f32 v{c}, v{c}, v{c+2}")
for seg in range(3):
    c = CP + 4*seg
    a(f"v_mov_b32 v{c+1}, v{c}")
a("s_nop 1")
for seg in range(3):
    c = CP + 4*seg
    a(f"v_permlane32_swap_b32 v{c}, v{c+1}")
a("s_nop 1")
AB = [224, 228, 216]
for seg in range(3):
    c, d = CP + 4*seg, AB[seg]
    a(f"v_add_f32 v{c}, v{c}, v{c+1}")
    a(f"v_and_b32 v{c+1}, 0xffff0000, v{c}")
    a(f"v_sub_f32 v{c}, v{c}, v{c+1}")
    a(f"v_cvt_pk_bf16_f32 v{d}, v{c+1}, v{c+1}")
    a(f"v_cvt_pk_bf16_f32 v{d+1}, v{c}, v{c}")
    a(f"v_lshl_or_b32 v{d+2}, v{V_B1+seg}, 16, v{V_B1+seg}")
    a(f"v_mov_b32 v{d+3}, 0")
BO = 232
a(f"v_mov_b32 v{BO+3}, 0")
def gt(i): return 224 + i if i < 8 else 176 + i
def gelu_block(seg):
    u = F_ACC[seg]
    a.raw(".p2align 3")
    def two(op, f, D=gt):
        for i in range(0, 16, 2):
            a(f"v_pk_{op}_f32 {vr(D(i),2)}, " + f(vr(u+i, 2), vr(gt(i), 2)))
    two("mul", lambda U, T: f"{U}, {vr(RS,2)}", lambda i: u + i)
    two("fma", lambda U, T: f"{U}, {U}, v[10:11]")
    two("mul", lambda U, T: f"{T}, {U}")
    for i in range(16):
        a(f"v_exp_f32 v{gt(i)}, v{gt(i)}")
    two("add", lambda U, T: f"{T}, v[14:15]")
    for h in range(2):
        for i in range(8*h, 8*h + 8):
            a(f"v_rcp_f32 v{gt(i)}, v{gt(i)}")
        for i in range(8*h, 8*h + 8, 2):
            a(f"v_pk_mul_f32 {vr(gt(i),2)}, {vr(gt(i),2)}, {vr(u+i,2)}")
        for i in range(4):
            a(f"v_cvt_pk_bf16_f32 v{u+8*h+i}, v{gt(8*h+2*i)}, v{gt(8*h+2*i+1)}")
        a(f"buffer_store_dwordx4 {vr(u+8*h,4)}, v{V_L16}, {sr(R_WS,4)}, s{S_D0+seg} offen offset:{h*1024} sc1")
        vc.issue("st")
inj = {}
prep = [f"v_add_f32 v{HS}, v{HS}, v{HS+2}", f"v_add_f32 v{HS+1}, v{HS+1}, v{HS+3}",
        f"v_add_f32 v{HS+4}, v{HS+4}, v{HS+6}", f"v_add_f32 v{HS+5}, v{HS+5}, v{HS+7}",
        f"v_add_f32 v{HS}, v{HS}, v{HS+4}", f"v_add_f32 v{HS+1}, v{HS+1}, v{HS+5}",
        f"v_mov_b32 v{HS+2}, v{HS}", f"v_mov_b32 v{HS+3}, v{HS+1}",
        f"s_nop 1\nv_permlane32_swap_b32 v{HS}, v{HS+2}", f"v_permlane32_swap_b32 v{HS+1}, v{HS+3}\ns_nop 1",
        f"v_add_f32 v{HS}, v{HS}, v{HS+2}", f"v_add_f32 v{HS+1}, v{HS+1}, v{HS+3}",
        f"v_mul_f32 v{HS}, {f32(-1.0/512)}, v{HS}", f"v_mul_f32 v{HS+1}, {f32(1.0/512)}, v{HS+1}",
        f"v_fma_f32 v{HS+1}, -v{HS}, v{HS}, v{HS+1}", f"v_max_f32 v{HS+1}, 0, v{HS+1}",
        f"v_add_f32 v{HS+1}, {f32(1e-5)}, v{HS+1}", f"v_rsq_f32 v{HS+2}, v{HS+1}",
        f"v_and_b32 v{HS+3}, 0xffff0000, v{HS}", f"v_sub_f32 v{HS}, v{HS}, v{HS+3}",
        f"v_mul_f32 v{HS+1}, v{HS+1}, v{HS+2}", f"v_mul_f32 v{RS}, {f32(GS)}, v{HS+2}",
        f"v_cvt_pk_bf16_f32 v{BO}, v{HS+3}, v{HS}", f"v_and_b32 v{HS+3}, 0xffff0000, v{HS+1}",
        f"v_sub_f32 v{HS+1}, v{HS+1}, v{HS+3}", f"v_mov_b32 v{RS+1}, v{RS}",
        f"v_cvt_pk_bf16_f32 v{BO+2}, v{HS+3}, v{HS+1}",
        f"s_mov_b32 exec_lo, 0\nv_mov_b32 v{BO}, 0\nv_mov_b32 v{BO+2}, 0\ns_mov_b32 exec_lo, -1", f"v_mov_b32 v{BO+1}, v{BO}"]
spread(inj, [(x, 1) for x in prep], 0, 20)
spread(inj, [(x, 1) for x in capture(act_setup, 11, WS_GF, True)[:-5]], 70, 80)
def corr(seg):
    d = vr(F_ACC[seg], 16)
    a(f"v_mfma_f32_32x32x16_bf16 {d}, {vr(AB[seg],4)}, {vr(BO,4)}, {'0' if seg else d}")
def blk0():
    if W2L:
        a("s_barrier")
    a.c("the other accumulators start from -mean x colsum + std x bias")
    corr(2)
    corr(1)
    a("s_nop 7")
    gelu_block(0)
def blk1():
    a("s_nop 7")
    a("s_nop 1")
    gelu_block(1)
    if SKIP5:
        a(f"s_cmp_ge_u32 s{S_STAGE}, s{S_NT}")
        a("s_cbranch_scc1 L_p4_idle")
def g_reread(seg):
    if seg < 2 and not opt("grr", 1):
        return
    a("s_mov_b64 exec, 0xffff")
    a(f"buffer_load_dword v251, v3, {sr(R_WS,4)}, s{S_D0+seg} offen sc1")
    a("s_mov_b64 exec, -1")
def pub(seg):
    def f():
        vc.wait("st")
        g_reread(seg)
        a("s_barrier")
    return f
gemm_compute(vc, F_ACC, F_WF, set(), {0}, inj, {24: lambda: corr(0), 32: blk0, UP0: pub(0), 64: blk1, UP1: pub(1)},
             (0, 1, 2, 3, 6, 7, 10), 'p4', 1024, W0)
stamp("ffn1 done")
if SKIP5:
    a("s_nop 7")
    a("s_nop 3")
    gelu_block(2)
    a("s_branch L_p4_skip")
    a.label("L_p4_idle")
    for x in capture(act_setup, 11, WS_GF, True)[:-5]:
        a(x)
    a(f"s_mov_b32 s{S_D2}, s{S_D1}")
    a("s_barrier")
    a("s_waitcnt vmcnt(0) lgkmcnt(0)")
    g_reread(1)
    a("s_barrier")
else:
    a(f"s_cmp_ge_u32 s{S_STAGE}, s{S_NT}")
    a(f"s_cselect_b32 s{S_D2}, s{S_D1}, s{S_D2}")
    a("s_cbranch_scc1 L_p4_skip")
    a("s_nop 7")
    a("s_nop 0")
    gelu_block(2)
a.label("L_p4_skip")
stamp("g stored")
vl = new_vm()
def g_issue(*L):
    for n in L:
        if n == 10:
            a.c("the last chunk has three tiles: wave 3 repeats wave 2's")
            a(f"s_cmp_eq_u32 s{S_W}, 3")
            a(f"s_cselect_b32 s{T7}, 2048, 0")
            a(f"s_sub_u32 s{T4}, s{T4}, s{T7}")
        act_issue(vl, n, G_SLOTS[n], 11, True)
if not FQ:
    g_issue(2, 3)
if FQ == 2:
    vl.issue(("a", 2))
only(0, spoll_issue, F_G1)
Q1, QI = opt("q1", 2 if FQ else 1), opt("qi", 5)
def p5_after(q):
    if q == 0 and FQ:
        g_issue(*range(1 + FQ, 4))
    if q in (0, 2, 4, 7, 10) and opt("fst", 0):
        stamp(f"p5 q{q}")
    if q == Q1 - 1:
        only(0, spoll_check, F_G1)
    if q == 2:
        a.c("the wait for chunk 2 covered the last stores of every wave")
        flag_store(0, F_G2)
        if RR2 == 1:
            g_reread(2)
            vl.issue("rr")
    if q == Q1:
        g_issue(*range(4, Q1 + 4))
    elif Q1 < q <= 4:
        g_issue(q + 3)
    if q == 2 and RR2 == 2:
        g_reread(2)
        vl.issue("rr")
    if q == QI:
        only(0, spoll_issue, F_G2)
    if q == QP - 1:
        only(0, spoll_check, F_G2)
    if q == QP:
        g_issue(8, 9, 10)
tile_loader(vl, 43, p5_after, (1,) if FQ else ())
for x in out_pre:
    a(x)

a.label("L_p5_done")
tile_gather(16)
for h in range(2):
    a(f"s_waitcnt lgkmcnt({2-2*h})")
    for i in range(2*h, 2*h+2):
        a(f"v_pk_add_f32 {vr(16+2*i,2)}, {vr(16+2*i,2)}, {vr(24+2*i,2)}")
        a(f"v_pk_fma_f32 {vr(OE+2*i,2)}, {vr(16+2*i,2)}, v[10:11], {vr(OE+2*i,2)}")
    for i in range(2*h, 2*h+2):
        a(f"v_cvt_pk_bf16_f32 v{40+i}, v{OE+2*i}, v{OE+2*i+1}")
a(f"buffer_store_dwordx4 v[40:43], v{V_ROWOFF}, {sr(R_OUT,4)}, s{S_TILE} offen {opt('of', 'sc0_sc1').replace('_', ' ')}")
if STAMPS:
    a("s_waitcnt vmcnt(0)")
stamp("end")
stamp_flush()
a.label("L_end")
a("s_endpgm")
a.label("L_code_end")

a.c("======== attention with the row's true maximum: query block B over all 2048 keys")
a.label("L_attn_fb")
FM = SB
a("s_waitcnt vmcnt(0)")
a(f"v_mov_b32 v{FM}, 0xff800000")
a(f"s_mov_b32 s{S_XOFF}, 0")
a(f"s_mov_b32 s{S_LOOP}, 64")
a.label("L_fb1")
a(f"buffer_load_dwordx4 {vr(Kf(0),4)}, v{A_AK}, {sr(R_WS,4)}, s{S_XOFF} offen sc1")
a("s_waitcnt vmcnt(0)")
a(f"v_mfma_f32_32x32x16_bf16 {vr(SA,16)}, {vr(Kf(0),4)}, {vr(QB,4)}, 0")
a(f"s_add_u32 s{S_XOFF}, s{S_XOFF}, 2048")
a("s_nop 7")
a("s_nop 3")
for i in range(8):
    a(f"v_max3_f32 v{FM}, v{FM}, v{SA+2*i}, v{SA+2*i+1}")
a(f"s_sub_u32 s{S_LOOP}, s{S_LOOP}, 1")
a(f"s_cmp_lg_u32 s{S_LOOP}, 0")
a("s_cbranch_scc1 L_fb1")
a(f"v_mov_b32 v{FM+1}, v{FM}")
a("s_nop 1")
a(f"v_permlane32_swap_b32 v{FM}, v{FM+1}")
a("s_nop 1")
a(f"v_max_f32 v{FM}, v{FM}, v{FM+1}")
for i in range(16):
    a(f"v_mov_b32 v{OB+i}, 0")
a(f"s_mov_b32 s{S_XOFF}, 0")
a(f"s_mov_b32 s{S_LOOP}, 64")
a.label("L_fb2")
kv_load(Cnt(a, "vmcnt", 63), 0, 4)
a("s_waitcnt vmcnt(0)")
a(f"v_mfma_f32_32x32x16_bf16 {vr(SA,16)}, {vr(Kf(0),4)}, {vr(QB,4)}, 0")
a(f"s_add_u32 s{S_XOFF}, s{S_XOFF}, 2048")
a("s_nop 7")
a("s_nop 3")
for i in range(16):
    a(f"v_sub_f32 v{SA+i}, v{SA+i}, v{FM}")
for i in range(16):
    a(f"v_exp_f32 v{SA+i}, v{SA+i}")
a("s_nop 1")
smf(OB, Vf(0, 0), SA)
smf(OB, Vf(0, 1), SA+8)
a(f"s_sub_u32 s{S_LOOP}, s{S_LOOP}, 1")
a(f"s_cmp_lg_u32 s{S_LOOP}, 0")
a("s_nop 7")
a("s_cbranch_scc1 L_fb2")
a("s_nop 7")
a("s_nop 3")
a(f"v_rcp_f32 v10, v{OB+8}")
a("s_branch L_attn_fin")

a.raw('.section .rodata,"a"')
a.raw(".p2align 6")
a.raw(f".amdhsa_kernel {NAME}_kernel")
a.raw("  .amdhsa_next_free_vgpr 256")
a.raw("  .amdhsa_next_free_sgpr 102")
a.raw("  .amdhsa_accum_offset 256")
a.raw("  .amdhsa_group_segment_fixed_size 0")
a.raw("  .amdhsa_kernarg_size 88")
a.raw("  .amdhsa_user_sgpr_count 2")
a.raw("  .amdhsa_user_sgpr_kernarg_segment_ptr 1")
a.raw("  .amdhsa_system_sgpr_workgroup_id_x 1")
a.raw(".end_amdhsa_kernel")

out = [x for x in args if not x.startswith("--")]
open(out[0] if out else "cdna_kernels/" + NAME + ".s", "w").write(a.text())
```

```python
import sys, math
from lib import *

NAME = "sequential_preLN__softmax_full_mha__dense_activation_gelu__prompt"
args = sys.argv[1:]
def opt(n, d):
    for x in args:
        if x.startswith("--" + n + "="):
            return type(d)(x.split("=")[1])
    return d
STAMPS = "--stamps" in args
FORCE_FB = "--force-fallback" in args
LH = 2
NA = opt("na", 50)
IT1 = opt("it1", 4)
IT2 = opt("it2", 1)
TB1 = opt("tb1", 6)
TB2 = opt("tb2", 2)
T0B = opt("t0b", 1)
TEND = opt("tend", 2)
NBLK = opt("nblk", 2)
NPA = opt("npa", 3)
UKV = opt("ukv", 90)
NO = opt("no", 3)
NH = opt("nh", 3)
UP0 = opt("up0", 61)
UP1 = opt("up1", 89)
QP = opt("qp", 7)
KVL = opt("kvl", 1)
KVP = opt("kvp", 0)
SLP = opt("slp", 0)
HPK = opt("hpk", 0)
OPK = opt("opk", 0)
DO = opt("do", 0)
DH = opt("dh", 0)
NW2 = opt("nw2", 2)
BK = opt("bk", 0)
LATE = opt("late", 0)
SPF = opt("spf", 0)
SPF2 = opt("spf2", -1)
L2PF = opt("l2pf", 2)
NPB = opt("npb", 0)
XSW = opt("xsw", 0)
KVJ = opt("kvj", 0)
QPF = opt("qpf", -1)
NB0 = opt("nb0", 3)
EARLY = opt("early", 0)
MW = opt("mw", -1)
WM = opt("wm", 0)
BAT = opt("bat", 0)
LPOS = opt("lpos", 12)
KPOS = opt("kpos", -1)
PRA = 2
FLIP = opt("flip", 5)
FEND = opt("fend", 2)
STM = opt("stm", 0)
ORD = opt("ord", 1)
W2L = opt("w2l", 0)
WS1 = [int(c) for c in opt("ws1", "40202")]
WC = [sum(WS1[:k]) for k in range(6)]
LF = opt("lf", 1)
LOC = opt("loc", 1)
WPF = opt("wpf", 0)
RR2 = opt("rr2", 0)
OSP = opt("osp", 1)
NEAR = opt("near", 1)
PEEL = opt("peel", 1)
BP0, BP1 = opt("bp0", 13), opt("bp1", 13)
GST = opt("gst", 0)
TSPLIT = opt("tsplit", 1)
PRE = opt("pre", 1)
SKIP5 = opt("skip5", 1)
SEL = opt("sel", "").replace("_", " ")
PROBE = opt("probe", "").replace("_", " ")
PFROM = opt("pfrom", "").replace("_", " ")
PCYC = opt("pcyc", 0)

S_WG, S_W = 2, 3
S_PC = 4
R_X, R_WQKV, R_WO, R_W1, R_W2, R_WS, R_OUT, R_B1, R_B2 = 8, 12, 16, 20, 24, 28, 32, 36, 40
KA = 44
S_HG, S_TB, S_TB2, S_J, S_N = 66, 67, 68, 69, 70
S_F0 = 71
T0, T1, T2, T3, T4, T5, T6, T7 = 72, 73, 74, 75, 76, 77, 78, 79
S_LOOP, S_XOFF, S_HEAD = 80, 81, 82
S_TILE = 83
S_MASKV = 84
S_D0, S_D1, S_D2, S_D3 = 86, 87, 88, 89
S_TS = 90
S_NT = 92
S_SPIN = 93
S_SAVE = 94
S_D4, S_D5 = 96, 97
S_STAGE = 101
S_SHR = 100
S_FOWN, S_FPOLL = 98, 99
S_ZG, S_ZO = 60, 61
S_OWN, S_OWN2 = 62, 63

WS_NONCE = 0
WS_PL = 0x1000
WS_FKV = 0x4000
WS_FC = 0x8000
WS_STAMP = 0x10000
WS_CS = 0x60000
WS_KV = 0x100000
WS_OF = 0x600000
WS_H = WS_OF + 0x20000
WS_GF = WS_OF + 0x40000
WS_GRP = WS_OF + 0xA0000
WS_SIZE = WS_OF + 0x2000000
F_PROBE = 768
F_O, F_H, F_G0, F_G1, F_G2 = 0, 128, 256, 384, 512

L_XN = 0
L_RING = 65536
L_Q = 32768
L_OX = 0
LDS_BYTES = 163840

V_LANE, V_ROWOFF, V_XNW = 1, 2, 3
V_DA, V_DB = 12, 13
V_B1 = 232
V_B2 = 236
V_REDW, V_REDR, V_L16 = 240, 244, 246
V_HRES = 252

a = Asm()
stamp_idx = [0]
def stamp(name):
    i = stamp_idx[0]
    stamp_idx[0] += 1
    if PROBE and name == "start":
        a("s_memrealtime s[6:7]")
    if PROBE and name == "setup":
        a("s_mov_b32 s1, 0")
    clk = "s_memtime" if PCYC else "s_memrealtime"
    if PROBE and name == "setup":
        a("s_mov_b32 s0, 0")
    if PFROM == name:
        a(f"{clk} {sr(S_TS,2)}")
        a("s_waitcnt lgkmcnt(0)")
        a(f"s_mov_b32 s0, s{S_TS}")
    if PROBE == name:
        a(f"{clk} {sr(S_TS,2)}")
        a("s_waitcnt lgkmcnt(0)")
        a(f"s_sub_u32 s1, s{S_TS}, s{0 if PFROM else 6}")
        if PFROM:
            a("s_cmp_eq_u32 s0, 0")
            a("s_cselect_b32 s1, 0, s1")
    if PROBE and name == "end":
        a(f"s_mul_i32 s1, s1, {1 if PCYC else 10}")
        a("s_add_u32 s1, s1, 10000")
        a(f"s_cmp_lg_u32 s{S_WG}, 100")
        a("s_cbranch_scc1 L_nopin")
        a.label("L_pin")
        a(f"s_memrealtime {sr(S_TS,2)}")
        a("s_waitcnt lgkmcnt(0)")
        a(f"s_sub_u32 s{S_TS}, s{S_TS}, s6")
        a(f"s_cmp_lt_u32 s{S_TS}, s1")
        a("s_cbranch_scc1 L_pin")
        a.label("L_nopin")
    if not STAMPS:
        return
    if SEL and name not in ("start", "end") and not any(k in name for k in SEL.split(",")):
        return
    a.c(f"stamp {i} {name}")
    a(f"s_memtime {sr(S_TS,2)}")
    a(f"s_waitcnt lgkmcnt(0)")
    a(f"v_writelane_b32 v250, s{S_TS}, {i}")
    a(f"s_memrealtime {sr(S_TS,2)}")
    a(f"s_waitcnt lgkmcnt(0)")
    a(f"v_writelane_b32 v250, s{S_TS}, {i+32}")

def stamp_flush():
    if not STAMPS:
        return
    l = a.uniq("L_st")
    a(f"s_and_b32 s{T7}, s{S_W}, 3")
    a(f"s_cmp_lg_u32 s{T7}, {opt('sw', 0)}")
    a(f"s_cbranch_scc1 {l}")
    a(f"s_lshl_b32 s{T7}, s{S_WG}, 9")
    a(f"s_and_b32 s{T6}, s{S_W}, 4")
    a(f"s_lshl_b32 s{T6}, s{T6}, 6")
    a(f"s_add_u32 s{T7}, s{T7}, s{T6}")
    a(f"s_add_u32 s{T7}, s{T7}, {WS_STAMP}")
    a(f"v_lshlrev_b32 v251, 2, v{V_LANE}")
    a(f"buffer_store_dword v250, v251, {sr(R_WS,4)}, s{T7} offen")
    a.label(l)

def srd(r, ptr, size):
    a(f"s_mov_b32 s{r}, s{ptr}")
    a(f"s_mov_b32 s{r+1}, s{ptr+1}")
    a(f"s_mov_b32 s{r+2}, {size}")
    a(f"s_mov_b32 s{r+3}, 0x00020000")

def flag_addr(base, line_own, word_own, line_poll, sh=8):
    a(f"s_lshl_b32 s{S_FOWN}, s{line_own}, {sh}")
    a(f"s_lshl_b32 s{T7}, s{word_own}, 2")
    a(f"s_add_u32 s{S_FOWN}, s{S_FOWN}, s{T7}")
    a(f"s_add_u32 s{S_FOWN}, s{S_FOWN}, {base}")
    a(f"s_lshl_b32 s{S_FPOLL}, s{line_poll}, {sh}")
    a(f"s_add_u32 s{S_FPOLL}, s{S_FPOLL}, {base}")

def grp_flags(tb_own, z_own, word):
    a(f"s_add_u32 s{S_FPOLL}, s{S_ZG}, {WS_GRP}")
    a(f"s_lshl_b32 s{T7}, s{word}, 2")
    a(f"s_add_u32 s{S_FOWN}, s{z_own}, s{T7}")
    a(f"s_add_u32 s{S_FOWN}, s{S_FOWN}, {WS_GRP}")

def half_issue():
    a(f"s_lshl_b32 s{S_ZG}, s{S_TB2}, 6")
    a(f"s_add_u32 s{S_ZG}, s{S_ZG}, {WS_PL}")
    a(f"s_lshl_b32 s{S_ZO}, s{S_TB}, 6")
    a(f"s_add_u32 s{S_ZO}, s{S_ZO}, {WS_PL}")
    a(f"s_mov_b32 s{S_SPIN}, 0")
    a.c("cached first try: an old copy only fails the tag test")
    a(f"s_load_dwordx2 {sr(KA+12,2)}, {sr(KA+20,2)}, s{S_ZG}")
    a(f"s_load_dwordx2 {sr(KA+14,2)}, {sr(KA+20,2)}, s{S_ZO}")

def half_check():
    l, l_ok = a.uniq("L_hp"), a.uniq("L_hok")
    a.label(l)
    a("s_waitcnt lgkmcnt(0)")
    for k in range(4):
        a(f"s_cmp_eq_u32 s{KA+12+k}, s{S_N}")
        a(f"s_cselect_b32 s{KA+12+k}, 8192, 0")
    a(f"s_or_b32 s{KA+12}, s{KA+12}, s{KA+13}")
    a(f"s_or_b32 s{KA+14}, s{KA+14}, s{KA+15}")
    a(f"s_and_b32 s{KA+12}, s{KA+12}, s{KA+14}")
    a(f"s_cbranch_scc1 {l_ok}")
    a(f"s_add_u32 s{S_SPIN}, s{S_SPIN}, 1")
    a(f"s_cmp_gt_u32 s{S_SPIN}, 200000")
    a(f"s_cbranch_scc1 {l_ok}")
    a(f"s_load_dwordx2 {sr(KA+12,2)}, {sr(KA+20,2)}, s{S_ZG} glc")
    a(f"s_load_dwordx2 {sr(KA+14,2)}, {sr(KA+20,2)}, s{S_ZO} glc")
    a(f"s_branch {l}")
    a.label(l_ok)
    a(f"s_lshl_b32 s{S_ZG}, s{S_TB2}, 20")
    a(f"s_add_u32 s{S_ZG}, s{S_ZG}, s{KA+13}")
    a(f"s_lshl_b32 s{S_ZO}, s{S_TB}, 20")
    a(f"s_add_u32 s{S_ZO}, s{S_ZO}, s{KA+15}")
    a(f"s_add_u32 s{S_HEAD}, s{S_HEAD}, s{S_ZO}")

def flag_store(poller, off=0, peek=False):
    l = a.uniq("L_nf")
    a(f"s_cmp_lg_u32 s{S_W}, {poller}")
    a(f"s_cbranch_scc1 {l}")
    a(f"s_mov_b64 exec, 1")
    a(f"buffer_store_dword v248, v249, {sr(R_WS,4)}, s{S_FOWN} offen offset:{off} sc1")
    if peek:
        a(f"s_mov_b64 exec, 0xff")
        a(f"buffer_load_dword v247, v249, {sr(R_WS,4)}, s{S_FPOLL} offen offset:{off} sc1")
    a(f"s_mov_b64 exec, -1")
    a.label(l)

def flag_poll(poller, nflags, off=0, va=249):
    l_skip, l_poll, l_done = a.uniq("L_skip"), a.uniq("L_poll"), a.uniq("L_done")
    if poller is None:
        a(f"v_cmp_eq_u32 vcc, v247, v248")
        a("s_nop 0")
        a(f"s_and_b32 s{T7}, vcc_lo, {(1 << nflags) - 1:#x}")
        a(f"s_cmp_eq_u32 s{T7}, {(1 << nflags) - 1:#x}")
    else:
        a(f"s_cmp_lg_u32 s{S_W}, {poller}")
    a(f"s_cbranch_scc1 {l_skip}")
    a(f"s_mov_b32 exec_hi, 0")
    a(f"s_mov_b32 exec_lo, {(1 << nflags) - 1:#x}")
    a(f"s_mov_b32 s{S_SPIN}, 0")
    a.label(l_poll)
    a(f"buffer_load_dword v247, v{va}, {sr(R_WS,4)}, s{S_FPOLL} offen offset:{off} sc1")
    a(f"s_add_u32 s{S_SPIN}, s{S_SPIN}, 1")
    a("s_waitcnt vmcnt(0)")
    a(f"v_cmp_eq_u32 vcc, v247, v248")
    a(f"s_cmp_gt_u32 s{S_SPIN}, 200000")
    a(f"s_cbranch_scc1 {l_done}")
    a(f"s_cmp_eq_u64 vcc, exec")
    if BK:
        a(f"s_cbranch_scc1 {l_done}")
        a(f"s_sleep {BK}")
        a(f"s_branch {l_poll}")
    else:
        a(f"s_cbranch_scc0 {l_poll}")
    a.label(l_done)
    a("s_mov_b64 exec, -1")
    a.label(l_skip)

def peek_check(n, ok):
    a(f"s_waitcnt vmcnt({n})")
    a(f"v_cmp_eq_u32 vcc, v247, v248")
    a("s_nop 0")
    a(f"s_and_b32 s{T7}, vcc_lo, 0xff")
    a(f"s_cmp_eq_u32 s{T7}, 0xff")
    a(f"s_cbranch_scc1 {ok}")

def spoll_issue(off):
    a(f"s_add_u32 s{KA+2}, s{S_FPOLL}, {off}")
    a(f"s_load_dwordx8 {sr(KA+4,8)}, {sr(KA+20,2)}, s{KA+2} glc")
    a(f"s_mov_b32 s{KA}, s{S_N}")
    a(f"s_mov_b32 s{KA+1}, s{S_N}")
    a(f"s_mov_b32 s{KA+3}, 0")

def spoll_check(off):
    l, l_ok = a.uniq("L_sp"), a.uniq("L_spok")
    a.label(l)
    a("s_waitcnt lgkmcnt(0)")
    for k in range(4):
        a(f"s_xor_b64 {sr(KA+4+2*k,2)}, {sr(KA+4+2*k,2)}, {sr(KA,2)}")
    for k in range(1, 4):
        a(f"s_or_b64 {sr(KA+4,2)}, {sr(KA+4,2)}, {sr(KA+4+2*k,2)}")
    a(f"s_cbranch_scc0 {l_ok}")
    if BK:
        a(f"s_sleep {BK}")
    a(f"s_load_dwordx8 {sr(KA+4,8)}, {sr(KA+20,2)}, s{KA+2} glc")
    a(f"s_add_u32 s{KA+3}, s{KA+3}, 1")
    a(f"s_cmp_lt_u32 s{KA+3}, 16")
    a(f"s_cbranch_scc1 {l}")
    a("s_waitcnt lgkmcnt(0)")
    a(f"v_not_b32 v247, v248")
    flag_poll(None, 8, off)
    a.label(l_ok)

LN_X, LN_D, LN_T = 16, 48, 56

def ln_loads(vm, rsrc, soff, flags=""):
    for i in range(8):
        so, imm = (soff[i >> 1], 128*(i & 1)) if isinstance(soff, list) else (soff, 128*i)
        a(f"buffer_load_dwordx4 {vr(LN_X+4*i,4)}, v{V_ROWOFF}, {sr(rsrc,4)}, s{so} offen offset:{imm} {flags}")
        vm.issue(("x", i))

def ln_consts():
    t = LN_T
    a(f"v_mov_b32 v{t+4}, 0x3f803f80")
    a(f"v_mov_b32 v{t+5}, 0x00003f80")
    a(f"v_mov_b32 v{t+6}, 0x3f800000")
    a(f"v_mov_b32 v{t}, 0")
    a(f"v_mov_b32 v{t+1}, 0")

def ln_stats(vm, scale):
    t = LN_T
    for i in range(8):
        vm.wait(("x", i))
        if i == SPF2 and SPF < 3:
            w_touch(QKV_SEG[SPF:])
        if i in (7,) and scale >= 1.0:
            stamp(f"x{i} in {scale}")
        a.raw(".p2align 3")
        for j in range(4):
            a(f"v_dot2_f32_bf16 v{t}, v{LN_X+4*i+j}, v{t+4}, v{t}")
            a(f"v_dot2_f32_bf16 v{t+1}, v{LN_X+4*i+j}, v{LN_X+4*i+j}, v{t+1}")

def sum8_pair(t):
    a("s_nop 1")
    for ctl in ("quad_perm:[1,0,3,2]", "quad_perm:[2,3,0,1]", "row_half_mirror"):
        a("s_nop 0")
        a(f"v_add_f32_dpp v{t}, v{t}, v{t} {ctl} row_mask:0xf bank_mask:0xf")
        a(f"v_add_f32_dpp v{t+1}, v{t+1}, v{t+1} {ctl} row_mask:0xf bank_mask:0xf")

def ln_norm(scale, vm=None):
    t = LN_T
    sum8_pair(t)
    a(f"v_mul_f32 v{t}, {f32(-1.0/512)}, v{t}")
    a(f"v_mul_f32 v{t+2}, v{t}, v{t}")
    a(f"v_mul_f32 v{t+1}, {f32(1.0/512)}, v{t+1}")
    a(f"v_sub_f32 v{t+1}, v{t+1}, v{t+2}")
    a(f"v_max_f32 v{t+1}, 0, v{t+1}")
    a(f"v_add_f32 v{t+1}, {f32(1e-5)}, v{t+1}")
    a(f"v_rsq_f32 v{t+2}, v{t+1}")
    a("s_nop 0")
    if scale != 1.0:
        a(f"v_mul_f32 v{t+2}, {f32(scale)}, v{t+2}")
    a(f"v_mov_b32 v{t+3}, v{t+2}")
    for i in range(8):
        if vm:
            vm.wait(("x", i))
        a.raw(".p2align 3")
        for j in range(4):
            a(f"v_dot2_f32_bf16 v{LN_D+2*j}, v{LN_X+4*i+j}, v{t+5}, v{t}")
            a(f"v_dot2_f32_bf16 v{LN_D+2*j+1}, v{LN_X+4*i+j}, v{t+6}, v{t}")
        for j in range(4):
            a(f"v_pk_mul_f32 {vr(LN_D+2*j,2)}, {vr(LN_D+2*j,2)}, {vr(t+2,2)}")
        for j in range(4):
            a(f"v_cvt_pk_bf16_f32 v{LN_X+4*i+j}, v{LN_D+2*j}, v{LN_D+2*j+1}")
        a(f"ds_write_b128 v{V_XNW}, {vr(LN_X+4*i,4)} offset:{L_XN + 4096*i}")

def dma_addr(dst, row_bytes, col_s):
    a(f"v_lshrrev_b32 v10, 3, v{V_LANE}")
    a(f"v_and_b32 v11, 7, v{V_LANE}")
    a(f"v_lshlrev_b32 v{dst}, 1, v10")
    a(f"v_and_b32 v{dst}, 4, v{dst}")
    a(f"v_xor_b32 v11, v11, v{dst}")
    a(f"v_mul_u32_u24 v10, {row_bytes}, v10")
    a(f"v_lshl_add_u32 v10, v11, 4, v10")
    a(f"v_add_u32 v{dst}, s{col_s}, v10")

def dma(vm, tag, rsrc, vaddr, sg, goff, sl, loff, flags=""):
    a(f"s_add_u32 m0, s{sl}, {loff}")
    a(f"s_add_u32 s{T7}, s{sg}, {goff}")
    a(f"buffer_load_dwordx4 v{vaddr}, {sr(rsrc,4)}, s{T7} offen {flags} lds")
    vm.issue(tag)

def tr_lane_addr(dst, hp_s, perm):
    a(f"v_bfe_u32 v10, v{V_LANE}, 2, 2")
    a(f"v_lshrrev_b32 v11, 1, v10")
    a(f"v_xor_b32 v11, s{hp_s}, v11")
    a(f"v_lshlrev_b32 v11, 6, v11")
    a(f"v_lshl_add_u32 v11, v10, 7, v11")
    a(f"v_bfe_u32 v10, v{V_LANE}, 4, 1")
    a(f"v_lshl_add_u32 v11, v10, 5, v11")
    if perm:
        a(f"v_and_b32 v10, 1, v{V_LANE}")
        a(f"v_lshl_add_u32 v11, v10, 4, v11")
        a(f"v_bfe_u32 v10, v{V_LANE}, 1, 1")
        a(f"v_lshl_add_u32 v11, v10, 3, v11")
    else:
        a(f"v_and_b32 v10, 3, v{V_LANE}")
        a(f"v_lshl_add_u32 v11, v10, 3, v11")
    a(f"v_lshrrev_b32 v10, 5, v{V_LANE}")
    a(f"v_lshl_add_u32 v{dst}, v10, 10, v11")

def tr_read(dst, vaddr, off):
    a(f"ds_read_b64_tr_b16 {vr(dst,2)}, v{vaddr} offset:{off}")
    a(f"ds_read_b64_tr_b16 {vr(dst+2,2)}, v{vaddr} offset:{off+512}")

G_X = 16
G_XA, G_WA = 4, 8

FAKE = opt("fake", "")
def mm(kind, acc, A, B, t, zero):
    if kind in FAKE:
        for k in range(2):
            d = vr(acc + 4*((2*t + k) % 4), 4)
            a(f"v_mfma_f32_16x16x32_bf16 {d}, {A}, {B}, {'0' if zero and t < 2 else d}")
    else:
        d = vr(acc, 16)
        a(f"v_mfma_f32_32x32x16_bf16 {d}, {A}, {B}, {'0' if zero and t == 0 else d}")

def capture(f, *x):
    keep, a.L = a.L, []
    f(*x)
    out, a.L = [l.strip() for l in a.L if not l.strip().startswith(";")], keep
    return out

def w_addr():
    a(f"s_bfe_u32 s{T0}, s{S_W}, 0x10001")
    tr_lane_addr(G_WA, T0, True)
    a(f"v_add_u32 v{G_WA}, {L_RING}, v{G_WA}")
    a(f"v_add_u32 v{G_WA+1}, 49152, v{G_WA}")

def x_addr(raw):
    a(f"s_and_b32 s{T0}, s{S_W}, 1")
    a(f"s_lshl_b32 s{T0}, s{T0}, 15")
    if raw:
        a(f"v_bfe_u32 v10, v{V_LANE}, 3, 2")
        a(f"v_lshlrev_b32 v10, 13, v10")
        a(f"v_and_b32 v11, 7, v{V_LANE}")
        a(f"v_lshl_add_u32 v10, v11, 7, v10")
        a(f"v_add_u32 v10, s{T0}, v10")
        a(f"v_bfe_u32 v11, v{V_LANE}, 1, 3")
        a(f"v_lshrrev_b32 v{G_XA}, 5, v{V_LANE}")
        a(f"v_xor_b32 v11, v11, v{G_XA}")
        for b in range(4):
            a(f"v_xor_b32 v{G_XA+b}, {2*b}, v11")
            a(f"v_lshl_add_u32 v{G_XA+b}, v{G_XA+b}, 4, v10")
    else:
        for b in range(4):
            a(f"v_lshrrev_b32 v10, 5, v{V_LANE}")
            a(f"v_add_u32 v10, {2*b}, v10")
            a(f"v_and_b32 v11, 31, v{V_LANE}")
            a(f"v_xor_b32 v11, v11, v10")
            a(f"v_lshlrev_b32 v11, 4, v11")
            a(f"v_lshl_add_u32 v11, v10, 9, v11")
            a(f"v_add_u32 v{G_XA+b}, s{T0}, v11")

def w_read(dst, u):
    off = ((u >> 3) % 6)*16384 + (u & 7)*2048
    if off >= 49152:
        tr_read(dst, G_WA + 1, off - 49152)
    else:
        tr_read(dst, G_WA, off)

def gemm_compute(vm, acc, wf, swapped, zero_c, inject, before, bars, nm, xstride, w0=None, joint=False):
    lg = Cnt(a, "lgkmcnt", 15)
    nxt = [0]
    def unit(u):
        return (u & 1, u >> 1) if (joint and u < 64) else (u >> 5, u & 31)
    def rd(u):
        if u % 8 == 0 and (u >> 3) in bars:
            vm.wait(("w", u >> 3), ("x", u >> 3), extra="" if u else "lgkmcnt(0)")
            if u == 0 and nm == "p1":
                pass
            a("s_barrier")
        seg, t = unit(u)
        if seg == 0:
            a(f"ds_read_b128 {vr(G_X+4*t,4)}, v{G_XA+(t&3)} offset:{L_XN + (t>>2)*xstride}")
            lg.issue(u)
        if u >= 32 or not w0:
            w_read(wf[u % 6], u)
            lg.issue(u, 2)
    def fill(upto):
        while nxt[0] <= min(upto, 95):
            rd(nxt[0]); nxt[0] += 1
    fill(5 if joint else 3)
    for u in range(96):
        seg, t = unit(u)
        if u % 32 == 0 and GST:
            stamp(f"{nm} pass{u >> 5}")
        if u in before:
            before[u]()
        if u < 32 and not joint:
            lg.wait(u)
        elif u % 2 == 0:
            lg.wait(u + 1)
        x, d = vr(G_X+4*t, 4), vr(acc[seg], 16)
        w = vr(w0(t) if (w0 and u < 32) else wf[u % 6], 4)
        c = "0" if (seg in zero_c and t == 0) else d
        if seg in swapped:
            mm(nm[1], acc[seg], x, w, t, seg in zero_c)
        else:
            mm(nm[1], acc[seg], w, x, t, seg in zero_c)
        fill(u + (6 if joint else 4 if u < 28 else 5 if u < 29 else 6))
        for ins in inject.get(u, []):
            if isinstance(ins, tuple):
                a(ins[0]); vm.issue(ins[1])
            else:
                a(ins)

def spread(inject, items, u0, u1):
    tot = sum(c for _, c in items)
    acc = 0
    for ins, c in items:
        u = u0 + min(u1 - u0 - 1, int(acc * (u1 - u0) / tot))
        inject.setdefault(u, []).append(ins)
        acc += c

S_RG = [S_D0, S_D1, S_D2, S_D3]
def ring_setup(row_bytes, rot, rows=32):
    a(f"s_and_b32 s{S_D5}, s{S_W}, 3")
    a(f"s_mul_i32 s{T0}, s{S_D5}, {rows*row_bytes}")
    a(f"s_lshl_b32 s{S_D5}, s{S_D5}, 12")
    for c in range(4):
        if rot:
            a(f"s_add_u32 s{T7}, s{rot}, {c}")
            a(f"s_and_b32 s{T7}, s{T7}, 3")
            a(f"s_mul_i32 s{T7}, s{T7}, {128*row_bytes}")
            a(f"s_add_u32 s{S_RG[c]}, s{T0}, s{T7}")
        else:
            a(f"s_add_u32 s{S_RG[c]}, s{T0}, {c*128*row_bytes}")

def ring_issue(vm, rsrc, row_bytes, seg_off, n):
    if rsrc == R_W1 and "%x" % n in opt("skipw", ""):
        return
    for p in range(4):
        dma(vm, ("w", n), rsrc, V_DB, S_RG[n & 3], seg_off[n >> 2] + p*8*row_bytes, S_D5, L_RING + (n % 6)*16384 + p*1024)

def qkv_issue(vm, n):
    if not KVJ:
        return ring_issue(vm, R_WQKV, 3072, QKV_SEG, n)
    if n == 8:
        a(f"s_mul_i32 s{T7}, s{S_D5}, 12")
        for c in range(4):
            a(f"s_add_u32 s{S_RG[c]}, s{S_RG[c]}, s{T7}")
    if n >= 8:
        return ring_issue(vm, R_WQKV, 3072, QKV_SEG, n)
    for p in range(4):
        dma(vm, ("w", n), R_WQKV, V_DB, S_RG[n >> 1], QKV_SEG[p >> 1] + ((n & 1)*64 + (p & 1)*8)*3072, S_D5, L_RING + (n % 6)*16384 + p*1024)

def swap23(dst, mask, tmp):
    a(f"v_and_b32 v{dst}, {mask & ~12:#x}, v{V_LANE}")
    a(f"v_bfe_u32 v{tmp}, v{V_LANE}, 2, 1")
    a(f"v_lshl_add_u32 v{dst}, v{tmp}, 3, v{dst}")
    a(f"v_bfe_u32 v{tmp}, v{V_LANE}, 3, 1")
    a(f"v_lshl_add_u32 v{dst}, v{tmp}, 2, v{dst}")

def only(w, f, *x):
    l = a.uniq("L_w")
    a(f"s_cmp_lg_u32 s{S_W}, {w}")
    a(f"s_cbranch_scc1 {l}")
    f(*x)
    a.label(l)

def is_a(label):
    a(f"s_cmp_lt_u32 s{S_W}, 4")
    a(f"s_cbranch_scc1 {label}")

def act_setup(nblk, base, pairs):
    a(f"s_and_b32 s{T0}, s{S_W}, 3")
    a(f"s_lshl_b32 s{T3}, s{T0}, 10")
    a(f"s_lshl_b32 s{T0}, s{T0}, {11 if pairs else 10}")
    a(f"s_add_u32 s{T0}, s{T0}, s{S_ZG}")
    a(f"s_add_u32 s{T4}, s{T0}, {base}")
    a(f"s_and_b32 s{T0}, s{S_W}, 2")
    a(f"s_lshl_b32 s{T0}, s{T0}, 12")
    a(f"v_add_u32 v4, s{T0}, v{V_L16}")
    a(f"v_add_u32 v5, 65536, v4")
    a(f"v_add_u32 v6, 131072, v4")

def act_issue(vm, q, slot, nblk, pairs):
    for kh in range(2):
        for tb32 in range(2):
            g = (tb32*nblk + q)*16384 + kh*1024 if pairs else (tb32*nblk + 2*kh + (q >> 1))*16384 + (q & 1)*4096
            dma(vm, ("a", q), R_WS, V_L16, T0 if (ORD and not pairs and q & 1) else T4, g, T3, slot*16384 + kh*8192 + tb32*4096, "sc1")

def tile_compute(vm, nsteps, slots, wreg, acc, af, inject={}, skip=()):
    lg = Cnt(a, "lgkmcnt", 15)
    last = 4*((nsteps - 1)//4)
    seq = [(t, b) for t in range(last) for b in range(2)]
    if TSPLIT:
        seq += [(t, b) for b in range(2) for t in range(last, nsteps)]
    else:
        seq += [(t, b) for t in range(last, nsteps) for b in range(2)]
    n = len(seq)
    def rd(u):
        if u >= n: return
        t, tb32 = seq[u]
        if u % 8 == 0 and (t >> 2) not in skip:
            vm.wait(("a", t >> 2), *[("a", k) for k in skip if k == (t >> 2) + 1])
            a("s_barrier")
        off = slots[t >> 2]*16384 + tb32*4096 + (t & 3)*1024
        a(f"ds_read_b128 {vr(af+4*(u&3),4)}, v{4 + off//65536} offset:{off % 65536}")
        lg.issue(u)
    def wr(tb32):
        for i in range(4):
            a(f"ds_write_b128 v{V_REDW+i}, {vr(acc+16*tb32+4*i,4)} offset:{tb32*8192}")
    for u in range(4):
        rd(u)
    for u in range(n):
        t, tb32 = seq[u]
        lg.wait(u)
        d = vr(acc + 16*tb32, 16)
        mm("t", acc + 16*tb32, vr(wreg(t),4), vr(af+4*(u&3),4), t, True)
        rd(u + 4)
        for x in inject.get(u, []):
            a(x)
    if TSPLIT:
        k = 2*(nsteps - last)
        a(f"s_nop {11 - k}")
        wr(0)
        if k > 4:
            a(f"s_nop {k - 5}")
        wr(1)
    else:
        a("s_nop 7")
        a("s_nop 2")
        wr(0)
        wr(1)
    a("s_waitcnt lgkmcnt(0)")

def tile_loader(vm, nsteps, after, skip=()):
    for q in range((nsteps + 3)//4):
        if q not in skip:
            vm.wait(("a", q))
            a("s_barrier")
        after(q)

def reduce_addr():
    a(f"s_and_b32 s{T0}, s{S_W}, 2")
    a(f"s_lshl_b32 s{T0}, s{T0}, 13")
    a(f"s_and_b32 s{T1}, s{S_W}, 1")
    a(f"s_lshl_b32 s{T1}, s{T1}, 2")
    a(f"v_and_b32 v10, 31, v{V_LANE}")
    a(f"v_lshlrev_b32 v10, 8, v10")
    a(f"v_lshrrev_b32 v11, 5, v{V_LANE}")
    a(f"v_xor_b32 v11, v11, v{V_LANE}")
    a(f"v_and_b32 v11, 1, v11")
    a(f"v_lshl_add_u32 v10, v11, 7, v10")
    a(f"v_add_u32 v10, s{T0}, v10")
    a(f"v_and_b32 v11, 7, v{V_LANE}")
    a(f"v_xor_b32 v11, s{T1}, v11")
    for i in range(4):
        a(f"v_xor_b32 v{V_REDW+i}, {i}, v11")
        a(f"v_lshl_add_u32 v{V_REDW+i}, v{V_REDW+i}, 4, v10")
    a(f"v_lshrrev_b32 v10, 3, v0")
    a(f"v_xor_b32 v11, v10, v0")
    a(f"v_and_b32 v11, 7, v11")
    a(f"v_lshlrev_b32 v11, 4, v11")
    a(f"v_lshl_add_u32 v11, v10, 8, v11")
    a(f"v_and_b32 v10, 1, v10")
    a(f"v_lshl_add_u32 v{V_REDR}, v10, 7, v11")
    a(f"v_xor_b32 v{V_REDR+1}, 128, v{V_REDR}")

def tile_gather(dst):
    a("s_barrier")
    a(f"ds_read_b128 {vr(dst,4)}, v{V_REDR}")
    a(f"ds_read_b128 {vr(dst+8,4)}, v{V_REDR} offset:16384")
    a(f"ds_read_b128 {vr(dst+4,4)}, v{V_REDR+1}")
    a(f"ds_read_b128 {vr(dst+12,4)}, v{V_REDR+1} offset:16384")

def unpack8(dst, src):
    L = []
    for i in range(4):
        L.append(f"v_lshlrev_b32 v{dst+2*i}, 16, v{src+i}")
        L.append(f"v_and_b32 v{dst+2*i+1}, 0xffff0000, v{src+i}")
    return L

hdr = open("cdna_kernels/" + NAME + ".s.ref").read().split("\n")
for line in hdr:
    if line.startswith("; Override"):
        break
    a.raw(line)
a.raw(f"; @launch grid=(256,1,1) block=(512,1,1) lds={LDS_BYTES}")
a.raw("""; One persistent launch, 256 workgroups x 8 waves, one workgroup per CU.
; loads after the flag.  Nothing assumes a placement: ids and the timed choice of a memory half only affect speed.""")
a.raw('.amdgcn_target "amdgcn-amd-amdhsa--gfx950"')
a.raw(".text")
a.raw(f".globl {NAME}_kernel")
a.raw(".p2align 8")
a.raw(f".type {NAME}_kernel,@function")
a.label(f"{NAME}_kernel")

vm = Cnt(a, "vmcnt", 63)
def new_vm(): return Cnt(a, "vmcnt", 63)
a(f"s_cmp_ge_u32 s{S_WG}, 256")
a("s_cbranch_scc1 L_end")
if STAMPS:
    a("v_mov_b32 v250, 0")
stamp("start")
a(f"s_load_dwordx16 {sr(KA,16)}, s[0:1], 0")
a(f"s_load_dwordx4 {sr(KA+16,4)}, s[0:1], 64")
a(f"s_load_dwordx2 {sr(KA+20,2)}, s[0:1], 80")
a(f"s_getpc_b64 {sr(S_PC,2)}")
a.label("L_pc")
a.c("pull this kernel's code into L2, two lines per wave")
a("v_lshrrev_b32 v4, 6, v0")
a(f"s_and_b32 s{T0}, s{S_WG}, 0xf8")
a(f"v_readfirstlane_b32 s{S_W}, v4")
a(f"v_and_b32 v{V_LANE}, 63, v0")
a(f"v_lshl_add_u32 v5, v{V_LANE}, 8, v4")
a(f"v_add_u32 v5, s{T0}, v5")
a(f"v_lshlrev_b32 v5, 7, v5")
a(f"v_min_u32 v5, L_code_end-L_pc-4, v5")
a("s_mov_b64 exec, 3")
a(f"global_load_dword v251, v5, {sr(S_PC,2)}")
vm.issue("pf")
a("s_mov_b64 exec, -1")
a.c("roles: attention (hg, tb), MLP (tb2, j)")
a(f"s_and_b32 s{T0}, s{S_WG}, 7")
a(f"s_lshr_b32 s{T1}, s{S_WG}, 3")
a(f"s_lshr_b32 s{T2}, s{T0}, {3 - LH}")
a(f"s_lshl_b32 s{T2}, s{T2}, {5 - LH}")
a(f"s_lshr_b32 s{S_SHR}, s{T1}, {LH}")
a(f"s_add_u32 s{S_TB}, s{T2}, s{S_SHR}")
a(f"v_lshrrev_b32 v4, 3, v0")
if XSW:
    a(f"s_and_b32 s{T2}, s{T1}, 1")
    a(f"s_lshl_b32 s{S_STAGE}, s{T2}, 15")
    a(f"s_lshl_b32 s{T2}, s{T2}, 5")
    a(f"v_xor_b32 v4, s{T2}, v4")
a(f"v_and_b32 v5, 7, v0")
a(f"v_lshlrev_b32 v{V_ROWOFF}, 10, v4")
a(f"v_lshl_add_u32 v{V_ROWOFF}, v5, 4, v{V_ROWOFF}")
a(f"s_lshl_b32 s{T6}, s{S_TB}, 16")
for c in range(4):
    a(f"s_add_u32 s{T7}, s{S_SHR}, {c}")
    a(f"s_and_b32 s{T7}, s{T7}, 3")
    a(f"s_lshl_b32 s{T7}, s{T7}, 8")
    a(f"s_add_u32 s{S_RG[c]}, s{T6}, s{T7}")
a(f"s_mov_b32 s{R_X+2}, {2048*512*2}")
a(f"s_mov_b32 s{R_X+3}, 0x00020000")
QKV_SEG = [1024, 2048, 0]
a(f"s_lshl_b32 s{T4}, s{S_WG}, 1")
a(f"s_lshr_b32 s{T5}, s{S_W}, 2")
a(f"s_add_u32 s{T4}, s{T4}, s{T5}")
a(f"s_mul_i32 s{T4}, s{T4}, 3072")
a(f"s_and_b32 s{T5}, s{S_W}, 3")
a(f"s_lshl_b32 s{T5}, s{T5}, 8")
a(f"s_add_u32 s{T4}, s{T4}, s{T5}")
a("s_waitcnt lgkmcnt(0)")
a(f"s_mov_b64 {sr(R_X,2)}, {sr(KA,2)}")
a(f"s_add_u32 s{S_PC}, s{KA+2}, s{T4}")
a(f"s_addc_u32 s{S_PC+1}, s{KA+3}, 0")
def w_touch(segs):
    a.c("first touch of Wqkv (scalar path), a different quarter row by every wave")
    for o in segs:
        for i in range(4):
            a(f"s_load_dword s{S_SPIN}, {sr(S_PC,2)}, {o + 64*i}")
w_touch(QKV_SEG[:SPF])
if WPF:
    a(f"v_lshrrev_b32 v6, 1, v{V_LANE}")
    a(f"v_add_u32 v6, 1, v6")
    a(f"v_mul_u32_u24 v7, 11, v6")
    a(f"v_lshrrev_b32 v7, 5, v7")
    a(f"v_mul_u32_u24 v7, 3, v7")
    a(f"v_sub_u32 v6, v6, v7")
    a(f"v_lshlrev_b32 v6, 10, v6")
    a(f"v_and_b32 v7, 1, v{V_LANE}")
    a(f"v_lshl_add_u32 v6, v7, 7, v6")
    a(f"s_mov_b64 exec, {(1 << (2*WPF)) - 1}")
    a(f"global_load_dword v251, v6, {sr(S_PC,2)}")
    vm.issue("pf")
    a("s_mov_b64 exec, -1")
if EARLY:
    a(f"s_cmp_ge_u32 s{S_W}, 4")
    a("s_cbranch_scc1 L_x_later")
ln_loads(vm, R_X, S_RG)
if EARLY:
    a.label("L_x_later")
if XSW:
    a(f"v_xor_b32 v{V_ROWOFF}, s{S_STAGE}, v{V_ROWOFF}")
a(f"s_load_dword s{S_N}, {sr(KA+20,2)}, {WS_NONCE}")
srd(R_WQKV, KA+2, 512*1536*2)
a(f"s_and_b32 s{T2}, s{T0}, {(8 >> LH) - 1}")
a(f"s_and_b32 s{T3}, s{T1}, {(1 << LH) - 1}")
a(f"s_lshl_b32 s{T3}, s{T3}, {3 - LH}")
a(f"s_add_u32 s{S_HG}, s{T2}, s{T3}")
a(f"s_lshl_b32 s{T2}, s{T0}, 2")
a(f"s_and_b32 s{T3}, s{T1}, 3")
a(f"s_add_u32 s{S_TB2}, s{T2}, s{T3}")
a(f"s_lshr_b32 s{S_J}, s{T1}, 2")
a(f"v_and_b32 v6, 31, v4")
a(f"v_xor_b32 v6, v6, v5")
a(f"v_lshlrev_b32 v6, 4, v6")
a(f"v_lshl_add_u32 v6, v5, 9, v6")
a(f"v_lshrrev_b32 v4, 5, v4")
a(f"v_lshl_add_u32 v{V_XNW}, v4, 15, v6")
ln_consts()
W1_SEG = [0, 128, 256]

QA, QB, SA, SB, OA, OB = 16, 20, 24, 40, 56, 72
A_KV = 88
A_IDX, A_AV, A_AK = 8, 14, 15
A_W1, A_WO = 3, 12
A_ONE, A_QA = 214, 215
P_W = 160
def Kf(t, ns=4): return A_KV + 12*(t % ns)
def Vf(t, s, ns=4): return A_KV + 12*(t % ns) + 4 + 4*s
def F_W(t): return 140 + 4*t if t < 24 else 64 + 4*(t - 24)

def qkv_ring_setup():
    a(f"s_lshl_b32 s{T4}, s{S_HG}, 7")
    dma_addr(V_DB, 3072, T4)
    ring_setup(3072, S_SHR, 16 if KVJ else 32)

def common_setup():
    srd(R_WS, KA+20, WS_SIZE)
    srd(R_WO, KA+4, 512*512*2)
    srd(R_W1, KA+8, 512*1376*2)
    srd(R_B1, KA+10, 1376*2)
    srd(R_W2, KA+12, 1376*512*2)
    srd(R_B2, KA+14, 512*2)
    srd(R_OUT, KA+16, 2048*512*2)
    a(f"s_min_u32 s{T2}, s{S_J}, 3")
    a(f"s_mul_i32 s{S_F0}, s{S_J}, 5")
    a(f"s_add_u32 s{S_F0}, s{S_F0}, s{T2}")
    a(f"s_cmp_lt_u32 s{S_J}, 3")
    a(f"s_cselect_b32 s{S_NT}, 6, 5")
    a(f"s_lshl_b32 s{T4}, s{S_J}, 7")
    a(f"s_lshl_b32 s{T5}, s{S_TB2}, 16")
    a(f"s_add_u32 s{S_TILE}, s{T5}, s{T4}")
    a(f"v_lshlrev_b32 v{V_L16}, 4, v{V_LANE}")
    a(f"v_lshlrev_b32 v249, 2, v{V_LANE}")
    reduce_addr()
    a(f"s_and_b32 s{T0}, s{S_W}, 3")
    a(f"s_lshl_b32 s{T2}, s{S_HG}, 2")
    a(f"s_add_u32 s{T2}, s{T2}, s{T0}")
    a(f"s_lshl_b32 s{T2}, s{T2}, 17")
    a(f"s_add_u32 s{T2}, s{T2}, {WS_KV}")
    a(f"v_and_b32 v10, 15, v{V_LANE}")
    a(f"v_lshrrev_b32 v11, 5, v{V_LANE}")
    a(f"v_lshl_add_u32 v10, v11, 4, v10")
    a(f"v_lshl_add_u32 v{A_AV}, v10, 4, s{T2}")
    a(f"v_add_u32 v{A_AK}, s{T2}, v{V_L16}")
    a.c("waves 0-3 start on this workgroup's own two key tiles; the sweep over the others skips them")
    a(f"s_lshr_b32 s{T1}, s{S_W}, 2")
    a(f"s_mul_i32 s{S_XOFF}, s{T1}, {(NA - 2)*2048}")
    a(f"s_lshl_b32 s{S_OWN}, s{S_TB}, 12")
    a(f"s_add_u32 s{S_OWN2}, s{S_OWN}, 4096")
    if LOC:
        a(f"s_and_b32 s{S_OWN2}, s{S_OWN2}, 0x1ffff")
        a(f"s_and_b32 s{T2}, s{S_OWN}, 0x7fff")
        a(f"s_cmp_ge_u32 s{S_XOFF}, s{T2}")
        a(f"s_cselect_b32 s{T3}, 4096, 0")
        a(f"s_add_u32 s{S_XOFF}, s{S_XOFF}, s{T3}")
        a(f"s_and_b32 s{T2}, s{S_OWN}, 0x18000")
        a(f"s_add_u32 s{S_XOFF}, s{S_XOFF}, s{T2}")
        a(f"s_and_b32 s{S_XOFF}, s{S_XOFF}, 0x1ffff")
    else:
        a(f"s_cmp_ge_u32 s{S_XOFF}, s{S_OWN}")
        a(f"s_cselect_b32 s{T3}, 4096, 0")
        a(f"s_add_u32 s{S_XOFF}, s{S_XOFF}, s{T3}")
    a(f"s_mov_b32 s{S_MASKV}, 0xffff")
    a(f"s_mov_b32 s{S_MASKV+1}, 0xffff")
    a.c("rows 16 and 20 of the V operand are ones (row sums for both lane halves), the other spare rows zero")
    a(f"v_and_b32 v10, 0x1b, v{V_LANE}")
    a(f"v_cmp_eq_u32 vcc, 16, v10")
    a(f"v_mov_b32 v10, 0x3f803f80")
    a(f"v_mov_b32 v11, 0")
    a(f"v_cndmask_b32 v{A_ONE}, v11, v10, vcc")
    a(f"s_lshl_b32 s{T2}, s{S_W}, 10")
    a(f"v_add_u32 v{A_QA}, s{T2}, v{V_L16}")
    a(f"s_lshl_b32 s{T2}, s{T1}, 3")
    a(f"s_add_u32 s{T2}, s{T2}, s{S_HG}")
    a(f"s_lshl_b32 s{T2}, s{T2}, 2")
    a(f"s_add_u32 s{T2}, s{T2}, s{T0}")
    a(f"s_lshl_b32 s{T2}, s{T2}, 10")
    a(f"s_and_b32 s{T3}, s{T2}, 0xffffe000")
    a(f"s_add_u32 s{T2}, s{T2}, s{T3}")
    a(f"s_add_u32 s{S_HEAD}, s{T2}, {WS_OF}")

A_KF = 216
def kvflag_setup():
    if KVL:
        a(f"s_and_b32 s{S_SPIN}, s{S_TB}, 7")
        a(f"s_lshl_b32 s{S_FOWN}, s{S_TB}, 2")
        a(f"s_and_b32 s{S_FOWN}, s{S_FOWN}, 0x60")
        a(f"s_add_u32 s{S_SPIN}, s{S_SPIN}, s{S_FOWN}")
        flag_addr(WS_FKV, S_HG, S_SPIN, S_HG, 9)
        a(f"v_and_b32 v10, 7, v{V_LANE}")
        a(f"v_lshrrev_b32 v11, 3, v{V_LANE}")
        a(f"v_lshlrev_b32 v11, 7, v11")
        a(f"v_lshl_add_u32 v{A_KF}, v10, 2, v11")
    else:
        flag_addr(WS_FKV, S_HG, S_TB, S_HG, 9)
        a(f"v_mov_b32 v{A_KF}, v249")

def tag_setup():
    a.c("hand-off tag of this launch: next value of a full-period sequence after the one found in the workspace")
    a(f"s_mul_i32 s{S_N}, s{S_N}, 0x0019660d")
    a(f"s_add_u32 s{S_N}, s{S_N}, 0x3c6ef35f")
    a(f"v_mov_b32 v248, s{S_N}")

def misc_loads(v, with_b1):
    a.c("small operands needed much later: residual x tile, biases")
    a(f"buffer_load_dwordx4 {vr(V_HRES,4)}, v{V_ROWOFF}, {sr(R_X,4)}, s{S_TILE} offen")
    a(f"v_and_b32 v10, 0x70, v{V_L16}")
    a(f"s_lshl_b32 s{T7}, s{S_J}, 7")
    a(f"buffer_load_dwordx4 {vr(V_B2,4)}, v10, {sr(R_B2,4)}, s{T7} offen")
    v.issue("misc", 2)
    if with_b1:
        swap23(10, 31, 11)
        a(f"v_lshlrev_b32 v10, 1, v10")
        a(f"s_lshr_b32 s{T7}, s{S_W}, 1")
        a(f"s_add_u32 s{T7}, s{T7}, s{S_F0}")
        a(f"s_lshl_b32 s{T7}, s{T7}, 6")
        for seg in range(3):
            a(f"buffer_load_ushort v{V_B1+seg}, v10, {sr(R_B1,4)}, s{T7} offen offset:{seg*128}")
        v.issue("misc", 3)

def attn_zero(ns):
    L = [(SB+8+i, f"v_mov_b32 v{SB+8+i}, 0") for i in range(8)]
    L += [(o+i, f"v_mov_b32 v{o+i}, 0") for o in (OA, OB) for i in range(16)]
    L += [(Vf(t,0,ns)+i, f"v_mov_b32 v{Vf(t,0,ns)+i}, v{A_ONE}") for t in range(ns) for i in range(8)]
    return L

def q_reads():
    a(f"v_xor_b32 v10, 4096, v{A_QA}")
    a(f"ds_read_b128 {vr(QB,4)}, v{A_QA} offset:{L_Q}")
    a(f"ds_read_b128 {vr(QA,4)}, v10 offset:{L_Q}")

def kv_load(v, t, ns, part=None):
    imm = 2048*(t & 1)
    so = S_OWN if t < 0 else S_XOFF
    if part != "v":
        a(f"buffer_load_dwordx4 {vr(Kf(t,ns),4)}, v{A_AK}, {sr(R_WS,4)}, s{so} offen offset:{imm} sc1")
    if part == "k":
        return
    a(f"s_mov_b64 exec, {sr(S_MASKV,2)}")
    a(f"buffer_load_dwordx4 {vr(Vf(t,0,ns),4)}, v{A_AV}, {sr(R_WS,4)}, s{so} offen offset:{imm+1024} sc1")
    a(f"buffer_load_dwordx4 {vr(Vf(t,1,ns),4)}, v{A_AV}, {sr(R_WS,4)}, s{so} offen offset:{imm+1536} sc1")
    a("s_mov_b64 exec, -1")
    if t & 1 and t >= 0:
        a(f"s_add_u32 s{S_XOFF}, s{S_XOFF}, 4096")
        if LOC:
            a(f"s_and_b32 s{S_XOFF}, s{S_XOFF}, 0x1ffff")
        if ns == 6 or not LOC:
            a(f"s_cmp_eq_u32 s{S_XOFF}, s{S_OWN}")
            a(f"s_cselect_b32 s{S_XOFF}, s{S_OWN2}, s{S_XOFF}")
    v.issue(("kv", t), 3)
def kv_load2(v, t, ns):
    for k in range(2):
        a(f"buffer_load_dwordx4 {vr(Kf(t+k,ns),4)}, v{A_AK}, {sr(R_WS,4)}, s{S_XOFF} offen offset:{2048*k} sc1")
    a(f"s_mov_b64 exec, {sr(S_MASKV,2)}")
    for k in range(2):
        for h in range(2):
            a(f"buffer_load_dwordx4 {vr(Vf(t+k,h,ns),4)}, v{A_AV}, {sr(R_WS,4)}, s{S_XOFF} offen offset:{2048*k+1024+512*h} sc1")
    a("s_mov_b64 exec, -1")
    a(f"s_add_u32 s{S_XOFF}, s{S_XOFF}, 4096")
    a(f"s_and_b32 s{S_XOFF}, s{S_XOFF}, 0x1ffff")
    a(f"s_cmp_eq_u32 s{S_XOFF}, s{S_OWN}")
    a(f"s_cselect_b32 s{S_XOFF}, s{S_OWN2}, s{S_XOFF}")
    v.issue(("kv", t + 1), 5)
    v.issue(("kv", t), 1)
def smf(o, v, s):
    a(f"v_smfmac_f32_32x32x32_bf16 {vr(o,16)}, {vr(v,4)}, {vr(s,8)}, v{A_IDX}")
def attn_tile(v, t, ns, last=None, side=(), tail=None, load=True, order=None, skew=0):
    order = order or {1: [(0, 13)], 2: [(0, BP0), (1, BP1)], 4: [(0, 4), (0, 13), (1, 4), (1, 13)]}[NBLK]
    at = {}
    if isinstance(side, dict):
        at = {order[b]: L for b, L in side.items()}
    else:
        for k, f in enumerate(side):
            at.setdefault(order[k*len(order)//len(side)], []).append(f)
    for ph in range(2):
        S, So, O, Oo, Qo = (SA, SB, OA, OB, QB) if ph == 0 else (SB, SA, OB, OA, QA)
        for i in range(16):
            if skew and ph == 0 and i % skew == 0 and i // skew < 4:
                if i == 0:
                    a("s_setprio 3")
                only(4 + i // skew, lambda: a("s_setprio 1"))
            for f in at.get((ph, i), []):
                f()
            if i == 2:
                smf(Oo, Vf(t - 1 + ph, 1, ns), So + 8)
            if i == 5 and not (ph == 1 and t == last):
                if ph == 1:
                    v.wait(("kv", t + 1))
                a(f"v_mfma_f32_32x32x16_bf16 {vr(So,16)}, {vr(Kf(t+ph,ns),4)}, {vr(Qo,4)}, 0")
            if i == 10:
                smf(O, Vf(t, 0, ns), S)
            if ph == 0 and i == KPOS and ns == 6 and load and (last is None or t + ns - 1 <= last):
                kv_load(v, t + ns - 1, ns, "k")
            if ph == 0 and i == LPOS and load and (last is None or t + ns - 1 <= last):
                if BAT and ns == 6 and t >= 0:
                    if t % 2 == 0:
                        kv_load2(v, t + 4, ns)
                        if BAT == 1:
                            v.wait(("kv", t + 2))
                else:
                    kv_load(v, t + ns - 1, ns, "v" if KPOS >= 0 and ns == 6 else None)
                    if WM and t >= 0 and ns == 6:
                        v.wait(("kv", t + 1))
            if ph == 1 and i == 12 and tail:
                tail()
            a(f"v_exp_f32 v{S+i}, v{S+i}")
def send_a():
    a.c("block A is complete: hand it to the wave that has the other keys")
    a(f"s_lshl_b32 s{T2}, s{S_W}, 11")
    a(f"v_add_u32 v10, s{T2}, v{V_L16}")
    a(f"s_lshl_b32 s{T2}, s{S_W}, 8")
    a(f"v_add_u32 v11, s{T2}, v249")
    a(f"ds_write_b32 v11, v{OA+8} offset:{L_OX+16384}")
    a(f"ds_write_b128 v10, {vr(OA,4)} offset:{L_OX}")
    a(f"ds_write_b128 v10, {vr(OA+4,4)} offset:{L_OX+1024}")
def attn_first(v, t, ns, fill=None):
    v.wait(("kv", t), extra="lgkmcnt(0)")
    a(f"v_mfma_f32_32x32x16_bf16 {vr(SA,16)}, {vr(Kf(t,ns),4)}, {vr(QA,4)}, 0")
    if fill:
        fill()
    a("s_nop 7")
    a("s_nop 3")

a.c("======== phase 1: LN1 + QKV projection")
stamp("setup") if PROBE else None
va, vb = vm.copy(), vm.copy()
is_a("L_p1_a")
def w_prefetch(v, segs):
    if not segs:
        return
    a.c("4 rows per wave of the XCD's Wqkv columns into L2")
    a(f"s_lshr_b32 s{T5}, s{S_WG}, 3")
    a(f"s_lshl_b32 s{T5}, s{T5}, 2")
    a(f"s_and_b32 s{T7}, s{S_W}, 3")
    a(f"s_add_u32 s{T5}, s{T5}, s{T7}")
    a(f"s_mul_i32 s{T5}, s{T5}, {4*3072}")
    a(f"s_and_b32 s{T7}, s{S_HG}, {(8 >> LH) - 1}")
    a(f"s_lshl_b32 s{T7}, s{T7}, 7")
    a(f"s_add_u32 s{T5}, s{T5}, s{T7}")
    a(f"v_lshrrev_b32 v10, {LH}, v{V_LANE}")
    a(f"v_mul_u32_u24 v10, 3072, v10")
    a(f"v_and_b32 v11, {(1 << LH) - 1}, v{V_LANE}")
    a(f"v_lshl_add_u32 v10, v11, {10 - LH}, v10")
    a(f"s_mov_b64 exec, {(1 << (4 << LH)) - 1:#x}")
    for o in segs:
        a(f"buffer_load_dword v251, v10, {sr(R_WQKV,4)}, s{T5} offen offset:{o}")
        v.issue("pf")
    a("s_mov_b64 exec, -1")
L2A = opt('l2a', 0)
if EARLY:
    common_setup()
    a("v_mov_b32 v208, 0")
    a("v_mov_b32 v209, 0")
    if EARLY > 1:
        for r, x in attn_zero(4):
            if r >= 64:
                a(x)
    ln_loads(new_vm(), R_X, S_RG)
w_prefetch(vb, QKV_SEG[L2A:L2PF])
if opt("diag", 0):
    stamp("pf issued")
    a(f"s_waitcnt vmcnt({L2PF})")
    stamp("pf xin")
    for k in range(L2PF):
        a(f"s_waitcnt vmcnt({L2PF - 1 - k})")
        stamp(f"pf done{k}")
qkv_ring_setup()
for n in range(NPB):
    qkv_issue(vb, n)
ln_stats(vb, 2.0)
a("s_branch L_p1_norm")

a.label("L_p1_a")
w_prefetch(va, QKV_SEG[:L2A])
common_setup()
a.c("first touch (scalar path) of the flag lines and the biases")
a(f"s_lshl_b32 s{T2}, s{S_TB2}, 20")
a(f"s_lshl_b32 s{T3}, s{S_J}, 7")
a(f"s_add_u32 s{T2}, s{T2}, s{T3}")
a(f"s_and_b32 s{T3}, s{S_W}, 1")
a(f"s_lshl_b32 s{T3}, s{T3}, 13")
a(f"s_add_u32 s{T2}, s{T2}, s{T3}")
a(f"s_add_u32 s{T2}, s{T2}, {WS_GRP}")
a(f"s_load_dword s{S_SPIN}, {sr(KA+20,2)}, s{T2}")
a(f"s_lshl_b32 s{T3}, s{S_W}, 7")
a(f"s_lshl_b32 s{T2}, s{S_HG}, 9")
a(f"s_add_u32 s{T2}, s{T2}, s{T3}")
a(f"s_add_u32 s{T2}, s{T2}, {WS_FKV}")
if opt("kt", 1):
    a(f"s_and_b32 s{T3}, s{S_TB}, 1")
    a(f"s_lshl_b32 s{T3}, s{T3}, 6")
    a(f"s_add_u32 s{T2}, s{T2}, s{T3}")
a(f"s_load_dword s{S_SPIN}, {sr(KA+20,2)}, s{T2}")
a(f"s_lshl_b32 s{T2}, s{S_WG}, 2")
a(f"s_add_u32 s{T2}, s{T2}, {WS_FC}")
a(f"s_load_dword s{S_SPIN}, {sr(KA+20,2)}, s{T2}")
a(f"s_lshl_b32 s{T2}, s{S_W}, 1")
a(f"s_add_u32 s{T2}, s{T2}, s{S_F0}")
a(f"s_min_u32 s{T2}, s{T2}, 41")
a(f"s_lshl_b32 s{T2}, s{T2}, 6")
a(f"s_add_u32 s{T3}, s{T2}, 64")
a(f"s_load_dword s{S_SPIN}, {sr(KA+10,2)}, s{T2}")
a(f"s_load_dword s{S_SPIN}, {sr(KA+10,2)}, s{T3}")
a(f"s_and_b32 s{T2}, s{S_W}, 1")
a(f"s_lshl_b32 s{T2}, s{T2}, 6")
a(f"s_add_u32 s{T2}, s{T2}, s{T4}")
a(f"s_load_dword s{S_SPIN}, {sr(KA+14,2)}, s{T2}")
if opt("tlb", 0):
    a.c("... and of the pages used later")
    a(f"s_lshr_b32 s{T2}, s{S_WG}, 3")
    a(f"s_lshl_b32 s{T2}, s{T2}, 2")
    a(f"s_add_u32 s{T2}, s{T2}, s{S_W}")
    a(f"s_lshl_b32 s{T3}, s{T2}, 12")
    a(f"s_load_dword s{S_SPIN}, {sr(KA+4,2)}, s{T3}")
    a(f"s_mul_i32 s{T3}, s{T2}, 11008")
    a(f"s_load_dword s{S_SPIN}, {sr(KA+8,2)}, s{T3}")
    a(f"s_load_dword s{S_SPIN}, {sr(KA+12,2)}, s{T3}")
    if opt("tlb", 0) > 1:
        a(f"s_lshl_b32 s{T3}, s{T2}, 17")
        a(f"s_load_dword s{S_SPIN}, {sr(KA+20,2)}, s{T3}")
        a(f"s_lshl_b32 s{T3}, s{T2}, 14")
        a(f"s_load_dword s{S_SPIN}, {sr(KA+16,2)}, s{T3}")
w_addr()
x_addr(False)
qkv_ring_setup()
a(f"s_and_b32 s{T0}, s{S_W}, 1")
a(f"s_lshr_b32 s{T1}, s{S_W}, 1")
tr_lane_addr(A_WO, T0, False)
a(f"s_lshl_b32 s{T7}, s{T1}, 15")
a(f"v_add_u32 v{A_WO}, s{T7}, v{A_WO}")
E_K, E_V, E_Q, E_C = 208, 209, 210, 212
swap23(10, 63, 11)
a(f"v_lshlrev_b32 v{E_K}, 4, v10")
a(f"v_and_b32 v10, 15, v{V_LANE}")
a("v_lshlrev_b32 v10, 4, v10")
a(f"v_lshrrev_b32 v11, 5, v{V_LANE}")
a("v_lshl_add_u32 v10, v11, 8, v10")
a(f"v_bfe_u32 v11, v{V_LANE}, 4, 1")
a(f"v_lshl_add_u32 v{E_V}, v11, 17, v10")
a(f"s_lshl_b32 s{T2}, s{T0}, 12")
a(f"s_lshl_b32 s{T3}, s{T1}, 11")
a(f"s_add_u32 s{T2}, s{T2}, s{T3}")
a(f"v_add_u32 v{E_Q}, s{T2}, v{V_L16}")
a(f"v_mov_b32 v{E_C}, {f32(0.25*math.log2(math.e))}")
a(f"v_mov_b32 v{E_C+1}, v{E_C}")
a(f"s_lshl_b32 s{T2}, s{S_HG}, 1")
a(f"s_add_u32 s{T2}, s{T2}, s{T1}")
a(f"s_lshl_b32 s{T2}, s{T2}, 18")
a(f"s_lshl_b32 s{T3}, s{S_TB}, 1")
a(f"s_add_u32 s{T3}, s{T3}, s{T0}")
a(f"s_lshl_b32 s{T3}, s{T3}, 11")
a(f"s_add_u32 s{T2}, s{T2}, s{T3}")
a(f"s_add_u32 s{T2}, s{T2}, {WS_KV}")
a(f"s_add_u32 s{T3}, s{T2}, 0x20000")
ln_stats(va, 1.0)
a.label("L_p1_norm")
ln_norm(1.0)
pass
is_a("L_p1_compute")

W2_HOME = [(0, 65536, 49152), (24, 131072, 16384), (32, 20480, 22528)]
if W2L:
    W2_HOME = [(0, 65536, 49152), (24, 20480, 6144), (27, 0, 32768)]
W2_END = 27 if W2L else 43
S_H = [T4, T5, T6]
def w2_home(t):
    k = 0 if t < 24 else 1 if t < W2_HOME[2][0] else 2
    return k, (t - W2_HOME[k][0])*2048
def staging_setup():
    a(f"s_lshl_b32 s{T4}, s{S_J}, 7")
    dma_addr(V_DA, 1024, T4)
    a(f"s_lshl_b32 s{T4}, s{S_F0}, 6")
    dma_addr(V_DB, 2752, T4)
    a(f"v_lshrrev_b32 v10, 2, v{V_LANE}")
    a(f"v_mul_u32_u24 v10, 2752, v10")
    a(f"v_and_b32 v11, 3, v{V_LANE}")
    a(f"v_lshlrev_b32 v11, 7, v11")
    a(f"v_min_u32 v11, {252 if WS1[0] == 4 else 380}, v11")
    a(f"v_add3_u32 v{A_W1}, v10, v11, s{T4}")
    a(f"s_and_b32 s{T0}, s{S_W}, 3")
    a(f"s_lshl_b32 s{S_D0}, s{T0}, 13")
    a(f"s_lshl_b32 s{S_D1}, s{T0}, 10")
    a(f"s_mul_i32 s{S_D2}, s{T0}, {8*2752}")
    a(f"s_and_b32 s{T4}, s{S_TB2}, 3")
    a(f"s_lshl_b32 s{T4}, s{T4}, 2")
    a(f"s_add_u32 s{T4}, s{T4}, s{T0}")
    a(f"s_mul_i32 s{S_D4}, s{T4}, {32*2752}")
    a(f"s_and_b32 s{T2}, s{S_W}, 1")
    a(f"s_bfe_u32 s{T3}, s{S_W}, 0x10001")
    tr_lane_addr(7, T2, False)
    for k, (t0, base, stride) in enumerate(W2_HOME):
        a(f"s_mul_i32 s{S_H[k]}, s{T3}, {stride}")
        a(f"s_add_u32 s{S_H[k]}, s{S_H[k]}, {base}")
        a(f"v_add_u32 v{4+k}, s{S_H[k]}, v7")
        a(f"s_lshl_b32 s{T7}, s{T2}, 10")
        a(f"s_add_u32 s{S_H[k]}, s{S_H[k]}, s{T7}")
    a(f"v_mov_b32 v{A_IDX}, 0xdddddddd")
def mall_touch():
    a.c("first touch of the later weights, different lines by every wave")
    a(f"s_lshl_b32 s{T2}, s{S_WG}, 2")
    a(f"s_add_u32 s{T2}, s{T2}, s{S_W}")
    a(f"s_sub_u32 s{T2}, s{T2}, 4")
    a(f"s_lshl_b32 s{T3}, s{T2}, 9")
    a(f"s_mul_i32 s{T2}, s{T2}, {11*128}")
    a(f"v_lshlrev_b32 v10, 7, v{V_LANE}")
    for r, so, m in ((R_WO, T3, 15), (R_W2, T2, 0x7ff), (R_W1, T2, 0x7ff)):
        a(f"s_mov_b64 exec, {m:#x}")
        a(f"buffer_load_dword v251, v10, {sr(r,4)}, s{so} offen")
        vb.issue("pf")
    a("s_mov_b64 exec, -1")
def s_touch(k):
    def f():
        if k == 0:
            a(f"s_lshl_b32 s{T7}, s{S_WG}, 2")
            a(f"s_add_u32 s{T7}, s{T7}, s{S_W}")
            a(f"s_sub_u32 s{T7}, s{T7}, 4")
            a(f"s_lshl_b32 s{S_SPIN}, s{T7}, 9")
            a(f"s_add_u32 s{KA+4}, s{KA+4}, s{S_SPIN}")
            a(f"s_addc_u32 s{KA+5}, s{KA+5}, 0")
            a(f"s_mul_i32 s{T7}, s{T7}, {11*128}")
            a(f"s_min_u32 s{T7}, s{T7}, {512*1376*2 - 11*128}")
            for p in (KA+8, KA+12):
                a(f"s_add_u32 s{p}, s{p}, s{T7}")
                a(f"s_addc_u32 s{p+1}, s{p+1}, 0")
        L = [(KA+4, i) for i in range(8)] + [(KA+12, i) for i in range(22)] + [(KA+8, i) for i in range(22)]
        for p, i in L[13*k:13*k + 13]:
            a(f"s_load_dword s{KA+6}, {sr(p,2)}, {64*i}")
    return f
cs = capture(common_setup)
late = {3: cs[:40], 4: cs[40:80], 5: cs[80:], 6: [x for _, x in attn_zero(4)][:36], 7: [x for _, x in attn_zero(4)][36:],
        8: capture(staging_setup)[:38], 9: capture(staging_setup)[38:], 10: capture(tag_setup) + capture(kvflag_setup)}
if EARLY:
    zz = [x for r, x in attn_zero(4) if r < 64 or EARLY == 1]
    late.update({3: zz[:15], 4: zz[15:30], 5: zz[30:45], 6: zz[45:60], 7: zz[60:]})
later = []
if LATE:
    for k in ((8, 9) if LATE == 1 else (6, 7, 8, 9)):
        later += late.pop(k)
for k in (40, 80):
    assert not cs[k].startswith("s_cselect") and "vcc" not in cs[k]
nxw = NPA
if opt("sq", -1) == -2:
    a("s_waitcnt lgkmcnt(0)")
    for o in (0, -3072):
        for i in range(4):
            a(f"s_load_dword s{KA+6}, {sr(S_PC,2)}, {o + 64*i}")
for n in range(12):
    vb.wait(("w", n), extra="lgkmcnt(0)" if n == 0 and opt("sq", -1) != -2 else "")
    if opt("bst", -1) == n:
        stamp(f"bw{n}")
    a("s_barrier")
    if opt("bst", -1) == n:
        stamp(f"bb{n}")
    while nxw <= min(11, n + NB0 + 1, n + 4 if n >= 2 else 5):
        qkv_issue(vb, nxw)
        nxw += 1
    if n == opt("sq", -1):
        a.c("first touch of the Q columns (scalar path)")
        for o in (0, -3072):
            for i in range(4):
                a(f"s_load_dword s{KA+6}, {sr(S_PC,2)}, {o + 64*i}")
    if n == QPF:
        w_prefetch(vb, QKV_SEG[2:])
    for x in late.get(n, []):
        a(x)
    if n == MW:
        mall_touch()
    if STM and n == STM:
        s_touch(0)()
    if STM and n == 11 and opt("stm2", 1):
        s_touch(1)()
misc_loads(vb, False)
a("s_barrier")
flag_store(4)
def lead():
    l = a.uniq("L_nl")
    a(f"s_cmp_lg_u32 s{S_J}, 0")
    a(f"s_cbranch_scc1 {l}")
    a.c("Group leader: which memory half is closer to this XCD?  One read of each, timed.  The answer only selects which")
    a.c("copy of the hand-off buffers this launch uses (same results either way); later launches ignore it (other tag).")
    a(f"s_lshl_b32 s{T2}, s{S_TB2}, 20")
    a(f"s_add_u32 s{T2}, s{T2}, {WS_GRP + F_PROBE}")
    a(f"s_add_u32 s{T3}, s{T2}, 8192")
    NP = opt("np", 1)
    for k in range(2*NP):
        a(f"s_memtime {sr(KA+2*k,2)}")
        a("s_waitcnt lgkmcnt(0)")
        a(f"s_load_dword s{KA+14}, {sr(KA+20,2)}, s{(T2, T3)[k & 1]} glc")
        a("s_waitcnt lgkmcnt(0)")
    a(f"s_memtime {sr(KA+4*NP,2)}")
    a("s_waitcnt lgkmcnt(0)")
    for k in range(2*NP):
        a(f"s_sub_u32 s{KA+2*k}, s{KA+2*k+2}, s{KA+2*k}")
    for k in range(2, 2*NP):
        a(f"s_min_u32 s{KA+2*(k&1)}, s{KA+2*(k&1)}, s{KA+2*k}")
    a(f"s_mov_b32 s{T2}, s{KA}")
    a(f"s_mov_b32 s{T3}, s{KA+2}")
    a(f"s_cmp_lt_u32 s{T3}, s{T2}")
    a(f"s_cselect_b32 s{T2}, " + {1: "4, 0", 2: "0, 4", 0: "0, 0"}[NEAR])
    a(f"s_lshl_b32 s{T7}, s{S_TB2}, 6")
    a(f"s_add_u32 s{T7}, s{T7}, s{T2}")
    a(f"s_add_u32 s{T7}, s{T7}, {WS_PL}")
    a("s_mov_b64 exec, 1")
    a(f"buffer_store_dword v248, v249, {sr(R_WS,4)}, s{T7} offen sc1")
    a("s_mov_b64 exec, -1")
    a.label(l)
L_GO = L_Q + 8192
if LF:
    a("v_mov_b32 v9, 0")
    a(f"ds_write_b32 v9, v9 offset:{L_GO}")
    a("s_waitcnt lgkmcnt(0)")
a("s_barrier")
q_reads()
for x in later:
    a(x)
if not KVP:
    if SLP:
        a(f"s_sleep {SLP}")
    if LF:
        a(f"s_lshr_b32 s{T7}, s{S_TB}, 3")
        a(f"s_lshl_b32 s{T7}, s{T7}, 7")
        a(f"v_add_u32 v10, s{T7}, v249")
        flag_poll(4, 8, 0, 10)
    else:
        flag_poll(4, 32, 0, A_KF)
    pass
a("s_waitcnt lgkmcnt(0)")
a("s_barrier")
if LF:
    a.c("the remaining flags: wave 4 polls, waves 5-7 watch an LDS word")
    flag_poll(4, 32, 0, A_KF)
    def go():
        a("v_mov_b32 v10, 1")
        a(f"ds_write_b32 v9, v10 offset:{L_GO}")
    only(4, go)
    only(5, lead)
    a(f"s_mov_b32 s{S_SPIN}, 0")
    a.label("L_go")
    a(f"ds_read_b32 v10, v9 offset:{L_GO}")
    a(f"s_add_u32 s{S_SPIN}, s{S_SPIN}, 1")
    a(f"s_lshr_b32 s{T2}, s{S_SPIN}, 22")
    a("s_waitcnt lgkmcnt(0)")
    a(f"v_readfirstlane_b32 s{T7}, v10")
    a("s_nop 0")
    a(f"s_or_b32 s{T7}, s{T7}, s{T2}")
    a("s_cbranch_scc0 L_go")
    pass
a.c("======== phase 2, waves 4-7: fewer key tiles, and the weights of the later phases go on chip")
NB = 64 - NA
a("s_setprio 1")
for t in range(3):
    kv_load(vb, t, 4)
attn_first(vb, 0, 4)
if STM:
    s_touch(1 + opt("stm2", 1))()
elif MW == -1:
    mall_touch()
F0 = [5*j + min(j, 3) for j in range(8)]
TL = [F0[j] + 2*p + i for p in range(2) for j in range(8) for i in range(2)] + [F0[j] + i for j in range(8) for i in range(4, 6 if j < 3 else 5)]
assert sorted(TL) == list(range(43))
ND = opt("nd", 0)
def mk(*x):
    if ND == 1:
        return lambda: None
    if ND == 2:
        return lambda: a("\n".join(capture(dma, new_vm(), *x)[:2]))
    if ND == 3:
        return lambda: dma(vb, x[0], x[1], x[2], x[3], 0, x[5], x[6])
    return lambda: dma(vb, *x)
L_wo = [mk("r1", R_WO, V_DA, S_D0, k*32768, S_D1, k*4096) for k in range(16)]
L_w2 = [mk("r1" if t < 24 else "r2", R_W2, V_DA, S_D0, TL[t]*32768, S_H[w2_home(t)[0]], w2_home(t)[1]) for t in range(43)]
L_w1 = [mk("r2", R_W1, V_DB, S_D2, k*32*2752, S_D1, L_RING + k*4096) for k in range(16)]
def d_warm(k):
    def f():
        a(f"s_add_u32 s{T7}, s{S_D4}, {k*16*2752 + (128 if WS1[0] == 4 else 0)}")
        a(f"buffer_load_dword v251, v{A_W1}, {sr(R_W1,4)}, s{T7} offen")
        vb.issue("pf")
    return f
def d_rd(t):
    k, off = w2_home(t)
    return lambda: tr_read(F_W(t), 4 + k, off)
def d_c3():
    a.c("lines at 384 mod 1024 stream slowly past L2 into a single CU: every workgroup pulls a few of them")
    a(f"s_lshr_b32 s{T2}, s{S_WG}, 3")
    a(f"s_lshl_b32 s{T2}, s{T2}, 2")
    a(f"s_add_u32 s{T2}, s{T2}, s{T0}")
    a(f"s_lshl_b32 s{T3}, s{T2}, 12")
    a(f"s_mul_i32 s{T2}, s{T2}, {11*1024}")
    a(f"v_lshlrev_b32 v10, 10, v{V_LANE}")
    for r, so, m in ((R_WO, T3, 15), (R_W2, T2, 0x7ff)):
        a(f"s_mov_b64 exec, {m:#x}")
        a(f"buffer_load_dword v251, v10, {sr(r,4)}, s{so} offen offset:384")
        vb.issue("pf")
    a("s_mov_b64 exec, -1")
def d_code():
    a.c("the code of the later phases back into L2, two lines per wave")
    a(f"s_getpc_b64 {sr(S_PC,2)}")
    a.label("L_pc2")
    a(f"s_lshr_b32 s{T2}, s{S_WG}, 3")
    a(f"s_lshl_b32 s{T2}, s{T2}, 2")
    a(f"s_add_u32 s{T2}, s{T2}, s{T0}")
    a(f"s_lshl_b32 s{T2}, s{T2}, 7")
    a(f"s_add_u32 s{T2}, s{T2}, L_attn_end-L_pc2")
    a(f"v_lshl_add_u32 v10, v{V_LANE}, 14, s{T2}")
    a(f"v_min_u32 v10, L_code_end-L_pc2-4, v10")
    a("s_mov_b64 exec, 3")
    a(f"global_load_dword v251, v10, {sr(S_PC,2)}")
    vb.issue("pf")
    a("s_mov_b64 exec, -1")
def share(L, tiles):
    return {t: L[k*len(L)//len(tiles):(k+1)*len(L)//len(tiles)] for k, t in enumerate(tiles)}
plan = {0: [lambda: None]*3 + [d_c3]}
plan.update(share(L_wo + L_w2[:24], list(range(T0B, TB1 - 1))))
if ND != 4:
    plan.update(share([d_rd(t) for t in range(24)], list(range(TB1, TB1 + TB2))))
plan.update(share(L_w2[24:W2_END] + L_w1[:2*WS1[0]] + [d_warm(0)] + L_w1[2*WS1[0]:4*WS1[0]] + [d_warm(1)], list(range(TB1 + TB2, NB - TEND))))
if STM:
    for k in range(2 + opt("stm2", 1), 4):
        t = k - 1 - opt("stm2", 1)
        plan[t] = [s_touch(k)] + plan.get(t, [])
def blocks(L, b0, b1):
    for b, part in share(L, list(range(b0, b1))).items():
        t = b >> 1
        if not isinstance(plan.get(t), dict):
            plan[t] = {}
        plan[t][b & 1] = plan[t].get(b & 1, []) + part
R1A, R1B, R2B = opt("r1a", 2*T0B), opt("r1b", 2*TB1 - 2), opt("r2b", 2*(NB - TEND))
if NBLK == 2:
    for t in list(range(0, TB1)) + list(range(TB1 + TB2, NB)):
        plan.pop(t, None)
    blocks([d_c3], opt("c3b", 1), opt("c3b", 1) + 1)
    blocks(L_wo + L_w2[:24], R1A, R1B)
    WL = [int(x) for x in opt("wl", "11,24").split(",") if x]
    if True:
        if len(WL) == 4:
            for k, b in enumerate(WL):
                def f(k=k):
                    a(f"s_mov_b32 exec_{'lo' if k & 1 else 'hi'}, 0")
                    d_warm(k >> 1)()
                    a("s_mov_b64 exec, -1")
                blocks([f], b, b + 1)
        else:
            for k, b in enumerate(WL):
                blocks([d_warm(k)], b, b + 1)
        blocks(L_w2[24:W2_END] + L_w1[:4*WS1[0]], 2*(TB1 + TB2), R2B)
    else:
        blocks(L_w2[24:W2_END] + L_w1[:2*WS1[0]] + [d_warm(0)] + L_w1[2*WS1[0]:4*WS1[0]] + [d_warm(1)], 2*(TB1 + TB2), R2B)
    blocks([d_code], 2*(NB - opt("cpf", 1)), 2*(NB - opt("cpf", 1)) + 1)
elif opt("cpf", 1):
    plan[NB - opt("cpf", 1)] = [d_code] + plan.get(NB - opt("cpf", 1), [])
for t in range(NB):
    if t == 1 and LF:
        a("s_barrier")
    if t == TB1:
        vb.wait("r1")
        a("s_barrier")
        half_issue()
    if t == TB1 + TB2:
        a("s_waitcnt lgkmcnt(0)")
        a("s_barrier")
        half_check()
    attn_tile(vb, t, 4, NB - 1, plan.get(t, []), send_a if t == NB - 1 else None, order={0: None, 1: [(1, 15)], 2: [(1, 7), (1, 15)]}[opt("rdl", 1)] if t == TB1 else None, skew=opt('skew', 0) if t in (1, TB1 + TB2) else 0)
vb.wait("r2")
a("s_setprio 0")
a("s_nop 0")
smf(OB, Vf(NB - 1, 1, 4), SB+8)
a("s_branch L_attn_end")

a.label("L_p1_compute")
for n in range(NPB, NPA):
    qkv_issue(va, n)
pass
w_prefetch(va, QKV_SEG[L2PF:opt("l2e", 2)])
def cvt_inplace(b):
    return [f"v_cvt_pk_bf16_f32 v{b+i}, v{b+2*i}, v{b+2*i+1}" for i in range(8)]
aK, aV, aQ = 144, 160, 176
inj = {2: capture(tag_setup)}
spread(inj, [(x, 1) for x in capture(kvflag_setup)], 4, 20)
items = [(x, 1) for x in cvt_inplace(aK)]
items += [((f"buffer_store_dwordx4 {vr(aK,4)}, v{E_K}, {sr(R_WS,4)}, s{T2} offen sc1", "st"), 2),
          ((f"buffer_store_dwordx4 {vr(aK+4,4)}, v{E_K}, {sr(R_WS,4)}, s{T3} offen sc1", "st"), 2)]
spread(inj, items, *((67, 70) if KVJ else (36, 42)))
items = [(x, 1) for x in cvt_inplace(aV)]
items += [((f"buffer_store_dwordx4 {vr(aV,4)}, v{E_V}, {sr(R_WS,4)}, s{T2} offen offset:1024 sc1", "st"), 2),
          ((f"buffer_store_dwordx4 {vr(aV+4,4)}, v{E_V}, {sr(R_WS,4)}, s{T2} offen offset:1536 sc1", "st"), 2)]
spread(inj, items, *((70, 73) if KVJ else (67, 71)))
a_zero = attn_zero(6)
spread(inj, [(x, 1) for r, x in a_zero if r >= 144], *((80, 92) if KVJ else (48, 60)))
for r, x in a_zero:
    if r < 144:
        inj.setdefault(64 + (r - G_X)//4, []).append(x)
def pub_kv():
    va.wait("st")
    a("s_barrier")
    stamp("kv drained")
gemm_compute(va, [aK, aV, aQ], [192, 196, 200, 204, 224, 228], {1}, {0, 1, 2}, inj, {UKV: pub_kv}, range(12), 'p1', 4096, None, KVJ)
kv_load(va, -2, 6)
kv_load(va, -1, 6)
a(f"v_mov_b32 v{A_IDX}, 0xdddddddd")
for i in range(8):
    a(f"v_pk_mul_f32 {vr(aQ+2*i,2)}, {vr(aQ+2*i,2)}, {vr(E_C,2)}")
for x in cvt_inplace(aQ):
    a(x)
a(f"ds_write_b128 v{E_Q}, {vr(aQ,4)} offset:{L_Q}")
a(f"ds_write_b128 v{E_Q}, {vr(aQ+4,4)} offset:{L_Q+1024}")
a("s_waitcnt lgkmcnt(0)")
a("s_barrier")
pass
q_reads()
misc_loads(va, True)
a.c("======== phase 2, waves 0-3: attention; wave = head, 64 queries")
a(f"s_setprio {PRA}")
a(f"s_mov_b32 s{S_D4}, 1")
a(f"s_mov_b32 s{S_LOOP}, {1 if LF else IT1}")
a(f"s_mov_b32 s{S_STAGE}, {0 if LF else 1}")
def kv_try():
    a("s_mov_b32 exec_hi, 0")
    a(f"buffer_load_dword v247, v{A_KF}, {sr(R_WS,4)}, s{S_FPOLL} offen sc1")
    a("s_mov_b32 exec_hi, -1")
def kv_check():
    a("s_waitcnt vmcnt(0)")
    flag_poll(None, 32, 0, A_KF)
attn_first(va, -2, 6, (lambda: only(0, kv_try)) if KVP else None)
attn_tile(va, -2, 6, load=False)
pass
if KVP:
    only(0, kv_check)
a("s_barrier")
stamp("kv ready")
for t in range(4):
    kv_load(va, t, 6)
attn_tile(va, -1, 6, load=not BAT)
if BAT:
    va.wait(('kv', 1))
    va.q = [('kv', 3)]*5 + [('kv', 2)]
a("s_branch L_attn")
a.label("L_attn_s0")
a("s_barrier")
a(f"s_setprio {PRA}")
a(f"s_mov_b32 s{S_LOOP}, {IT1 - 1}")
a("s_branch L_attn")
a.label("L_attn_s1")
a("s_barrier")
a(f"s_setprio {PRA}")
if ORD:
    a(f"s_and_b32 s{T7}, s{S_WG}, 1")
    a(f"s_lshl_b32 s{T7}, s{T7}, 13")
    a(f"v_add_u32 v10, s{T7}, v{A_WO}")
    a(f"s_sub_u32 s{T7}, 8192, s{T7}")
    a(f"v_add_u32 v11, s{T7}, v{A_WO}")
for t in range(16 if ND != 4 else 0):
    if ORD:
        tr_read(P_W + 4*t, 10 + ((t >> 2) & 1), (t & ~4)*2048)
    else:
        tr_read(P_W + 4*t, A_WO, t*2048)
half_issue()
a(f"s_mov_b32 s{S_LOOP}, {IT2}")
a("s_branch L_attn")
a.label("L_attn_s2")
half_check()
a("s_barrier")
a(f"s_setprio {PRA}")
if FEND <= (NA - 2) % 6 + 6*PEEL:
    a(f"s_mov_b32 s{S_D4}, 0")
a(f"s_mov_b32 s{S_LOOP}, {(NA - 2)//6 - IT1 - IT2 - PEEL}")
a.raw(".p2align 4")
a.label("L_attn")
def loop_tail():
    a(f"s_sub_u32 s{S_LOOP}, s{S_LOOP}, 1")
    a(f"s_cmp_lg_u32 s{S_LOOP}, 0")
for t in range(6):
    if t == FLIP:
        a(f"s_cmp_lg_u32 s{S_LOOP}, s{S_D4}")
        a("s_cbranch_scc1 L_keep")
        a("s_setprio 0")
        a.label("L_keep")
    attn_tile(va, t, 6, None, [], loop_tail if t == 5 else None)
a("s_cbranch_scc1 L_attn")
a(f"s_add_u32 s{S_STAGE}, s{S_STAGE}, 1")
for k in range(3):
    a(f"s_cmp_eq_u32 s{S_STAGE}, {k + 1}")
    a(f"s_cbranch_scc1 L_attn_s{k}")
NT_ = (NA - 2) % 6 + 6*PEEL
for t in range(6, 6 + NT_):
    if 6 + NT_ - t == FEND:
        a("s_setprio 0")
    attn_tile(va, t, 6, 5 + NT_, [], send_a if t == 5 + NT_ else None)
assert NT_
if NT_:
    a("s_nop 1")
smf(OB, Vf(5 + NT_, 1, 6), SB+8)
a("s_setprio 0")

a.label("L_attn_end")
stamp("attn loop done")
a.c("combine the two key ranges of block B")
a("v_xor_b32 v10, 8192, v10")
a("v_xor_b32 v11, 1024, v11")
a("s_waitcnt lgkmcnt(0)")
a("s_barrier")
a(f"ds_read_b32 v{SA+8}, v11 offset:{L_OX+16384}")
a(f"ds_read_b128 {vr(SA,4)}, v10 offset:{L_OX}")
a(f"ds_read_b128 {vr(SA+4,4)}, v10 offset:{L_OX+1024}")
a(f"v_mov_b32 v{SB}, {f32(2.0**-64)}")
a(f"v_mov_b32 v{SB+1}, {f32(2.0**64)}")
for r in (4, 5, 7):
    a(f"v_mov_b32 v{SB+r}, 0")
a("s_waitcnt lgkmcnt(2)")
a(f"v_add_f32 v{OB+8}, v{OB+8}, v{SA+8}")
a.c("The loop subtracted no row maximum.  That is exact unless something left the fp32 range: a row sum outside")
a.c("[2^-64, 2^64], or any Inf/NaN in the sums, sends the wave to the path that subtracts the true maximum.")
a(f"v_mov_b32 v{SB+6}, v{OB+8}")
a("s_waitcnt lgkmcnt(0)")
for i in range(4):
    a(f"v_pk_add_f32 {vr(OB+2*i,2)}, {vr(OB+2*i,2)}, {vr(SA+2*i,2)}")
for i in range(4):
    a(f"v_pk_fma_f32 {vr(SB+6,2)}, {vr(OB+2*i,2)}, {vr(SB+4,2)}, {vr(SB+6,2)}")
a(f"v_add_f32 v{SB+6}, v{SB+6}, v{SB+7}")
a(f"v_cmp_ge_f32 vcc, v{SB+6}, v{SB}")
a(f"v_cmp_le_f32 {sr(S_SAVE,2)}, v{SB+6}, v{SB+1}")
a(f"v_rcp_f32 v10, v{OB+8}")
a(f"s_and_b64 vcc, vcc, {sr(S_SAVE,2)}")
a(f"s_cmp_eq_u64 vcc, -1")
if FORCE_FB:
    a("s_branch L_attn_fb")
else:
    a("s_cbranch_scc0 L_attn_fb")
a.label("L_attn_fin")
a("v_mov_b32 v11, v10")
for i in range(4):
    a(f"v_pk_mul_f32 {vr(OB+2*i,2)}, {vr(OB+2*i,2)}, v[10:11]")
for i in range(4):
    a(f"v_cvt_pk_bf16_f32 v{SA+i}, v{OB+2*i}, v{OB+2*i+1}")
a(f"buffer_store_dwordx4 {vr(SA,4)}, v{V_L16}, {sr(R_WS,4)}, s{S_HEAD} offen sc1")

a.c("======== phase 3: h = x + O Wo ; tile 64 tokens x 64 columns, computed by waves 0-3")
T_ACC, T_AF = 16, 48
def o_reread():
    if ORD:
        a("s_mov_b32 exec_lo, 0x01010101")
        a("s_mov_b32 exec_hi, 0x01010101")
        a(f"buffer_load_dword v251, v{V_L16}, {sr(R_WS,4)}, s{S_HEAD} offen sc1")
        a("s_mov_b64 exec, -1")
def W0(t): return 64 + 4*t
is_a("L_p3_a")
vb = new_vm()
for t in range(24, W2_END):
    d_rd(t)()
if W2L:
    a(f"s_mov_b32 s{S_OWN}, s{S_D0}")
    a(f"s_mov_b32 s{S_OWN2}, s{S_H[2]}")
    a(f"v_mov_b32 v8, v6")
ring_setup(2752, None)
assert WC[2] <= 4 and WC[3] <= 6 and WC[5] >= 6
for n in range(WC[1], WC[2]):
    ring_issue(vb, R_W1, 2752, W1_SEG, n)
a(f"s_waitcnt vmcnt({4*WS1[1]}) lgkmcnt(0)")
o_reread()
a("s_barrier")
for n in range(WC[2], WC[3]):
    ring_issue(vb, R_W1, 2752, W1_SEG, n)
act_setup(4, WS_OF, False)
if ORD:
    a(f"s_and_b32 s{T7}, s{S_WG}, 1")
    a(f"s_lshl_b32 s{T7}, s{T7}, 12")
    a(f"s_sub_u32 s{T0}, s{T4}, s{T7}")
    a(f"s_add_u32 s{T4}, s{T4}, s{T7}")
grp_flags(S_TB2, S_ZG, S_J)
stamp("owin B")
a("s_barrier")
for q in range(NO):
    act_issue(vb, q, q, 4, False)
def h_pre(B):
    L = unpack8(B, V_HRES) + ["v_mov_b32 v10, 0x3f803f80", "v_and_b32 v7, 0x1f8, v0",
         f"s_lshl_b32 s{T2}, s{S_W}, 6", f"s_add_u32 s{T2}, s{T2}, s{S_J}", f"s_lshl_b32 s{T2}, s{T2}, 7",
         f"s_add_u32 s{T2}, s{T2}, s{S_ZG}", f"s_add_u32 s{T2}, s{T2}, {WS_H}",
         f"s_add_u32 s{T5}, s{S_ZG}, {WS_GRP + 4096}",
         f"s_lshl_b32 s{T6}, s{S_J}, 9", f"s_add_u32 s{T6}, s{T6}, s{T5}"]
    return L
def h_epilogue(B):
    tile_gather(16)
    for h in range(2):
        a(f"s_waitcnt lgkmcnt({2-2*h})")
        for i in range(2*h, 2*h+2):
            a(f"v_pk_add_f32 {vr(B+2*i,2)}, {vr(B+2*i,2)}, {vr(16+2*i,2)}")
            a(f"v_pk_add_f32 {vr(B+2*i,2)}, {vr(B+2*i,2)}, {vr(24+2*i,2)}")
        for i in range(2*h, 2*h+2):
            a(f"v_cvt_pk_bf16_f32 v{V_HRES+i}, v{B+2*i}, v{B+2*i+1}")
tile_loader(vb, 16, lambda q: act_issue(vb, q + NO, q + NO, 4, False) if q + NO < 4 else None)
for x in h_pre(32):
    a(x)
h_epilogue(32)
a("s_branch L_p3_done")
a.label("L_p3_a")
CJ, CA = 28, 16
a.c("wave 1 of workgroups 0-175 sums 64 rows of a 64-column strip of W1 (LayerNorm's mean term)")
a(f"s_cmp_lt_u32 s{S_WG}, 176")
a(f"s_cselect_b32 s{S_STAGE}, s{S_W}, 0")
a(f"s_cmp_lg_u32 s{S_STAGE}, 1")
a("s_cbranch_scc1 L_cs_noload")
a(f"v_lshrrev_b32 v10, 3, v{V_LANE}")
a(f"v_mul_u32_u24 v10, 2752, v10")
a(f"v_and_b32 v11, 7, v{V_LANE}")
a(f"v_lshl_add_u32 v10, v11, 4, v10")
a(f"s_and_b32 s{T0}, s{S_WG}, 7")
a(f"s_mul_i32 s{T0}, s{T0}, {64*2752}")
a(f"s_lshr_b32 s{T1}, s{S_WG}, 3")
a(f"s_lshl_b32 s{T1}, s{T1}, 7")
a(f"s_add_u32 s{T0}, s{T0}, s{T1}")
for i in range(8):
    a(f"buffer_load_dwordx4 {vr(CJ+4*i,4)}, v10, {sr(R_W1,4)}, s{T0} offen")
    a(f"s_add_u32 s{T0}, s{T0}, {8*2752}")
a.label("L_cs_noload")
grp_flags(S_TB, S_ZO, S_HG)
w_addr()
act_setup(4, WS_OF, False)
a(f"s_cmp_eq_u32 s{S_STAGE}, 1")
a("s_waitcnt vmcnt(8)")
a("s_cbranch_scc1 L_cs_loaded")
a("s_waitcnt vmcnt(0)")
a.label("L_cs_loaded")
o_reread()
a("s_barrier")
flag_store(0, 0, OPK)
stamp("O drained")
R0 = min(24, 8*WC[1])
R1 = min(32, 8*WC[3])
RB = min(R0, opt("rb", 24))
for t in range(RB):
    w_read(W0(t), t)
a(f"s_cmp_lg_u32 s{S_STAGE}, 1")
a("s_cbranch_scc1 L_cs_nojob")
a(f"v_mov_b32 v10, 0x00003f80")
a(f"v_mov_b32 v11, 0x3f800000")
for i in range(8):
    a(f"s_waitcnt vmcnt({7-i+ORD})")
    for j in range(4):
        for h in range(2):
            a(f"v_dot2_f32_bf16 v{CA+2*j+h}, v{CJ+4*i+j}, v{10+h}, {f'v{CA+2*j+h}' if i else '0'}")
a(f"s_and_b32 s{T0}, s{S_WG}, 7")
a(f"s_mul_i32 s{T0}, s{T0}, {1408*4}")
a(f"s_lshr_b32 s{T1}, s{S_WG}, 3")
a(f"s_lshl_b32 s{T1}, s{T1}, 8")
for k in range(4):
    a(f"v_permlane32_swap_b32 v{CA+k}, v{CA+4+k}")
a(f"s_add_u32 s{T0}, s{T0}, s{T1}")
a(f"s_add_u32 s{T0}, s{T0}, {WS_CS}")
for k in range(4):
    a(f"v_add_f32 v{CA+k}, v{CA+k}, v{CA+4+k}")
a("s_nop 1")
for k in range(2):
    a(f"v_permlane16_swap_b32 v{CA+k}, v{CA+2+k}")
a("s_nop 1")
for k in range(2):
    a(f"v_add_f32 v{CA+k}, v{CA+k}, v{CA+2+k}")
a(f"v_and_b32 v10, 7, v{V_LANE}")
a(f"v_lshrrev_b32 v11, 4, v{V_LANE}")
for k in range(2):
    a(f"v_add_f32_dpp v{CA+k}, v{CA+k}, v{CA+k} row_ror:8 row_mask:0xf bank_mask:0xf")
a(f"v_lshlrev_b32 v11, 3, v11")
a(f"v_lshl_add_u32 v10, v10, 5, v11")
a(f"s_mov_b32 exec_lo, 0x00ff00ff")
a(f"s_mov_b32 exec_hi, 0x00ff00ff")
a(f"buffer_store_dwordx2 {vr(CA,2)}, v10, {sr(R_WS,4)}, s{T0} offen sc1")
a("s_mov_b64 exec, -1")
a.label("L_cs_nojob")
stamp("owin A")
if OSP:
    a(f"s_cmp_lg_u32 s{S_W}, 0")
    a("s_cbranch_scc1 L_o_seen")
    if OPK:
        peek_check(0, "L_o_seen")
    if DO:
        a(f"s_sleep {DO}")
    spoll_issue(0)
    spoll_check(0)
    a.label("L_o_seen")
else:
    flag_poll(0, 8)
a("s_waitcnt lgkmcnt(0)")
a("s_barrier")
stamp("O ready")
for t in range(RB, R0):
    w_read(W0(t), t)
a(f"s_cmp_lg_u32 s{S_STAGE}, 1")
a("s_cbranch_scc1 L_cs_noflag")
a(f"s_lshl_b32 s{T0}, s{S_WG}, 2")
a(f"s_add_u32 s{T0}, s{T0}, {WS_FC}")
a("s_waitcnt vmcnt(0)")
a("s_mov_b64 exec, 1")
a(f"buffer_store_dword v248, v249, {sr(R_WS,4)}, s{T0} offen sc1")
a("s_mov_b64 exec, -1")
a.label("L_cs_noflag")
a.c("every workgroup has read the old tag by now: leave this launch's tag for the next launch to step past")
a(f"s_or_b32 s{T0}, s{S_WG}, s{S_W}")
a("s_cbranch_scc1 L_notag")
a("s_mov_b64 exec, 1")
a(f"buffer_store_dword v248, v249, {sr(R_WS,4)}, 0 offen offset:{WS_NONCE} sc1")
a("s_mov_b64 exec, -1")
a.label("L_notag")
for x in h_pre(224):
    a(x)
tile_compute(new_vm(), 16, [0, 1, 2, 3], lambda t: P_W + 4*t, T_ACC, T_AF)
h_epilogue(224)
a.label("L_p3_done")
a(f"buffer_store_dwordx4 {vr(V_HRES,4)}, v{V_ROWOFF}, {sr(R_WS,4)}, s{T2} offen sc1")
a.c("partial row statistics of this 64-column slice")
for i in range(4):
    a(f"v_dot2_f32_bf16 v16, v{V_HRES+i}, v10, {'v16' if i else '0'}")
    a(f"v_dot2_f32_bf16 v17, v{V_HRES+i}, v{V_HRES+i}, {'v17' if i else '0'}")
sum8_pair(16)
a(f"s_mov_b32 exec_lo, 0x01010101")
a(f"s_mov_b32 exec_hi, 0x01010101")
a(f"buffer_store_dwordx2 v[16:17], v7, {sr(R_WS,4)}, s{T6} offen sc1")
a("s_mov_b64 exec, -1")
a("v_mov_b32 v41, v7")
stamp("h stored")
HRR = opt("hrr", 1)
def h_reread():
    if not HRR:
        return
    a.c("pull the stored lines back into this XCD's L2 while the flags travel")
    a(f"s_mov_b32 exec_lo, 0x01010101")
    a(f"s_mov_b32 exec_hi, 0x01010101")
    a(f"buffer_load_dword v251, v{V_ROWOFF}, {sr(R_WS,4)}, s{T2} offen sc1")
    a("s_mov_b64 exec, 1")
    a(f"buffer_load_dword v251, v41, {sr(R_WS,4)}, s{T6} offen sc1")
    a("s_mov_b64 exec, -1")

a.c("======== phase 4: g = gelu(LN(h) W1 + b1) with LN folded into the product, scaled by GS so that the tanh argument is u*(u*u+k)")
c1 = -2.0*math.sqrt(2.0/math.pi)*math.log2(math.e)
c3 = c1*0.044715
GS = -((-c3) ** (1.0/3))
GK = c1/GS
G_SLOTS = [0, 1, 2, 3, 4, 5, 6, 7, 8, 9, 2]
is_a("L_p4_a")
vb = new_vm()
a.c("source offsets of the raw h image: wave 4+b loads row groups b and b+4")
a(f"v_lshrrev_b32 v10, 4, v0")
a(f"v_xor_b32 v10, v10, v0")
a(f"v_and_b32 v10, 7, v10")
a(f"v_and_b32 v{V_XNW}, 0x7c00, v{V_ROWOFF}")
a(f"v_lshl_add_u32 v{V_XNW}, v10, 4, v{V_XNW}")
a(f"s_and_b32 s{T3}, s{S_W}, 3")
a(f"s_lshl_b32 s{T3}, s{T3}, 13")
a(f"s_add_u32 s{T4}, s{T3}, {WS_H}")
a(f"s_add_u32 s{T4}, s{T4}, s{S_ZG}")
assert WC[4] <= 6 + R0//8 and WC[5] <= 6 + R1//8
for n in range(WC[3], WC[4]):
    ring_issue(vb, R_W1, 2752, W1_SEG, n)
a(f"s_waitcnt vmcnt({4*WS1[3]})")
h_reread()
vb.issue("rr", 2*HRR)
a("s_barrier")
flag_store(4, F_H, HPK)
HPI = opt("hpi", 8)
L = []
for n in range(WC[4], WC[5]):
    L += capture(ring_issue, vb, R_W1, 2752, W1_SEG, n)
for x in L[:3*HPI]:
    a(x)
def h_try():
    if opt("hpw", 0):
        a(f"s_waitcnt vmcnt({min(HPI, len(L)//3)})")
    spoll_issue(F_H)
only(4, h_try)
for x in L[3*HPI:]:
    a(x)
a(f"s_cmp_lg_u32 s{S_W}, 4")
a("s_cbranch_scc1 L_h_seen")
spoll_check(F_H)
a.label("L_h_seen")
stamp("hseen B")
vb.wait(("w", 3))
a("s_barrier")
def h_issue(n):
    for i in (2*n, 2*n + 1):
        for r in range(2):
            dma(vb, ("x", n), R_WS, V_XNW, T4, r*65536 + i*128, T3, r*32768 + i*1024, "sc1")
for n in range(NH):
    h_issue(n)
for n in range(4):
    vb.wait(("x", n))
    a("s_barrier")
    if n + NH < 4:
        h_issue(n + NH)
    for k in {2: range(WC[5], WC[5] + 1), 3: range(WC[5] + 1, 10)}.get(n, []):
        ring_issue(vb, R_W1, 2752, W1_SEG, k)
act_setup(11, WS_GF, True)
TH = opt("th", 4)
GRP = [int(c, 16) for c in opt("grp", "8008")]
assert sum(GRP) == 16
w2n = [27]
def w2_late(k):
    for t in range(w2n[0], w2n[0] + k if W2L else 0):
        if len(vb.q) > TH:
            a(f"s_waitcnt vmcnt({TH})")
            vb.q = vb.q[len(vb.q) - TH:]
        dma(vb, "w2", R_W2, V_DA, S_OWN, TL[t]*32768, S_OWN2, w2_home(t)[1])
    w2n[0] += k
if W2L:
    a("s_barrier")
w2_late(GRP[0])
for n in (10, 11):
    vb.wait(("w", n - 4), *([("w", 9)] if n == 11 else []))
    a("s_barrier")
    ring_issue(vb, R_W1, 2752, W1_SEG, n)
    w2_late(GRP[n - 9])
vb.wait(("w", 9))
a("s_barrier")
flag_store(4, F_G0)
w2_late(GRP[3])
a("s_waitcnt vmcnt(0)")
vb.clear()
only(4, spoll_issue, F_G0)
a("s_barrier")
if W2L:
    for t in range(27, 43):
        tr_read(F_W(t), 8, w2_home(t)[1])
    a("s_waitcnt lgkmcnt(0)")
only(4, spoll_check, F_G0)
stamp("g0 ready")
a("s_barrier")
flag_store(4, F_G1)
a.c("======== phase 5: out = h + g W2 + b2, computed by waves 4-7")
if opt("pb", 0):
    a("s_setprio 1")
for q in range(2):
    act_issue(vb, q, G_SLOTS[q], 11, True)
OE = 140
out_pre = unpack8(OE, V_HRES) + unpack8(OE + 8, V_B2) + [f"v_add_f32 v{OE+i}, v{OE+i}, v{OE+8+i}" for i in range(8)]
out_pre += [f"v_mov_b32 v10, {f32(1.0/GS)}", "v_mov_b32 v11, v10"]
inj = {}
spread(inj, [(x, 1) for x in out_pre], 12, 40)
FQ = opt('fq', 2)
if FQ == 2:
    vb.wait(('a', 0))
    act_issue(vb, 2, G_SLOTS[2], 11, True)
tile_compute(vb, 43, G_SLOTS, F_W, T_ACC, T_AF, inj, (1,) if FQ else ())
stamp("ffn2 done B")
a("s_branch L_p5_done")

a.label("L_p4_a")
F_ACC = [192, 208, 168]
F_WF = [144, 148, 152, 156, 160, 164]
GT = 224
CB = [224, 228, 224]
CS = 16
for t in range(R0, R1):
    w_read(W0(t), t)
a.c("column sums of W1 for this wave's three tiles")
a(f"s_lshr_b32 s{T0}, s{S_F0}, 1")
a(f"s_min_u32 s{T0}, s{T0}, 18")
a(f"s_lshl_b32 s{T0}, s{T0}, 5")
a(f"s_add_u32 s{S_FPOLL}, s{T0}, {WS_FC}")
a("s_mov_b32 exec_hi, 0")
a(f"buffer_load_dword v247, v249, {sr(R_WS,4)}, s{S_FPOLL} offen sc1")
a("s_mov_b32 exec_hi, -1")
x_addr(True)
swap23(10, 31, 11)
a(f"v_lshrrev_b32 v11, 5, v{V_LANE}")
a(f"v_mul_u32_u24 v11, {4*1408*4}, v11")
a(f"v_lshl_add_u32 v10, v10, 2, v11")
a(f"s_lshr_b32 s{T0}, s{S_W}, 1")
a(f"s_add_u32 s{T0}, s{T0}, s{S_F0}")
a(f"s_lshl_b32 s{T0}, s{T0}, 7")
a(f"s_add_u32 s{T0}, s{T0}, {WS_CS}")
a("s_waitcnt vmcnt(1) lgkmcnt(0)")
h_reread()
a("s_barrier")
stamp("h drained")
a(f"s_waitcnt vmcnt({2*HRR})")
flag_poll(None, 32)
HS = 208
CP = 192
for k in range(4):
    for seg in range(3):
        a(f"buffer_load_dword v{CP+4*seg+k}, v10, {sr(R_WS,4)}, s{T0} offen offset:{seg*256} sc1")
    a(f"s_add_u32 s{T0}, s{T0}, {1408*4}")
grp_flags(S_TB2, S_ZG, S_J)
a(f"s_and_b32 s{T0}, s{S_W}, 1")
a(f"s_lshl_b32 s{T7}, s{T0}, 8")
a(f"s_add_u32 s{T5}, s{T5}, s{T7}")
a(f"s_mul_i32 s{T0}, s{T0}, {11*16384}")
a(f"s_add_u32 s{T0}, s{T0}, s{S_ZG}")
a(f"s_add_u32 s{T0}, s{T0}, {WS_GF}")
a(f"s_lshr_b32 s{T1}, s{S_W}, 1")
a(f"s_add_u32 s{S_STAGE}, s{T1}, 4")
a(f"s_lshl_b32 s{T7}, s{S_J}, 2")
a(f"s_sub_u32 s{T2}, s{S_F0}, s{T7}")
a(f"s_add_u32 s{T2}, s{T2}, s{T1}")
a(f"s_and_b32 s{T7}, s{T2}, 0xfc")
a(f"s_add_u32 s{T2}, s{T2}, s{T7}")
a(f"s_lshl_b32 s{T2}, s{T2}, 11")
a(f"s_add_u32 s{T2}, s{T2}, s{T0}")
a(f"s_add_u32 s{S_D2}, s{T2}, {8*16384}")
a(f"s_lshl_b32 s{T2}, s{S_J}, 1")
a(f"s_add_u32 s{T2}, s{T2}, s{T1}")
a(f"s_and_b32 s{T7}, s{T2}, 0xfc")
a(f"s_add_u32 s{T2}, s{T2}, s{T7}")
a(f"s_lshl_b32 s{T2}, s{T2}, 11")
a(f"s_add_u32 s{S_D0}, s{T2}, s{T0}")
a(f"s_add_u32 s{S_D1}, s{S_D0}, {4*16384}")
a(f"v_and_b32 v10, 31, v{V_LANE}")
a(f"v_lshlrev_b32 v10, 3, v10")
a(f"v_lshrrev_b32 v11, 5, v{V_LANE}")
a(f"v_lshl_add_u32 v235, v11, 11, v10")
a(f"v_lshlrev_b32 v3, 7, v{V_LANE}")
RS = 12
a(f"v_mov_b32 v10, {f32(GK)}")
a(f"v_mov_b32 v11, v10")
a(f"v_mov_b32 v14, 1.0")
a(f"v_mov_b32 v15, 1.0")
stamp("hwin A")
a("s_barrier")
stamp("h ready")
for t in range(R1, 32):
    w_read(W0(t), t)
vc = new_vm()
for k in range(4):
    a(f"buffer_load_dwordx2 {vr(HS+2*k,2)}, v235, {sr(R_WS,4)}, s{T5} offen offset:{k*512} sc1")
vc.issue(("x", 0), 4)
a("s_waitcnt vmcnt(4)")
for seg in range(3):
    c = CP + 4*seg
    a(f"v_add_f32 v{c}, v{c}, v{c+1}")
    a(f"v_add_f32 v{c+2}, v{c+2}, v{c+3}")
for seg in range(3):
    c = CP + 4*seg
    a(f"v_add_f32 v{c}, v{c}, v{c+2}")
for seg in range(3):
    c = CP + 4*seg
    a(f"v_mov_b32 v{c+1}, v{c}")
a("s_nop 1")
for seg in range(3):
    c = CP + 4*seg
    a(f"v_permlane32_swap_b32 v{c}, v{c+1}")
a("s_nop 1")
AB = [224, 228, 216]
for seg in range(3):
    c, d = CP + 4*seg, AB[seg]
    a(f"v_add_f32 v{c}, v{c}, v{c+1}")
    a(f"v_and_b32 v{c+1}, 0xffff0000, v{c}")
    a(f"v_sub_f32 v{c}, v{c}, v{c+1}")
    a(f"v_cvt_pk_bf16_f32 v{d}, v{c+1}, v{c+1}")
    a(f"v_cvt_pk_bf16_f32 v{d+1}, v{c}, v{c}")
    a(f"v_lshl_or_b32 v{d+2}, v{V_B1+seg}, 16, v{V_B1+seg}")
    a(f"v_mov_b32 v{d+3}, 0")
BO = 232
a(f"v_mov_b32 v{BO+3}, 0")
def gt(i): return 224 + i if i < 8 else 176 + i
def gelu_block(seg):
    u = F_ACC[seg]
    a.raw(".p2align 3")
    def two(op, f, D=gt):
        for i in range(0, 16, 2):
            a(f"v_pk_{op}_f32 {vr(D(i),2)}, " + f(vr(u+i, 2), vr(gt(i), 2)))
    two("mul", lambda U, T: f"{U}, {vr(RS,2)}", lambda i: u + i)
    two("fma", lambda U, T: f"{U}, {U}, v[10:11]")
    two("mul", lambda U, T: f"{T}, {U}")
    for i in range(16):
        a(f"v_exp_f32 v{gt(i)}, v{gt(i)}")
    two("add", lambda U, T: f"{T}, v[14:15]")
    for h in range(2):
        for i in range(8*h, 8*h + 8):
            a(f"v_rcp_f32 v{gt(i)}, v{gt(i)}")
        for i in range(8*h, 8*h + 8, 2):
            a(f"v_pk_mul_f32 {vr(gt(i),2)}, {vr(gt(i),2)}, {vr(u+i,2)}")
        for i in range(4):
            a(f"v_cvt_pk_bf16_f32 v{u+8*h+i}, v{gt(8*h+2*i)}, v{gt(8*h+2*i+1)}")
        a(f"buffer_store_dwordx4 {vr(u+8*h,4)}, v{V_L16}, {sr(R_WS,4)}, s{S_D0+seg} offen offset:{h*1024} sc1")
        vc.issue("st")
inj = {}
prep = [f"v_add_f32 v{HS}, v{HS}, v{HS+2}", f"v_add_f32 v{HS+1}, v{HS+1}, v{HS+3}",
        f"v_add_f32 v{HS+4}, v{HS+4}, v{HS+6}", f"v_add_f32 v{HS+5}, v{HS+5}, v{HS+7}",
        f"v_add_f32 v{HS}, v{HS}, v{HS+4}", f"v_add_f32 v{HS+1}, v{HS+1}, v{HS+5}",
        f"v_mov_b32 v{HS+2}, v{HS}", f"v_mov_b32 v{HS+3}, v{HS+1}",
        f"s_nop 1\nv_permlane32_swap_b32 v{HS}, v{HS+2}", f"v_permlane32_swap_b32 v{HS+1}, v{HS+3}\ns_nop 1",
        f"v_add_f32 v{HS}, v{HS}, v{HS+2}", f"v_add_f32 v{HS+1}, v{HS+1}, v{HS+3}",
        f"v_mul_f32 v{HS}, {f32(-1.0/512)}, v{HS}", f"v_mul_f32 v{HS+1}, {f32(1.0/512)}, v{HS+1}",
        f"v_fma_f32 v{HS+1}, -v{HS}, v{HS}, v{HS+1}", f"v_max_f32 v{HS+1}, 0, v{HS+1}",
        f"v_add_f32 v{HS+1}, {f32(1e-5)}, v{HS+1}", f"v_rsq_f32 v{HS+2}, v{HS+1}",
        f"v_and_b32 v{HS+3}, 0xffff0000, v{HS}", f"v_sub_f32 v{HS}, v{HS}, v{HS+3}",
        f"v_mul_f32 v{HS+1}, v{HS+1}, v{HS+2}", f"v_mul_f32 v{RS}, {f32(GS)}, v{HS+2}",
        f"v_cvt_pk_bf16_f32 v{BO}, v{HS+3}, v{HS}", f"v_and_b32 v{HS+3}, 0xffff0000, v{HS+1}",
        f"v_sub_f32 v{HS+1}, v{HS+1}, v{HS+3}", f"v_mov_b32 v{RS+1}, v{RS}",
        f"v_cvt_pk_bf16_f32 v{BO+2}, v{HS+3}, v{HS+1}",
        f"s_mov_b32 exec_lo, 0\nv_mov_b32 v{BO}, 0\nv_mov_b32 v{BO+2}, 0\ns_mov_b32 exec_lo, -1", f"v_mov_b32 v{BO+1}, v{BO}"]
spread(inj, [(x, 1) for x in prep], 0, 20)
spread(inj, [(x, 1) for x in capture(act_setup, 11, WS_GF, True)[:-5]], 70, 80)
def corr(seg):
    d = vr(F_ACC[seg], 16)
    a(f"v_mfma_f32_32x32x16_bf16 {d}, {vr(AB[seg],4)}, {vr(BO,4)}, {'0' if seg else d}")
def blk0():
    if W2L:
        a("s_barrier")
    a.c("the other accumulators start from -mean x colsum + std x bias")
    corr(2)
    corr(1)
    a("s_nop 7")
    gelu_block(0)
def blk1():
    a("s_nop 7")
    a("s_nop 1")
    gelu_block(1)
    if SKIP5:
        a(f"s_cmp_ge_u32 s{S_STAGE}, s{S_NT}")
        a("s_cbranch_scc1 L_p4_idle")
def g_reread(seg):
    if seg < 2 and not opt("grr", 0):
        return
    a("s_mov_b64 exec, 0xffff")
    a(f"buffer_load_dword v251, v3, {sr(R_WS,4)}, s{S_D0+seg} offen sc1")
    a("s_mov_b64 exec, -1")
def pub(seg):
    def f():
        vc.wait("st")
        g_reread(seg)
        a("s_barrier")
    return f
gemm_compute(vc, F_ACC, F_WF, set(), {0}, inj, {24: lambda: corr(0), 32: blk0, UP0: pub(0), 64: blk1, UP1: pub(1)},
             (0, 1, 2, 3, 6, 7, 10), 'p4', 1024, W0)
stamp("ffn1 done")
if SKIP5:
    a("s_nop 7")
    a("s_nop 3")
    gelu_block(2)
    a("s_branch L_p4_skip")
    a.label("L_p4_idle")
    for x in capture(act_setup, 11, WS_GF, True)[:-5]:
        a(x)
    a(f"s_mov_b32 s{S_D2}, s{S_D1}")
    a("s_barrier")
    a("s_waitcnt vmcnt(0) lgkmcnt(0)")
    g_reread(1)
    a("s_barrier")
else:
    a(f"s_cmp_ge_u32 s{S_STAGE}, s{S_NT}")
    a(f"s_cselect_b32 s{S_D2}, s{S_D1}, s{S_D2}")
    a("s_cbranch_scc1 L_p4_skip")
    a("s_nop 7")
    a("s_nop 0")
    gelu_block(2)
a.label("L_p4_skip")
stamp("g stored")
vl = new_vm()
def g_issue(*L):
    for n in L:
        if n == 10:
            a.c("the last chunk has three tiles: wave 3 repeats wave 2's")
            a(f"s_cmp_eq_u32 s{S_W}, 3")
            a(f"s_cselect_b32 s{T7}, 2048, 0")
            a(f"s_sub_u32 s{T4}, s{T4}, s{T7}")
        act_issue(vl, n, G_SLOTS[n], 11, True)
if not FQ:
    g_issue(2, 3)
if FQ == 2:
    vl.issue(("a", 2))
only(0, spoll_issue, F_G1)
Q1, QI = opt("q1", 2 if FQ else 1), opt("qi", 5)
def p5_after(q):
    if q == 0 and FQ:
        g_issue(*range(1 + FQ, 4))
    if q in (0, 2, 4, 7, 10) and opt("fst", 0):
        stamp(f"p5 q{q}")
    if q == Q1 - 1:
        only(0, spoll_check, F_G1)
    if q == 2:
        a.c("the wait for chunk 2 covered the last stores of every wave")
        flag_store(0, F_G2)
        if RR2 == 1:
            g_reread(2)
            vl.issue("rr")
    if q == Q1:
        g_issue(*range(4, Q1 + 4))
    elif Q1 < q <= 4:
        g_issue(q + 3)
    if q == 2 and RR2 == 2:
        g_reread(2)
        vl.issue("rr")
    if q == QI:
        only(0, spoll_issue, F_G2)
    if q == QP - 1:
        only(0, spoll_check, F_G2)
    if q == QP:
        g_issue(8, 9, 10)
tile_loader(vl, 43, p5_after, (1,) if FQ else ())
for x in out_pre:
    a(x)

a.label("L_p5_done")
tile_gather(16)
for h in range(2):
    a(f"s_waitcnt lgkmcnt({2-2*h})")
    for i in range(2*h, 2*h+2):
        a(f"v_pk_add_f32 {vr(16+2*i,2)}, {vr(16+2*i,2)}, {vr(24+2*i,2)}")
        a(f"v_pk_fma_f32 {vr(OE+2*i,2)}, {vr(16+2*i,2)}, v[10:11], {vr(OE+2*i,2)}")
    for i in range(2*h, 2*h+2):
        a(f"v_cvt_pk_bf16_f32 v{40+i}, v{OE+2*i}, v{OE+2*i+1}")
a(f"buffer_store_dwordx4 v[40:43], v{V_ROWOFF}, {sr(R_OUT,4)}, s{S_TILE} offen {opt('of', 'sc0_sc1').replace('_', ' ')}")
if STAMPS:
    a("s_waitcnt vmcnt(0)")
stamp("end")
stamp_flush()
a.label("L_end")
a("s_endpgm")
a.label("L_code_end")

a.c("======== attention with the row's true maximum: query block B over all 2048 keys")
a.label("L_attn_fb")
FM = SB
a("s_waitcnt vmcnt(0)")
a(f"v_mov_b32 v{FM}, 0xff800000")
a(f"s_mov_b32 s{S_XOFF}, 0")
a(f"s_mov_b32 s{S_LOOP}, 64")
a.label("L_fb1")
a(f"buffer_load_dwordx4 {vr(Kf(0),4)}, v{A_AK}, {sr(R_WS,4)}, s{S_XOFF} offen sc1")
a("s_waitcnt vmcnt(0)")
a(f"v_mfma_f32_32x32x16_bf16 {vr(SA,16)}, {vr(Kf(0),4)}, {vr(QB,4)}, 0")
a(f"s_add_u32 s{S_XOFF}, s{S_XOFF}, 2048")
a("s_nop 7")
a("s_nop 3")
for i in range(8):
    a(f"v_max3_f32 v{FM}, v{FM}, v{SA+2*i}, v{SA+2*i+1}")
a(f"s_sub_u32 s{S_LOOP}, s{S_LOOP}, 1")
a(f"s_cmp_lg_u32 s{S_LOOP}, 0")
a("s_cbranch_scc1 L_fb1")
a(f"v_mov_b32 v{FM+1}, v{FM}")
a("s_nop 1")
a(f"v_permlane32_swap_b32 v{FM}, v{FM+1}")
a("s_nop 1")
a(f"v_max_f32 v{FM}, v{FM}, v{FM+1}")
for i in range(16):
    a(f"v_mov_b32 v{OB+i}, 0")
a(f"s_mov_b32 s{S_XOFF}, 0")
a(f"s_mov_b32 s{S_LOOP}, 64")
a.label("L_fb2")
kv_load(Cnt(a, "vmcnt", 63), 0, 4)
a("s_waitcnt vmcnt(0)")
a(f"v_mfma_f32_32x32x16_bf16 {vr(SA,16)}, {vr(Kf(0),4)}, {vr(QB,4)}, 0")
a(f"s_add_u32 s{S_XOFF}, s{S_XOFF}, 2048")
a("s_nop 7")
a("s_nop 3")
for i in range(16):
    a(f"v_sub_f32 v{SA+i}, v{SA+i}, v{FM}")
for i in range(16):
    a(f"v_exp_f32 v{SA+i}, v{SA+i}")
a("s_nop 1")
smf(OB, Vf(0, 0), SA)
smf(OB, Vf(0, 1), SA+8)
a(f"s_sub_u32 s{S_LOOP}, s{S_LOOP}, 1")
a(f"s_cmp_lg_u32 s{S_LOOP}, 0")
a("s_nop 7")
a("s_cbranch_scc1 L_fb2")
a("s_nop 7")
a("s_nop 3")
a(f"v_rcp_f32 v10, v{OB+8}")
a("s_branch L_attn_fin")

a.raw('.section .rodata,"a"')
a.raw(".p2align 6")
a.raw(f".amdhsa_kernel {NAME}_kernel")
a.raw("  .amdhsa_next_free_vgpr 256")
a.raw("  .amdhsa_next_free_sgpr 102")
a.raw("  .amdhsa_accum_offset 256")
a.raw("  .amdhsa_group_segment_fixed_size 0")
a.raw("  .amdhsa_kernarg_size 88")
a.raw("  .amdhsa_user_sgpr_count 2")
a.raw("  .amdhsa_user_sgpr_kernarg_segment_ptr 1")
a.raw("  .amdhsa_system_sgpr_workgroup_id_x 1")
a.raw(".end_amdhsa_kernel")

out = [x for x in args if not x.startswith("--")]
open(out[0] if out else "cdna_kernels/" + NAME + ".s", "w").write(a.text())
```
